```python
import torch

def _softmax(x, axis=-1):
    return torch.softmax(x, dim=axis)
def _gelu(x):
    return torch.nn.functional.gelu(x, approximate="tanh")
def _silu(x):
    return torch.nn.functional.silu(x)
def _sigmoid(x):
    return torch.sigmoid(x)
def _layernorm(x, axis=-1, eps=1e-5):
    m = x.mean(dim=axis, keepdim=True)
    v = x.var(dim=axis, keepdim=True, unbiased=False)
    return (x - m) / torch.sqrt(v + eps)
def _scatter_add(tgt, idx, src, axis=0):
    return tgt.clone().index_add_(axis, idx, src)
def _segment_sum(src, seg, n):
    out = torch.zeros((n,) + src.shape[1:], dtype=src.dtype)
    return out.index_add_(0, seg, src)
def _pad(x, pw):
    flat = tuple(v for pair in reversed(pw) for v in pair)
    return torch.nn.functional.pad(x, flat)

kernel_name = 'recurrent_scan__sliding_local_dilated__swiglu_ffn__prompt'

def setup_inputs():

    _w = (lambda a: (lambda t: t.to(torch.bfloat16) if t.is_floating_point() else t)(torch.as_tensor(a)))
    def _A_setup():
        B, S, D = 1, 2048, 512
        return {
            "x": _w((lambda *s: torch.randn(*s, dtype=torch.bfloat16) * 0.05)(B, S, D)),
            "wqkv": _w((lambda *s: torch.randn(*s, dtype=torch.bfloat16) * 0.05)(D, 3 * D)),
            "wo": _w((lambda *s: torch.randn(*s, dtype=torch.bfloat16) * 0.05)(D, D)),
        }
    _A_in = _A_setup()

    def _B_setup():
        B, S, D, F = 1, 2048, 512, 1376
        return {
            "x": _w((lambda *s: torch.randn(*s, dtype=torch.bfloat16) * 0.05)(B, S, D)),
            "w_gate": _w((lambda *s: torch.randn(*s, dtype=torch.bfloat16) * 0.05)(D, F)),
            "w_up": _w((lambda *s: torch.randn(*s, dtype=torch.bfloat16) * 0.05)(D, F)),
            "w_down": _w((lambda *s: torch.randn(*s, dtype=torch.bfloat16) * 0.05)(F, D)),
        }
    _B_in = _B_setup()

    return {
        "A_x": _A_in["x"],
        "A_wqkv": _A_in["wqkv"],
        "A_wo": _A_in["wo"],
        "B_x": _B_in["x"],
        "B_w_gate": _B_in["w_gate"],
        "B_w_up": _B_in["w_up"],
        "B_w_down": _B_in["w_down"],
    }

def reference(A_x, A_wqkv, A_wo, B_x, B_w_gate, B_w_up, B_w_down):
    def _A_ref(x, wqkv, wo):
        B, S, D = x.shape
        H = 32; Dh = D // H
        W, dil = 8, 2
        qkv = (lambda x, *d: x.permute(*d))((x @ wqkv).reshape(B, S, 3, H, Dh), 2, 0, 3, 1, 4)
        q, k, v = qkv[0], qkv[1], qkv[2]
        scale = Dh ** -0.5
        pos = torch.arange(S)
        off = torch.arange(W) * dil
        idx = pos[:, None] - off[None, :]
        mask = idx >= 0
        idx_c = torch.where(mask, idx, 0).reshape(-1)
        kg = k[:, :, idx_c, :].reshape(B, H, S, W, Dh)
        vg = v[:, :, idx_c, :].reshape(B, H, S, W, Dh)
        logits = torch.einsum("bhsd,bhswd->bhsw", q, kg) * scale
        logits = torch.where(mask[None, None, :, :], logits, -1e9)
        attn = _softmax(logits, axis=-1)
        o = torch.einsum("bhsw,bhswd->bhsd", attn, vg)
        return (lambda x, *d: x.permute(*d))(o, 0, 2, 1, 3).reshape(B, S, D) @ wo

    def _B_ref(x, w_gate, w_up, w_down):
        g = _silu(x @ w_gate)
        u = x @ w_up
        return (g * u) @ w_down

    x = A_x
    xn = _layernorm(x, axis=-1)
    s = _A_ref(xn, A_wqkv, A_wo)
    g = _silu(_B_ref(xn, B_w_gate, B_w_up, B_w_down))
    return x + s * g
```

```python
import re

REG_RE = re.compile(r'^(-|\|)?(abs\()?([vas])(\d+|\[(\d+):(\d+)\])\)?\|?$')

def regs_of(op):
    op = op.strip()
    if op in ('vcc',): return [('s', 'vcc_lo'), ('s', 'vcc_hi')]
    if op in ('vcc_lo', 'vcc_hi'): return [('s', op)]
    if op == 'exec': return [('s', 'exec')]
    if op == 'm0': return [('s', 'm0')]
    m = REG_RE.match(op)
    if not m: return []
    k = m.group(3)
    if m.group(5) is not None:
        return [(k, i) for i in range(int(m.group(5)), int(m.group(6)) + 1)]
    return [(k, int(m.group(4)))]

TRANS = ('v_exp_f32', 'v_log_f32', 'v_rcp_f32', 'v_rsq_f32', 'v_sqrt_f32', 'v_sin_f32', 'v_cos_f32')
NODST_S = ('s_cmp', 's_waitcnt', 's_branch', 's_cbranch', 's_barrier', 's_nop', 's_sleep', 's_setprio', 's_endpgm', 's_bitcmp')

class Ins:
    def __init__(self, text):
        self.text = text
        t = text.split(';')[0].strip()
        self.label = None
        self.op = ''
        self.rd = []; self.wr = []
        self.A = self.B = self.C = []
        if t.endswith(':'):
            self.label = t[:-1]; return
        if not t or t.startswith('.'):
            self.op = '.'; return
        parts = t.split(None, 1)
        self.op = op = parts[0]
        rest = parts[1] if len(parts) > 1 else ''
        ops = []; cur = ''; d = 0
        for ch in rest:
            if ch in '[(': d += 1
            if ch in '])': d -= 1
            if ch == ',' and d == 0: ops.append(cur.strip()); cur = ''
            else: cur += ch
        if cur.strip(): ops.append(cur.strip())
        mods = ''
        if ops:
            last = ops[-1].split()
            ops[-1] = last[0]; mods = ' '.join(last[1:])
        self.ops = ops; self.mods = mods
        R = lambda i: regs_of(ops[i]) if i < len(ops) else []
        allr = lambda a: sum((regs_of(o) for o in ops[a:]), [])
        if op.startswith('v_pk_') and op.endswith('_f32'):
            m_ = re.search(r'op_sel:\[([01,]+)\]', mods)
            assert not (m_ and '1' in m_.group(1)), text
        self.is_mfma = op.startswith('v_mfma')
        self.is_valu = op.startswith('v_') and not self.is_mfma
        self.is_trans = any(op.startswith(x) for x in TRANS)
        self.is_dot = op.startswith('v_dot')
        self.is_ds = op.startswith('ds_')
        self.is_vmem = op.startswith('buffer_') or op.startswith('global_')
        self.is_salu = op.startswith('s_')
        self.is_lds_dma = self.is_vmem and (' lds' in (' ' + mods) or 'load_lds' in op)
        self.is_dpp = 'dpp' in op or 'row_' in mods or 'quad_perm' in mods
        self.wide_store = False
        if self.is_mfma:
            self.wr = R(0); self.A = R(1); self.B = R(2); self.C = R(3); self.rd = self.A + self.B + self.C
            self.passes = 8 if '32x32x16' in op else 4
        elif op.startswith('v_permlane') or op.startswith('v_swap'):
            self.wr = R(0) + R(1); self.rd = R(0) + R(1)
        elif op.startswith('v_cmp'):
            self.wr = R(0); self.rd = allr(1)
        elif op.startswith('v_cndmask'):
            self.wr = R(0); self.rd = allr(1)
            if len(ops) == 3: self.rd += regs_of('vcc')
        elif re.match(r'v_(add|sub|subrev)_co_u32|v_addc_co_u32|v_subb_co_u32', op):
            self.wr = R(0) + R(1); self.rd = allr(2)
        elif self.is_valu:
            self.wr = R(0); self.rd = allr(1)
            if op.startswith('v_dot2c') or op.startswith('v_fmac') or op.startswith('v_writelane'): self.rd += R(0)
            if self.is_dpp or 'sdwa' in op: self.rd += R(0)
        elif self.is_ds:
            if op.startswith('ds_read') or op.startswith('ds_bpermute') or op.startswith('ds_swizzle'):
                self.wr = R(0); self.rd = allr(1)
            else:
                self.rd = allr(0)
        elif self.is_vmem:
            if op.startswith('buffer_wbl2') or op.startswith('buffer_inv'):
                pass
            elif self.is_lds_dma:
                self.rd = allr(0) + [('s', 'm0')]
            elif '_load' in op:
                self.wr = R(0); self.rd = allr(1)
            else:
                self.rd = allr(0)
                if 'x4' in op or 'x3' in op:
                    self.wide_store = True
                    self.sdata = R(0) if op.startswith('buffer_') else R(1)
        elif self.is_salu:
            if any(op.startswith(x) for x in NODST_S):
                self.rd = allr(0)
            else:
                self.wr = R(0); self.rd = allr(1)
                if 'saveexec' in op: self.wr = self.wr + [('s', 'exec')]
        self.branch_target = None
        if op.startswith('s_branch') or op.startswith('s_cbranch'):
            self.branch_target = ops[0]
    def states(self):
        if self.label is not None or self.op == '.': return 0
        if self.op == 's_nop': return int(self.ops[0], 0) + 1
        return 1

def isv(r): return r[0] in 'va'

def need(p, c):
    n = 0
    if p.label is not None or p.op == '.' or c.label is not None or c.op == '.': return 0
    pw = set(p.wr); cr = set(c.rd); cw = set(c.wr)
    if p.is_mfma:
        big = {8: 12, 4: 8}[p.passes]; ovl = {8: 10, 4: 6}[p.passes]; war = {8: 7, 4: 3}[p.passes]
        if c.is_mfma:
            if pw & set(c.A + c.B): n = max(n, big)
            if pw & set(c.C):
                if not (c.C == p.wr and c.passes == p.passes): n = max(n, ovl)
            elif pw & cw: n = max(n, ovl)
        elif c.is_valu or c.is_ds or c.is_vmem:
            if pw & (cr | cw): n = max(n, big)
        if c.is_valu and set(p.C) & cw: n = max(n, war)
    if p.is_valu:
        pv = {r for r in pw if isv(r)}; ps = {r for r in pw if not isv(r)}
        if c.is_mfma and pv & cr: n = max(n, 2)
        if p.is_trans and c.is_valu and not c.is_trans and pv & cr: n = max(n, 1)
        if p.is_trans and c.is_trans and pv & cr: n = max(n, 1)
        if p.is_dot and (c.is_valu or c.is_mfma or c.is_ds or c.is_vmem):
            if c.op == p.op:
                if pv & set(sum((regs_of(o) for o in c.ops[1:3]), [])): n = max(n, 3)
            elif pv & (cr | cw): n = max(n, 3)
        if c.op.startswith('v_permlane') and pv & cr: n = max(n, 2)
        if (c.op.startswith('v_readfirstlane') or c.op.startswith('v_readlane')) and pv & cr: n = max(n, 1)
        if c.is_valu and c.is_dpp and pv & cr: n = max(n, 2)
        if ps:
            if c.is_valu and ps & cr: n = max(n, 4 if 'lane' in c.op else 2)
            if c.is_vmem and ps & cr: n = max(n, 5)
            if c.is_salu and ps & cr: n = max(n, 4)
            if c.op.startswith('s_cbranch_vcc') and any(r[1] in ('vcc_lo', 'vcc_hi') for r in ps): n = max(n, 4)
        if 'sdwa' in p.op and c.is_valu and pv & (cr | cw): n = max(n, 1)
    if p.is_salu and ('s', 'm0') in pw and c.is_lds_dma: n = max(n, 1)
    if p.is_salu and ('s', 'exec') in pw and c.is_valu and c.is_dpp: n = max(n, 5)
    if p.is_salu and ('s', 'exec') in pw and c.op.startswith('v_permlane'): n = max(n, 4)
    if p.wide_store and set(p.sdata) & cw: n = max(n, 2)
    return n

class Asm:
    def __init__(self):
        self.lines = []
    def __call__(self, text):
        for l in text.split('\n'):
            l = l.strip()
            if l: self.lines.append(l)
    def label(self, n): self.lines.append(n + ':')
    def finish(self, verbose=False):
        ins = [Ins(l) for l in self.lines]
        total = 0
        changed = True
        while changed:
            changed = False
            lab = {x.label: i for i, x in enumerate(ins) if x.label is not None}
            srcs = {}
            for i, x in enumerate(ins):
                if x.label is None and x.op != '.' and x.branch_target in lab:
                    srcs.setdefault(lab[x.branch_target], []).append(i)
            for i, c in enumerate(ins):
                if c.label is not None or c.op == '.' : continue
                worst = 0; who = None
                stack = [(i - 1, 0)]
                seen = {}
                while stack:
                    j, d = stack.pop()
                    if j < 0 or d >= 13: continue
                    if seen.get(j, 99) <= d: continue
                    seen[j] = d
                    p = ins[j]
                    if p.label is not None:
                        for s in srcs.get(j, []): stack.append((s, d))
                        q = ins[j - 1] if j > 0 else None
                        k = j - 1
                        while k >= 0 and (ins[k].op == '.'): k -= 1
                        if k >= 0 and ins[k].label is None and ins[k].op in ('s_branch', 's_endpgm'): continue
                        stack.append((j - 1, d)); continue
                    nd = need(p, c) - d
                    if nd > worst: worst = nd; who = p
                    stack.append((j - 1, d + p.states()))
                if worst > 0:
                    if verbose: print(f'; nop {worst} before [{c.text}] due to [{who.text}]')
                    ins.insert(i, Ins(f's_nop {worst - 1}'))
                    total += worst
                    changed = True
                    break
        self.nops = total
        out = []
        for x in ins:
            out.append(x.text if (x.label is not None or x.text.startswith('.')) else '    ' + x.text)
        return '\n'.join(out) + '\n'

class Q:
    def __init__(self, cap): self.q = []; self.cap = cap
    def issue(self, tag): self.q.append(tag)
    def need(self, tags):
        last = -1
        for i, t in enumerate(self.q):
            if t in tags: last = i
        if last < 0: return None
        n = len(self.q) - 1 - last
        n = min(n, self.cap)
        self.q = self.q[len(self.q) - n:] if n else []
        return n
    def drain(self): self.q = []
```

```python
import sys, os
sys.path.insert(0, os.path.dirname(os.path.abspath(__file__)))
from asmlib import Asm, Q

NAME = "recurrent_scan__sliding_local_dilated__swiglu_ffn__prompt"
OPT = dict(nodma=0, nord=0, stamps=0, rot=1, dots=1, stop=0, verbose=0, pf=1)
for a in sys.argv[1:]:
    k, v = a.split('=')
    OPT[k] = int(v)

SLOT = 53504
UPOFF = 18560
LDS_BYTES = 163840
ACT_OFF = 1 << 20
TG_STRIDE = 118 * 1024
ACT_BYTES = 64 * TG_STRIDE
FLAG_F = 0
FLAG_A = 4096
STAMP_OFF = 1 << 19
NREG = 24
NSTAT = 35
KHSTAT = NSTAT * 2048
LOG2E = 1.4426950408889634
import struct
def f2u(x): return struct.unpack('<I', struct.pack('<f', x))[0]

sW = 3
SRD_X, SRD_W, SRD_ACT, SRD_B2, SRD_XR, SRD_OUT = 4, 8, 12, 16, 20, 24
sDBG, sWS = 28, 30
sKA = 32
sIT, sKS, sBX, sBW, sMX, sMW, sOX, sOW = 48, 49, 50, 51, 52, 53, 54, 55
sD = 56
sSLOT, sDELTA, sONES, sRS = 60, 61, 62, 63
sR, sCB, sA, sB, sTAG, sT0, sT1, sT2, sT3 = 64, 65, 66, 67, 68, 69, 70, 71, 72
sNT, sST, sFLAG, sSOFF, sROLE, sT4, sT5 = 73, 74, 75, 76, 77, 78, 79
sSTAMP = 80
def srd(n): return f's[{n}:{n+3}]'

vL = 0
vDMA = 4
vRX, vRW = 17, 21
vST = 25
vCS = 31
vFR = 40
vTMP = 88
vACC = 112
def vr(b, n): return f'v[{b}:{b+n-1}]'
def ar(b, n): return f'a[{b}:{b+n-1}]'

A = Asm()
nstamp = [0]
def stamp(drain_ok=True):
    if not OPT['stamps']: return
    i = nstamp[0]; nstamp[0] += 1
    assert i < 10
    A(f's_memrealtime s[{sSTAMP+2*i}:{sSTAMP+2*i+1}]')
    A('s_waitcnt lgkmcnt(0)')

def mfma(d, a, b, c):
    A(f'v_mfma_f32_32x32x16_bf16 {d}, {a}, {b}, {c}')

A(f'{NAME}_kernel:')
A(f'''s_load_dwordx16 s[{sKA}:{sKA+15}], s[0:1], 0
s_load_dwordx4 s[{sDBG}:{sDBG+3}], s[0:1], 64
s_cmp_ge_u32 s2, 256
s_cbranch_scc1 L_end
v_lshrrev_b32 v1, 6, v0
v_and_b32 v{vL}, 63, v0
v_readfirstlane_b32 s{sW}, v1
s_and_b32 s{sT0}, s2, 7
s_lshr_b32 s{sT1}, s2, 3
s_lshr_b32 s{sT2}, s{sT0}, 1
s_and_b32 s{sT3}, s{sT0}, 1''')
A(f'''s_lshl_b32 s{sR}, s{sT0}, 2
s_lshr_b32 s{sCB}, s{sT1}, 3
s_add_u32 s{sR}, s{sR}, s{sCB}
s_and_b32 s{sCB}, s{sT1}, 7
s_mov_b32 s{sONES}, 0x3f803f80
v_lshrrev_b32 v1, 3, v{vL}
v_and_b32 v2, 7, v{vL}
v_lshrrev_b32 v3, 4, v{vL}''')
if OPT['stamps']:
    A(f's_memrealtime s[{sSTAMP}:{sSTAMP+1}]'); nstamp[0] = 1
A(f'''s_cmp_ge_u32 s{sT1}, 20
s_cbranch_scc1 L_attn''')

def x_patterns(n, per):
    A(f'''v_xor_b32 v{vTMP}, v2, v3
v_lshlrev_b32 v{vTMP}, 4, v{vTMP}
v_lshl_add_u32 v{vDMA}, v1, 11, v{vTMP}
v_xor_b32 v{vTMP+1}, 64, v{vDMA}''')
    for i in range(1, n):
        src = vDMA if i % 2 == 0 else vTMP + 1
        A(f'v_add_u32 v{vDMA+i}, {i*16384 - (i % per)*1024}, v{src}')

def build_srd(n, plo, size):
    A(f'''s_mov_b32 s{n}, s{plo}
s_mov_b32 s{n+1}, s{plo+1}
s_mov_b32 s{n+2}, {size}
s_mov_b32 s{n+3}, 0x20000''')

def set_soff():
    A(f'''s_mul_i32 s{sOX}, s{sKS}, s{sMX}
s_mul_i32 s{sOW}, s{sKS}, s{sMW}
s_add_u32 s{sOX}, s{sOX}, s{sBX}
s_add_u32 s{sOW}, s{sOW}, s{sBW}
s_add_u32 s{sKS}, s{sKS}, 1
s_and_b32 s{sKS}, s{sKS}, 7''')

def dma_list(nx, nw, per):
    out = []
    for i in range(nx + nw):
        if per == 4: g, im = (0, i) if i < 4 else (1 + (i - 4) // 4, (i - 4) % 4)
        else: g, im = divmod(i, 3)
        pre = [f's_add_u32 m0, s{sSLOT}, s{sD+g}'] if im == 0 else []
        s_, o_ = (SRD_X, sOX) if i < nx else (SRD_W, sOW)
        off = f' offset:{im*1024}' if im else ''
        out.append(pre + [f'buffer_load_dwordx4 v{vDMA+i}, {srd(s_)}, s{o_} offen{off} lds'])
    return out

def adv_slot():
    A(f'''s_add_u32 s{sSLOT}, s{sSLOT}, {SLOT}
s_cmp_eq_u32 s{sSLOT}, {3*SLOT}
s_cselect_b32 s{sSLOT}, 0, s{sSLOT}''')

def common_setup2():
    if OPT['pf']:
        A(f'''s_getpc_b64 s[{sT4}:{sT5}]
L_pc{common_setup2.n}:
s_sub_u32 s{sT4}, s{sT4}, L_pc{common_setup2.n}-{NAME}_kernel
s_subb_u32 s{sT5}, s{sT5}, 0
v_lshlrev_b32 v{vTMP}, 7, v{vL}
s_lshl_b32 s{sT0}, s{sW}, 13
v_add_u32 v{vTMP}, s{sT0}, v{vTMP}
v_min_u32 v{vTMP}, L_end-{NAME}_kernel, v{vTMP}
global_load_dword v{vTMP+23}, v{vTMP}, s[{sT4}:{sT5}]''')
    common_setup2.n += 1
    build_srd(SRD_XR, sKA, 2048 * 1024)
    build_srd(SRD_OUT, sKA + 14, 2048 * 1024)
    A(f'''s_add_u32 s{SRD_ACT}, s{sWS}, {ACT_OFF}
s_addc_u32 s{SRD_ACT+1}, s{sWS+1}, 0
s_mov_b32 s{SRD_ACT+2}, {ACT_BYTES}
s_mov_b32 s{SRD_ACT+3}, 0x20000
s_cmp_ge_u32 s{sW}, 2
s_cselect_b32 s{SRD_B2}, s{sKA+12}, s{sKA+4}
s_cselect_b32 s{SRD_B2+1}, s{sKA+13}, s{sKA+5}
s_mov_b32 s{SRD_B2+2}, {512*1024}
s_cmov_b32 s{SRD_B2+2}, {1376*1024}
s_mov_b32 s{SRD_B2+3}, 0x20000''')
    A(f'''s_or_b32 s{sT0}, s2, s{sW}
s_cmp_lg_u32 s{sT0}, 0
s_cbranch_scc1 L_notag{common_setup2.n}
s_memrealtime s[{sT4}:{sT5}]
s_waitcnt lgkmcnt(0)
s_or_b32 s{sT4}, s{sT4}, 1
v_mov_b32 v{vTMP+2}, 0
v_mov_b32 v{vTMP+3}, s{sT4}
s_mov_b64 exec, 1
global_store_dword v{vTMP+2}, v{vTMP+3}, s[{sDBG}:{sDBG+1}] sc1
s_mov_b64 exec, -1
L_notag{common_setup2.n}:''')
    for i in range(144):
        A(f'v_mov_b32 v{vACC+i}, 0')
    for i in range(vST, vFR):
        A(f'v_mov_b32 v{i}, 0')
common_setup2.n = 0

def retarget(n_instr, per):
    A(f'''v_lshrrev_b32 v1, 3, v{vL}
v_and_b32 v2, 7, v{vL}
v_bfe_u32 v3, v{vL}, 4, 1
v_lshlrev_b32 v3, 2, v3
v_xor_b32 v2, v2, v3
v_lshlrev_b32 v2, 4, v2
v_lshl_add_u32 v{vDMA}, v1, 10, v2''')
    for i in range(1, 12):
        A(f'v_add_u32 v{vDMA+i}, {8192*i - (i % per)*1024}, v{vDMA}')
    if n_instr == 13:
        A(f'v_mov_b32 v{vDMA+12}, 0x80000000')
    build_srd(SRD_X, sKA + 12, 1376 * 1024)
    build_srd(SRD_W, sKA + 12, 1376 * 1024)
    A(f'''s_lshr_b32 s{sT0}, s{sW}, 1
s_mul_i32 s{sT0}, s{sT0}, {432*1024}
s_and_b32 s{sT1}, s{sW}, 1
s_mul_i32 s{sT1}, s{sT1}, {96*1024}
s_add_u32 s{sBX}, s{sT0}, s{sT1}
s_lshl_b32 s{sT1}, s{sCB}, 7
s_add_u32 s{sBX}, s{sBX}, s{sT1}
s_mov_b32 s{sBW}, s{sBX}
s_mov_b32 s{sMX}, {192*1024}
s_mov_b32 s{sMW}, {192*1024}
s_mov_b32 s{sKS}, 0
s_mul_i32 s{sD}, s{sW}, 12288
s_add_u32 s{sD+1}, s{sD}, {per*1024}
s_add_u32 s{sD+2}, s{sD}, {2*per*1024}''')
    if per == 4:
        A(f's_lshl_b32 s{sD+3}, s{sW}, 10\ns_add_u32 s{sD+3}, s{sD+3}, 49152')
    else:
        A(f's_add_u32 s{sD+3}, s{sD}, {3*per*1024}')
    A(f'''v_mov_b32 v1, 0
global_load_dword v3, v1, s[{sDBG}:{sDBG+1}] sc1''')

def main_loop(tag, n_mfma_fn, reads_fn, fill, dmas, nd, per, tail_reads):
    pass

def spread(groups, slots):
    out = {}
    n = len(groups)
    for i, g in enumerate(groups):
        s = slots[(i * len(slots)) // n]
        out.setdefault(s, []).extend(g)
    return out

def stats_ops(x, sm, sq):
    ops = []
    for i in range(4):
        ops.append([f'v_dot2c_f32_bf16 v{sm}, s{sONES}, v{x+i}'])
        ops.append([f'v_dot2c_f32_bf16 v{sq}, v{x+i}, v{x+i}'])
    return ops

def read_delta():
    A(f'''s_add_u32 s{sRS}, s{sRS}, 1
s_cmp_eq_u32 s{sRS}, 3
s_mov_b32 s{sDELTA}, {SLOT}
s_cmov_b32 s{sDELTA}, {(-2*SLOT) & 0xffffffff}
s_cselect_b32 s{sRS}, 0, s{sRS}''')

def ln_stats(sm, sq, t):
    A(f'''v_mul_f32 v{sm}, {f2u(1/512)}, v{sm}
v_mul_f32 v{sq}, {f2u(1/512)}, v{sq}
v_fma_f32 v{sq}, -v{sm}, v{sm}, v{sq}
v_max_f32 v{sq}, 0, v{sq}
v_cvt_pk_bf16_f32 v{sq}, v{sq}, v{sq}
v_cvt_pk_bf16_f32 v{sm}, -v{sm}, -v{sm}
v_lshlrev_b32 v{sq}, 16, v{sq}
v_add_f32 v{sq}, {f2u(1e-5)}, v{sq}
v_cvt_pk_bf16_f32 v{sq}, v{sq}, v{sq}
v_lshlrev_b32 v{sq}, 16, v{sq}
v_sqrt_f32 v{sq}, v{sq}
v_cvt_pk_bf16_f32 v{sq}, v{sq}, v{sq}
v_lshlrev_b32 v{sq}, 16, v{sq}
v_rcp_f32 v{t}, v{sq}''')

def half_sum(r, t):
    A(f'''v_mov_b32 v{t}, v{r}
v_permlane32_swap_b32 v{r}, v{t}
v_add_f32 v{r}, v{r}, v{t}''')

def split_hilo(r, t):
    A(f'''v_cvt_pk_bf16_f32 v{t}, v{r}, v{r}
v_lshlrev_b32 v{t}, 16, v{t}
v_sub_f32 v{t}, v{r}, v{t}
v_cvt_pk_bf16_f32 v{r}, v{r}, v{t}''')

vB0, vB1, vB2, vB3 = 17, 18, 19, 20
def breg_reads():
    A(f'''v_lshrrev_b32 v1, 5, v{vL}
v_bfe_u32 v2, v{vL}, 2, 2
v_lshl_add_u32 v1, v1, 2, v2
v_lshlrev_b32 v1, 7, v1
v_bfe_u32 v2, v{vL}, 3, 1
v_lshl_add_u32 v1, v2, 6, v1
v_bfe_u32 v2, v{vL}, 4, 1
v_lshl_add_u32 v1, v2, 5, v1
v_and_b32 v2, 3, v{vL}
v_lshl_add_u32 v1, v2, 3, v1
s_lshr_b32 s{sT0}, s{sW}, 1
s_mul_i32 s{sT1}, s{sT0}, 24576
v_add_u32 v{vB0}, s{sT1}, v1
v_xor_b32 v{vB1}, 64, v{vB0}
v_add_u32 v{vB2}, {2*SLOT}, v{vB0}
v_add_u32 v{vB3}, {2*SLOT}, v{vB1}''')
    for st in range(NREG):
        for ct in range(2):
            base = (vB2 + ct) if st < 12 else (vB0 + ct)
            for hf in range(2):
                A(f'ds_read_b64_tr_b16 {ar(st*8 + ct*4 + hf*2, 2)}, v{base} offset:{(st % 12)*2048 + hf*1024}')
    A(f'''s_mul_i32 s{sT1}, s{sT0}, {KHSTAT}
v_add_u32 v{vB0}, s{sT1}, v1
v_xor_b32 v{vB1}, 64, v{vB0}
v_add_u32 v{vB2}, 65536, v{vB0}
v_add_u32 v{vB3}, 65536, v{vB1}''')

def static_dma_groups():
    out = []
    for t in range(NSTAT):
        g = []
        if t == 3:
            g.append(f's_mov_b32 s{sSOFF}, s{sT5}')
        elif t > 0:
            g.append(f's_add_u32 s{sSOFF}, s{sSOFF}, 16384')
        if t > 0: g.append('s_add_u32 m0, m0, 2048')
        s_ = SRD_X if t < 3 else SRD_B2
        g.append(f'buffer_load_dwordx4 v{vDMA}, {srd(s_)}, s{sSOFF} offen lds')
        out.append(g)
    return out

def static_dma_setup():
    A(f'''s_lshr_b32 s{sT0}, s{sW}, 1
s_and_b32 s{sT1}, s{sW}, 1
s_mul_i32 s{sT2}, s{sT0}, {KHSTAT}
s_lshl_b32 s{sT3}, s{sT1}, 10
s_add_u32 m0, s{sT2}, s{sT3}
s_lshl_b32 s{sT3}, s{sT1}, 13
s_lshl_b32 s{sT1}, s{sCB}, 7
s_add_u32 s{sT3}, s{sT3}, s{sT1}
s_mul_i32 s{sSOFF}, s{sT0}, {432*1024}
s_add_u32 s{sSOFF}, s{sSOFF}, {NREG*16384}
s_add_u32 s{sSOFF}, s{sSOFF}, s{sT3}
s_mul_i32 s{sT5}, s{sT0}, {864*1024}
s_add_u32 s{sT5}, s{sT5}, s{sT3}''')

class Inter:
    def __init__(self, groups, every):
        self.g = list(groups); self.every = every; self.c = 0
    def __call__(self, text):
        for l in text.split('\n'):
            l = l.strip()
            if not l: continue
            A(l); self.c += 1
            if self.g and self.c >= self.every:
                for x in self.g.pop(0): A(x)
                self.c = 0
    def flush(self):
        while self.g:
            for x in self.g.pop(0): A(x)

def get_tag(n):
    A(f'''v_readfirstlane_b32 s{sTAG}, v3
s_mov_b32 s{sT0}, 0
L_tag{n}:
s_cmp_lg_u32 s{sTAG}, 0
s_cbranch_scc1 L_tagok{n}
v_mov_b32 v1, 0
global_load_dword v3, v1, s[{sDBG}:{sDBG+1}] sc1
s_waitcnt vmcnt(0)
v_readfirstlane_b32 s{sTAG}, v3
s_add_u32 s{sT0}, s{sT0}, 1
s_cmp_lt_u32 s{sT0}, 0x40000
s_cbranch_scc1 L_tag{n}
L_tagok{n}:''')

A(f'''s_mul_i32 s{sA}, s{sT1}, 52
s_lshr_b32 s{sA}, s{sA}, 8
s_mul_i32 s{sB}, s{sA}, 5
s_sub_u32 s{sB}, s{sT1}, s{sB}
s_mul_i32 s{sT3}, s{sT3}, 5
s_add_u32 s{sB}, s{sB}, s{sT3}
s_lshl_b32 s{sT2}, s{sT2}, 2
s_add_u32 s{sA}, s{sA}, s{sT2}''')
x_patterns(4, 4)
A(f'''s_and_b32 s{sT0}, s{sW}, 1
s_mul_i32 s{sT1}, s{sT0}, 576
v_add_u32 v{vTMP+2}, s{sT1}, v{vL}
s_movk_i32 s{sT2}, 3641
s_movk_i32 s{sT3}, 2464''')
for i in range(9):
    A(f'''v_mul_u32_u24 v{vTMP+3}, s{sT2}, v{vTMP+2}
v_lshrrev_b32 v{vTMP+3}, 16, v{vTMP+3}
v_mul_u32_u24 v{vTMP+3}, s{sT3}, v{vTMP+3}
v_lshl_add_u32 v{vDMA+4+i}, v{vTMP+2}, 4, v{vTMP+3}''')
    if i % 4: A(f'v_subrev_u32 v{vDMA+4+i}, {(i % 4)*1024}, v{vDMA+4+i}')
    if i < 8: A(f'v_add_u32 v{vTMP+2}, 64, v{vTMP+2}')
A(f'''s_mul_i32 s{sST}, s{sB}, 9
s_sub_u32 s{sT1}, s{sB}, 6
s_max_i32 s{sT1}, s{sT1}, 0
s_sub_u32 s{sST}, s{sST}, s{sT1}
s_lshl_b32 s{sBW}, s{sST}, 5
s_lshl_b32 s{sBX}, s{sA}, 7
s_lshr_b32 s{sT1}, s{sW}, 1
s_lshl_b32 s{sT2}, s{sT1}, 6
s_add_u32 s{sBX}, s{sBX}, s{sT2}
s_add_u32 s{sBX}, s{sBX}, s{sT0}
s_lshl_b32 s{sBX}, s{sBX}, 10
s_movk_i32 s{sMX}, 128
s_mov_b32 s{sMW}, {64*2752}
s_lshl_b32 s{sD}, s{sW}, 12
s_mul_i32 s{sD+1}, s{sT1}, {UPOFF}
s_mul_i32 s{sT2}, s{sT0}, 9216
s_add_u32 s{sD+1}, s{sD+1}, s{sT2}
s_add_u32 s{sD+1}, s{sD+1}, 16384
s_add_u32 s{sD+2}, s{sD+1}, 4096
s_add_u32 s{sD+3}, s{sD+1}, 8192
s_mov_b32 s{sSLOT}, 0''')
if OPT['rot']: A(f's_add_u32 s{sKS}, s{sA}, s{sB}\ns_and_b32 s{sKS}, s{sKS}, 7')
else: A(f's_mov_b32 s{sKS}, 0')
set_soff()
A(f'''s_cmp_ge_u32 s{sW}, 2
s_waitcnt lgkmcnt(0)
s_cselect_b32 s{SRD_W}, s{sKA+10}, s{sKA+8}
s_cselect_b32 s{SRD_W+1}, s{sKA+11}, s{sKA+9}
s_mov_b32 s{SRD_W+2}, {512*2752}
s_mov_b32 s{SRD_W+3}, 0x20000''')
build_srd(SRD_X, sKA, 2048 * 1024)
FD = dma_list(4, 9, 4)
for g in FD:
    for l in g: A(l)
adv_slot(); set_soff()
for g in FD:
    for l in g: A(l)
adv_slot()
common_setup2()
A(f'''v_and_b32 v1, 31, v{vL}
s_lshl_b32 s{sT0}, s{sW}, 5
v_add_u32 v1, s{sT0}, v1
v_bfe_u32 v2, v1, 1, 3
v_lshrrev_b32 v3, 5, v{vL}
v_xor_b32 v2, v2, v3
v_lshlrev_b32 v2, 4, v2
v_lshl_add_u32 v1, v1, 7, v2''')
A(f'''v_bfe_u32 v2, v{vL}, 2, 2
v_lshl_add_u32 v2, v3, 3, v2
v_mul_u32_u24 v2, 288, v2
v_bfe_u32 v3, v{vL}, 4, 1
v_mul_u32_u24 v3, {UPOFF}, v3
v_add_u32 v2, v2, v3
v_and_b32 v3, 3, v{vL}
v_lshl_add_u32 v2, v3, 3, v2
v_add_u32 v2, 16384, v2''')
for p in range(4):
    A(f'''s_xor_b32 s{sT0}, s{sW}, {p}
s_lshl_b32 s{sT1}, s{sT0}, 5
s_mul_i32 s{sT2}, s{sT0}, 4608
v_xor_b32 v{vRX+p}, s{sT1}, v1
v_add_u32 v{vRW+p}, s{sT2}, v2''')
A(f's_mov_b32 s{sIT}, 0\ns_mov_b32 s{sRS}, 0')

lg = Q(15)
def f_rw(n):
    p, T = divmod(n, 9); s = vFR + 8 + (n % 6) * 4
    A(f'ds_read_b64_tr_b16 {vr(s, 2)}, v{vRW+p} offset:{T*32}'); lg.issue(('w', n))
    A(f'ds_read_b64_tr_b16 {vr(s+2, 2)}, v{vRW+p} offset:{T*32+1152}'); lg.issue(('w', n))
def f_rx(p):
    A(f'ds_read_b128 {vr(vFR + (p & 1)*4, 4)}, v{vRX+p}'); lg.issue(('x', p))

npf = 1 if OPT['pf'] else 0
A(f's_waitcnt vmcnt(13)' if True else '')
A('s_barrier')
stamp()
f_rw(0); f_rx(0); f_rw(1); f_rw(2); f_rw(3); f_rw(4)
A.label('L_floop')
A(f'''s_cmp_lg_u32 s{sIT}, 6
s_cbranch_scc1 L_fnort''')
retarget(13, 4)
A.label('L_fnort')
set_soff()
fill = spread(FD, list(range(1, 27, 2))) if not OPT['nodma'] else {}
for p in range(4):
    if OPT['dots']:
        for s_, l in spread(stats_ops(vFR + (p & 1) * 4, vST, vST + 1), [9*p + i for i in range(8)]).items():
            fill.setdefault(s_, []).extend(l)
for n in range(36):
    p, T = divmod(n, 9)
    c = lg.need({('w', n), ('x', p)})
    if c is not None: A(f's_waitcnt lgkmcnt({c})')
    s = vFR + 8 + (n % 6) * 4
    mfma(vr(vACC + 16*T, 16), vr(s, 4), vr(vFR + (p & 1)*4, 4), vr(vACC + 16*T, 16))
    cs = []
    if OPT['dots'] and T % 4 == p:
        cs = [f'v_dot2c_f32_bf16 v{vCS+T}, s{sONES}, v{s+i}' for i in range(4)]
    if cs: A(cs[0])
    if n <= 30: f_rw(n + 5)
    if cs: A(cs[1])
    if T == 3 and p < 3: f_rx(p + 1)
    fl = fill.get(n, [])
    for i, l in enumerate(fl):
        A(l)
        if i == 0 and cs: A(cs[2])
    if cs:
        if not fl: A(cs[2])
        A(cs[3])
    if n == 30: read_delta(); adv_slot()
    if n == 31:
        for i in range(4): A(f'v_add_u32 v{vRW+i}, s{sDELTA}, v{vRW+i}')
    if n == 32:
        for i in range(4): A(f'v_add_u32 v{vRX+i}, s{sDELTA}, v{vRX+i}')
        A('s_waitcnt vmcnt(13) lgkmcnt(0)'); lg.drain()
        A('s_barrier')
        f_rw(0); f_rx(0); f_rw(1); f_rw(2)
    if n == 33: f_rw(3)
    if n == 34:
        f_rw(4)
        A(f's_add_u32 s{sIT}, s{sIT}, 1\ns_cmp_lt_u32 s{sIT}, 8')
A('s_cbranch_scc1 L_floop')
stamp()
LAST = SLOT
half_sum(vST, vTMP); half_sum(vST + 1, vTMP + 1)
for T in range(9): split_hilo(vCS + T, vTMP + 2 + (T & 1))
A(f'''v_and_b32 v1, 31, v{vL}
v_lshlrev_b32 v1, 3, v1
v_lshrrev_b32 v2, 5, v{vL}
v_lshl_add_u32 v{vTMP+4}, v2, 2, v1
s_lshl_b32 s{sT0}, s{sW}, 12
s_add_u32 s{sT0}, s{sT0}, {LAST}
v_add_u32 v{vTMP+4}, s{sT0}, v{vTMP+4}
v_lshl_add_u32 v{vTMP+5}, v2, 13, v1
v_add_u32 v{vTMP+5}, {LAST}, v{vTMP+5}
v_add_u32 v{vTMP+6}, 256, v{vTMP+5}''')
for T in range(9): A(f'ds_write_b32 v{vTMP+4}, v{vCS+T} offset:{T*256}')
ln_stats(vST, vST + 1, vST + 2)
A(f'''v_mov_b32 v{vTMP+8}, v{vST}
v_mov_b32 v{vTMP+9}, v{vST}
v_mov_b32 v{vTMP+10}, v{vST}
v_mov_b32 v{vTMP+11}, v{vST}
v_mul_f32 v{vST+2}, {f2u(-LOG2E)}, v{vST+3-1}
v_mul_f32 v{vST+4}, v{vST+1}, v{vST+1}
s_waitcnt vmcnt(0) lgkmcnt(0)
s_barrier''')
vC1, vIR = vST + 2, vST + 4
for T in range(9):
    A(f'ds_read2st64_b64 {vr(vFR + 4*T, 4)}, v{vTMP+5+(T&1)} offset0:{T>>1} offset1:{8+(T>>1)}')
get_tag('f')
for T in range(9):
    A(f's_waitcnt lgkmcnt({8-T})')
    mfma(vr(vACC + 16*T, 16), vr(vFR + 4*T, 4), vr(vTMP + 8, 4), vr(vACC + 16*T, 16))
breg_reads()
static_dma_setup()
A(f'''s_lshl_b32 s{sT0}, s{sA}, 2
s_add_u32 s{sT0}, s{sT0}, s{sW}
s_mul_i32 s{sOX}, s{sT0}, {TG_STRIDE}
s_lshl_b32 s{sT0}, s{sST}, 10
s_add_u32 s{sOX}, s{sOX}, s{sT0}
v_lshlrev_b32 v{vTMP}, 4, v{vL}
s_waitcnt lgkmcnt(0)
s_barrier''')
stamp()
E = Inter(static_dma_groups(), 8)
def bc(r):
    return r
for T in range(9):
    a = vACC + 16*T
    t = vFR + (T & 1) * 24
    ev = vC1 & ~1; sel1 = vC1 & 1
    iv = vIR & ~1; sel2 = vIR & 1
    for k in range(4):
        E(f'v_pk_mul_f32 {vr(t+2*k, 2)}, {vr(a+2*k, 2)}, {vr(ev, 2)} op_sel:[0,{sel1}] op_sel_hi:[1,{sel1}]')
    for k in range(8): E(f'v_exp_f32 v{t+k}, v{t+k}')
    for k in range(4):
        E(f'v_pk_mul_f32 {vr(t+8+2*k, 2)}, {vr(a+2*k, 2)}, {vr(a+8+2*k, 2)}')
    for k in range(4):
        E(f'v_pk_fma_f32 {vr(t+2*k, 2)}, {vr(t+2*k, 2)}, {vr(iv, 2)}, {vr(iv, 2)} op_sel:[0,{sel2},{sel2}] op_sel_hi:[1,{sel2},{sel2}]')
    for k in range(8): E(f'v_rcp_f32 v{t+k}, v{t+k}')
    for k in range(4):
        E(f'v_pk_mul_f32 {vr(t+2*k, 2)}, {vr(t+2*k, 2)}, {vr(t+8+2*k, 2)}')
    for k in range(4):
        E(f'v_cvt_pk_bf16_f32 v{t+16+k}, v{t+2*k}, v{t+2*k+1}')
    if T == 8:
        E.flush()
        A(f's_cmp_ge_u32 s{sB}, 6\ns_cbranch_scc1 L_fskip8')
    if T and T % 4 == 0: A(f's_add_u32 s{sOX}, s{sOX}, 4096')
    off = f' offset:{(T % 4)*1024}' if T % 4 else ''
    A(f'buffer_store_dwordx4 {vr(t+16, 4)}, v{vTMP}, {srd(SRD_ACT)}, s{sOX} offen{off} sc1')
A.label('L_fskip8')
A(f'''s_lshl_b32 s{sFLAG}, s{sA}, 7
s_lshl_b32 s{sT0}, s{sB}, 2
s_add_u32 s{sFLAG}, s{sFLAG}, s{sT0}
s_branch L_phase2''')

nst_save = nstamp[0]
nstamp[0] = 1 if OPT["stamps"] else 0
A.label('L_attn')
A(f'''s_sub_u32 s{sT1}, s{sT1}, 20
s_lshr_b32 s{sA}, s{sT1}, 2
s_mul_i32 s{sT2}, s{sT2}, 3
s_add_u32 s{sA}, s{sA}, s{sT2}
s_and_b32 s{sB}, s{sT1}, 3
s_lshl_b32 s{sT3}, s{sT3}, 2
s_add_u32 s{sB}, s{sB}, s{sT3}''')
x_patterns(6, 3)
A(f'''v_and_b32 v3, 1, v3
v_lshlrev_b32 v3, 2, v3
v_xor_b32 v2, v2, v3
v_lshlrev_b32 v2, 4, v2
v_mul_u32_u24 v1, 3072, v1
v_add_u32 v1, v1, v2
s_mul_i32 s{sT0}, s{sW}, 49152
v_add_u32 v{vDMA+6}, s{sT0}, v1
v_mov_b32 v{vDMA+7}, v{vDMA+6}
v_mov_b32 v{vDMA+8}, v{vDMA+6}
v_add_u32 v{vDMA+9}, 24576, v{vDMA+6}
v_mov_b32 v{vDMA+10}, v{vDMA+9}
v_mov_b32 v{vDMA+11}, v{vDMA+9}
s_mul_i32 s{sST}, s{sA}, 176
s_sub_u32 s{sST}, s{sST}, 16
s_max_i32 s{sST}, s{sST}, 0
s_and_b32 s{sT0}, s{sW}, 1
s_mul_i32 s{sT1}, s{sT0}, 96
s_lshr_b32 s{sT2}, s{sW}, 1
s_add_u32 s{sBX}, s{sST}, s{sT1}
s_add_u32 s{sBX}, s{sBX}, s{sT2}
s_lshl_b32 s{sBX}, s{sBX}, 10
s_lshl_b32 s{sBW}, s{sB}, 7
s_movk_i32 s{sMX}, 128
s_mov_b32 s{sMW}, {64*3072}
s_mul_i32 s{sD}, s{sW}, 6144
s_add_u32 s{sD+1}, s{sD}, 3072
s_add_u32 s{sD+2}, s{sD}, 24576
s_add_u32 s{sD+3}, s{sD}, {24576+3072}
s_mov_b32 s{sSLOT}, 0''')
if OPT['rot']: A(f's_add_u32 s{sKS}, s{sA}, s{sB}\ns_and_b32 s{sKS}, s{sKS}, 7')
else: A(f's_mov_b32 s{sKS}, 0')
set_soff()
A('s_waitcnt lgkmcnt(0)')
build_srd(SRD_X, sKA, 2048 * 1024)
build_srd(SRD_W, sKA + 2, 512 * 3072)
AD = dma_list(6, 6, 3)
for g in AD:
    for l in g: A(l)
adv_slot(); set_soff()
for g in AD:
    for l in g: A(l)
adv_slot()
common_setup2()
vMSK = vTMP
A(f'''v_and_b32 v1, 31, v{vL}
v_lshrrev_b32 v3, 5, v{vL}
v_lshlrev_b32 v2, 2, v3
v_sub_u32 v2, v1, v2
v_mov_b32 v{vTMP+20}, 0xff800000''')
for j in range(20):
    cj = (8 * (j // 4) + j % 4) if j < 16 else (8 * 3 + (j - 16) - 32)
    A(f'v_subrev_u32 v{vMSK+j}, {cj}, v2' if cj >= 0 else f'v_add_u32 v{vMSK+j}, {-cj}, v2')
for j in range(20):
    A(f'v_cmp_gt_u32 s[{sSTAMP+16}:{sSTAMP+17}], 8, v{vMSK+j}' if j % 2 else f'v_cmp_gt_u32 vcc, 8, v{vMSK+j}')
    if j % 2:
        A(f'v_cndmask_b32 v{vMSK+j-1}, v{vTMP+20}, 0, vcc')
        A(f'v_cndmask_b32 v{vMSK+j}, v{vTMP+20}, 0, s[{sSTAMP+16}:{sSTAMP+17}]')
A(f'''s_and_b32 s{sT0}, s{sW}, 1
s_mul_i32 s{sT0}, s{sT0}, 96
v_add_u32 v1, s{sT0}, v1
v_bfe_u32 v2, v1, 1, 3
v_xor_b32 v2, v2, v3
v_lshlrev_b32 v2, 4, v2
v_lshl_add_u32 v1, v1, 7, v2
v_mul_u32_u24 v2, 3072, v3
v_bfe_u32 v3, v{vL}, 2, 2
v_lshl_add_u32 v2, v3, 7, v2
v_bfe_u32 v3, v{vL}, 3, 1
s_lshr_b32 s{sT0}, s{sW}, 1
v_xor_b32 v3, s{sT0}, v3
v_lshl_add_u32 v2, v3, 6, v2
v_bfe_u32 v3, v{vL}, 4, 1
v_lshl_add_u32 v2, v3, 5, v2
v_and_b32 v3, 3, v{vL}
v_lshl_add_u32 v2, v3, 3, v2
v_add_u32 v2, 24576, v2''')
for p in range(4):
    A(f'''s_xor_b32 s{sT0}, s{sW}, {p}
s_lshl_b32 s{sT1}, s{sT0}, 5
s_mul_i32 s{sT2}, s{sT0}, 6144
v_xor_b32 v{vRX+p}, s{sT1}, v1
v_add_u32 v{vRW+p}, s{sT2}, v2''')
A(f's_mov_b32 s{sIT}, 0\ns_mov_b32 s{sRS}, 0')
lg = Q(15)
def xf(p, G): return vFR + (p & 1) * 24 + 4 * G
def wf(p, m): return vFR + (p & 1) * 24 + 12 + 4 * m
def a_rd(p, k):
    kind, i = [('w', 0), ('x', 0), ('x', 1), ('x', 2), ('w', 1), ('w', 2)][k]
    if kind == 'x':
        A(f'ds_read_b128 {vr(xf(p, i), 4)}, v{vRX+p} offset:{i*4096}'); lg.issue(('x', p, i))
    else:
        A(f'ds_read_b64_tr_b16 {vr(wf(p, i), 2)}, v{vRW+p} offset:{i*1024}'); lg.issue(('w', p, i))
        A(f'ds_read_b64_tr_b16 {vr(wf(p, i)+2, 2)}, v{vRW+p} offset:{i*1024+512}'); lg.issue(('w', p, i))
A('s_waitcnt vmcnt(12)\ns_barrier')
stamp()
for k in range(6): a_rd(0, k)
A.label('L_aloop')
A(f'''s_cmp_lg_u32 s{sIT}, 6
s_cbranch_scc1 L_anort''')
retarget(12, 3)
A.label('L_anort')
set_soff()
fill = spread(AD, list(range(1, 25, 2))) if not OPT['nodma'] else {}
STATP = {0: (0, 1), 1: (2, 3), 2: (1, 2)}
CSP = {0: (0, 2), 1: (0, 3), 2: (0, 3)}
for p in range(4):
    ops = []
    if OPT['dots']:
        for G in range(3):
            if p in STATP[G]: ops += stats_ops(xf(p, G), vST + 2*G, vST + 2*G + 1)
        cso = []
        for m in range(3):
            if p in CSP[m]: cso.append([[f'v_dot2c_f32_bf16 v{vCS+m}, s{sONES}, v{wf(p, m)+i}'] for i in range(4)])
        late = []
        for i in range(4):
            for c_ in cso: late.append(c_[i])
        so = spread(ops, [9*p + i for i in range(2, 9)]) if ops else {}
        co = spread(late, [9*p + i for i in range(6, 9)]) if late else {}
        for d_ in (so, co):
            for s_, l in d_.items(): fill.setdefault(s_, []).extend(l)
for n in range(36):
    p, r = divmod(n, 9)
    m, G = divmod(r, 3)
    c = lg.need({('w', p, m), ('x', p, G)})
    if c is not None: A(f's_waitcnt lgkmcnt({c})')
    acc = vr(vACC + 48*m + 16*G, 16)
    if m < 2: mfma(acc, vr(wf(p, m), 4), vr(xf(p, G), 4), acc)
    else: mfma(acc, vr(xf(p, G), 4), vr(wf(p, m), 4), acc)
    if p < 3 and r < 6: a_rd(p + 1, r)
    for l in fill.get(n, []): A(l)
    if n == 26: read_delta(); adv_slot()
    if n == 27:
        for i in range(4): A(f'v_add_u32 v{vRW+i}, s{sDELTA}, v{vRW+i}')
    if n == 28:
        for i in range(4): A(f'v_add_u32 v{vRX+i}, s{sDELTA}, v{vRX+i}')
    if n == 29:
        A('s_waitcnt vmcnt(12) lgkmcnt(0)'); lg.drain()
        A('s_barrier')
        a_rd(0, 0); a_rd(0, 1)
    if 30 <= n <= 33: a_rd(0, n - 28)
    if n == 34: A(f's_add_u32 s{sIT}, s{sIT}, 1\ns_cmp_lt_u32 s{sIT}, 8')
A('s_cbranch_scc1 L_aloop')
stamp()
SCR = LAST + 49152
CSA = SCR
STA = SCR + 3072 - 16384 + 16384
CS_BYTES = 2 * 3 * 32 * 16
STA = 49152
RRW = 2 * SLOT + 49152
for G in range(3):
    half_sum(vST + 2*G, 1); half_sum(vST + 2*G + 1, 2)
for m in range(3): split_hilo(vCS + m, 1 + (m & 1))
A(f'''v_and_b32 v1, 31, v{vL}
v_lshrrev_b32 v2, 5, v{vL}
s_lshr_b32 s{sT0}, s{sW}, 1
s_and_b32 s{sT1}, s{sW}, 1
s_mul_i32 s{sT2}, s{sT0}, 1536
s_add_u32 s{sT2}, s{sT2}, {CSA}
v_lshlrev_b32 v{vRX}, 4, v1
v_add_u32 v{vRX}, s{sT2}, v{vRX}
s_lshl_b32 s{sT3}, s{sT1}, 3
v_lshl_add_u32 v{vRX+1}, v2, 2, v{vRX}
v_add_u32 v{vRX+1}, s{sT3}, v{vRX+1}
s_mul_i32 s{sT2}, s{sT0}, 1536
s_mul_i32 s{sT3}, s{sT1}, 768
s_add_u32 s{sT4}, s{sT2}, s{sT3}
s_add_u32 s{sT4}, s{sT4}, {STA}
v_lshlrev_b32 v{vRX+2}, 3, v1
v_add_u32 v{vRX+3}, s{sT4}, v{vRX+2}
s_xor_b32 s{sT0}, s{sT0}, 1
s_mul_i32 s{sT2}, s{sT0}, 1536
s_add_u32 s{sT4}, s{sT2}, s{sT3}
s_add_u32 s{sT4}, s{sT4}, {STA}
v_add_u32 v{vRX+2}, s{sT4}, v{vRX+2}
s_mul_i32 s{sT4}, s{sW}, 384
s_add_u32 s{sT4}, s{sT4}, {RRW}
v_lshl_add_u32 v{vRW}, v1, 2, s{sT4}
v_lshl_add_u32 v{vRW+1}, v2, 4, s{sT4}''')
for m in range(3): A(f'ds_write_b32 v{vRX+1}, v{vCS+m} offset:{m*512}')
assert vST % 2 == 1
for G in range(3):
    A(f'ds_write2_b32 v{vRX+3}, v{vST+2*G}, v{vST+2*G+1} offset0:{G*64} offset1:{G*64+1}')
A('s_waitcnt vmcnt(0) lgkmcnt(0)\ns_barrier')
for G in range(3): A(f'ds_read_b64 {vr(vFR+2*G, 2)}, v{vRX+2} offset:{G*256}')
for m in range(3): A(f'ds_read_b128 {vr(vFR+8+4*m, 4)}, v{vRX} offset:{m*512}')
get_tag('a')
A(f'v_cmp_gt_u32 vcc, 32, v{vL}\ns_waitcnt lgkmcnt(3)')
vRR = vCS
vBM = vFR + 24
for G in range(3):
    A(f'v_add_f32 v{vST+2*G}, v{vST+2*G}, v{vFR+2*G}\nv_add_f32 v{vST+2*G+1}, v{vST+2*G+1}, v{vFR+2*G+1}')
    ln_stats(vST + 2*G, vST + 2*G + 1, vRR + G)
    A(f'v_cndmask_b32 v{vBM+4*G}, 0, v{vST+2*G}, vcc')
    A(f'ds_write_b32 v{vRW}, v{vRR+G} offset:{G*128}')
    for i in range(1, 4): A(f'v_mov_b32 v{vBM+4*G+i}, v{vBM+4*G}')
    A(f'v_mul_f32 v{vRR+3+G}, {f2u(0.25*LOG2E)}, v{vRR+G}')
A('s_waitcnt lgkmcnt(0)')
for m in range(3):
    for G in range(3):
        acc = vr(vACC + 48*m + 16*G, 16)
        if m < 2: mfma(acc, vr(vFR+8+4*m, 4), vr(vBM+4*G, 4), acc)
        else: mfma(acc, vr(vBM+4*G, 4), vr(vFR+8+4*m, 4), acc)
vRROW = vFR
rrow_addr = vRW + 1
A(f'v_mov_b32 v{vDMA+12}, v{rrow_addr}')
breg_reads()
for G in range(3):
    for a_ in range(4):
        A(f'ds_read_b128 {vr(vRROW+16*G+4*a_, 4)}, v{vDMA+12} offset:{G*128+a_*32}')
static_dma_setup()
A(f'''v_and_b32 v1, 31, v{vL}
s_lshr_b32 s{sT0}, s{sST}, 1
v_add_u32 v2, s{sT0}, v1
s_cmp_eq_u32 s{sA}, 0
s_cselect_b32 s{sT1}, 0, 8
s_and_b32 s{sT2}, s{sW}, 1
s_mul_i32 s{sT2}, s{sT2}, {TG_STRIDE}
s_lshl_b32 s{sT3}, s{sB}, 2
s_lshr_b32 s{sT4}, s{sW}, 1
s_lshl_b32 s{sT4}, s{sT4}, 1
s_add_u32 s{sT3}, s{sT3}, s{sT4}
s_add_u32 s{sT3}, s{sT3}, 86
s_lshl_b32 s{sT3}, s{sT3}, 10
s_add_u32 s{sOX}, s{sT2}, s{sT3}
s_mov_b32 s{sT2}, {2*TG_STRIDE}
v_lshrrev_b32 v3, 5, v{vL}
v_lshlrev_b32 v3, 9, v3
v_subrev_u32 v1, s{sT1}, v1
v_mov_b32 v{vDMA+4}, 0x80000000''')
for G in range(3):
    d = vDMA + 1 + G
    A(f'''v_lshrrev_b32 v{d}, 5, v2
v_mul_lo_u32 v{d}, v{d}, s{sT2}
v_and_b32 v{vDMA+5}, 31, v2
v_lshl_add_u32 v{vDMA+5}, v{vDMA+5}, 4, v3
v_add_u32 v{d}, v{d}, v{vDMA+5}
v_cmp_gt_u32 vcc, 88, v1
v_cndmask_b32 v{d}, v{vDMA+4}, v{d}, vcc''')
    if G < 2: A(f'v_add_u32 v2, 32, v2\nv_add_u32 v1, 32, v1')
A('s_waitcnt lgkmcnt(0)\ns_barrier')
stamp()
E = Inter(static_dma_groups(), 14)
QP, KP, VP = vACC, vACC + 48, vACC + 96
def pk_scale_lane(dst, src, r):
    ev = r & ~1; sl = r & 1
    for k in range(8):
        E(f'v_pk_mul_f32 {vr(src+2*k, 2)}, {vr(src+2*k, 2)}, {vr(ev, 2)} op_sel:[0,{sl}] op_sel_hi:[1,{sl}]')
    for k in range(8):
        E(f'v_cvt_pk_bf16_f32 v{dst+k}, v{src+2*k}, v{src+2*k+1}')
for G in range(3):
    for k in range(8):
        E(f'v_pk_mul_f32 {vr(VP+16*G+2*k, 2)}, {vr(VP+16*G+2*k, 2)}, {vr(vRROW+16*G+2*k, 2)}')
    for k in range(8):
        E(f'v_cvt_pk_bf16_f32 v{VP+8*G+k}, v{VP+16*G+2*k}, v{VP+16*G+2*k+1}')
for G in range(3):
    pk_scale_lane(KP + 8*G, KP + 16*G, vRR + G)
for G in range(3):
    pk_scale_lane(QP + 8*G, QP + 16*G, vRR + 3 + G)
SD = [40, 56]; SP = [72, 136]; OO = [184, 232]; PD = [152, 200]; PP = [248, 252]
TM = [21, 26]
E(f'v_mov_b32 v248, 0\nv_mov_b32 v249, 0\nv_mov_b32 v252, 0\nv_mov_b32 v253, 0')
def s_mm(G, e):
    E(f'v_mfma_f32_32x32x16_bf16 {vr(SD[e], 16)}, {vr(KP+8*G+4*e, 4)}, {vr(QP+8*G+4*e, 4)}, {vr(vMSK, 16)}')
    if G: E(f'v_mfma_f32_32x32x16_bf16 {vr(SP[e], 16)}, {vr(KP+8*(G-1)+4*e, 4)}, {vr(QP+8*G+4*e, 4)}, {vr(vMSK+4, 16)}')
def soft(G, e):
    s = SD[e]; sp = SP[e] + 12; t = TM[e]
    mx = t + (t & 1)
    o1 = mx + 1; o2 = t if (t & 1) else t + 2
    vals = [s + i for i in range(16)] + ([sp + i for i in range(4)] if G else [])
    E(f'v_max3_f32 v{mx}, v{vals[0]}, v{vals[1]}, v{vals[2]}')
    E(f'v_max3_f32 v{o1}, v{vals[3]}, v{vals[4]}, v{vals[5]}')
    rest = vals[6:]
    tgt = [mx, o1]
    i = 0
    while len(rest) >= 2:
        E(f'v_max3_f32 v{tgt[i&1]}, v{tgt[i&1]}, v{rest[0]}, v{rest[1]}'); rest = rest[2:]; i += 1
    assert not rest
    E(f'v_max_f32 v{mx}, v{mx}, v{o1}')
    E(f'v_mov_b32 v{o1}, v{mx}')
    E(f'v_permlane32_swap_b32 v{mx}, v{o1}')
    E(f'v_max_f32 v{mx}, v{mx}, v{o1}')
    prs = [vals[i] for i in range(0, len(vals), 2)]
    for r in prs:
        E(f'v_pk_add_f32 {vr(r, 2)}, {vr(r, 2)}, {vr(mx, 2)} op_sel:[0,0] op_sel_hi:[1,0] neg_lo:[0,1] neg_hi:[0,1]')
    for r in vals: E(f'v_exp_f32 v{r}, v{r}')
    for k in range(8): E(f'v_cvt_pk_bf16_f32 v{PD[e]+k}, v{s+2*k}, v{s+2*k+1}')
    if G:
        for k in range(2): E(f'v_cvt_pk_bf16_f32 v{PP[e]+2+k}, v{sp+2*k}, v{sp+2*k+1}')
    E(f'v_mfma_f32_32x32x16_bf16 {vr(OO[e], 16)}, {vr(VP+8*G, 4)}, {vr(PD[e], 4)}, 0')
    E(f'v_mfma_f32_32x32x16_bf16 {vr(OO[e], 16)}, {vr(VP+8*G+4, 4)}, {vr(PD[e]+4, 4)}, {vr(OO[e], 16)}')
    if G: E(f'v_mfma_f32_32x32x16_bf16 {vr(OO[e], 16)}, {vr(VP+8*(G-1)+4, 4)}, {vr(PP[e], 4)}, {vr(OO[e], 16)}')
    while len(prs) > 1:
        nxt = []
        for i in range(0, len(prs) - 1, 2):
            E(f'v_pk_add_f32 {vr(prs[i], 2)}, {vr(prs[i], 2)}, {vr(prs[i+1], 2)}'); nxt.append(prs[i])
        if len(prs) & 1: nxt.append(prs[-1])
        prs = nxt
    E(f'v_add_f32 v{mx}, v{prs[0]}, v{prs[0]+1}')
    E(f'v_mov_b32 v{o1}, v{mx}')
    E(f'v_permlane32_swap_b32 v{mx}, v{o1}')
    E(f'v_add_f32 v{mx}, v{mx}, v{o1}')
    E(f'v_rcp_f32 v{mx}, v{mx}')
def fin(G, e):
    t = TM[e]; mx = t + (t & 1)
    o = OO[e] + 8 * e
    for k in range(4):
        E(f'v_pk_mul_f32 {vr(o+2*k, 2)}, {vr(o+2*k, 2)}, {vr(mx, 2)} op_sel:[0,0] op_sel_hi:[1,0]')
    d = OO[e] + 8 * (1 - e)
    for k in range(4): E(f'v_cvt_pk_bf16_f32 v{d+k}, v{o+2*k}, v{o+2*k+1}')
    off = ' offset:1024' if e else ''
    E(f'buffer_store_dwordx4 {vr(d, 4)}, v{vDMA+1+G}, {srd(SRD_ACT)}, s{sOX} offen{off} sc1')
s_mm(0, 0); s_mm(0, 1)
for G in range(3):
    soft(G, 0)
    if G < 2: s_mm(G + 1, 0)
    soft(G, 1)
    if G < 2: s_mm(G + 1, 1)
    if G == 2: E.flush()
    fin(G, 0); fin(G, 1)
A(f'''s_lshl_b32 s{sFLAG}, s{sA}, 5
s_lshl_b32 s{sT0}, s{sB}, 2
s_add_u32 s{sFLAG}, s{sFLAG}, s{sT0}
s_add_u32 s{sFLAG}, s{sFLAG}, {FLAG_A}''')
assert nstamp[0] == nst_save

A.label('L_phase2')
stamp()
vF, vS = 192, 224
vXR = 24
vRING = 40; NRING = 38
vAO = 4; vPO = 5; vOO = 6; vEX = 7
aLB = 192
A(f'''v_and_b32 v1, 31, v{vL}
v_lshrrev_b32 v2, 5, v{vL}
s_and_b32 s{sT0}, s{sW}, 1
s_lshr_b32 s{sT1}, s{sW}, 1
s_lshl_b32 s{sT2}, s{sR}, 6
s_add_u32 s{sT2}, s{sT2}, s{sT0}
s_lshl_b32 s{sT2}, s{sT2}, 10
s_lshl_b32 s{sT3}, s{sCB}, 7
s_add_u32 s{sT2}, s{sT2}, s{sT3}
s_lshl_b32 s{sT3}, s{sT1}, 6
s_add_u32 s{sT2}, s{sT2}, s{sT3}
v_lshlrev_b32 v{vOO}, 11, v1
v_lshl_add_u32 v{vOO}, v2, 4, v{vOO}
v_add_u32 v{vOO}, s{sT2}, v{vOO}
buffer_load_dwordx4 v[8:11], v{vOO}, {srd(SRD_XR)}, 0 offen
buffer_load_dwordx4 v[12:15], v{vOO}, {srd(SRD_XR)}, 0 offen offset:32
v_lshlrev_b32 v{vAO}, 4, v{vL}
s_lshl_b32 s{sT2}, s{sR}, 1
s_add_u32 s{sT2}, s{sT2}, s{sT0}
s_mul_i32 s{sOX}, s{sT2}, {TG_STRIDE}
s_mul_i32 s{sT3}, s{sT1}, {27*1024}
s_mul_i32 s{sT2}, s{sT1}, {32*1024}
s_add_u32 s{sOW}, s{sOX}, {86*1024}
s_sub_u32 s{sOW}, s{sOW}, s{sT2}
s_add_u32 s{sOX}, s{sOX}, s{sT3}''')
A(f'''v_and_b32 v1, 15, v{vL}
s_lshr_b32 s{sT2}, s{sR}, 1
s_lshl_b32 s{sT2}, s{sT2}, 7
s_mul_i32 s{sT3}, s{sT1}, 12
s_add_u32 s{sT3}, s{sT3}, s{sT2}
v_min_u32 v2, 2, v1
v_lshl_add_u32 v2, v2, 2, s{sT3}
s_lshl_b32 s{sT3}, s{sR}, 6
s_mul_i32 s{sT4}, s{sT3}, 745
s_lshr_b32 s{sT4}, s{sT4}, 17
s_add_u32 s{sT3}, s{sT3}, 63
s_mul_i32 s{sT3}, s{sT3}, 745
s_lshr_b32 s{sT3}, s{sT3}, 17
s_sub_u32 s{sT3}, s{sT3}, s{sT4}
s_lshl_b32 s{sT3}, s{sT3}, 3
s_add_u32 s{sT3}, s{sT3}, 7
s_lshl_b32 s{sT4}, s{sT4}, 5
s_add_u32 s{sT4}, s{sT4}, {FLAG_A}
s_add_u32 s{sT2}, s{sT2}, 24
s_cmp_eq_u32 s{sT1}, 0
s_cselect_b32 s{sT3}, s{sT3}, 3
s_cselect_b32 s{sT4}, s{sT4}, s{sT2}
v_min_u32 v3, s{sT3}, v1
v_lshl_add_u32 v3, v3, 2, s{sT4}
v_bfe_u32 v1, v{vL}, 4, 1
v_cmp_eq_u32 vcc, 0, v1
v_cndmask_b32 v{vPO}, v3, v2, vcc
v_mov_b32 v1, s{sFLAG}
v_mov_b32 v2, s{sTAG}''')
for i in range(64): A(f'v_mov_b32 v{vF+i}, 0')
A(f'''s_waitcnt vmcnt(0)
s_barrier
s_cmp_lg_u32 s{sW}, 0
s_cbranch_scc1 L_noflag
s_mov_b64 exec, 1
global_store_dword v1, v2, s[{sWS}:{sWS+1}] sc1
s_mov_b64 exec, -1
L_noflag:''')
stamp()
if OPT['stop'] == 1:
    A('s_branch L_dump')
A(f'''global_load_dword v3, v{vPO}, s[{sWS}:{sWS+1}] sc1
v_permlane32_swap_b32 v8, v10
v_permlane32_swap_b32 v9, v11
v_permlane32_swap_b32 v12, v14
v_permlane32_swap_b32 v13, v15''')
for i in range(8):
    A(f'v_lshlrev_b32 v{vXR+2*i}, 16, v{8+i}\nv_and_b32 v{vXR+2*i+1}, 0xffff0000, v{8+i}')
A(f'''s_mov_b32 s{sT0}, 0
L_poll1:
s_waitcnt vmcnt(0)
v_cmp_eq_u32 vcc, s{sTAG}, v3
s_and_b32 s{sT1}, vcc_lo, 0xffff
s_cmp_eq_u32 s{sT1}, 0xffff
s_cbranch_scc1 L_poll1ok
global_load_dword v3, v{vPO}, s[{sWS}:{sWS+1}] sc1
s_add_u32 s{sT0}, s{sT0}, 1
s_cmp_lt_u32 s{sT0}, 0x40000
s_cbranch_scc1 L_poll1
L_poll1ok:
s_mov_b32 s{sROLE}, vcc_lo''')
stamp()
vm = Q(63); lg = Q(15)
def a_load(st):
    so = sOX if st < 27 else sOW
    k = st if st < 27 else st - 27
    if k and k % 4 == 0: A(f's_add_u32 s{so}, s{so}, 4096')
    off = f' offset:{(k % 4)*1024}' if k % 4 else ''
    A(f'buffer_load_dwordx4 {vr(vRING + 4*(st % NRING), 4)}, v{vAO}, {srd(SRD_ACT)}, s{so} offen{off} sc1')
    vm.issue(st)
def b_read(st):
    t = st - NREG
    for ct in range(2):
        off = t * 2048
        base = vB0 + ct
        if off >= 65536: off -= 65536; base = vB2 + ct
        for hf in range(2):
            A(f'ds_read_b64_tr_b16 {ar(aLB + (t % 4)*8 + ct*4 + hf*2, 2)}, v{base} offset:{off + hf*1024}')
            lg.issue(st)
for st in range(27): a_load(st)
P2AT = 6
nextld = 27
for st in range(59):
    if st == P2AT:
        A(f'''s_cmp_eq_u32 s{sROLE}, -1
s_cbranch_scc1 L_poll2ok
s_mov_b32 s{sT0}, 0
L_poll2:
global_load_dword v3, v{vPO}, s[{sWS}:{sWS+1}] sc1
s_waitcnt vmcnt(0)
v_cmp_eq_u32 vcc, s{sTAG}, v3
s_add_u32 s{sT0}, s{sT0}, 1
s_cmp_eq_u32 vcc_lo, -1
s_cbranch_scc1 L_poll2ok
s_cmp_lt_u32 s{sT0}, 0x40000
s_cbranch_scc1 L_poll2
L_poll2ok:''')
    if st >= P2AT:
        k = 0
        while nextld < 59 and nextld < st + NRING and k < 3:
            a_load(nextld); nextld += 1; k += 1
    w = []
    c = vm.need({st})
    if c is not None: w.append(f'vmcnt({c})')
    c = lg.need({st})
    if c is not None: w.append(f'lgkmcnt({c})')
    if w: A('s_waitcnt ' + ' '.join(w))
    acc = vF if st < 27 else vS
    for ct in range(2):
        b = ar(st*8 + ct*4, 4) if st < NREG else ar(aLB + ((st - NREG) % 4)*8 + ct*4, 4)
        mfma(vr(acc + 16*ct, 16), b, vr(vRING + 4*(st % NRING), 4), vr(acc + 16*ct, 16))
        if ct == 0 and NREG <= st + 3 < 59: b_read(st + 3)
stamp()
A(f'''s_and_b32 s{sT0}, s{sW}, 1
s_mul_i32 s{sT0}, s{sT0}, 12288
v_add_u32 v{vEX}, s{sT0}, v{vAO}
s_barrier
s_cmp_ge_u32 s{sW}, 2
s_cbranch_scc1 L_kh1''')
for i in range(4): A(f'ds_write_b128 v{vEX}, {vr(vF+16+4*i, 4)} offset:{i*1024}')
for i in range(4): A(f'ds_write_b128 v{vEX}, {vr(vS+16+4*i, 4)} offset:{4096+i*1024}')
A('s_waitcnt lgkmcnt(0)\ns_barrier')
for i in range(4): A(f'ds_read_b128 {vr(vRING+4*i, 4)}, v{vEX} offset:{8192+i*1024}')
for i in range(8):
    if i % 2 == 0: A(f's_waitcnt lgkmcnt({3 - i//2})')
    A(f'v_pk_add_f32 {vr(vF+2*i, 2)}, {vr(vF+2*i, 2)}, {vr(vRING+2*i, 2)}')
A('s_branch L_final')
A.label('L_kh1')
for i in range(8): A(f'v_pk_add_f32 {vr(vF+2*i, 2)}, {vr(vF+2*i, 2)}, {vr(vS+2*i, 2)}')
for i in range(4): A(f'ds_write_b128 v{vEX}, {vr(vF+4*i, 4)} offset:{8192+i*1024}')
for i in range(8): A(f'v_pk_add_f32 {vr(vF+16+2*i, 2)}, {vr(vF+16+2*i, 2)}, {vr(vS+16+2*i, 2)}')
A('s_waitcnt lgkmcnt(0)\ns_barrier')
for i in range(4): A(f'ds_read_b128 {vr(vRING+4*i, 4)}, v{vEX} offset:{i*1024}')
for i in range(4): A(f'ds_read_b128 {vr(vS+4*i, 4)}, v{vEX} offset:{4096+i*1024}')
for i in range(8):
    if i % 2 == 0: A(f's_waitcnt lgkmcnt({7 - i//2})')
    A(f'v_pk_add_f32 {vr(vF+2*i, 2)}, {vr(vF+16+2*i, 2)}, {vr(vRING+2*i, 2)}')
A('s_waitcnt lgkmcnt(0)')
A.label('L_final')
t = vRING + 16
A(f's_mov_b32 s{sT0}, {f2u(-LOG2E)}\ns_mov_b32 s{sT0+1}, {f2u(-LOG2E)}')
assert sT0 % 2 == 1
A(f's_mov_b32 s{sT0+2}, {f2u(-LOG2E)}')
for i in range(8): A(f'v_pk_mul_f32 {vr(t+2*i, 2)}, {vr(vF+2*i, 2)}, s[{sT0+1}:{sT0+2}]')
for i in range(16): A(f'v_exp_f32 v{t+i}, v{t+i}')
for i in range(8): A(f'v_pk_mul_f32 {vr(vS+2*i, 2)}, {vr(vS+2*i, 2)}, {vr(vF+2*i, 2)}')
for i in range(8): A(f'v_pk_add_f32 {vr(t+2*i, 2)}, {vr(t+2*i, 2)}, 1.0 op_sel_hi:[1,0]')
for i in range(16): A(f'v_rcp_f32 v{t+i}, v{t+i}')
for i in range(8): A(f'v_pk_fma_f32 {vr(t+2*i, 2)}, {vr(t+2*i, 2)}, {vr(vS+2*i, 2)}, {vr(vXR+2*i, 2)}')
for i in range(8): A(f'v_cvt_pk_bf16_f32 v{8+i}, v{t+2*i}, v{t+2*i+1}')
A(f'''v_permlane32_swap_b32 v8, v10
v_permlane32_swap_b32 v9, v11
v_permlane32_swap_b32 v12, v14
v_permlane32_swap_b32 v13, v15
buffer_store_dwordx4 v[8:11], v{vOO}, {srd(SRD_OUT)}, 0 offen
buffer_store_dwordx4 v[12:15], v{vOO}, {srd(SRD_OUT)}, 0 offen offset:32''')
if OPT['stamps']:
    A('s_waitcnt vmcnt(0)')
    stamp()
    A.label('L_dump')
    A(f'''s_lshl_b32 s{sT0}, s2, 8
s_lshl_b32 s{sT1}, s{sW}, 6
s_add_u32 s{sT0}, s{sT0}, s{sT1}
s_add_u32 s{sT0}, s{sT0}, {STAMP_OFF}
v_mov_b32 v1, s{sT0}''')
    for i in range(10): A(f'v_mov_b32 v{8+i}, s{sSTAMP+2*i}')
    A(f'''global_store_dwordx4 v1, v[8:11], s[{sWS}:{sWS+1}]
global_store_dwordx4 v1, v[12:15], s[{sWS}:{sWS+1}] offset:16
global_store_dwordx2 v1, v[16:17], s[{sWS}:{sWS+1}] offset:32''')
elif OPT['stop']:
    A.label('L_dump')
A.label('L_end')
A('s_endpgm')

body = A.finish(verbose=False)
hdr = open('cdna_kernels/' + NAME + '.s.ref').read().split('; Override launch')[0]
out = hdr + f'''; @launch grid=(256,1,1) block=(256,1,1) lds={LDS_BYTES}
.amdgcn_target "amdgcn-amd-amdhsa--gfx950"
.text
.globl {NAME}_kernel
.p2align 8
.type {NAME}_kernel,@function
''' + body + f'''.section .rodata,"a"
.p2align 6
.amdhsa_kernel {NAME}_kernel
  .amdhsa_next_free_vgpr 512
  .amdhsa_next_free_sgpr 102
  .amdhsa_accum_offset 256
  .amdhsa_group_segment_fixed_size 0
  .amdhsa_kernarg_size 80
  .amdhsa_user_sgpr_count 2
  .amdhsa_user_sgpr_kernarg_segment_ptr 1
  .amdhsa_system_sgpr_workgroup_id_x 1
.end_amdhsa_kernel
'''
sys.stdout.write(out)
sys.stderr.write(f'nops inserted: {A.nops}\n')
```

```python
import sys, os, struct
sys.path.insert(0, os.path.dirname(os.path.abspath(__file__)))
from asmlib import Asm, Q

NAME = "recurrent_scan__sliding_local_dilated__swiglu_ffn__prompt"
OPT = dict(stamps=0, sg=0, rot=1, nodma=0, btouch=1, map2=0, burst=12)
for a in sys.argv[1:]:
    k, v = a.split('=')
    assert k in OPT, k
    OPT[k] = int(v)

SLOT = 53504
UPOFF = 18560
SPARE = 3 * SLOT
LDS_BYTES = 163840
ACT_OFF = 1 << 20
TG_STRIDE = 118 * 1024
ACT_BYTES = 64 * TG_STRIDE
FLAG_F = 0
FLAG_A = 0x1000
FLAG_S = 0x1400
FLAG_C = 0x1800
STAT_OFF = 0x2000
CS_OFF = 0x8000
AUX_BYTES = 0x8000 + 10 * 9216
STAMP_OFF = 1 << 19
NREG = 24
LOG2E = 1.4426950408889634
OOB = 0x80000000
SPIN = 0x40000
def f2u(x): return struct.unpack('<I', struct.pack('<f', x))[0]

sW = 3
SRD_X, SRD_W, SRD_ACT, SRD_B2, SRD_XR, SRD_OUT = 4, 8, 12, 16, 20, 24
sDBG, sWS = 28, 30
sKA = 32
sIT, sKS, sBX, sBW, sMX, sMW, sOX, sOW = 48, 49, 50, 51, 52, 53, 54, 55
sD = 56
sSLOT, sDELTA, sONES, sRS = 60, 61, 62, 63
sR, sCB, sA, sB, sTAG, sT0, sT1, sT2, sT3 = 64, 65, 66, 67, 68, 69, 70, 71, 72
sHM, sST, sFLAG, sSOFF, sROLE, sT4, sT5 = 73, 74, 75, 76, 77, 78, 79
SRD_AUX = 80
SRD_T = 84
sEX = 88
sTO = 90
sSTAMP = 92
def srd(n): return f's[{n}:{n+3}]'

vL = 0
vDMA = 4
vRX, vRW = 17, 21
vST = 25
vPL = 28
vCS = 31
vFR = 40
vTMP = 88
vACC = 112
aCS = 192
aST = 240
def vr(b, n): return f'v[{b}:{b+n-1}]'
def ar(b, n): return f'a[{b}:{b+n-1}]'

A = Asm()
STI = 's_memtime' if OPT['stamps'] == 2 else 's_memrealtime'
nstamp = [0]
def stamp(grp=0):
    if not OPT['stamps'] or grp != OPT['sg']: return
    i = nstamp[0]; nstamp[0] += 1
    assert i < 12
    A(f'{STI} s[{sSTAMP}:{sSTAMP+1}]\ns_waitcnt lgkmcnt(0)\nv_accvgpr_write_b32 a{aST+i}, s{sSTAMP}')

def mf(d, a, b, c): return f'v_mfma_f32_32x32x16_bf16 {d}, {a}, {b}, {c}'
def mfma(d, a, b, c): A(mf(d, a, b, c))

def spread(groups, slots, into=None):
    out = {} if into is None else into
    n = len(groups)
    for i, g in enumerate(groups):
        out.setdefault(slots[(i * len(slots)) // n], []).extend(g)
    return out

class Inter:
    def __init__(self): self.g = []; self.every = 1; self.c = 0
    def push(self, groups, every): self.g += list(groups); self.every = every; self.c = 0
    def __call__(self, text):
        for l in text.split('\n'):
            l = l.strip()
            if not l: continue
            A(l); self.c += 1
            if self.g and self.c >= self.every:
                g = self.g.pop(0)
                for x in g: (x() if callable(x) else A(x))
                self.c = 0
    def flush(self):
        while self.g:
            for x in self.g.pop(0): (x() if callable(x) else A(x))

def build_srd(n, plo, size, E=None):
    (E or A)(f'''s_mov_b32 s{n}, s{plo}
s_mov_b32 s{n+1}, s{plo+1}
s_mov_b32 s{n+2}, {size}
s_mov_b32 s{n+3}, 0x20000''')

SOFF = [f's_mul_i32 s{sOX}, s{sKS}, s{sMX}', f's_mul_i32 s{sOW}, s{sKS}, s{sMW}',
        f's_add_u32 s{sOX}, s{sOX}, s{sBX}', f's_add_u32 s{sOW}, s{sOW}, s{sBW}',
        f's_add_u32 s{sKS}, s{sKS}, 1', f's_and_b32 s{sKS}, s{sKS}, 7']
ADV = [f's_add_u32 s{sSLOT}, s{sSLOT}, {SLOT}', f's_cmp_eq_u32 s{sSLOT}, {3*SLOT}', f's_cselect_b32 s{sSLOT}, 0, s{sSLOT}']
RDELTA = [f's_add_u32 s{sRS}, s{sRS}, 1', f's_mov_b32 s{sDELTA}, {SLOT}', f's_cmp_eq_u32 s{sRS}, 3',
          f's_cmov_b32 s{sDELTA}, {(-2*SLOT) & 0xffffffff}', f's_cmov_b32 s{sRS}, 0']
def lines(L):
    for l in L: A(l)

def dma_list(nx, nw, per, exmask=False):
    out = []
    for i in range(nx + nw):
        if per == 4: g, im = (0, i) if i < 4 else (1 + (i - 4) // 4, (i - 4) % 4)
        else: g, im = divmod(i, 3)
        pre = [f's_add_u32 m0, s{sSLOT}, s{sD+g}'] if im == 0 else []
        s_, o_ = (SRD_X, sOX) if i < nx else (SRD_W, sOW)
        off = f' offset:{im*1024}' if im else ''
        ld = [f'buffer_load_dwordx4 v{vDMA+i}, {srd(s_)}, s{o_} offen{off} lds']
        if exmask and i == 0: ld = [f's_mov_b64 exec, s[{sEX}:{sEX+1}]'] + ld + ['s_mov_b64 exec, -1']
        out.append(pre + ld)
    return out

def x_patterns(n, per):
    A(f'''v_xor_b32 v{vTMP}, v2, v3
v_lshlrev_b32 v{vTMP}, 4, v{vTMP}
v_lshl_add_u32 v{vDMA}, v1, 11, v{vTMP}
v_xor_b32 v{vTMP+1}, 64, v{vDMA}''')
    for i in range(1, n):
        src = vDMA if i % 2 == 0 else vTMP + 1
        A(f'v_add_u32 v{vDMA+i}, {i*16384 - (i % per)*1024}, v{src}')

vSR = 96
def stat_loads():
    A(f'''s_lshl_b32 s{sT0}, s2, 13
s_lshl_b32 s{sT1}, s{sW}, 11
s_add_u32 s{sT0}, s{sT0}, s{sT1}
v_and_b32 v{vTMP+2}, 31, v{vL}
v_lshlrev_b32 v{vTMP+2}, 4, v{vTMP+2}
v_lshrrev_b32 v{vTMP+3}, 5, v{vL}
v_lshl_add_u32 v{vTMP+2}, v{vTMP+3}, 10, v{vTMP+2}
buffer_load_dwordx4 {vr(vSR, 4)}, v{vTMP+2}, {srd(SRD_XR)}, s{sT0} offen
buffer_load_dwordx4 {vr(vSR+4, 4)}, v{vTMP+2}, {srd(SRD_XR)}, s{sT0} offen offset:512''')

def stat_compute(E):
    sm, sq, t, t2 = vTMP + 4, vTMP + 5, vTMP + 6, vTMP + 7
    E(f'v_mov_b32 v{sm}, 0\nv_mov_b32 v{sq}, 0')
    for i in range(8):
        E(f'v_dot2c_f32_bf16 v{sm}, s{sONES}, v{vSR+i}\nv_dot2c_f32_bf16 v{sq}, v{vSR+i}, v{vSR+i}')
    for r in (1, 2, 4, 8):
        E(f'v_add_f32_dpp v{sm}, v{sm}, v{sm} row_ror:{r} row_mask:0xf bank_mask:0xf')
        E(f'v_add_f32_dpp v{sq}, v{sq}, v{sq} row_ror:{r} row_mask:0xf bank_mask:0xf')
    E(f'''v_mov_b32 v{t}, v{sm}
v_mov_b32 v{t2}, v{sq}
v_permlane16_swap_b32 v{sm}, v{t}
v_permlane16_swap_b32 v{sq}, v{t2}
v_add_f32 v{sm}, v{sm}, v{t}
v_add_f32 v{sq}, v{sq}, v{t2}
v_mul_f32 v{sm}, {f2u(1/512)}, v{sm}
v_mul_f32 v{sq}, {f2u(1/512)}, v{sq}
v_fma_f32 v{sq}, -v{sm}, v{sm}, v{sq}
v_max_f32 v{sq}, 0, v{sq}
v_cvt_pk_bf16_f32 v{sq}, v{sq}, v{sq}
v_lshlrev_b32 v{sq}, 16, v{sq}
v_add_f32 v{sq}, {f2u(1e-5)}, v{sq}
v_cvt_pk_bf16_f32 v{sq}, v{sq}, v{sq}
v_lshlrev_b32 v{sq}, 16, v{sq}
v_sqrt_f32 v{sq}, v{sq}
s_lshl_b32 s{sT0}, s2, 5
s_lshl_b32 s{sT1}, s{sW}, 3
s_add_u32 s{sT0}, s{sT0}, s{sT1}
s_add_u32 s{sT0}, s{sT0}, {STAT_OFF}
v_cvt_pk_bf16_f32 v{sq}, -v{sm}, v{sq}
v_lshlrev_b32 v{t}, 2, v{vTMP+3}''')
    A(f'''s_mov_b32 exec_lo, 1
s_mov_b32 exec_hi, 1
buffer_store_dword v{sq}, v{t}, {srd(SRD_AUX)}, s{sT0} offen sc1
s_mov_b64 exec, -1''')

uid = [0]
def setup2(E):
    uid[0] += 1; n = uid[0]
    for i in range(144): E(f'v_mov_b32 v{vACC+i}, 0')
    build_srd(SRD_AUX, sWS, AUX_BYTES, E)
    build_srd(SRD_OUT, sKA + 14, 2048 * 1024, E)
    A(f'''s_add_u32 s{SRD_ACT}, s{sWS}, {ACT_OFF}
s_addc_u32 s{SRD_ACT+1}, s{sWS+1}, 0
s_mov_b32 s{SRD_ACT+2}, {ACT_BYTES}
s_mov_b32 s{SRD_ACT+3}, 0x20000
s_cmp_ge_u32 s{sW}, 2
s_cselect_b32 s{SRD_B2}, s{sKA+12}, s{sKA+4}
s_cselect_b32 s{SRD_B2+1}, s{sKA+13}, s{sKA+5}
s_mov_b32 s{SRD_B2+2}, {512*1024}
s_cmov_b32 s{SRD_B2+2}, {1376*1024}
s_mov_b32 s{SRD_B2+3}, 0x20000
s_mov_b32 s{sIT}, 0
s_mov_b32 s{sRS}, 0''')

def publish_tag():
    uid[0] += 1; n = uid[0]
    A(f'''s_or_b32 s{sT0}, s2, s{sW}
s_cmp_lg_u32 s{sT0}, 0
s_cbranch_scc1 L_notag{n}
s_memrealtime s[{sT4}:{sT5}]
s_waitcnt lgkmcnt(0)
s_or_b32 s{sT4}, s{sT4}, 1
v_mov_b32 v{vTMP+4}, 0
v_mov_b32 v{vTMP+5}, s{sT4}
s_mov_b64 exec, 1
global_store_dword v{vTMP+4}, v{vTMP+5}, s[{sDBG}:{sDBG+1}] sc1
s_mov_b64 exec, -1
L_notag{n}:''')

vBP = 32
def bpat_setup(E):
    E(f'''v_lshrrev_b32 v1, 3, v{vL}
v_and_b32 v2, 7, v{vL}
v_bfe_u32 v3, v{vL}, 4, 1
v_lshlrev_b32 v3, 2, v3
v_xor_b32 v2, v2, v3
v_lshlrev_b32 v2, 4, v2
v_lshl_add_u32 v{vBP}, v1, 10, v2''')
    for i in range(1, 4): E(f'v_add_u32 v{vBP+i}, {7168*i}, v{vBP}')

def touch_b(E, vm):
    A(f'''s_lshl_b32 s{sT0}, s2, 2
s_add_u32 s{sT0}, s{sT0}, s{sW}
s_sub_u32 s{sT1}, s{sT0}, 734
s_cmp_ge_u32 s{sT0}, 734
s_cselect_b32 s{sT0}, s{sT1}, s{sT0}
s_cselect_b32 s{SRD_T}, s{sKA+4}, s{sKA+12}
s_cselect_b32 s{SRD_T+1}, s{sKA+5}, s{sKA+13}
s_mov_b32 s{SRD_T+2}, {1376*1024 if OPT['btouch'] else 0}
s_cmov_b32 s{SRD_T+2}, {512*1024 if OPT['btouch'] else 0}
s_mov_b32 s{SRD_T+3}, 0x20000
s_mul_i32 s{sTO}, s{sT0}, {15*128}
v_min_u32 v110, 14, v{vL}
v_lshlrev_b32 v110, 7, v110
buffer_load_dword v111, v110, {srd(SRD_T)}, s{sTO} offen''')
    vm.issue('touch')

def tail_setup():
    build_srd(SRD_X, sKA + 12, 1376 * 1024)
    A(f'''s_lshr_b32 s{sT0}, s{sW}, 1
s_mul_i32 s{sT0}, s{sT0}, {432*1024}
s_and_b32 s{sT1}, s{sW}, 1
s_mul_i32 s{sT1}, s{sT1}, {96*1024}
s_add_u32 s{sOX}, s{sT0}, s{sT1}
s_lshl_b32 s{sT1}, s{sCB}, 7
s_add_u32 s{sOX}, s{sOX}, s{sT1}
s_mul_i32 s{sD}, s{sW}, 12288''')

def tail_dma(ffn):
    out = []
    for i in range(12):
        g, im = divmod(i, 4)
        pre = []
        if im == 0:
            pre.append(f's_add_u32 m0, s{sSLOT}, s{sD}' if g == 0 else 's_add_u32 m0, m0, 4096')
        off = f' offset:{im*1024}' if im else ''
        ld = [f'buffer_load_dwordx4 v{vBP+im}, {srd(SRD_X)}, s{sOX} offen{off} lds']
        if im == 3: ld.append(f's_add_u32 s{sOX}, s{sOX}, {32768 if g < 2 else 196608 - 65536}')
        out.append(pre + ld)
    if ffn:
        out.append([f's_add_u32 m0, s{sSLOT}, s{sD+1}', f's_add_u32 s{sOW}, s{sOW}, 4096',
                    f'buffer_load_dwordx4 v{vBP+4}, {srd(SRD_AUX)}, s{sOW} offen sc1 lds'])
    return out

def post_flag0(n):
    A(f'''v_readfirstlane_b32 s{sTAG}, v30
s_mov_b32 s{sT0}, 0
L_tag{n}:
s_cmp_lg_u32 s{sTAG}, 0
s_cbranch_scc1 L_tagok{n}
v_mov_b32 v1, 0
global_load_dword v30, v1, s[{sDBG}:{sDBG+1}] sc1
s_waitcnt vmcnt(0)
v_readfirstlane_b32 s{sTAG}, v30
s_add_u32 s{sT0}, s{sT0}, 1
s_cmp_lt_u32 s{sT0}, {SPIN}
s_cbranch_scc1 L_tag{n}
L_tagok{n}:
s_cmp_lg_u32 s{sW}, 0
s_cbranch_scc1 L_{n}back
v_mov_b32 v1, s{sTAG}
s_mov_b64 exec, 3
buffer_store_dword v1, v{vPL+1}, {srd(SRD_AUX)}, 0 offen sc1
s_mov_b64 exec, -1
s_branch L_{n}back''')

def check_flag0(n):
    A(f'''s_mov_b32 s{sT0}, 0
L_f0{n}:
v_cmp_ne_u32 vcc, s{sTAG}, v30
s_cbranch_vccz L_f0ok{n}
buffer_load_dword v30, v{vPL}, {srd(SRD_AUX)}, 0 offen sc1
s_waitcnt vmcnt(0)
s_add_u32 s{sT0}, s{sT0}, 1
s_cmp_lt_u32 s{sT0}, {SPIN}
s_cbranch_scc1 L_f0{n}
L_f0ok{n}:''')

def split_hilo(r, t, E=None):
    (E or A)(f'''v_cvt_pk_bf16_f32 v{t}, v{r}, v{r}
v_lshlrev_b32 v{t}, 16, v{t}
v_sub_f32 v{t}, v{r}, v{t}
v_cvt_pk_bf16_f32 v{r}, v{r}, v{t}''')

vB = 17
REG_BASE = [SLOT, 2 * SLOT, 0]
REG_STEPS = [(24, 37), (37, 50), (50, 59)]
def baddr_setup():
    A(f'''v_lshrrev_b32 v1, 5, v{vL}
v_bfe_u32 v2, v{vL}, 2, 2
v_lshl_add_u32 v1, v1, 2, v2
v_lshlrev_b32 v1, 7, v1
v_bfe_u32 v2, v{vL}, 3, 1
v_lshl_add_u32 v1, v2, 6, v1
v_bfe_u32 v2, v{vL}, 4, 1
v_lshl_add_u32 v1, v2, 5, v1
v_and_b32 v2, 3, v{vL}
v_lshl_add_u32 v23, v2, 3, v1
s_lshr_b32 s{sT0}, s{sW}, 1
s_mul_i32 s{sT1}, s{sT0}, 24576
v_add_u32 v{vB+2}, s{sT1}, v23
v_xor_b32 v{vB+3}, 64, v{vB+2}
v_add_u32 v{vB}, {2*SLOT}, v{vB+2}
v_add_u32 v{vB+1}, {2*SLOT}, v{vB+3}''')
def breg_groups(half):
    out = []
    for st in range(12 * half, 12 * half + 12):
        for ct in range(2):
            out.append([f'ds_read_b64_tr_b16 {ar(st*8 + ct*4 + hf*2, 2)}, v{vB + 2*half + ct} offset:{(st % 12)*2048 + hf*1024}' for hf in range(2)])
    return out
def baddr_final():
    A(f's_lshr_b32 s{sT0}, s{sW}, 1\ns_mul_i32 s{sT1}, s{sT0}, 26624')
    for r in range(3):
        A(f's_add_u32 s{sT2}, s{sT1}, {REG_BASE[r]}\nv_add_u32 v{vB+2*r}, s{sT2}, v23\nv_xor_b32 v{vB+2*r+1}, 64, v{vB+2*r}')
def static_setup():
    A(f'''s_lshr_b32 s{sT0}, s{sW}, 1
s_and_b32 s{sT1}, s{sW}, 1
s_mul_i32 s{sHM}, s{sT0}, 26624
s_lshl_b32 s{sT3}, s{sT1}, 10
s_add_u32 s{sHM}, s{sHM}, s{sT3}
s_lshl_b32 s{sT3}, s{sT1}, 13
s_lshl_b32 s{sT1}, s{sCB}, 7
s_add_u32 s{sT3}, s{sT3}, s{sT1}
s_mul_i32 s{sSOFF}, s{sT0}, {432*1024}
s_add_u32 s{sSOFF}, s{sSOFF}, {NREG*16384}
s_add_u32 s{sSOFF}, s{sSOFF}, s{sT3}
s_mul_i32 s{sT5}, s{sT0}, {864*1024}
s_add_u32 s{sT5}, s{sT5}, s{sT3}
v_add_u32 v24, {16384-2048}, v{vBP}''')
def static_groups(r, vm=None):
    out = []
    a, b = REG_STEPS[r]
    pair = 0
    for st in range(a, b):
        g = []
        newgrp = (st == a) or (st == 27) or pair == 2
        if newgrp:
            if st == 27: g.append(f's_mov_b32 s{sSOFF}, s{sT5}')
            elif st > 24: g.append(f's_add_u32 s{sSOFF}, s{sSOFF}, {16384*lastn}')
            g.insert(0, f's_add_u32 m0, s{sHM}, {REG_BASE[r] + (st - a)*2048}')
            pair = 0
        s_ = SRD_X if st < 27 else SRD_B2
        if pair == 0: g.append(f'buffer_load_dwordx4 v{vBP}, {srd(s_)}, s{sSOFF} offen lds')
        else: g.append(f'buffer_load_dwordx4 v24, {srd(s_)}, s{sSOFF} offen offset:2048 lds')
        pair += 1
        globals()['lastn'] = pair
        if vm is not None: g.append(lambda: vm.issue('dma'))
        out.append(g)
    return out
lastn = 0

A(f'{NAME}_kernel:')
A(f'''s_load_dwordx16 s[{sKA}:{sKA+15}], s[0:1], 0
s_load_dwordx4 s[{sDBG}:{sDBG+3}], s[0:1], 64
s_cmp_ge_u32 s2, 256
s_cbranch_scc1 L_end
s_getpc_b64 s[{sT4}:{sT5}]
v_lshlrev_b32 v1, 7, v0
global_load_dword v111, v1, s[{sT4}:{sT5}]
v_lshrrev_b32 v1, 6, v0
v_and_b32 v{vL}, 63, v0
v_readfirstlane_b32 s{sW}, v1
s_and_b32 s{sT0}, s2, 7
s_lshr_b32 s{sT1}, s2, 3
s_lshr_b32 s{sT2}, s{sT0}, 1
s_and_b32 s{sT3}, s{sT0}, 1''')
if OPT['stamps']:
    A(f'{STI} s[{sSTAMP+2}:{sSTAMP+3}]'); nstamp[0] = 1
if OPT['map2'] == 0:
    A(f'''s_lshl_b32 s{sR}, s{sT0}, 2
s_lshr_b32 s{sCB}, s{sT1}, 3
s_add_u32 s{sR}, s{sR}, s{sCB}
s_and_b32 s{sCB}, s{sT1}, 7''')
else:
    A(f'''s_lshl_b32 s{sR}, s{sT2}, 3
s_lshr_b32 s{sCB}, s{sT1}, 2
s_add_u32 s{sR}, s{sR}, s{sCB}
s_and_b32 s{sCB}, s{sT1}, 3
s_lshl_b32 s{sA}, s{sT3}, 2
s_add_u32 s{sCB}, s{sCB}, s{sA}''')
A(f'''s_mov_b32 s{sONES}, 0x3f803f80
v_lshrrev_b32 v1, 3, v{vL}
v_and_b32 v2, 7, v{vL}
v_lshrrev_b32 v3, 4, v{vL}
s_mov_b32 s{sSLOT}, 0
s_movk_i32 s{sMX}, 128
s_cmp_ge_u32 s{sT1}, 20
s_cbranch_scc1 L_attn''')

A(f'''s_mul_i32 s{sA}, s{sT1}, 52
s_lshr_b32 s{sA}, s{sA}, 8
s_mul_i32 s{sB}, s{sA}, 5
s_sub_u32 s{sB}, s{sT1}, s{sB}
s_mul_i32 s{sT3}, s{sT3}, 5
s_add_u32 s{sB}, s{sB}, s{sT3}
s_lshl_b32 s{sT2}, s{sT2}, 2
s_add_u32 s{sA}, s{sA}, s{sT2}''')
x_patterns(4, 4)
A(f'''s_and_b32 s{sT0}, s{sW}, 1
s_mul_i32 s{sT1}, s{sT0}, 576
v_add_u32 v{vTMP+2}, s{sT1}, v{vL}
s_movk_i32 s{sT2}, 3641
s_movk_i32 s{sT3}, 2464''')
for i in range(9):
    A(f'''v_mul_u32_u24 v{vTMP+3}, s{sT2}, v{vTMP+2}
v_lshrrev_b32 v{vTMP+3}, 16, v{vTMP+3}
v_mul_u32_u24 v{vTMP+3}, s{sT3}, v{vTMP+3}
v_lshl_add_u32 v{vDMA+4+i}, v{vTMP+2}, 4, v{vTMP+3}''')
    if i % 4: A(f'v_subrev_u32 v{vDMA+4+i}, {(i % 4)*1024}, v{vDMA+4+i}')
    if i < 8: A(f'v_add_u32 v{vTMP+2}, 64, v{vTMP+2}')
A(f'''s_mul_i32 s{sST}, s{sB}, 9
s_sub_u32 s{sT1}, s{sB}, 6
s_max_i32 s{sT1}, s{sT1}, 0
s_sub_u32 s{sST}, s{sST}, s{sT1}
s_lshl_b32 s{sBW}, s{sST}, 5
s_lshl_b32 s{sBX}, s{sA}, 7
s_lshr_b32 s{sT1}, s{sW}, 1
s_lshl_b32 s{sT2}, s{sT1}, 6
s_add_u32 s{sBX}, s{sBX}, s{sT2}
s_add_u32 s{sBX}, s{sBX}, s{sT0}
s_lshl_b32 s{sBX}, s{sBX}, 10
s_mov_b32 s{sMW}, {64*2752}
s_lshl_b32 s{sD}, s{sW}, 12
s_mul_i32 s{sD+1}, s{sT1}, {UPOFF}
s_mul_i32 s{sT2}, s{sT0}, 9216
s_add_u32 s{sD+1}, s{sD+1}, s{sT2}
s_add_u32 s{sD+1}, s{sD+1}, 16384
s_add_u32 s{sD+2}, s{sD+1}, 4096
s_add_u32 s{sD+3}, s{sD+1}, 8192
s_and_b32 s{sKS}, s{sA}, 7''')
lines(SOFF)
A(f'''s_cmp_ge_u32 s{sW}, 2
s_waitcnt lgkmcnt(0)
s_cselect_b32 s{SRD_W}, s{sKA+10}, s{sKA+8}
s_cselect_b32 s{SRD_W+1}, s{sKA+11}, s{sKA+9}
s_mov_b32 s{SRD_W+2}, {512*2752}
s_mov_b32 s{SRD_W+3}, 0x20000''')
if OPT['stamps']: A(f'v_accvgpr_write_b32 a{aST}, s{sSTAMP+2}')
build_srd(SRD_XR, sKA, 2048 * 1024)
stat_loads()
build_srd(SRD_X, sKA, 2048 * 1024)
stamp(1)
vm = Q(63); vm.issue('code'); vm.issue('sr'); vm.issue('sr')
FD = dma_list(4, 9, 4)
publish_tag()
E = Inter()
E.push([g + [lambda: vm.issue('w0')] for g in FD[4:]] + [g + [lambda: vm.issue('x0')] for g in FD[:4]], 1)
E('s_nop 0'); E.every = 18
setup2(E)
vCA = 36
E(f"""v_and_b32 v1, 31, v{vL}
s_lshl_b32 s{sT0}, s{sW}, 5
v_add_u32 v1, s{sT0}, v1
v_bfe_u32 v2, v1, 1, 3
v_lshrrev_b32 v3, 5, v{vL}
v_xor_b32 v2, v2, v3
v_lshlrev_b32 v2, 4, v2
v_lshl_add_u32 v1, v1, 7, v2
v_bfe_u32 v2, v{vL}, 2, 2
v_mul_u32_u24 v{vCA+1}, 288, v2
v_lshl_add_u32 v2, v3, 3, v2
v_mul_u32_u24 v2, 288, v2
v_bfe_u32 v3, v{vL}, 4, 1
v_lshl_add_u32 v{vCA}, v3, 7, v{vCA+1}
v_mul_u32_u24 v3, {UPOFF}, v3
v_add_u32 v2, v2, v3
v_and_b32 v3, 3, v{vL}
v_lshl_add_u32 v2, v3, 3, v2
v_add_u32 v2, 16384, v2
v_lshl_add_u32 v{vCA+1}, v3, 3, v{vCA+1}
v_add_u32 v{vCA+1}, s{sD+1}, v{vCA+1}
v_lshl_add_u32 v{vCA}, v3, 3, v{vCA}
v_add_u32 v{vCA}, s{sD+1}, v{vCA}
v_lshrrev_b32 v3, 5, v{vL}
v_lshl_add_u32 v{vCA}, v3, 5, v{vCA}""")
for p in range(4):
    E(f"""s_xor_b32 s{sT0}, s{sW}, {p}
s_lshl_b32 s{sT1}, s{sT0}, 5
s_mul_i32 s{sT2}, s{sT0}, 4608
v_xor_b32 v{vRX+p}, s{sT1}, v1
v_add_u32 v{vRW+p}, s{sT2}, v2""")
bpat_setup(E)
E.flush()
stamp(1)
lines(ADV); lines(SOFF)
A(f"""s_lshl_b32 s{sT0}, s2, 2
s_add_u32 s{sT0}, s{sT0}, {FLAG_S}
s_lshl_b32 s{sT1}, s{sB}, 5
s_add_u32 s{sT1}, s{sT1}, {FLAG_C}
s_lshl_b32 s{sT2}, s{sA}, 2
s_add_u32 s{sT2}, s{sT2}, s{sT1}
s_cmp_lt_u32 s{sA}, 8
s_cselect_b32 s{sT2}, s{sT2}, s{sT0}
v_mov_b32 v{vPL+1}, s{sT2}
v_writelane_b32 v{vPL+1}, s{sT0}, 0
s_lshl_b32 s{sT0}, s{sA}, 6
s_add_u32 s{sT0}, s{sT0}, {FLAG_S}
v_and_b32 v1, 15, v{vL}
v_lshl_add_u32 v1, v1, 2, s{sT0}
v_and_b32 v2, 7, v{vL}
v_lshl_add_u32 v2, v2, 2, s{sT1}
v_cmp_gt_u32 vcc, 32, v{vL}
v_cndmask_b32 v{vPL}, v2, v1, vcc
v_lshlrev_b32 v{vCA+3}, 2, v{vL}
s_mul_i32 s{sT0}, s{sW}, 768
s_add_u32 s{sT0}, s{sT0}, {SPARE}
v_add_u32 v{vCA+2}, s{sT0}, v{vCA+3}
s_xor_b32 s{sT0}, s{sW}, 1
s_mul_i32 s{sT0}, s{sT0}, 768
s_add_u32 s{sT0}, s{sT0}, {SPARE}
v_add_u32 v{vCA+3}, s{sT0}, v{vCA+3}
s_mul_i32 s{sT0}, s{sB}, 9216
s_lshl_b32 s{sT1}, s{sA}, 2
s_add_u32 s{sT0}, s{sT0}, s{sT1}
s_lshr_b32 s{sT1}, s{sW}, 1
s_lshl_b32 s{sT1}, s{sT1}, 9
s_add_u32 s{sT0}, s{sT0}, s{sT1}
s_add_u32 s{sT0}, s{sT0}, {CS_OFF}
v_lshrrev_b32 v1, 5, v{vL}
v_bfe_u32 v2, v{vL}, 4, 1
v_lshl_add_u32 v1, v2, 2, v1
v_lshlrev_b32 v1, 10, v1
v_and_b32 v2, 15, v{vL}
v_lshlrev_b32 v2, 5, v2
v_add3_u32 v104, v1, v2, s{sT0}
s_add_u32 s{sT0}, s{sT0}, 8192
v_add_u32 v2, s{sT0}, v2
v_mov_b32 v3, {OOB}
v_cmp_gt_u32 vcc, 16, v{vL}
v_cndmask_b32 v105, v3, v2, vcc
s_lshr_b32 s{sT1}, s{sA}, 3
s_or_b32 s{sT1}, s{sT1}, s{sW}
s_bitcmp1_b32 s{sT1}, 0
s_cselect_b32 s{sHM}, 0x24, 38""")
stamp(1)
A(f's_waitcnt vmcnt({vm.need({"sr"})})')
stamp(1)
E = Inter()
E.push([g + [lambda: vm.issue('s1')] for g in FD[4:] + FD[:4]], 9)
stat_compute(E); vm.issue('st')
c = vm.need({"w0"})
if c is not None: A(f's_waitcnt vmcnt({c})')
stamp(1)
vCS = 107
for s_ in range(3): E(f'v_mov_b32 v{vCS+s_}, 0')
for half in range(2):
    for rq in range(4*half, 4*half + 4):
        for s_ in range(3):
            d = vFR + (rq % 4) * 6 + s_ * 2
            if s_ < 2: E(f'ds_read_b64_tr_b16 {vr(d, 2)}, v{vCA} offset:{rq*1152 + s_*64}')
            else: E(f'ds_read_b64_tr_b16 {vr(d, 2)}, v{vCA+1} offset:{rq*1152 + 256}')
    for rq in range(4):
        E(f's_waitcnt lgkmcnt({9 - 3*rq})')
        for k in range(2):
            for s_ in range(3):
                E(f'v_dot2c_f32_bf16 v{vCS+s_}, s{sONES}, v{vFR + rq*6 + s_*2 + k}')
for s_ in range(3): E(f'ds_write_b32 v{vCA+2}, v{vCS+s_} offset:{s_*256}')
E.flush()
lines(ADV); lines(SOFF)
touch_b(E, vm)
A(f'v_mov_b32 v1, 0\nglobal_load_dword v30, v1, s[{sDBG}:{sDBG+1}] sc1'); vm.issue('tag')
A(f'v_lshlrev_b32 v{vBP+4}, 4, v{vL}')
stamp(1)
A(f's_waitcnt vmcnt({vm.need({"x0"})}) lgkmcnt(0)\ns_barrier')
stamp(); stamp(1)
for s_ in range(3): A(f'ds_read_b32 v{vTMP+s_}, v{vCA+3} offset:{s_*256}')

lg = Q(15)
def f_rw(n):
    p, T = divmod(n, 9); s = vFR + 8 + (n % 6) * 4
    A(f'ds_read_b64_tr_b16 {vr(s, 2)}, v{vRW+p} offset:{T*32}'); lg.issue(('w', n))
    A(f'ds_read_b64_tr_b16 {vr(s+2, 2)}, v{vRW+p} offset:{T*32+1152}'); lg.issue(('w', n))
def f_rx(p):
    A(f'ds_read_b128 {vr(vFR + (p & 1)*4, 4)}, v{vRX+p}'); lg.issue(('x', p))
def f_mfma(n):
    p, T = divmod(n, 9); s = vFR + 8 + (n % 6) * 4
    mfma(vr(vACC + 16*T, 16), vr(s, 4), vr(vFR + (p & 1)*4, 4), vr(vACC + 16*T, 16))
DSLOT13 = [0, 3, 5, 8, 11, 13, 16, 19, 21, 24, 27, 29, 32]
def f_fill(main):
    fill = {}
    if not OPT['nodma']: spread(FD if main else tail_dma(True), DSLOT13, fill)
    spread([[x] for x in RDELTA[:2]] + [RDELTA[2:]], [4, 6, 7], fill)
    if main:
        spread([[SOFF[0], SOFF[2]], [f's_mul_i32 s{sT3}, s{sKS}, s{sMW}', f's_add_u32 s{sT3}, s{sT3}, s{sBW}'], SOFF[4:6],
                [f's_mov_b32 s{sOW}, s{sT3}']], [12, 14, 17, 33], fill)
    spread([ADV], [33], fill)
    spread([[f'v_add_u32 v{vRX+i}, s{sDELTA}, v{vRX+i}'] for i in range(4)], [9, 15, 20, 28], fill)
    spread([[f'v_add_u32 v{vRW+i}, s{sDELTA}, v{vRW+i}'] for i in range(4)], [10, 18, 30, 34], fill)
    return fill
def f_head(fill, with_mfma, extra=None):
    extra = extra or [None] * 3
    lg.drain()
    f_rw(0); f_rx(0)
    for m in range(3):
        if with_mfma: f_mfma(33 + m)
        if m == 0: f_rw(1); f_rw(2)
        if m == 1: f_rw(3); f_rw(4)
        if extra[m]: extra[m]()
        lines(fill.get(m, []))
def f_rest(fill, last_it, label):
    for n in range(33):
        p, T = divmod(n, 9)
        if n == 32:
            A('s_waitcnt vmcnt(13) lgkmcnt(0)'); lg.drain()
        c = lg.need({('w', n), ('x', p)})
        if c is not None: A(f's_waitcnt lgkmcnt({c})')
        f_mfma(n)
        if n <= 30: f_rw(n + 5)
        if T == 3 and p < 3: f_rx(p + 1)
        lines(fill.get(n + 3, []))
        if n == 31: A(f's_add_u32 s{sIT}, s{sIT}, 1\ns_cmp_lt_u32 s{sIT}, {last_it}')
    A(f's_barrier\ns_cbranch_scc1 {label}')
fm, ft = f_fill(True), f_fill(False)
f_head(fm, False)
A('s_branch L_fent')
A.label('L_floop')
f_head(fm, True, [lambda: A(f's_bitcmp1_b32 s{sHM}, s{sIT}\ns_cbranch_scc1 L_fh\nL_fback:'), None, None])
A.label('L_fent')
f_rest(fm, 6, 'L_floop')
def f_inter0():
    check_flag0('f')
    A(f"""v_and_b32 v1, 31, v{vL}
v_lshlrev_b32 v1, 3, v1
s_lshr_b32 s{sT0}, s{sBX}, 8
s_add_u32 s{sT0}, s{sT0}, {STAT_OFF}
buffer_load_dword v{vST}, v1, {srd(SRD_AUX)}, s{sT0} offen sc1
s_mul_i32 s{sOW}, s{sB}, 9216
s_add_u32 s{sT0}, s{sOW}, {CS_OFF + 8192}
s_mov_b32 m0, {SPARE}
s_lshl_b32 s{sD+1}, s{sW}, 10
buffer_load_dwordx4 v{vBP+4}, {srd(SRD_AUX)}, s{sT0} offen sc1 lds
s_add_u32 s{sOW}, s{sOW}, s{sD+1}
s_add_u32 s{sOW}, s{sOW}, {CS_OFF - 4096}
s_add_u32 s{sD+1}, s{sD+1}, 49152""")
    tail_setup()
f_head(ft, True, [f_inter0, None, None])
A('s_branch L_ftent')
A.label('L_ftail')
f_head(ft, True)
A.label('L_ftent')
f_rest(ft, 8, 'L_ftail')
stamp()
vC1, vIR = vST + 2, vST + 4
vBM = vTMP + 8
vCF = vTMP + 12
CSADDR = [2*SLOT + 49152 + 1024*i for i in range(4)] + [49152 + 1024*i for i in range(4)] + [SPARE]
def cs_read(T):
    base, off = (36, CSADDR[T]) if CSADDR[T] < 65536 else (37, CSADDR[T] - 2*SLOT)
    A(f'ds_read_b128 {vr(vCF + 4*(T % 3), 4)}, v{base} offset:{off}')
def corr(T): return mf(vr(vACC + 16*T, 16), vr(vCF + 4*(T % 3), 4), vr(vBM, 4), vr(vACC + 16*T, 16))
A(f"""v_and_b32 v1, 31, v{vL}
v_lshlrev_b32 v1, 5, v1
v_lshrrev_b32 v2, 5, v{vL}
v_lshl_add_u32 v36, v2, 4, v1
v_add_u32 v37, {2*SLOT}, v36""")
f_mfma(33)
cs_read(0); cs_read(1); cs_read(2)
A(f"""v_and_b32 v1, 0xffff, v{vST}
v_and_b32 v{vST+1}, 0xffff0000, v{vST}
v_lshl_or_b32 v{vBM}, v1, 16, v1
v_rcp_f32 v{vC1}, v{vST+1}""")
f_mfma(34)
A(f"""v_mov_b32 v{vBM+1}, v{vBM}
v_mov_b32 v{vBM+2}, v{vBM}
v_mov_b32 v{vBM+3}, v{vBM}
v_mul_f32 v{vIR}, v{vST+1}, v{vST+1}
v_mul_f32 v{vC1}, {f2u(-LOG2E)}, v{vC1}""")
f_mfma(35)
baddr_setup()
A('s_waitcnt lgkmcnt(0)')
A(corr(0))
static_setup()
A(corr(1))
A(f"""s_lshl_b32 s{sT0}, s{sA}, 2
s_add_u32 s{sT0}, s{sT0}, s{sW}
s_mul_i32 s{sOX}, s{sT0}, {TG_STRIDE}
s_lshl_b32 s{sT0}, s{sST}, 10
s_add_u32 s{sOX}, s{sOX}, s{sT0}
v_lshlrev_b32 v{vTMP}, 4, v{vL}""")
A(corr(2))
cs_read(3); cs_read(8)
vm = Q(63)
for i in range(13): vm.issue('v9')
def mix(a, b):
    out = []
    while a or b:
        if a: out.append(a.pop(0))
        if b: out.append(b.pop(0))
    return out
E = Inter()
def ffn_tile(T, mid=None):
    a = vACC + 16*T
    t = vFR + (T & 1) * 24
    for k in range(4):
        E(f'v_pk_mul_f32 {vr(t+2*k, 2)}, {vr(a+2*k, 2)}, {vr(vC1-1, 2)} op_sel:[0,1] op_sel_hi:[1,1]')
    if mid: mid(0)
    for k in range(8): E(f'v_exp_f32 v{t+k}, v{t+k}')
    for k in range(4):
        E(f'v_pk_mul_f32 {vr(t+8+2*k, 2)}, {vr(a+2*k, 2)}, {vr(a+8+2*k, 2)}')
    for k in range(4):
        E(f'v_pk_fma_f32 {vr(t+2*k, 2)}, {vr(t+2*k, 2)}, {vr(vIR-1, 2)}, {vr(vIR-1, 2)} op_sel:[0,1,1] op_sel_hi:[1,1,1]')
    if mid: mid(1)
    for k in range(8): E(f'v_rcp_f32 v{t+k}, v{t+k}')
    for k in range(4):
        E(f'v_pk_mul_f32 {vr(t+2*k, 2)}, {vr(t+2*k, 2)}, {vr(t+8+2*k, 2)}')
    for k in range(4):
        E(f'v_cvt_pk_bf16_f32 v{t+16+k}, v{t+2*k}, v{t+2*k+1}')
    if T == 8:
        E.flush()
        A(f's_cmp_ge_u32 s{sB}, 6\ns_cbranch_scc1 L_fskip8')
    if T and T % 4 == 0: A(f's_add_u32 s{sOX}, s{sOX}, 4096')
    off = f' offset:{(T % 4)*1024}' if T % 4 else ''
    A(f'buffer_store_dwordx4 {vr(t+16, 4)}, v{vTMP}, {srd(SRD_ACT)}, s{sOX} offen{off} sc1'); vm.issue('st')
def mid0(i):
    if i == 0: A('s_waitcnt lgkmcnt(0)'); A(corr(3))
    else: A(corr(8)); E.push(mix(breg_groups(0), static_groups(0, vm)), 2)
ffn_tile(0, mid0); ffn_tile(1); ffn_tile(2); E.flush()
A(f's_waitcnt vmcnt({vm.need({"v9"})}) lgkmcnt(0)\ns_barrier')
stamp()
cs_read(4); cs_read(5); cs_read(6)
def mid3(i):
    if i == 0: A('s_waitcnt lgkmcnt(0)'); A(corr(4))
    else: A(corr(5)); cs_read(7)
def mid4(i):
    if i == 0: A(corr(6))
    else: A('s_waitcnt lgkmcnt(0)'); A(corr(7)); E.push(mix(breg_groups(1), static_groups(1, vm)), 2)
ffn_tile(3, mid3); ffn_tile(4, mid4); ffn_tile(5); ffn_tile(6); E.flush()
A('s_waitcnt lgkmcnt(0)\ns_barrier')
E.push(static_groups(2, vm), 4)
ffn_tile(7); ffn_tile(8)
A.label('L_fskip8')
A(f"""s_lshl_b32 s{sFLAG}, s{sA}, 7
s_lshl_b32 s{sT0}, s{sB}, 2
s_add_u32 s{sFLAG}, s{sFLAG}, s{sT0}
s_branch L_phase2""")

A.label('L_fh')
A(f"""s_cmp_eq_u32 s{sIT}, 2
s_cbranch_scc1 L_fh2
s_cmp_eq_u32 s{sIT}, 5
s_cbranch_scc1 L_fh5""")
for s_ in range(3): A(f'v_add_f32 v{vCS+s_}, v{vCS+s_}, v{vTMP+s_}')
for s_ in range(3): split_hilo(vCS + s_, vTMP + s_)
A(f"""buffer_store_dword v{vCS}, v104, {srd(SRD_AUX)}, 0 offen sc1
buffer_store_dword v{vCS+1}, v104, {srd(SRD_AUX)}, 0 offen offset:2048 sc1
buffer_store_dword v{vCS+2}, v105, {srd(SRD_AUX)}, 0 offen sc1
s_branch L_fback""")
A.label('L_fh2')
post_flag0('f')
A.label('L_fh5')
A(f'buffer_load_dword v30, v{vPL}, {srd(SRD_AUX)}, 0 offen sc1\ns_branch L_fback')
vCS = 31

nst_save = nstamp[0]
nstamp[0] = 1 if OPT['stamps'] else 0
A.label('L_attn')
A(f'''s_sub_u32 s{sTO}, s{sT1}, 20
s_lshr_b32 s{sA}, s{sTO}, 2
s_mul_i32 s{sT2}, s{sT2}, 3
s_add_u32 s{sA}, s{sA}, s{sT2}
s_and_b32 s{sB}, s{sTO}, 3
s_lshl_b32 s{sT3}, s{sT3}, 2
s_add_u32 s{sB}, s{sB}, s{sT3}''')
x_patterns(6, 3)
A(f'''v_and_b32 v3, 1, v3
v_lshlrev_b32 v3, 2, v3
v_xor_b32 v2, v2, v3
v_lshlrev_b32 v2, 4, v2
v_mul_u32_u24 v1, 3072, v1
v_add_u32 v1, v1, v2
s_mul_i32 s{sT0}, s{sW}, 49152
v_add_u32 v{vDMA+6}, s{sT0}, v1
v_mov_b32 v{vDMA+7}, v{vDMA+6}
v_mov_b32 v{vDMA+8}, v{vDMA+6}
v_add_u32 v{vDMA+9}, 24576, v{vDMA+6}
v_mov_b32 v{vDMA+10}, v{vDMA+9}
v_mov_b32 v{vDMA+11}, v{vDMA+9}
s_mul_i32 s{sST}, s{sA}, 176
s_and_b32 s{sT0}, s{sW}, 1
s_mul_i32 s{sT1}, s{sT0}, 96
s_lshr_b32 s{sT2}, s{sW}, 1
s_add_u32 s{sBX}, s{sST}, s{sT1}
s_add_u32 s{sBX}, s{sBX}, s{sT2}
s_lshl_b32 s{sBX}, s{sBX}, 10
s_lshl_b32 s{sBW}, s{sB}, 7
s_mov_b32 s{sMW}, {64*3072}
s_mul_i32 s{sD}, s{sW}, 6144
s_add_u32 s{sD+1}, s{sD}, 3072
s_add_u32 s{sD+2}, s{sD}, 24576
s_add_u32 s{sD+3}, s{sD}, {24576+3072}
s_mov_b64 s[{sEX}:{sEX+1}], -1
s_cmp_eq_u32 s{sT0}, 0
s_cmov_b32 s{sEX}, 0xffffff00
s_or_b32 s{sT1}, s{sT0}, s{sA}
s_cmp_eq_u32 s{sT1}, 0
s_cselect_b32 s{sT1}, {OOB}, 0
v_add_u32 v{vDMA}, s{sT1}, v{vDMA}
s_and_b32 s{sKS}, s{sA}, 7''')
lines(SOFF)
A('s_waitcnt lgkmcnt(0)')
if OPT['stamps']: A(f'v_accvgpr_write_b32 a{aST}, s{sSTAMP+2}')
build_srd(SRD_XR, sKA, 2048 * 1024)
stat_loads()
build_srd(SRD_W, sKA + 2, 512 * 3072)
A(f'''s_sub_u32 s{SRD_X}, s{sKA}, 16384
s_subb_u32 s{SRD_X+1}, s{sKA+1}, 0
s_mov_b32 s{SRD_X+2}, {2048*1024 + 16384}
s_mov_b32 s{SRD_X+3}, 0x20000''')
stamp(1)
vm = Q(63); vm.issue('code'); vm.issue('sr'); vm.issue('sr')
AD = dma_list(6, 6, 3, exmask=True)
publish_tag()
E = Inter()
E.push([g + [lambda: vm.issue('s0')] for g in AD], 1)
E('s_nop 0'); E.every = 18
setup2(E)
E(f"""v_lshrrev_b32 v1, 3, v{vL}
v_min_u32 v1, 5, v1
v_lshrrev_b32 v2, 1, v1
v_mul_u32_u24 v2, {SLOT}, v2
v_and_b32 v1, 1, v1
v_mul_u32_u24 v1, 12288, v1
v_add_u32 v1, v1, v2
v_and_b32 v2, 7, v{vL}
v_lshl_add_u32 v1, v2, 4, v1
v_mov_b32 v{vFR}, s{sONES}
v_mov_b32 v{vFR+1}, s{sONES}
v_mov_b32 v{vFR+2}, s{sONES}
v_mov_b32 v{vFR+3}, s{sONES}
ds_write_b128 v1, {vr(vFR, 4)}
v_and_b32 v1, 31, v{vL}
v_lshrrev_b32 v3, 5, v{vL}
s_and_b32 s{sT0}, s{sW}, 1
s_mul_i32 s{sT0}, s{sT0}, 96
v_add_u32 v1, s{sT0}, v1
v_bfe_u32 v2, v1, 1, 3
v_xor_b32 v2, v2, v3
v_lshlrev_b32 v2, 4, v2
v_lshl_add_u32 v1, v1, 7, v2
v_mul_u32_u24 v2, 3072, v3
v_bfe_u32 v3, v{vL}, 2, 2
v_lshl_add_u32 v2, v3, 7, v2
v_bfe_u32 v3, v{vL}, 3, 1
s_lshr_b32 s{sT0}, s{sW}, 1
v_xor_b32 v3, s{sT0}, v3
v_lshl_add_u32 v2, v3, 6, v2
v_bfe_u32 v3, v{vL}, 4, 1
v_lshl_add_u32 v2, v3, 5, v2
v_and_b32 v3, 3, v{vL}
v_lshl_add_u32 v2, v3, 3, v2
v_add_u32 v2, 24576, v2""")
for p in range(4):
    E(f"""s_xor_b32 s{sT0}, s{sW}, {p}
s_lshl_b32 s{sT1}, s{sT0}, 5
s_mul_i32 s{sT2}, s{sT0}, 6144
v_xor_b32 v{vRX+p}, s{sT1}, v1
v_add_u32 v{vRW+p}, s{sT2}, v2""")
bpat_setup(E)
E.flush()
stamp(1)
lines(ADV); lines(SOFF)
A(f"""s_lshl_b32 s{sT0}, s2, 2
s_add_u32 s{sT0}, s{sT0}, {FLAG_S}
v_mov_b32 v{vPL+1}, s{sT0}
s_lshr_b32 s{sT0}, s{sST}, 3
s_sub_u32 s{sT0}, s{sT0}, 2
v_min_u32 v1, 23, v{vL}
v_add_u32 v1, s{sT0}, v1
v_max_i32 v1, 0, v1
v_min_u32 v1, 255, v1
v_lshlrev_b32 v1, 2, v1
v_add_u32 v{vPL}, {FLAG_S}, v1
s_mov_b32 s{sHM}, 0x24
v_and_b32 v1, 31, v{vL}
v_lshlrev_b32 v1, 1, v1
s_and_b32 s{sT0}, s{sW}, 1
s_add_u32 s{sT0}, s{sT0}, s{sST}
s_sub_u32 s{sT0}, s{sT0}, 16
v_add_u32 v1, s{sT0}, v1
v_mov_b32 v3, {OOB}""")
for G in range(3):
    A(f"""v_cmp_gt_u32 vcc, 2048, v1
v_lshlrev_b32 v2, 2, v1
v_add_u32 v2, {STAT_OFF}, v2
v_cndmask_b32 v{36+G}, v3, v2, vcc""")
    if G < 2: A('v_add_u32 v1, 64, v1')
stamp(1)
A(f's_waitcnt vmcnt({vm.need({"sr"})})')
stamp(1)
E = Inter()
E.push([g + [lambda: vm.issue('s1')] for g in AD], 9)
stat_compute(E); vm.issue('st')
stamp(1)
vMSK = vTMP
E(f"""v_and_b32 v1, 31, v{vL}
v_lshrrev_b32 v3, 5, v{vL}
v_lshlrev_b32 v2, 2, v3
v_sub_u32 v2, v1, v2
v_mov_b32 v{vTMP+20}, 0xff800000""")
for j in range(20):
    cj = (8 * (j // 4) + j % 4) if j < 16 else (8 * 3 + (j - 16) - 32)
    E(f'v_subrev_u32 v{vMSK+j}, {cj}, v2' if cj >= 0 else f'v_add_u32 v{vMSK+j}, {-cj}, v2')
for j in range(0, 20, 2):
    E(f'v_cmp_gt_u32 vcc, 8, v{vMSK+j}')
    E(f'v_cmp_gt_u32 s[{sT4}:{sT5}], 8, v{vMSK+j+1}')
    E(f'v_cndmask_b32 v{vMSK+j}, v{vTMP+20}, 0, vcc')
    E(f'v_cndmask_b32 v{vMSK+j+1}, v{vTMP+20}, 0, s[{sT4}:{sT5}]')
E.flush()
lines(ADV); lines(SOFF)
touch_b(E, vm)
A(f'v_mov_b32 v1, 0\nglobal_load_dword v30, v1, s[{sDBG}:{sDBG+1}] sc1'); vm.issue('tag')
stamp(1)
A(f's_waitcnt vmcnt({vm.need({"s0"})}) lgkmcnt(0)\ns_barrier')
stamp(); stamp(1)
def xf(p, G): return vFR + (p & 1) * 24 + 4 * G
def wf(p, m): return vFR + (p & 1) * 24 + 12 + 4 * m
def a_rd(p, k):
    kind, i = [('w', 0), ('x', 0), ('x', 1), ('x', 2), ('w', 1), ('w', 2)][k]
    if kind == 'x':
        A(f'ds_read_b128 {vr(xf(p, i), 4)}, v{vRX+p} offset:{i*4096}'); lg.issue(('x', p, i))
    else:
        A(f'ds_read_b64_tr_b16 {vr(wf(p, i), 2)}, v{vRW+p} offset:{i*1024}'); lg.issue(('w', p, i))
        A(f'ds_read_b64_tr_b16 {vr(wf(p, i)+2, 2)}, v{vRW+p} offset:{i*1024+512}'); lg.issue(('w', p, i))
def a_mfma(n):
    p, r = divmod(n, 9); m, G = divmod(r, 3)
    acc = vr(vACC + 48*m + 16*G, 16)
    if m < 2: mfma(acc, vr(wf(p, m), 4), vr(xf(p, G), 4), acc)
    else: mfma(acc, vr(xf(p, G), 4), vr(wf(p, m), 4), acc)
NH = 5
DSLOT12 = [0, 3, 6, 9, 12, 15, 18, 21, 24, 27, 30, 33]
def a_fill(main):
    fill = {}
    if not OPT['nodma']: spread(AD if main else tail_dma(False), DSLOT12, fill)
    spread([[x] for x in RDELTA[:2]] + [RDELTA[2:]], [5, 7, 8], fill)
    if main:
        spread([[SOFF[0], SOFF[2]], [f's_mul_i32 s{sT3}, s{sKS}, s{sMW}', f's_add_u32 s{sT3}, s{sT3}, s{sBW}'], SOFF[4:6],
                [f's_mov_b32 s{sOW}, s{sT3}']], [17, 19, 20, 33], fill)
    spread([ADV], [32], fill)
    spread([[f'v_add_u32 v{vRX+i}, s{sDELTA}, v{vRX+i}', f'v_add_u32 v{vRW+i}, s{sDELTA}, v{vRW+i}'] for i in range(4)], [11, 13, 22, 31], fill)
    return fill
def a_head(fill, with_mfma, extra=None):
    lg.drain()
    a_rd(0, 0)
    for m in range(NH):
        if with_mfma: a_mfma(36 - NH + m)
        a_rd(0, m + 1)
        if m == 0 and extra: extra()
        lines(fill.get(m, []))
def a_rest(fill, last_it, label):
    for n in range(36 - NH):
        p, r = divmod(n, 9); m, G = divmod(r, 3)
        if n == 35 - NH:
            A('s_waitcnt vmcnt(12) lgkmcnt(0)'); lg.drain()
        c = lg.need({('w', p, m), ('x', p, G)})
        if c is not None: A(f's_waitcnt lgkmcnt({c})')
        a_mfma(n)
        if p < 3 and r < 6: a_rd(p + 1, r)
        lines(fill.get(n + NH, []))
        if n == 34 - NH: A(f's_add_u32 s{sIT}, s{sIT}, 1\ns_cmp_lt_u32 s{sIT}, {last_it}')
    A(f's_barrier\ns_cbranch_scc1 {label}')
am, at = a_fill(True), a_fill(False)
a_head(am, False)
A('s_branch L_aent')
A.label('L_aloop')
a_head(am, True, lambda: A(f's_bitcmp1_b32 s{sHM}, s{sIT}\ns_cbranch_scc1 L_ah\nL_aback:'))
A.label('L_aent')
a_rest(am, 6, 'L_aloop')
def a_inter():
    check_flag0('a')
    for G in range(3): A(f'buffer_load_dword v{vST+G}, v{36+G}, {srd(SRD_AUX)}, 0 offen sc1')
    tail_setup()
a_head(at, True, a_inter)
A('s_branch L_atent')
A.label('L_atail')
a_head(at, True)
A.label('L_atent')
a_rest(at, 8, 'L_atail')
stamp()
for n in range(36 - NH, 36): a_mfma(n)
QD, KD, VD = vACC, vACC + 48, vACC + 96
vRR = 10
vBM = vFR + 24
vCF = vFR + 36
A(f'''s_mul_i32 s{sT0}, s{sW}, 768
s_add_u32 s{sT0}, s{sT0}, {SPARE}
v_and_b32 v1, 31, v{vL}
v_lshrrev_b32 v2, 5, v{vL}
v_lshl_add_u32 v37, v1, 2, s{sT0}
v_lshl_add_u32 v38, v2, 4, s{sT0}
v_cmp_gt_u32 vcc, 32, v{vL}''')
for G in range(3):
    A(f'''v_and_b32 v1, 0xffff, v{vST+G}
v_and_b32 v{vRR+G}, 0xffff0000, v{vST+G}
v_lshl_or_b32 v1, v1, 16, v1
v_max_f32 v{vRR+G}, {f2u(1e-3)}, v{vRR+G}
v_cndmask_b32 v{vBM+4*G}, 0, v1, vcc
v_rcp_f32 v{vRR+G}, v{vRR+G}
v_mov_b32 v{vBM+4*G+1}, 0
v_mov_b32 v{vBM+4*G+2}, 0
v_mov_b32 v{vBM+4*G+3}, 0
ds_write_b32 v37, v{vRR+G} offset:{256+G*128}
v_mul_f32 v{vRR+3+G}, {f2u(0.25*LOG2E)}, v{vRR+G}''')
A('s_mov_b32 exec_lo, 1\ns_mov_b32 exec_hi, 1')
for m in range(2):
    for a_ in range(4):
        A(f'ds_write_b128 v38, {vr(vACC + 48*m + 4*a_, 4)} offset:{m*128 + a_*32}')
A('s_mov_b64 exec, -1')
for i in range(12):
    if i % 4: A(f'v_mov_b32 v{vCF+i}, 0')
A(f'v_mov_b32 v{vCF+8}, v{VD}')
split_hilo(vCF + 8, 1)
A(f'ds_read_b32 v{vCF}, v37\nds_read_b32 v{vCF+4}, v37 offset:128')
for G in range(3):
    acc = vr(VD + 16*G, 16); mfma(acc, vr(vBM+4*G, 4), vr(vCF+8, 4), acc)
baddr_setup()
A('s_waitcnt lgkmcnt(0)')
split_hilo(vCF, 1); split_hilo(vCF + 4, 2)
vRROW = vFR
for m in (1, 0):
    for G in range(3):
        acc = vr(vACC + 48*m + 16*G, 16); mfma(acc, vr(vCF+4*m, 4), vr(vBM+4*G, 4), acc)
        if m == 1 and G == 0: static_setup()
        if m == 1 and G == 1:
            for a_ in range(4): A(f'ds_read_b128 {vr(vRROW+4*a_, 4)}, v38 offset:{256+a_*32}')
        if m == 1 and G == 2:
            A(f'''v_and_b32 v1, 31, v{vL}
s_lshr_b32 s{sT0}, s{sST}, 1
s_sub_u32 s{sT0}, s{sT0}, 8
v_add_u32 v2, s{sT0}, v1
s_and_b32 s{sT2}, s{sW}, 1
s_mul_i32 s{sT2}, s{sT2}, {TG_STRIDE}
s_lshl_b32 s{sT3}, s{sB}, 2
s_and_b32 s{sT4}, s{sW}, 2
s_add_u32 s{sT3}, s{sT3}, s{sT4}
s_add_u32 s{sT3}, s{sT3}, 86
s_lshl_b32 s{sT3}, s{sT3}, 10
s_add_u32 s{sOX}, s{sT2}, s{sT3}
s_mov_b32 s{sT2}, {2*TG_STRIDE}
v_lshrrev_b32 v3, 5, v{vL}
v_lshlrev_b32 v3, 9, v3''')
        if m == 0:
            d = vDMA + 1 + G
            A(f'''v_lshrrev_b32 v{d}, 5, v2
v_mul_lo_u32 v{d}, v{d}, s{sT2}
v_and_b32 v{vDMA+5}, 31, v2
v_lshl_add_u32 v{vDMA+5}, v{vDMA+5}, 4, v3
v_add_u32 v{d}, v{d}, v{vDMA+5}
v_add_u32 v2, 32, v2''')
A(f'''v_cmp_le_u32 vcc, 8, v1
v_mov_b32 v{vDMA+5}, {OOB}
v_cndmask_b32 v{vDMA+1}, v{vDMA+5}, v{vDMA+1}, vcc''')
for G in (1, 2):
    for a_ in range(4): A(f'ds_read_b128 {vr(vRROW+16*G+4*a_, 4)}, v38 offset:{256+G*128+a_*32}')
vm = Q(63)
for i in range(12): vm.issue('v9')
E = Inter()
E.push(mix(breg_groups(0), static_groups(0, vm)), 4)
QP, KP, VP = QD, KD, VD
def pk_scale_lane(dst, src, r):
    ev = r & ~1; sl = r & 1
    for k in range(8):
        E(f'v_pk_mul_f32 {vr(src+2*k, 2)}, {vr(src+2*k, 2)}, {vr(ev, 2)} op_sel:[0,{sl}] op_sel_hi:[1,{sl}]')
    for k in range(8):
        E(f'v_cvt_pk_bf16_f32 v{dst+k}, v{src+2*k}, v{src+2*k+1}')
A('s_waitcnt lgkmcnt(0)')
for G in range(3):
    for k in range(8):
        E(f'v_pk_mul_f32 {vr(VP+16*G+2*k, 2)}, {vr(VP+16*G+2*k, 2)}, {vr(vRROW+16*G+2*k, 2)}')
    for k in range(8):
        E(f'v_cvt_pk_bf16_f32 v{VP+8*G+k}, v{VP+16*G+2*k}, v{VP+16*G+2*k+1}')
for G in range(3): pk_scale_lane(KP + 8*G, KP + 16*G, vRR + G)
for G in range(3): pk_scale_lane(QP + 8*G, QP + 16*G, vRR + 3 + G)
SD = [40, 56]; SP = [72, 136]; OO = [184, 232]; PD = [152, 200]; PP = [248, 252]
MX = [26, 28]
E(f'v_mov_b32 v248, 0\nv_mov_b32 v249, 0\nv_mov_b32 v252, 0\nv_mov_b32 v253, 0')
def s_mm(G, e):
    E(mf(vr(SD[e], 16), vr(KP+8*G+4*e, 4), vr(QP+8*G+4*e, 4), vr(vMSK, 16)))
    if G: E(mf(vr(SP[e], 16), vr(KP+8*(G-1)+4*e, 4), vr(QP+8*G+4*e, 4), vr(vMSK+4, 16)))
def soft(G, e):
    s = SD[e]; sp = SP[e] + 12
    mx = MX[e]; o1 = mx + 1
    vals = [s + i for i in range(16)] + ([sp + i for i in range(4)] if G else [])
    E(f'v_max3_f32 v{mx}, v{vals[0]}, v{vals[1]}, v{vals[2]}')
    E(f'v_max3_f32 v{o1}, v{vals[3]}, v{vals[4]}, v{vals[5]}')
    rest = vals[6:]; tgt = [mx, o1]; i = 0
    while rest:
        E(f'v_max3_f32 v{tgt[i&1]}, v{tgt[i&1]}, v{rest[0]}, v{rest[1]}'); rest = rest[2:]; i += 1
    E(f'v_max_f32 v{mx}, v{mx}, v{o1}')
    E(f'v_mov_b32 v{o1}, v{mx}')
    E(f'v_permlane32_swap_b32 v{mx}, v{o1}')
    E(f'v_max_f32 v{mx}, v{mx}, v{o1}')
    prs = [vals[i] for i in range(0, len(vals), 2)]
    for r in prs:
        E(f'v_pk_add_f32 {vr(r, 2)}, {vr(r, 2)}, {vr(mx, 2)} op_sel:[0,0] op_sel_hi:[1,0] neg_lo:[0,1] neg_hi:[0,1]')
    for r in vals: E(f'v_exp_f32 v{r}, v{r}')
    for k in range(8): E(f'v_cvt_pk_bf16_f32 v{PD[e]+k}, v{s+2*k}, v{s+2*k+1}')
    if G:
        for k in range(2): E(f'v_cvt_pk_bf16_f32 v{PP[e]+2+k}, v{sp+2*k}, v{sp+2*k+1}')
    while len(prs) > 1:
        nxt = []
        for i in range(0, len(prs) - 1, 2):
            E(f'v_pk_add_f32 {vr(prs[i], 2)}, {vr(prs[i], 2)}, {vr(prs[i+1], 2)}'); nxt.append(prs[i])
        if len(prs) & 1: nxt.append(prs[-1])
        prs = nxt
    E(f'v_add_f32 v{mx}, v{prs[0]}, v{prs[0]+1}')
    E(mf(vr(OO[e], 16), vr(VP+8*G, 4), vr(PD[e], 4), '0'))
    E(f'v_mov_b32 v{o1}, v{mx}')
    E(mf(vr(OO[e], 16), vr(VP+8*G+4, 4), vr(PD[e]+4, 4), vr(OO[e], 16)))
    E(f'v_permlane32_swap_b32 v{mx}, v{o1}')
    if G: E(mf(vr(OO[e], 16), vr(VP+8*(G-1)+4, 4), vr(PP[e], 4), vr(OO[e], 16)))
    E(f'v_add_f32 v{mx}, v{mx}, v{o1}')
    E(f'v_rcp_f32 v{mx}, v{mx}')
def fin(G, e):
    mx = MX[e]
    o = OO[e] + 8 * e
    for k in range(4):
        E(f'v_pk_mul_f32 {vr(o+2*k, 2)}, {vr(o+2*k, 2)}, {vr(mx, 2)} op_sel:[0,0] op_sel_hi:[1,0]')
    d = OO[e] + 8 * (1 - e)
    for k in range(4): E(f'v_cvt_pk_bf16_f32 v{d+k}, v{o+2*k}, v{o+2*k+1}')
    off = ' offset:1024' if e else ''
    E(f'buffer_store_dwordx4 {vr(d, 4)}, v{vDMA+1+G}, {srd(SRD_ACT)}, s{sOX} offen{off} sc1'); vm.issue('st')
E.flush()
for j in range(4): A(f'v_mov_b32 v{12+j}, v{vMSK+j}')
A(f's_cmp_lg_u32 s{sA}, 0\ns_cbranch_scc1 L_anomask')
for j in range(4): A(f'v_mov_b32 v{vMSK+j}, v{vTMP+20}')
A.label('L_anomask')
s_mm(0, 0); s_mm(0, 1)
A(f's_waitcnt vmcnt({vm.need({"v9"})}) lgkmcnt(0)\ns_barrier')
stamp()
for j in range(4): A(f'v_mov_b32 v{vMSK+j}, v{12+j}')
E.push(mix(breg_groups(1), static_groups(1, vm)), 4)
for G in range(3):
    soft(G, 0)
    if G < 2: s_mm(G + 1, 0)
    soft(G, 1)
    if G < 2: s_mm(G + 1, 1)
    if G == 0:
        E.flush()
        A('s_waitcnt lgkmcnt(0)\ns_barrier')
        E.push(static_groups(2, vm), 10)
    if G == 2: E.flush()
    fin(G, 0); fin(G, 1)
A(f'''s_lshl_b32 s{sFLAG}, s{sA}, 5
s_lshl_b32 s{sT0}, s{sB}, 2
s_add_u32 s{sFLAG}, s{sFLAG}, s{sT0}
s_add_u32 s{sFLAG}, s{sFLAG}, {FLAG_A}''')
assert nstamp[0] == nst_save, (nstamp[0], nst_save)

A.label('L_phase2')
stamp()
vF, vS = 192, 224
vXR = 24
vRING = 40; NRING = 38
vAO = 4; vPO = 5; vOO = 6; vEX = 7
aLB = 192
baddr_final()
A(f'''v_and_b32 v1, 31, v{vL}
v_lshrrev_b32 v2, 5, v{vL}
s_and_b32 s{sT0}, s{sW}, 1
s_lshr_b32 s{sT1}, s{sW}, 1
s_lshl_b32 s{sT2}, s{sR}, 6
s_add_u32 s{sT2}, s{sT2}, s{sT0}
s_lshl_b32 s{sT2}, s{sT2}, 10
s_lshl_b32 s{sT3}, s{sCB}, 7
s_add_u32 s{sT2}, s{sT2}, s{sT3}
s_lshl_b32 s{sT3}, s{sT1}, 6
s_add_u32 s{sT2}, s{sT2}, s{sT3}
v_lshlrev_b32 v{vOO}, 11, v1
v_lshl_add_u32 v{vOO}, v2, 4, v{vOO}
v_add_u32 v{vOO}, s{sT2}, v{vOO}
buffer_load_dwordx4 v[8:11], v{vOO}, {srd(SRD_XR)}, 0 offen
buffer_load_dwordx4 v[12:15], v{vOO}, {srd(SRD_XR)}, 0 offen offset:32
v_lshlrev_b32 v{vAO}, 4, v{vL}
s_lshl_b32 s{sT2}, s{sR}, 1
s_add_u32 s{sT2}, s{sT2}, s{sT0}
s_mul_i32 s{sOX}, s{sT2}, {TG_STRIDE}
s_mul_i32 s{sT3}, s{sT1}, {27*1024}
s_mul_i32 s{sT2}, s{sT1}, {32*1024}
s_add_u32 s{sOW}, s{sOX}, {86*1024}
s_sub_u32 s{sOW}, s{sOW}, s{sT2}
s_add_u32 s{sOX}, s{sOX}, s{sT3}''')
A(f'''v_and_b32 v1, 15, v{vL}
s_lshr_b32 s{sT2}, s{sR}, 1
s_lshl_b32 s{sT2}, s{sT2}, 7
s_mul_i32 s{sT3}, s{sT1}, 12
s_add_u32 s{sT3}, s{sT3}, s{sT2}
v_min_u32 v2, 2, v1
v_lshl_add_u32 v2, v2, 2, s{sT3}
s_lshl_b32 s{sT3}, s{sR}, 6
s_mul_i32 s{sT4}, s{sT3}, 745
s_lshr_b32 s{sT4}, s{sT4}, 17
s_add_u32 s{sT3}, s{sT3}, 63
s_mul_i32 s{sT3}, s{sT3}, 745
s_lshr_b32 s{sT3}, s{sT3}, 17
s_sub_u32 s{sT3}, s{sT3}, s{sT4}
s_lshl_b32 s{sT3}, s{sT3}, 3
s_add_u32 s{sT3}, s{sT3}, 7
s_lshl_b32 s{sT4}, s{sT4}, 5
s_add_u32 s{sT4}, s{sT4}, {FLAG_A}
s_add_u32 s{sT2}, s{sT2}, 24
s_cmp_eq_u32 s{sT1}, 0
s_cselect_b32 s{sT3}, s{sT3}, 3
s_cselect_b32 s{sT4}, s{sT4}, s{sT2}
v_min_u32 v3, s{sT3}, v1
v_lshl_add_u32 v3, v3, 2, s{sT4}
v_bfe_u32 v1, v{vL}, 4, 1
v_cmp_eq_u32 vcc, 0, v1
v_cndmask_b32 v{vPO}, v3, v2, vcc
v_mov_b32 v1, s{sFLAG}
v_mov_b32 v2, s{sTAG}''')
for i in range(64): A(f'v_mov_b32 v{vF+i}, 0')
A(f'''s_waitcnt vmcnt(0)
s_barrier
s_cmp_lg_u32 s{sW}, 0
s_cbranch_scc1 L_noflag
s_mov_b64 exec, 1
buffer_store_dword v2, v1, {srd(SRD_AUX)}, 0 offen sc1
s_mov_b64 exec, -1
L_noflag:''')
stamp()
A(f'''buffer_load_dword v3, v{vPO}, {srd(SRD_AUX)}, 0 offen sc1
v_permlane32_swap_b32 v8, v10
v_permlane32_swap_b32 v9, v11
v_permlane32_swap_b32 v12, v14
v_permlane32_swap_b32 v13, v15''')
for i in range(8):
    A(f'v_lshlrev_b32 v{vXR+2*i}, 16, v{8+i}\nv_and_b32 v{vXR+2*i+1}, 0xffff0000, v{8+i}')
A(f'''s_mov_b32 s{sT0}, 0
L_poll1:
s_waitcnt vmcnt(0)
v_cmp_eq_u32 vcc, s{sTAG}, v3
s_and_b32 s{sT1}, vcc_lo, 0xffff
s_cmp_eq_u32 s{sT1}, 0xffff
s_cbranch_scc1 L_poll1ok
buffer_load_dword v3, v{vPO}, {srd(SRD_AUX)}, 0 offen sc1
s_add_u32 s{sT0}, s{sT0}, 1
s_cmp_lt_u32 s{sT0}, {SPIN}
s_cbranch_scc1 L_poll1
L_poll1ok:
s_mov_b32 s{sROLE}, vcc_lo''')
stamp()
vm = Q(63); lg = Q(15)
def a_load(st):
    so = sOX if st < 27 else sOW
    k = st if st < 27 else st - 27
    if k and k % 4 == 0: A(f's_add_u32 s{so}, s{so}, 4096')
    off = f' offset:{(k % 4)*1024}' if k % 4 else ''
    A(f'buffer_load_dwordx4 {vr(vRING + 4*(st % NRING), 4)}, v{vAO}, {srd(SRD_ACT)}, s{so} offen{off} sc1')
    vm.issue(st)
def b_read(st, ct):
    r = [i for i, (a, b) in enumerate(REG_STEPS) if a <= st < b][0]
    off = (st - REG_STEPS[r][0]) * 2048
    for hf in range(2):
        A(f'ds_read_b64_tr_b16 {ar(aLB + (st % 4)*8 + ct*4 + hf*2, 2)}, v{vB + 2*r + ct} offset:{off + hf*1024}')
        lg.issue(st)
NB = OPT['burst']
for st in range(NB): a_load(st)
P2AT = 27 - NB
nextld = NB
for st in range(59):
    if st == P2AT:
        A(f'''s_cmp_eq_u32 s{sROLE}, -1
s_cbranch_scc1 L_poll2ok
s_mov_b32 s{sT0}, 0
L_poll2:
buffer_load_dword v3, v{vPO}, {srd(SRD_AUX)}, 0 offen sc1
s_waitcnt vmcnt(0)
v_cmp_eq_u32 vcc, s{sTAG}, v3
s_add_u32 s{sT0}, s{sT0}, 1
s_cmp_eq_u32 vcc_lo, -1
s_cbranch_scc1 L_poll2ok
s_cmp_lt_u32 s{sT0}, {SPIN}
s_cbranch_scc1 L_poll2
L_poll2ok:''')
    w = []
    c = vm.need({st})
    if c is not None: w.append(f'vmcnt({c})')
    c = lg.need({st})
    if c is not None: w.append(f'lgkmcnt({c})')
    if w: A('s_waitcnt ' + ' '.join(w))
    acc = vF if st < 27 else vS
    for ct in range(2):
        b = ar(st*8 + ct*4, 4) if st < NREG else ar(aLB + (st % 4)*8 + ct*4, 4)
        mfma(vr(acc + 16*ct, 16), b, vr(vRING + 4*(st % NRING), 4), vr(acc + 16*ct, 16))
        if NREG <= st + 3 < 59: b_read(st + 3, ct)
        if ct == 0 and nextld < 59:
            a_load(nextld); nextld += 1
stamp()
A(f'''s_and_b32 s{sT0}, s{sW}, 1
s_mul_i32 s{sT0}, s{sT0}, 12288
s_add_u32 s{sT0}, s{sT0}, {SLOT}
v_add_u32 v{vEX}, s{sT0}, v{vAO}
s_barrier
s_cmp_ge_u32 s{sW}, 2
s_cbranch_scc1 L_kh1''')
for i in range(4): A(f'ds_write_b128 v{vEX}, {vr(vF+16+4*i, 4)} offset:{i*1024}')
for i in range(4): A(f'ds_write_b128 v{vEX}, {vr(vS+16+4*i, 4)} offset:{4096+i*1024}')
A('s_waitcnt lgkmcnt(0)\ns_barrier')
for i in range(4): A(f'ds_read_b128 {vr(vRING+4*i, 4)}, v{vEX} offset:{8192+i*1024}')
for i in range(8):
    if i % 2 == 0: A(f's_waitcnt lgkmcnt({3 - i//2})')
    A(f'v_pk_add_f32 {vr(vF+2*i, 2)}, {vr(vF+2*i, 2)}, {vr(vRING+2*i, 2)}')
A('s_branch L_final')
A.label('L_kh1')
for i in range(8): A(f'v_pk_add_f32 {vr(vF+2*i, 2)}, {vr(vF+2*i, 2)}, {vr(vS+2*i, 2)}')
for i in range(4): A(f'ds_write_b128 v{vEX}, {vr(vF+4*i, 4)} offset:{8192+i*1024}')
for i in range(8): A(f'v_pk_add_f32 {vr(vF+16+2*i, 2)}, {vr(vF+16+2*i, 2)}, {vr(vS+16+2*i, 2)}')
A('s_waitcnt lgkmcnt(0)\ns_barrier')
for i in range(4): A(f'ds_read_b128 {vr(vRING+4*i, 4)}, v{vEX} offset:{i*1024}')
for i in range(4): A(f'ds_read_b128 {vr(vS+4*i, 4)}, v{vEX} offset:{4096+i*1024}')
for i in range(8):
    if i % 2 == 0: A(f's_waitcnt lgkmcnt({7 - i//2})')
    A(f'v_pk_add_f32 {vr(vF+2*i, 2)}, {vr(vF+16+2*i, 2)}, {vr(vRING+2*i, 2)}')
A('s_waitcnt lgkmcnt(0)')
A.label('L_final')
t = vRING + 16
assert sT1 % 2 == 0
A(f's_mov_b32 s{sT1}, {f2u(-LOG2E)}\ns_mov_b32 s{sT1+1}, {f2u(-LOG2E)}')
for i in range(8): A(f'v_pk_mul_f32 {vr(t+2*i, 2)}, {vr(vF+2*i, 2)}, s[{sT1}:{sT1+1}]')
for i in range(16): A(f'v_exp_f32 v{t+i}, v{t+i}')
for i in range(8): A(f'v_pk_mul_f32 {vr(vS+2*i, 2)}, {vr(vS+2*i, 2)}, {vr(vF+2*i, 2)}')
for i in range(8): A(f'v_pk_add_f32 {vr(t+2*i, 2)}, {vr(t+2*i, 2)}, 1.0 op_sel_hi:[1,0]')
for i in range(16): A(f'v_rcp_f32 v{t+i}, v{t+i}')
for i in range(8): A(f'v_pk_fma_f32 {vr(t+2*i, 2)}, {vr(t+2*i, 2)}, {vr(vS+2*i, 2)}, {vr(vXR+2*i, 2)}')
for i in range(8): A(f'v_cvt_pk_bf16_f32 v{8+i}, v{t+2*i}, v{t+2*i+1}')
A(f'''v_permlane32_swap_b32 v8, v10
v_permlane32_swap_b32 v9, v11
v_permlane32_swap_b32 v12, v14
v_permlane32_swap_b32 v13, v15
buffer_store_dwordx4 v[8:11], v{vOO}, {srd(SRD_OUT)}, 0 offen
buffer_store_dwordx4 v[12:15], v{vOO}, {srd(SRD_OUT)}, 0 offen offset:32''')
if OPT['stamps']:
    stamp()
    A('s_waitcnt vmcnt(0)')
    stamp()
    A(f'''s_lshl_b32 s{sT0}, s2, 8
s_lshl_b32 s{sT1}, s{sW}, 6
s_add_u32 s{sT0}, s{sT0}, s{sT1}
s_add_u32 s{sT0}, s{sT0}, {STAMP_OFF}
v_mov_b32 v1, s{sT0}
global_store_dwordx4 v1, {ar(aST, 4)}, s[{sWS}:{sWS+1}]
global_store_dwordx4 v1, {ar(aST+4, 4)}, s[{sWS}:{sWS+1}] offset:16
global_store_dwordx4 v1, {ar(aST+8, 4)}, s[{sWS}:{sWS+1}] offset:32''')
A.label('L_end')
A('s_endpgm')

A.label('L_ah')
A(f"""s_cmp_eq_u32 s{sIT}, 5
s_cbranch_scc1 L_ah5""")
post_flag0('a')
A.label('L_ah5')
A(f'buffer_load_dword v30, v{vPL}, {srd(SRD_AUX)}, 0 offen sc1\ns_branch L_aback')

body = A.finish(verbose=False)
hdr = open('cdna_kernels/' + NAME + '.s.ref').read().split('; Override launch')[0]
out = hdr + f'''; @launch grid=(256,1,1) block=(256,1,1) lds={LDS_BYTES}
.amdgcn_target "amdgcn-amd-amdhsa--gfx950"
.text
.globl {NAME}_kernel
.p2align 8
.type {NAME}_kernel,@function
''' + body + f'''L_codeend:
.fill (33024 - (L_codeend - {NAME}_kernel)) / 4, 4, 0xbf810000
.section .rodata,"a"
.p2align 6
.amdhsa_kernel {NAME}_kernel
  .amdhsa_next_free_vgpr 512
  .amdhsa_next_free_sgpr 102
  .amdhsa_accum_offset 256
  .amdhsa_group_segment_fixed_size 0
  .amdhsa_kernarg_size 80
  .amdhsa_user_sgpr_count 2
  .amdhsa_user_sgpr_kernarg_segment_ptr 1
  .amdhsa_system_sgpr_workgroup_id_x 1
.end_amdhsa_kernel
'''
sys.stdout.write(out)
sys.stderr.write(f'nops inserted: {A.nops}\n')
```

```python
import sys, os, struct
sys.path.insert(0, os.path.dirname(os.path.abspath(__file__)))
from asmlib import Asm, Q

NAME = "recurrent_scan__sliding_local_dilated__swiglu_ffn__prompt"
OPT = dict(dbgwg=-1, stamps=0, sg=0, rot=1, nodma=0, btouch=1, map2=0, burst=12)
for a in sys.argv[1:]:
    k, v = a.split('=')
    assert k in OPT, k
    OPT[k] = int(v)

SLOT = 53504
UPOFF = 18560
SPARE = 3 * SLOT
LDS_BYTES = 163840
ACT_OFF = 1 << 20
TG_STRIDE = 118 * 1024
ACT_BYTES = 64 * TG_STRIDE
FLAG_F = 0
FLAG_A = 0x1000
FLAG_S = 0x1400
FLAG_C = 0x1800
STAT_OFF = 0x2000
CS_OFF = 0x8000
AUX_BYTES = 0x8000 + 10 * 9216
STAMP_OFF = 1 << 19
NREG = 24
LOG2E = 1.4426950408889634
OOB = 0x80000000
SPIN = 0x40000
def f2u(x): return struct.unpack('<I', struct.pack('<f', x))[0]

sW = 3
SRD_X, SRD_W, SRD_ACT, SRD_B2, SRD_XR, SRD_OUT = 4, 8, 12, 16, 20, 24
sDBG, sWS = 28, 30
sKA = 32
sIT, sKS, sBX, sBW, sMX, sMW, sOX, sOW = 48, 49, 50, 51, 52, 53, 54, 55
sD = 56
sSLOT, sDELTA, sONES, sRS = 60, 61, 62, 63
sR, sCB, sA, sB, sTAG, sT0, sT1, sT2, sT3 = 64, 65, 66, 67, 68, 69, 70, 71, 72
sHM, sST, sFLAG, sSOFF, sROLE, sT4, sT5 = 73, 74, 75, 76, 77, 78, 79
SRD_AUX = 80
SRD_T = 84
sEX = 88
sTO = 90
sSTAMP = 92
def srd(n): return f's[{n}:{n+3}]'

vL = 0
vDMA = 4
vRX, vRW = 17, 21
vST = 25
vPL = 28
vCS = 31
vFR = 40
vTMP = 88
vACC = 112
aCS = 192
aST = 240
def vr(b, n): return f'v[{b}:{b+n-1}]'
def ar(b, n): return f'a[{b}:{b+n-1}]'

A = Asm()
STI = 's_memtime' if OPT['stamps'] == 2 else 's_memrealtime'
nstamp = [0]
def stamp(grp=0):
    if not OPT['stamps'] or grp != OPT['sg']: return
    i = nstamp[0]; nstamp[0] += 1
    assert i < 12
    A(f'{STI} s[{sSTAMP}:{sSTAMP+1}]\ns_waitcnt lgkmcnt(0)\nv_accvgpr_write_b32 a{aST+i}, s{sSTAMP}')

def mf(d, a, b, c): return f'v_mfma_f32_32x32x16_bf16 {d}, {a}, {b}, {c}'
def mfma(d, a, b, c): A(mf(d, a, b, c))

def spread(groups, slots, into=None):
    out = {} if into is None else into
    n = len(groups)
    for i, g in enumerate(groups):
        out.setdefault(slots[(i * len(slots)) // n], []).extend(g)
    return out

class Inter:
    def __init__(self): self.g = []; self.every = 1; self.c = 0
    def push(self, groups, every): self.g += list(groups); self.every = every; self.c = 0
    def __call__(self, text):
        for l in text.split('\n'):
            l = l.strip()
            if not l: continue
            A(l); self.c += 1
            if self.g and self.c >= self.every:
                g = self.g.pop(0)
                for x in g: (x() if callable(x) else A(x))
                self.c = 0
    def flush(self):
        while self.g:
            for x in self.g.pop(0): (x() if callable(x) else A(x))

def build_srd(n, plo, size, E=None):
    (E or A)(f'''s_mov_b32 s{n}, s{plo}
s_mov_b32 s{n+1}, s{plo+1}
s_mov_b32 s{n+2}, {size}
s_mov_b32 s{n+3}, 0x20000''')

SOFF = [f's_mul_i32 s{sOX}, s{sKS}, s{sMX}', f's_mul_i32 s{sOW}, s{sKS}, s{sMW}',
        f's_add_u32 s{sOX}, s{sOX}, s{sBX}', f's_add_u32 s{sOW}, s{sOW}, s{sBW}',
        f's_add_u32 s{sKS}, s{sKS}, 1', f's_and_b32 s{sKS}, s{sKS}, 7']
ADV = [f's_add_u32 s{sSLOT}, s{sSLOT}, {SLOT}', f's_cmp_eq_u32 s{sSLOT}, {3*SLOT}', f's_cselect_b32 s{sSLOT}, 0, s{sSLOT}']
RDELTA = [f's_add_u32 s{sRS}, s{sRS}, 1', f's_mov_b32 s{sDELTA}, {SLOT}', f's_cmp_eq_u32 s{sRS}, 3',
          f's_cmov_b32 s{sDELTA}, {(-2*SLOT) & 0xffffffff}', f's_cmov_b32 s{sRS}, 0']
def lines(L):
    for l in L: A(l)

def dma_list(nx, nw, per, exmask=False):
    out = []
    for i in range(nx + nw):
        if per == 4: g, im = (0, i) if i < 4 else (1 + (i - 4) // 4, (i - 4) % 4)
        else: g, im = divmod(i, 3)
        pre = [f's_add_u32 m0, s{sSLOT}, s{sD+g}'] if im == 0 else []
        s_, o_ = (SRD_X, sOX) if i < nx else (SRD_W, sOW)
        off = f' offset:{im*1024}' if im else ''
        ld = [f'buffer_load_dwordx4 v{vDMA+i}, {srd(s_)}, s{o_} offen{off} lds']
        if exmask and i == 0: ld = [f's_mov_b64 exec, s[{sEX}:{sEX+1}]'] + ld + ['s_mov_b64 exec, -1']
        out.append(pre + ld)
    return out

def x_patterns(n, per):
    A(f'''v_xor_b32 v{vTMP}, v2, v3
v_lshlrev_b32 v{vTMP}, 4, v{vTMP}
v_lshl_add_u32 v{vDMA}, v1, 11, v{vTMP}
v_xor_b32 v{vTMP+1}, 64, v{vDMA}''')
    for i in range(1, n):
        src = vDMA if i % 2 == 0 else vTMP + 1
        A(f'v_add_u32 v{vDMA+i}, {i*16384 - (i % per)*1024}, v{src}')

vSR = 96
def stat_loads():
    A(f'''s_lshl_b32 s{sT0}, s2, 13
s_lshl_b32 s{sT1}, s{sW}, 11
s_add_u32 s{sT0}, s{sT0}, s{sT1}
v_and_b32 v{vTMP+2}, 31, v{vL}
v_lshlrev_b32 v{vTMP+2}, 4, v{vTMP+2}
v_lshrrev_b32 v{vTMP+3}, 5, v{vL}
v_lshl_add_u32 v{vTMP+2}, v{vTMP+3}, 10, v{vTMP+2}
buffer_load_dwordx4 {vr(vSR, 4)}, v{vTMP+2}, {srd(SRD_XR)}, s{sT0} offen
buffer_load_dwordx4 {vr(vSR+4, 4)}, v{vTMP+2}, {srd(SRD_XR)}, s{sT0} offen offset:512''')

def stat_compute(E):
    sm, sq, t, t2 = vTMP + 4, vTMP + 5, vTMP + 6, vTMP + 7
    E(f'v_mov_b32 v{sm}, 0\nv_mov_b32 v{sq}, 0')
    for i in range(8):
        E(f'v_dot2c_f32_bf16 v{sm}, s{sONES}, v{vSR+i}\nv_dot2c_f32_bf16 v{sq}, v{vSR+i}, v{vSR+i}')
    for r in (1, 2, 4, 8):
        E(f'v_add_f32_dpp v{sm}, v{sm}, v{sm} row_ror:{r} row_mask:0xf bank_mask:0xf')
        E(f'v_add_f32_dpp v{sq}, v{sq}, v{sq} row_ror:{r} row_mask:0xf bank_mask:0xf')
    E(f'''v_mov_b32 v{t}, v{sm}
v_mov_b32 v{t2}, v{sq}
v_permlane16_swap_b32 v{sm}, v{t}
v_permlane16_swap_b32 v{sq}, v{t2}
v_add_f32 v{sm}, v{sm}, v{t}
v_add_f32 v{sq}, v{sq}, v{t2}
v_mul_f32 v{sm}, {f2u(1/512)}, v{sm}
v_mul_f32 v{sq}, {f2u(1/512)}, v{sq}
v_fma_f32 v{sq}, -v{sm}, v{sm}, v{sq}
v_max_f32 v{sq}, 0, v{sq}
v_cvt_pk_bf16_f32 v{sq}, v{sq}, v{sq}
v_lshlrev_b32 v{sq}, 16, v{sq}
v_add_f32 v{sq}, {f2u(1e-5)}, v{sq}
v_cvt_pk_bf16_f32 v{sq}, v{sq}, v{sq}
v_lshlrev_b32 v{sq}, 16, v{sq}
v_sqrt_f32 v{sq}, v{sq}
s_lshl_b32 s{sT0}, s2, 5
s_lshl_b32 s{sT1}, s{sW}, 3
s_add_u32 s{sT0}, s{sT0}, s{sT1}
s_add_u32 s{sT0}, s{sT0}, {STAT_OFF}
v_cvt_pk_bf16_f32 v{sq}, -v{sm}, v{sq}
v_lshlrev_b32 v{t}, 2, v{vTMP+3}''')
    A(f'''s_mov_b32 exec_lo, 1
s_mov_b32 exec_hi, 1
buffer_store_dword v{sq}, v{t}, {srd(SRD_AUX)}, s{sT0} offen sc1
s_mov_b64 exec, -1''')

uid = [0]
def setup2(E):
    uid[0] += 1; n = uid[0]
    for i in range(144): E(f'v_mov_b32 v{vACC+i}, 0')
    build_srd(SRD_AUX, sWS, AUX_BYTES, E)
    build_srd(SRD_OUT, sKA + 14, 2048 * 1024, E)
    A(f'''s_add_u32 s{SRD_ACT}, s{sWS}, {ACT_OFF}
s_addc_u32 s{SRD_ACT+1}, s{sWS+1}, 0
s_mov_b32 s{SRD_ACT+2}, {ACT_BYTES}
s_mov_b32 s{SRD_ACT+3}, 0x20000
s_cmp_ge_u32 s{sW}, 2
s_cselect_b32 s{SRD_B2}, s{sKA+12}, s{sKA+4}
s_cselect_b32 s{SRD_B2+1}, s{sKA+13}, s{sKA+5}
s_mov_b32 s{SRD_B2+2}, {512*1024}
s_cmov_b32 s{SRD_B2+2}, {1376*1024}
s_mov_b32 s{SRD_B2+3}, 0x20000
s_mov_b32 s{sIT}, 0
s_mov_b32 s{sRS}, 0''')

def publish_tag():
    uid[0] += 1; n = uid[0]
    A(f'''s_or_b32 s{sT0}, s2, s{sW}
s_cmp_lg_u32 s{sT0}, 0
s_cbranch_scc1 L_notag{n}
s_memrealtime s[{sT4}:{sT5}]
s_waitcnt lgkmcnt(0)
s_or_b32 s{sT4}, s{sT4}, 1
v_mov_b32 v{vTMP+4}, 0
v_mov_b32 v{vTMP+5}, s{sT4}
s_mov_b64 exec, 1
global_store_dword v{vTMP+4}, v{vTMP+5}, s[{sDBG}:{sDBG+1}] sc1
s_mov_b64 exec, -1
L_notag{n}:''')

vBP = 32
def bpat_setup(E):
    E(f'''v_lshrrev_b32 v1, 3, v{vL}
v_and_b32 v2, 7, v{vL}
v_bfe_u32 v3, v{vL}, 4, 1
v_lshlrev_b32 v3, 2, v3
v_xor_b32 v2, v2, v3
v_lshlrev_b32 v2, 4, v2
v_lshl_add_u32 v{vBP}, v1, 10, v2''')
    for i in range(1, 4): E(f'v_add_u32 v{vBP+i}, {7168*i}, v{vBP}')

def touch_b(E, vm):
    A(f'''s_lshl_b32 s{sT0}, s2, 2
s_add_u32 s{sT0}, s{sT0}, s{sW}
s_sub_u32 s{sT1}, s{sT0}, 734
s_cmp_ge_u32 s{sT0}, 734
s_cselect_b32 s{sT0}, s{sT1}, s{sT0}
s_cselect_b32 s{SRD_T}, s{sKA+4}, s{sKA+12}
s_cselect_b32 s{SRD_T+1}, s{sKA+5}, s{sKA+13}
s_mov_b32 s{SRD_T+2}, {1376*1024 if OPT['btouch'] else 0}
s_cmov_b32 s{SRD_T+2}, {512*1024 if OPT['btouch'] else 0}
s_mov_b32 s{SRD_T+3}, 0x20000
s_mul_i32 s{sTO}, s{sT0}, {15*128}
v_min_u32 v110, 14, v{vL}
v_lshlrev_b32 v110, 7, v110
buffer_load_dword v111, v110, {srd(SRD_T)}, s{sTO} offen''')
    vm.issue('touch')

def tail_setup():
    build_srd(SRD_X, sKA + 12, 1376 * 1024)
    A(f'''s_lshr_b32 s{sT0}, s{sW}, 1
s_mul_i32 s{sT0}, s{sT0}, {432*1024}
s_and_b32 s{sT1}, s{sW}, 1
s_mul_i32 s{sT1}, s{sT1}, {96*1024}
s_add_u32 s{sOX}, s{sT0}, s{sT1}
s_lshl_b32 s{sT1}, s{sCB}, 7
s_add_u32 s{sOX}, s{sOX}, s{sT1}
s_mul_i32 s{sD}, s{sW}, 12288''')

def tail_dma(ffn):
    out = []
    for i in range(12):
        g, im = divmod(i, 4)
        pre = []
        if im == 0:
            pre.append(f's_add_u32 m0, s{sSLOT}, s{sD}' if g == 0 else 's_add_u32 m0, m0, 4096')
        off = f' offset:{im*1024}' if im else ''
        ld = [f'buffer_load_dwordx4 v{vBP+im}, {srd(SRD_X)}, s{sOX} offen{off} lds']
        if im == 3: ld.append(f's_add_u32 s{sOX}, s{sOX}, {32768 if g < 2 else 196608 - 65536}')
        out.append(pre + ld)
    if ffn:
        out.append([f's_add_u32 m0, s{sSLOT}, s{sD+1}', f's_add_u32 s{sOW}, s{sOW}, 4096',
                    f'buffer_load_dwordx4 v{vBP+4}, {srd(SRD_AUX)}, s{sOW} offen sc1 lds'])
    return out

def post_flag0(n):
    A(f'''v_readfirstlane_b32 s{sTAG}, v30
s_mov_b32 s{sT0}, 0
L_tag{n}:
s_cmp_lg_u32 s{sTAG}, 0
s_cbranch_scc1 L_tagok{n}
v_mov_b32 v1, 0
global_load_dword v30, v1, s[{sDBG}:{sDBG+1}] sc1
s_waitcnt vmcnt(0)
v_readfirstlane_b32 s{sTAG}, v30
s_add_u32 s{sT0}, s{sT0}, 1
s_cmp_lt_u32 s{sT0}, {SPIN}
s_cbranch_scc1 L_tag{n}
L_tagok{n}:
s_cmp_lg_u32 s{sW}, 0
s_cbranch_scc1 L_{n}back
v_mov_b32 v1, s{sTAG}
s_mov_b64 exec, 3
buffer_store_dword v1, v{vPL+1}, {srd(SRD_AUX)}, 0 offen sc1
s_mov_b64 exec, -1
s_branch L_{n}back''')

def check_flag0(n):
    A(f'''s_mov_b32 s{sT0}, 0
L_f0{n}:
v_cmp_ne_u32 vcc, s{sTAG}, v30
s_cbranch_vccz L_f0ok{n}
buffer_load_dword v30, v{vPL}, {srd(SRD_AUX)}, 0 offen sc1
s_waitcnt vmcnt(0)
s_add_u32 s{sT0}, s{sT0}, 1
s_cmp_lt_u32 s{sT0}, {SPIN}
s_cbranch_scc1 L_f0{n}
L_f0ok{n}:''')

def split_hilo(r, t, E=None):
    (E or A)(f'''v_cvt_pk_bf16_f32 v{t}, v{r}, v{r}
v_lshlrev_b32 v{t}, 16, v{t}
v_sub_f32 v{t}, v{r}, v{t}
v_cvt_pk_bf16_f32 v{r}, v{r}, v{t}''')

vB = 17
REG_BASE = [SLOT, 2 * SLOT, 0]
REG_STEPS = [(24, 37), (37, 50), (50, 59)]
def baddr_setup():
    A(f'''v_lshrrev_b32 v1, 5, v{vL}
v_bfe_u32 v2, v{vL}, 2, 2
v_lshl_add_u32 v1, v1, 2, v2
v_lshlrev_b32 v1, 7, v1
v_bfe_u32 v2, v{vL}, 3, 1
v_lshl_add_u32 v1, v2, 6, v1
v_bfe_u32 v2, v{vL}, 4, 1
v_lshl_add_u32 v1, v2, 5, v1
v_and_b32 v2, 3, v{vL}
v_lshl_add_u32 v23, v2, 3, v1
s_lshr_b32 s{sT0}, s{sW}, 1
s_mul_i32 s{sT1}, s{sT0}, 24576
v_add_u32 v{vB+2}, s{sT1}, v23
v_xor_b32 v{vB+3}, 64, v{vB+2}
v_add_u32 v{vB}, {2*SLOT}, v{vB+2}
v_add_u32 v{vB+1}, {2*SLOT}, v{vB+3}''')
def breg_groups(half):
    out = []
    for st in range(12 * half, 12 * half + 12):
        for ct in range(2):
            out.append([f'ds_read_b64_tr_b16 {ar(st*8 + ct*4 + hf*2, 2)}, v{vB + 2*half + ct} offset:{(st % 12)*2048 + hf*1024}' for hf in range(2)])
    return out
def baddr_final():
    A(f's_lshr_b32 s{sT0}, s{sW}, 1\ns_mul_i32 s{sT1}, s{sT0}, 26624')
    for r in range(3):
        A(f's_add_u32 s{sT2}, s{sT1}, {REG_BASE[r]}\nv_add_u32 v{vB+2*r}, s{sT2}, v23\nv_xor_b32 v{vB+2*r+1}, 64, v{vB+2*r}')
def static_setup():
    A(f'''s_lshr_b32 s{sT0}, s{sW}, 1
s_and_b32 s{sT1}, s{sW}, 1
s_mul_i32 s{sHM}, s{sT0}, 26624
s_lshl_b32 s{sT3}, s{sT1}, 10
s_add_u32 s{sHM}, s{sHM}, s{sT3}
s_lshl_b32 s{sT3}, s{sT1}, 13
s_lshl_b32 s{sT1}, s{sCB}, 7
s_add_u32 s{sT3}, s{sT3}, s{sT1}
s_mul_i32 s{sSOFF}, s{sT0}, {432*1024}
s_add_u32 s{sSOFF}, s{sSOFF}, {NREG*16384}
s_add_u32 s{sSOFF}, s{sSOFF}, s{sT3}
s_mul_i32 s{sT5}, s{sT0}, {864*1024}
s_add_u32 s{sT5}, s{sT5}, s{sT3}
v_add_u32 v24, {16384-2048}, v{vBP}''')
def static_groups(r, vm=None):
    out = []
    a, b = REG_STEPS[r]
    pair = 0
    for st in range(a, b):
        g = []
        newgrp = (st == a) or (st == 27) or pair == 2
        if newgrp:
            if st == 27: g.append(f's_mov_b32 s{sSOFF}, s{sT5}')
            elif st > 24: g.append(f's_add_u32 s{sSOFF}, s{sSOFF}, {16384*lastn}')
            g.insert(0, f's_add_u32 m0, s{sHM}, {REG_BASE[r] + (st - a)*2048}')
            pair = 0
        s_ = SRD_X if st < 27 else SRD_B2
        if pair == 0: g.append(f'buffer_load_dwordx4 v{vBP}, {srd(s_)}, s{sSOFF} offen lds')
        else: g.append(f'buffer_load_dwordx4 v24, {srd(s_)}, s{sSOFF} offen offset:2048 lds')
        pair += 1
        globals()['lastn'] = pair
        if vm is not None: g.append(lambda: vm.issue('dma'))
        out.append(g)
    return out
lastn = 0

A(f'{NAME}_kernel:')
A(f'''s_load_dwordx16 s[{sKA}:{sKA+15}], s[0:1], 0
s_load_dwordx4 s[{sDBG}:{sDBG+3}], s[0:1], 64
s_cmp_ge_u32 s2, 256
s_cbranch_scc1 L_end
s_getpc_b64 s[{sT4}:{sT5}]
v_lshlrev_b32 v1, 7, v0
global_load_dword v111, v1, s[{sT4}:{sT5}]
v_lshrrev_b32 v1, 6, v0
v_and_b32 v{vL}, 63, v0
v_readfirstlane_b32 s{sW}, v1
s_and_b32 s{sT0}, s2, 7
s_lshr_b32 s{sT1}, s2, 3
s_lshr_b32 s{sT2}, s{sT0}, 1
s_and_b32 s{sT3}, s{sT0}, 1''')
if OPT['stamps']:
    A(f'{STI} s[{sSTAMP+2}:{sSTAMP+3}]'); nstamp[0] = 1
if OPT['map2'] == 0:
    A(f'''s_lshl_b32 s{sR}, s{sT0}, 2
s_lshr_b32 s{sCB}, s{sT1}, 3
s_add_u32 s{sR}, s{sR}, s{sCB}
s_and_b32 s{sCB}, s{sT1}, 7''')
else:
    A(f'''s_lshl_b32 s{sR}, s{sT2}, 3
s_lshr_b32 s{sCB}, s{sT1}, 2
s_add_u32 s{sR}, s{sR}, s{sCB}
s_and_b32 s{sCB}, s{sT1}, 3
s_lshl_b32 s{sA}, s{sT3}, 2
s_add_u32 s{sCB}, s{sCB}, s{sA}''')
A(f'''s_mov_b32 s{sONES}, 0x3f803f80
v_lshrrev_b32 v1, 3, v{vL}
v_and_b32 v2, 7, v{vL}
v_lshrrev_b32 v3, 4, v{vL}
s_mov_b32 s{sSLOT}, 0
s_movk_i32 s{sMX}, 128
s_cmp_ge_u32 s{sT1}, 20
s_cbranch_scc1 L_attn''')

A(f'''s_mul_i32 s{sA}, s{sT1}, 52
s_lshr_b32 s{sA}, s{sA}, 8
s_mul_i32 s{sB}, s{sA}, 5
s_sub_u32 s{sB}, s{sT1}, s{sB}
s_mul_i32 s{sT3}, s{sT3}, 5
s_add_u32 s{sB}, s{sB}, s{sT3}
s_lshl_b32 s{sT2}, s{sT2}, 2
s_add_u32 s{sA}, s{sA}, s{sT2}''')
x_patterns(4, 4)
A(f'''s_and_b32 s{sT0}, s{sW}, 1
s_mul_i32 s{sT1}, s{sT0}, 576
v_add_u32 v{vTMP+2}, s{sT1}, v{vL}
s_movk_i32 s{sT2}, 3641
s_movk_i32 s{sT3}, 2464''')
for i in range(9):
    A(f'''v_mul_u32_u24 v{vTMP+3}, s{sT2}, v{vTMP+2}
v_lshrrev_b32 v{vTMP+3}, 16, v{vTMP+3}
v_mul_u32_u24 v{vTMP+3}, s{sT3}, v{vTMP+3}
v_lshl_add_u32 v{vDMA+4+i}, v{vTMP+2}, 4, v{vTMP+3}''')
    if i % 4: A(f'v_subrev_u32 v{vDMA+4+i}, {(i % 4)*1024}, v{vDMA+4+i}')
    if i < 8: A(f'v_add_u32 v{vTMP+2}, 64, v{vTMP+2}')
A(f'''s_mul_i32 s{sST}, s{sB}, 9
s_sub_u32 s{sT1}, s{sB}, 6
s_max_i32 s{sT1}, s{sT1}, 0
s_sub_u32 s{sST}, s{sST}, s{sT1}
s_lshl_b32 s{sBW}, s{sST}, 5
s_lshl_b32 s{sBX}, s{sA}, 7
s_lshr_b32 s{sT1}, s{sW}, 1
s_lshl_b32 s{sT2}, s{sT1}, 6
s_add_u32 s{sBX}, s{sBX}, s{sT2}
s_add_u32 s{sBX}, s{sBX}, s{sT0}
s_lshl_b32 s{sBX}, s{sBX}, 10
s_mov_b32 s{sMW}, {64*2752}
s_lshl_b32 s{sD}, s{sW}, 12
s_mul_i32 s{sD+1}, s{sT1}, {UPOFF}
s_mul_i32 s{sT2}, s{sT0}, 9216
s_add_u32 s{sD+1}, s{sD+1}, s{sT2}
s_add_u32 s{sD+1}, s{sD+1}, 16384
s_add_u32 s{sD+2}, s{sD+1}, 4096
s_add_u32 s{sD+3}, s{sD+1}, 8192
s_and_b32 s{sKS}, s{sA}, 7''')
lines(SOFF)
A(f'''s_cmp_ge_u32 s{sW}, 2
s_waitcnt lgkmcnt(0)
s_cselect_b32 s{SRD_W}, s{sKA+10}, s{sKA+8}
s_cselect_b32 s{SRD_W+1}, s{sKA+11}, s{sKA+9}
s_mov_b32 s{SRD_W+2}, {512*2752}
s_mov_b32 s{SRD_W+3}, 0x20000''')
if OPT['stamps']: A(f'v_accvgpr_write_b32 a{aST}, s{sSTAMP+2}')
build_srd(SRD_XR, sKA, 2048 * 1024)
stat_loads()
build_srd(SRD_X, sKA, 2048 * 1024)
stamp(1)
vm = Q(63); vm.issue('code'); vm.issue('sr'); vm.issue('sr')
FD = dma_list(4, 9, 4)
publish_tag()
E = Inter()
E.push([g + [lambda: vm.issue('w0')] for g in FD[4:]] + [g + [lambda: vm.issue('x0')] for g in FD[:4]], 1)
E('s_nop 0'); E.every = 18
setup2(E)
vCA = 36
E(f"""v_and_b32 v1, 31, v{vL}
s_lshl_b32 s{sT0}, s{sW}, 5
v_add_u32 v1, s{sT0}, v1
v_bfe_u32 v2, v1, 1, 3
v_lshrrev_b32 v3, 5, v{vL}
v_xor_b32 v2, v2, v3
v_lshlrev_b32 v2, 4, v2
v_lshl_add_u32 v1, v1, 7, v2
v_bfe_u32 v2, v{vL}, 2, 2
v_mul_u32_u24 v{vCA+1}, 288, v2
v_lshl_add_u32 v2, v3, 3, v2
v_mul_u32_u24 v2, 288, v2
v_bfe_u32 v3, v{vL}, 4, 1
v_lshl_add_u32 v{vCA}, v3, 7, v{vCA+1}
v_mul_u32_u24 v3, {UPOFF}, v3
v_add_u32 v2, v2, v3
v_and_b32 v3, 3, v{vL}
v_lshl_add_u32 v2, v3, 3, v2
v_add_u32 v2, 16384, v2
v_lshl_add_u32 v{vCA+1}, v3, 3, v{vCA+1}
v_add_u32 v{vCA+1}, s{sD+1}, v{vCA+1}
v_lshl_add_u32 v{vCA}, v3, 3, v{vCA}
v_add_u32 v{vCA}, s{sD+1}, v{vCA}
v_lshrrev_b32 v3, 5, v{vL}
v_lshl_add_u32 v{vCA}, v3, 5, v{vCA}""")
for p in range(4):
    E(f"""s_xor_b32 s{sT0}, s{sW}, {p}
s_lshl_b32 s{sT1}, s{sT0}, 5
s_mul_i32 s{sT2}, s{sT0}, 4608
v_xor_b32 v{vRX+p}, s{sT1}, v1
v_add_u32 v{vRW+p}, s{sT2}, v2""")
bpat_setup(E)
E.flush()
stamp(1)
lines(ADV); lines(SOFF)
A(f"""s_lshl_b32 s{sT0}, s2, 2
s_add_u32 s{sT0}, s{sT0}, {FLAG_S}
s_lshl_b32 s{sT1}, s{sB}, 5
s_add_u32 s{sT1}, s{sT1}, {FLAG_C}
s_lshl_b32 s{sT2}, s{sA}, 2
s_add_u32 s{sT2}, s{sT2}, s{sT1}
s_cmp_lt_u32 s{sA}, 8
s_cselect_b32 s{sT2}, s{sT2}, s{sT0}
v_mov_b32 v{vPL+1}, s{sT2}
v_writelane_b32 v{vPL+1}, s{sT0}, 0
s_lshl_b32 s{sT0}, s{sA}, 6
s_add_u32 s{sT0}, s{sT0}, {FLAG_S}
v_and_b32 v1, 15, v{vL}
v_lshl_add_u32 v1, v1, 2, s{sT0}
v_and_b32 v2, 7, v{vL}
v_lshl_add_u32 v2, v2, 2, s{sT1}
v_cmp_gt_u32 vcc, 32, v{vL}
v_cndmask_b32 v{vPL}, v2, v1, vcc
v_lshlrev_b32 v{vCA+3}, 2, v{vL}
s_mul_i32 s{sT0}, s{sW}, 768
s_add_u32 s{sT0}, s{sT0}, {SPARE}
v_add_u32 v{vCA+2}, s{sT0}, v{vCA+3}
s_xor_b32 s{sT0}, s{sW}, 1
s_mul_i32 s{sT0}, s{sT0}, 768
s_add_u32 s{sT0}, s{sT0}, {SPARE}
v_add_u32 v{vCA+3}, s{sT0}, v{vCA+3}
s_mul_i32 s{sT0}, s{sB}, 9216
s_lshl_b32 s{sT1}, s{sA}, 2
s_add_u32 s{sT0}, s{sT0}, s{sT1}
s_lshr_b32 s{sT1}, s{sW}, 1
s_lshl_b32 s{sT1}, s{sT1}, 9
s_add_u32 s{sT0}, s{sT0}, s{sT1}
s_add_u32 s{sT0}, s{sT0}, {CS_OFF}
v_lshrrev_b32 v1, 5, v{vL}
v_bfe_u32 v2, v{vL}, 4, 1
v_lshl_add_u32 v1, v2, 2, v1
v_lshlrev_b32 v1, 10, v1
v_and_b32 v2, 15, v{vL}
v_lshlrev_b32 v2, 5, v2
v_add3_u32 v104, v1, v2, s{sT0}
s_add_u32 s{sT0}, s{sT0}, 8192
v_add_u32 v2, s{sT0}, v2
v_mov_b32 v3, {OOB}
v_cmp_gt_u32 vcc, 16, v{vL}
v_cndmask_b32 v105, v3, v2, vcc
s_lshr_b32 s{sT1}, s{sA}, 3
s_or_b32 s{sT1}, s{sT1}, s{sW}
s_bitcmp1_b32 s{sT1}, 0
s_cselect_b32 s{sHM}, 0x24, 38""")
stamp(1)
A(f's_waitcnt vmcnt({vm.need({"sr"})})')
stamp(1)
E = Inter()
E.push([g + [lambda: vm.issue('s1')] for g in FD[4:] + FD[:4]], 9)
stat_compute(E); vm.issue('st')
c = vm.need({"w0"})
if c is not None: A(f's_waitcnt vmcnt({c})')
stamp(1)
vCS = 107
for s_ in range(3): E(f'v_mov_b32 v{vCS+s_}, 0')
for half in range(2):
    for rq in range(4*half, 4*half + 4):
        for s_ in range(3):
            d = vFR + (rq % 4) * 6 + s_ * 2
            if s_ < 2: E(f'ds_read_b64_tr_b16 {vr(d, 2)}, v{vCA} offset:{rq*1152 + s_*64}')
            else: E(f'ds_read_b64_tr_b16 {vr(d, 2)}, v{vCA+1} offset:{rq*1152 + 256}')
    for rq in range(4):
        E(f's_waitcnt lgkmcnt({9 - 3*rq})')
        for k in range(2):
            for s_ in range(3):
                E(f'v_dot2c_f32_bf16 v{vCS+s_}, s{sONES}, v{vFR + rq*6 + s_*2 + k}')
for s_ in range(3): E(f'ds_write_b32 v{vCA+2}, v{vCS+s_} offset:{s_*256}')
E.flush()
lines(ADV); lines(SOFF)
touch_b(E, vm)
A(f'v_mov_b32 v1, 0\nglobal_load_dword v30, v1, s[{sDBG}:{sDBG+1}] sc1'); vm.issue('tag')
A(f'v_lshlrev_b32 v{vBP+4}, 4, v{vL}')
stamp(1)
A(f's_waitcnt vmcnt({vm.need({"x0"})}) lgkmcnt(0)\ns_barrier')
stamp(); stamp(1)
for s_ in range(3): A(f'ds_read_b32 v{vTMP+s_}, v{vCA+3} offset:{s_*256}')

lg = Q(15)
def f_rw(n):
    p, T = divmod(n, 9); s = vFR + 8 + (n % 6) * 4
    A(f'ds_read_b64_tr_b16 {vr(s, 2)}, v{vRW+p} offset:{T*32}'); lg.issue(('w', n))
    A(f'ds_read_b64_tr_b16 {vr(s+2, 2)}, v{vRW+p} offset:{T*32+1152}'); lg.issue(('w', n))
def f_rx(p):
    A(f'ds_read_b128 {vr(vFR + (p & 1)*4, 4)}, v{vRX+p}'); lg.issue(('x', p))
def f_mfma(n):
    p, T = divmod(n, 9); s = vFR + 8 + (n % 6) * 4
    mfma(vr(vACC + 16*T, 16), vr(s, 4), vr(vFR + (p & 1)*4, 4), vr(vACC + 16*T, 16))
DSLOT13 = [0, 3, 5, 8, 11, 13, 16, 19, 21, 24, 27, 29, 32]
def f_fill(main):
    fill = {}
    if not OPT['nodma']: spread(FD if main else tail_dma(True), DSLOT13, fill)
    spread([[x] for x in RDELTA[:2]] + [RDELTA[2:]], [4, 6, 7], fill)
    if main:
        spread([[SOFF[0], SOFF[2]], [f's_mul_i32 s{sT3}, s{sKS}, s{sMW}', f's_add_u32 s{sT3}, s{sT3}, s{sBW}'], SOFF[4:6],
                [f's_mov_b32 s{sOW}, s{sT3}']], [12, 14, 17, 33], fill)
    spread([ADV], [33], fill)
    spread([[f'v_add_u32 v{vRX+i}, s{sDELTA}, v{vRX+i}'] for i in range(4)], [9, 15, 20, 28], fill)
    spread([[f'v_add_u32 v{vRW+i}, s{sDELTA}, v{vRW+i}'] for i in range(4)], [10, 18, 30, 34], fill)
    return fill
def f_head(fill, with_mfma, extra=None):
    extra = extra or [None] * 3
    lg.drain()
    f_rw(0); f_rx(0)
    for m in range(3):
        if with_mfma: f_mfma(33 + m)
        if m == 0: f_rw(1); f_rw(2)
        if m == 1: f_rw(3); f_rw(4)
        if extra[m]: extra[m]()
        lines(fill.get(m, []))
def f_rest(fill, last_it, label):
    for n in range(33):
        p, T = divmod(n, 9)
        if n == 32:
            A('s_waitcnt vmcnt(13) lgkmcnt(0)'); lg.drain()
        c = lg.need({('w', n), ('x', p)})
        if c is not None: A(f's_waitcnt lgkmcnt({c})')
        f_mfma(n)
        if n <= 30: f_rw(n + 5)
        if T == 3 and p < 3: f_rx(p + 1)
        lines(fill.get(n + 3, []))
        if n == 31: A(f's_add_u32 s{sIT}, s{sIT}, 1\ns_cmp_lt_u32 s{sIT}, {last_it}')
    A(f's_barrier\ns_cbranch_scc1 {label}')
fm, ft = f_fill(True), f_fill(False)
f_head(fm, False)
A('s_branch L_fent')
A.label('L_floop')
f_head(fm, True, [lambda: A(f's_bitcmp1_b32 s{sHM}, s{sIT}\ns_cbranch_scc1 L_fh\nL_fback:'), None, None])
A.label('L_fent')
f_rest(fm, 6, 'L_floop')
def f_inter0():
    check_flag0('f')
    A(f"""v_and_b32 v1, 31, v{vL}
v_lshlrev_b32 v1, 3, v1
s_lshr_b32 s{sT0}, s{sBX}, 8
s_add_u32 s{sT0}, s{sT0}, {STAT_OFF}
buffer_load_dword v{vST}, v1, {srd(SRD_AUX)}, s{sT0} offen sc1
s_mul_i32 s{sOW}, s{sB}, 9216
s_add_u32 s{sT0}, s{sOW}, {CS_OFF + 8192}
s_mov_b32 m0, {SPARE}
s_lshl_b32 s{sD+1}, s{sW}, 10
buffer_load_dwordx4 v{vBP+4}, {srd(SRD_AUX)}, s{sT0} offen sc1 lds
s_add_u32 s{sOW}, s{sOW}, s{sD+1}
s_add_u32 s{sOW}, s{sOW}, {CS_OFF - 4096}
s_add_u32 s{sD+1}, s{sD+1}, 49152""")
    tail_setup()
f_head(ft, True, [f_inter0, None, None])
A('s_branch L_ftent')
A.label('L_ftail')
f_head(ft, True)
A.label('L_ftent')
f_rest(ft, 8, 'L_ftail')
stamp()
vC1, vIR = vST + 2, vST + 4
vBM = vTMP + 8
vCF = vTMP + 12
CSADDR = [2*SLOT + 49152 + 1024*i for i in range(4)] + [49152 + 1024*i for i in range(4)] + [SPARE]
def cs_read(T):
    base, off = (36, CSADDR[T]) if CSADDR[T] < 65536 else (37, CSADDR[T] - 2*SLOT)
    A(f'ds_read_b128 {vr(vCF + 4*(T % 3), 4)}, v{base} offset:{off}')
def corr(T): return mf(vr(vACC + 16*T, 16), vr(vCF + 4*(T % 3), 4), vr(vBM, 4), vr(vACC + 16*T, 16))
A(f"""v_and_b32 v1, 31, v{vL}
v_lshlrev_b32 v1, 5, v1
v_lshrrev_b32 v2, 5, v{vL}
v_lshl_add_u32 v36, v2, 4, v1
v_add_u32 v37, {2*SLOT}, v36""")
f_mfma(33)
cs_read(0); cs_read(1); cs_read(2)
A(f"""v_and_b32 v1, 0xffff, v{vST}
v_and_b32 v{vST+1}, 0xffff0000, v{vST}
v_lshl_or_b32 v{vBM}, v1, 16, v1
v_rcp_f32 v{vC1}, v{vST+1}""")
f_mfma(34)
A(f"""v_mov_b32 v{vBM+1}, v{vBM}
v_mov_b32 v{vBM+2}, v{vBM}
v_mov_b32 v{vBM+3}, v{vBM}
v_mul_f32 v{vIR}, v{vST+1}, v{vST+1}
v_mul_f32 v{vC1}, {f2u(-LOG2E)}, v{vC1}""")
f_mfma(35)
baddr_setup()
A('s_waitcnt lgkmcnt(0)')
A(corr(0))
static_setup()
A(corr(1))
A(f"""s_lshl_b32 s{sT0}, s{sA}, 2
s_add_u32 s{sT0}, s{sT0}, s{sW}
s_mul_i32 s{sOX}, s{sT0}, {TG_STRIDE}
s_lshl_b32 s{sT0}, s{sST}, 10
s_add_u32 s{sOX}, s{sOX}, s{sT0}
v_lshlrev_b32 v{vTMP}, 4, v{vL}""")
A(corr(2))
cs_read(3); cs_read(8)
vm = Q(63)
for i in range(13): vm.issue('v9')
def mix(a, b):
    out = []
    while a or b:
        if a: out.append(a.pop(0))
        if b: out.append(b.pop(0))
    return out
E = Inter()
def ffn_tile(T, mid=None):
    a = vACC + 16*T
    t = vFR + (T & 1) * 24
    for k in range(4):
        E(f'v_pk_mul_f32 {vr(t+2*k, 2)}, {vr(a+2*k, 2)}, {vr(vC1-1, 2)} op_sel:[0,1] op_sel_hi:[1,1]')
    if mid: mid(0)
    for k in range(8): E(f'v_exp_f32 v{t+k}, v{t+k}')
    for k in range(4):
        E(f'v_pk_mul_f32 {vr(t+8+2*k, 2)}, {vr(a+2*k, 2)}, {vr(a+8+2*k, 2)}')
    for k in range(4):
        E(f'v_pk_fma_f32 {vr(t+2*k, 2)}, {vr(t+2*k, 2)}, {vr(vIR-1, 2)}, {vr(vIR-1, 2)} op_sel:[0,1,1] op_sel_hi:[1,1,1]')
    if mid: mid(1)
    for k in range(8): E(f'v_rcp_f32 v{t+k}, v{t+k}')
    for k in range(4):
        E(f'v_pk_mul_f32 {vr(t+2*k, 2)}, {vr(t+2*k, 2)}, {vr(t+8+2*k, 2)}')
    for k in range(4):
        E(f'v_cvt_pk_bf16_f32 v{t+16+k}, v{t+2*k}, v{t+2*k+1}')
    if T == 8:
        E.flush()
        A(f's_cmp_ge_u32 s{sB}, 6\ns_cbranch_scc1 L_fskip8')
    if T and T % 4 == 0: A(f's_add_u32 s{sOX}, s{sOX}, 4096')
    off = f' offset:{(T % 4)*1024}' if T % 4 else ''
    A(f'buffer_store_dwordx4 {vr(t+16, 4)}, v{vTMP}, {srd(SRD_ACT)}, s{sOX} offen{off} sc1'); vm.issue('st')
def mid0(i):
    if i == 0: A('s_waitcnt lgkmcnt(0)'); A(corr(3))
    else: A(corr(8)); E.push(mix(breg_groups(0), static_groups(0, vm)), 2)
ffn_tile(0, mid0); ffn_tile(1); ffn_tile(2); E.flush()
A(f's_waitcnt vmcnt({vm.need({"v9"})}) lgkmcnt(0)\ns_barrier')
stamp()
cs_read(4); cs_read(5); cs_read(6)
def mid3(i):
    if i == 0: A('s_waitcnt lgkmcnt(0)'); A(corr(4))
    else: A(corr(5)); cs_read(7)
def mid4(i):
    if i == 0: A(corr(6))
    else: A('s_waitcnt lgkmcnt(0)'); A(corr(7)); E.push(mix(breg_groups(1), static_groups(1, vm)), 2)
ffn_tile(3, mid3); ffn_tile(4, mid4); ffn_tile(5); ffn_tile(6); E.flush()
A('s_waitcnt lgkmcnt(0)\ns_barrier')
E.push(static_groups(2, vm), 4)
ffn_tile(7); ffn_tile(8)
A.label('L_fskip8')
A(f"""s_lshl_b32 s{sFLAG}, s{sA}, 7
s_lshl_b32 s{sT0}, s{sB}, 2
s_add_u32 s{sFLAG}, s{sFLAG}, s{sT0}
s_branch L_phase2""")

A.label('L_fh')
A(f"""s_cmp_eq_u32 s{sIT}, 2
s_cbranch_scc1 L_fh2
s_cmp_eq_u32 s{sIT}, 5
s_cbranch_scc1 L_fh5""")
for s_ in range(3): A(f'v_add_f32 v{vCS+s_}, v{vCS+s_}, v{vTMP+s_}')
for s_ in range(3): split_hilo(vCS + s_, vTMP + s_)
A(f"""buffer_store_dword v{vCS}, v104, {srd(SRD_AUX)}, 0 offen sc1
buffer_store_dword v{vCS+1}, v104, {srd(SRD_AUX)}, 0 offen offset:2048 sc1
buffer_store_dword v{vCS+2}, v105, {srd(SRD_AUX)}, 0 offen sc1
s_branch L_fback""")
A.label('L_fh2')
post_flag0('f')
A.label('L_fh5')
A(f'buffer_load_dword v30, v{vPL}, {srd(SRD_AUX)}, 0 offen sc1\ns_branch L_fback')
vCS = 31

nst_save = nstamp[0]
nstamp[0] = 1 if OPT['stamps'] else 0
A.label('L_attn')
A(f'''s_sub_u32 s{sTO}, s{sT1}, 20
s_lshr_b32 s{sA}, s{sTO}, 2
s_mul_i32 s{sT2}, s{sT2}, 3
s_add_u32 s{sA}, s{sA}, s{sT2}
s_and_b32 s{sB}, s{sTO}, 3
s_lshl_b32 s{sT3}, s{sT3}, 2
s_add_u32 s{sB}, s{sB}, s{sT3}''')
x_patterns(6, 3)
A(f'''v_and_b32 v3, 1, v3
v_lshlrev_b32 v3, 2, v3
v_xor_b32 v2, v2, v3
v_lshlrev_b32 v2, 4, v2
v_mul_u32_u24 v1, 3072, v1
v_add_u32 v1, v1, v2
s_mul_i32 s{sT0}, s{sW}, 49152
v_add_u32 v{vDMA+6}, s{sT0}, v1
v_mov_b32 v{vDMA+7}, v{vDMA+6}
v_mov_b32 v{vDMA+8}, v{vDMA+6}
v_add_u32 v{vDMA+9}, 24576, v{vDMA+6}
v_mov_b32 v{vDMA+10}, v{vDMA+9}
v_mov_b32 v{vDMA+11}, v{vDMA+9}
s_mul_i32 s{sST}, s{sA}, 176
s_and_b32 s{sT0}, s{sW}, 1
s_mul_i32 s{sT1}, s{sT0}, 96
s_lshr_b32 s{sT2}, s{sW}, 1
s_add_u32 s{sBX}, s{sST}, s{sT1}
s_add_u32 s{sBX}, s{sBX}, s{sT2}
s_lshl_b32 s{sBX}, s{sBX}, 10
s_lshl_b32 s{sBW}, s{sB}, 7
s_mov_b32 s{sMW}, {64*3072}
s_mul_i32 s{sD}, s{sW}, 6144
s_add_u32 s{sD+1}, s{sD}, 3072
s_add_u32 s{sD+2}, s{sD}, 24576
s_add_u32 s{sD+3}, s{sD}, {24576+3072}
s_mov_b64 s[{sEX}:{sEX+1}], -1
s_cmp_eq_u32 s{sT0}, 0
s_cmov_b32 s{sEX}, 0xffffff00
s_or_b32 s{sT1}, s{sT0}, s{sA}
s_cmp_eq_u32 s{sT1}, 0
s_cselect_b32 s{sT1}, {OOB}, 0
v_add_u32 v{vDMA}, s{sT1}, v{vDMA}
s_and_b32 s{sKS}, s{sA}, 7''')
lines(SOFF)
A('s_waitcnt lgkmcnt(0)')
if OPT['stamps']: A(f'v_accvgpr_write_b32 a{aST}, s{sSTAMP+2}')
build_srd(SRD_XR, sKA, 2048 * 1024)
stat_loads()
build_srd(SRD_W, sKA + 2, 512 * 3072)
A(f'''s_sub_u32 s{SRD_X}, s{sKA}, 16384
s_subb_u32 s{SRD_X+1}, s{sKA+1}, 0
s_mov_b32 s{SRD_X+2}, {2048*1024 + 16384}
s_mov_b32 s{SRD_X+3}, 0x20000''')
stamp(1)
vm = Q(63); vm.issue('code'); vm.issue('sr'); vm.issue('sr')
AD = dma_list(6, 6, 3, exmask=True)
publish_tag()
E = Inter()
E.push([g + [lambda: vm.issue('s0')] for g in AD], 1)
E('s_nop 0'); E.every = 18
setup2(E)
E(f"""v_lshrrev_b32 v1, 3, v{vL}
v_min_u32 v1, 5, v1
v_lshrrev_b32 v2, 1, v1
v_mul_u32_u24 v2, {SLOT}, v2
v_and_b32 v1, 1, v1
v_mul_u32_u24 v1, 12288, v1
v_add_u32 v1, v1, v2
v_and_b32 v2, 7, v{vL}
v_lshl_add_u32 v1, v2, 4, v1
v_mov_b32 v{vFR}, s{sONES}
v_mov_b32 v{vFR+1}, s{sONES}
v_mov_b32 v{vFR+2}, s{sONES}
v_mov_b32 v{vFR+3}, s{sONES}
ds_write_b128 v1, {vr(vFR, 4)}
v_and_b32 v1, 31, v{vL}
v_lshrrev_b32 v3, 5, v{vL}
s_and_b32 s{sT0}, s{sW}, 1
s_mul_i32 s{sT0}, s{sT0}, 96
v_add_u32 v1, s{sT0}, v1
v_bfe_u32 v2, v1, 1, 3
v_xor_b32 v2, v2, v3
v_lshlrev_b32 v2, 4, v2
v_lshl_add_u32 v1, v1, 7, v2
v_mul_u32_u24 v2, 3072, v3
v_bfe_u32 v3, v{vL}, 2, 2
v_lshl_add_u32 v2, v3, 7, v2
v_bfe_u32 v3, v{vL}, 3, 1
s_lshr_b32 s{sT0}, s{sW}, 1
v_xor_b32 v3, s{sT0}, v3
v_lshl_add_u32 v2, v3, 6, v2
v_bfe_u32 v3, v{vL}, 4, 1
v_lshl_add_u32 v2, v3, 5, v2
v_and_b32 v3, 3, v{vL}
v_lshl_add_u32 v2, v3, 3, v2
v_add_u32 v2, 24576, v2""")
for p in range(4):
    E(f"""s_xor_b32 s{sT0}, s{sW}, {p}
s_lshl_b32 s{sT1}, s{sT0}, 5
s_mul_i32 s{sT2}, s{sT0}, 6144
v_xor_b32 v{vRX+p}, s{sT1}, v1
v_add_u32 v{vRW+p}, s{sT2}, v2""")
bpat_setup(E)
E.flush()
stamp(1)
lines(ADV); lines(SOFF)
A(f"""s_lshl_b32 s{sT0}, s2, 2
s_add_u32 s{sT0}, s{sT0}, {FLAG_S}
v_mov_b32 v{vPL+1}, s{sT0}
s_lshr_b32 s{sT0}, s{sST}, 3
s_sub_u32 s{sT0}, s{sT0}, 2
v_min_u32 v1, 23, v{vL}
v_add_u32 v1, s{sT0}, v1
v_max_i32 v1, 0, v1
v_min_u32 v1, 255, v1
v_lshlrev_b32 v1, 2, v1
v_add_u32 v{vPL}, {FLAG_S}, v1
s_mov_b32 s{sHM}, 0x24
v_and_b32 v1, 31, v{vL}
v_lshlrev_b32 v1, 1, v1
s_and_b32 s{sT0}, s{sW}, 1
s_add_u32 s{sT0}, s{sT0}, s{sST}
s_sub_u32 s{sT0}, s{sT0}, 16
v_add_u32 v1, s{sT0}, v1
v_mov_b32 v3, {OOB}""")
for G in range(3):
    A(f"""v_cmp_gt_u32 vcc, 2048, v1
v_lshlrev_b32 v2, 2, v1
v_add_u32 v2, {STAT_OFF}, v2
v_cndmask_b32 v{36+G}, v3, v2, vcc""")
    if G < 2: A('v_add_u32 v1, 64, v1')
stamp(1)
A(f's_waitcnt vmcnt({vm.need({"sr"})})')
stamp(1)
E = Inter()
E.push([g + [lambda: vm.issue('s1')] for g in AD], 9)
stat_compute(E); vm.issue('st')
stamp(1)
vMSK = vTMP
E(f"""v_and_b32 v1, 31, v{vL}
v_lshrrev_b32 v3, 5, v{vL}
v_lshlrev_b32 v2, 2, v3
v_sub_u32 v2, v1, v2
v_mov_b32 v{vTMP+20}, 0xff800000""")
for j in range(20):
    cj = (8 * (j // 4) + j % 4) if j < 16 else (8 * 3 + (j - 16) - 32)
    E(f'v_subrev_u32 v{vMSK+j}, {cj}, v2' if cj >= 0 else f'v_add_u32 v{vMSK+j}, {-cj}, v2')
for j in range(0, 20, 2):
    E(f'v_cmp_gt_u32 vcc, 8, v{vMSK+j}')
    E(f'v_cmp_gt_u32 s[{sT4}:{sT5}], 8, v{vMSK+j+1}')
    E(f'v_cndmask_b32 v{vMSK+j}, v{vTMP+20}, 0, vcc')
    E(f'v_cndmask_b32 v{vMSK+j+1}, v{vTMP+20}, 0, s[{sT4}:{sT5}]')
E.flush()
lines(ADV); lines(SOFF)
touch_b(E, vm)
A(f'v_mov_b32 v1, 0\nglobal_load_dword v30, v1, s[{sDBG}:{sDBG+1}] sc1'); vm.issue('tag')
stamp(1)
A(f's_waitcnt vmcnt({vm.need({"s0"})}) lgkmcnt(0)\ns_barrier')
stamp(); stamp(1)
def xf(p, G): return vFR + (p & 1) * 24 + 4 * G
def wf(p, m): return vFR + (p & 1) * 24 + 12 + 4 * m
def a_rd(p, k):
    kind, i = [('w', 0), ('x', 0), ('x', 1), ('x', 2), ('w', 1), ('w', 2)][k]
    if kind == 'x':
        A(f'ds_read_b128 {vr(xf(p, i), 4)}, v{vRX+p} offset:{i*4096}'); lg.issue(('x', p, i))
    else:
        A(f'ds_read_b64_tr_b16 {vr(wf(p, i), 2)}, v{vRW+p} offset:{i*1024}'); lg.issue(('w', p, i))
        A(f'ds_read_b64_tr_b16 {vr(wf(p, i)+2, 2)}, v{vRW+p} offset:{i*1024+512}'); lg.issue(('w', p, i))
def a_mfma(n):
    p, r = divmod(n, 9); m, G = divmod(r, 3)
    acc = vr(vACC + 48*m + 16*G, 16)
    if m < 2: mfma(acc, vr(wf(p, m), 4), vr(xf(p, G), 4), acc)
    else: mfma(acc, vr(xf(p, G), 4), vr(wf(p, m), 4), acc)
NH = 5
DSLOT12 = [0, 3, 6, 9, 12, 15, 18, 21, 24, 27, 30, 33]
def a_fill(main):
    fill = {}
    if not OPT['nodma']: spread(AD if main else tail_dma(False), DSLOT12, fill)
    spread([[x] for x in RDELTA[:2]] + [RDELTA[2:]], [5, 7, 8], fill)
    if main:
        spread([[SOFF[0], SOFF[2]], [f's_mul_i32 s{sT3}, s{sKS}, s{sMW}', f's_add_u32 s{sT3}, s{sT3}, s{sBW}'], SOFF[4:6],
                [f's_mov_b32 s{sOW}, s{sT3}']], [17, 19, 20, 33], fill)
    spread([ADV], [32], fill)
    spread([[f'v_add_u32 v{vRX+i}, s{sDELTA}, v{vRX+i}', f'v_add_u32 v{vRW+i}, s{sDELTA}, v{vRW+i}'] for i in range(4)], [11, 13, 22, 31], fill)
    return fill
def a_head(fill, with_mfma, extra=None):
    lg.drain()
    a_rd(0, 0)
    for m in range(NH):
        if with_mfma: a_mfma(36 - NH + m)
        a_rd(0, m + 1)
        if m == 0 and extra: extra()
        lines(fill.get(m, []))
def a_rest(fill, last_it, label):
    for n in range(36 - NH):
        p, r = divmod(n, 9); m, G = divmod(r, 3)
        if n == 35 - NH:
            A('s_waitcnt vmcnt(12) lgkmcnt(0)'); lg.drain()
        c = lg.need({('w', p, m), ('x', p, G)})
        if c is not None: A(f's_waitcnt lgkmcnt({c})')
        a_mfma(n)
        if p < 3 and r < 6: a_rd(p + 1, r)
        lines(fill.get(n + NH, []))
        if n == 34 - NH: A(f's_add_u32 s{sIT}, s{sIT}, 1\ns_cmp_lt_u32 s{sIT}, {last_it}')
    A(f's_barrier\ns_cbranch_scc1 {label}')
am, at = a_fill(True), a_fill(False)
a_head(am, False)
A('s_branch L_aent')
A.label('L_aloop')
a_head(am, True, lambda: A(f's_bitcmp1_b32 s{sHM}, s{sIT}\ns_cbranch_scc1 L_ah\nL_aback:'))
A.label('L_aent')
a_rest(am, 6, 'L_aloop')
def a_inter():
    check_flag0('a')
    for G in range(3): A(f'buffer_load_dword v{vST+G}, v{36+G}, {srd(SRD_AUX)}, 0 offen sc1')
    tail_setup()
a_head(at, True, a_inter)
A('s_branch L_atent')
A.label('L_atail')
a_head(at, True)
A.label('L_atent')
a_rest(at, 8, 'L_atail')
stamp()
for n in range(36 - NH, 36): a_mfma(n)
QD, KD, VD = vACC, vACC + 48, vACC + 96
vRR = 10
vBM = vFR + 24
vCF = vFR + 36
A(f'''s_mul_i32 s{sT0}, s{sW}, 768
s_add_u32 s{sT0}, s{sT0}, {SPARE}
v_and_b32 v1, 31, v{vL}
v_lshrrev_b32 v2, 5, v{vL}
v_lshl_add_u32 v37, v1, 2, s{sT0}
v_lshl_add_u32 v38, v2, 4, s{sT0}
v_cmp_gt_u32 vcc, 32, v{vL}''')
for G in range(3):
    A(f'''v_and_b32 v1, 0xffff, v{vST+G}
v_and_b32 v{vRR+G}, 0xffff0000, v{vST+G}
v_lshl_or_b32 v1, v1, 16, v1
v_max_f32 v{vRR+G}, {f2u(1e-3)}, v{vRR+G}
v_cndmask_b32 v{vBM+4*G}, 0, v1, vcc
v_rcp_f32 v{vRR+G}, v{vRR+G}
v_mov_b32 v{vBM+4*G+1}, 0
v_mov_b32 v{vBM+4*G+2}, 0
v_mov_b32 v{vBM+4*G+3}, 0
ds_write_b32 v37, v{vRR+G} offset:{256+G*128}
v_mul_f32 v{vRR+3+G}, {f2u(0.25*LOG2E)}, v{vRR+G}''')
A('s_mov_b32 exec_lo, 1\ns_mov_b32 exec_hi, 1')
for m in range(2):
    for a_ in range(4):
        A(f'ds_write_b128 v38, {vr(vACC + 48*m + 4*a_, 4)} offset:{m*128 + a_*32}')
A('s_mov_b64 exec, -1')
for i in range(12):
    if i % 4: A(f'v_mov_b32 v{vCF+i}, 0')
A(f'v_mov_b32 v{vCF+8}, v{VD}')
split_hilo(vCF + 8, 1)
A(f'ds_read_b32 v{vCF}, v37\nds_read_b32 v{vCF+4}, v37 offset:128')
for G in range(3):
    acc = vr(VD + 16*G, 16); mfma(acc, vr(vBM+4*G, 4), vr(vCF+8, 4), acc)
baddr_setup()
A('s_waitcnt lgkmcnt(0)')
split_hilo(vCF, 1); split_hilo(vCF + 4, 2)
vRROW = vFR
for m in (1, 0):
    for G in range(3):
        acc = vr(vACC + 48*m + 16*G, 16); mfma(acc, vr(vCF+4*m, 4), vr(vBM+4*G, 4), acc)
        if m == 1 and G == 0: static_setup()
        if m == 1 and G == 1:
            for a_ in range(4): A(f'ds_read_b128 {vr(vRROW+4*a_, 4)}, v38 offset:{256+a_*32}')
        if m == 1 and G == 2:
            A(f'''v_and_b32 v1, 31, v{vL}
s_lshr_b32 s{sT0}, s{sST}, 1
s_sub_u32 s{sT0}, s{sT0}, 8
v_add_u32 v2, s{sT0}, v1
s_and_b32 s{sT2}, s{sW}, 1
s_mul_i32 s{sT2}, s{sT2}, {TG_STRIDE}
s_lshl_b32 s{sT3}, s{sB}, 2
s_and_b32 s{sT4}, s{sW}, 2
s_add_u32 s{sT3}, s{sT3}, s{sT4}
s_add_u32 s{sT3}, s{sT3}, 86
s_lshl_b32 s{sT3}, s{sT3}, 10
s_add_u32 s{sOX}, s{sT2}, s{sT3}
s_mov_b32 s{sT2}, {2*TG_STRIDE}
v_lshrrev_b32 v3, 5, v{vL}
v_lshlrev_b32 v3, 9, v3''')
        if m == 0:
            d = vDMA + 1 + G
            A(f'''v_lshrrev_b32 v{d}, 5, v2
v_mul_lo_u32 v{d}, v{d}, s{sT2}
v_and_b32 v{vDMA+5}, 31, v2
v_lshl_add_u32 v{vDMA+5}, v{vDMA+5}, 4, v3
v_add_u32 v{d}, v{d}, v{vDMA+5}
v_add_u32 v2, 32, v2''')
A(f'''v_cmp_le_u32 vcc, 8, v1
v_mov_b32 v{vDMA+5}, {OOB}
v_cndmask_b32 v{vDMA+1}, v{vDMA+5}, v{vDMA+1}, vcc''')
for G in (1, 2):
    for a_ in range(4): A(f'ds_read_b128 {vr(vRROW+16*G+4*a_, 4)}, v38 offset:{256+G*128+a_*32}')
vm = Q(63)
for i in range(12): vm.issue('v9')
E = Inter()
E.push(mix(breg_groups(0), static_groups(0, vm)), 4)
QP, KP, VP = QD, KD, VD
def pk_scale_lane(dst, src, r):
    ev = r & ~1; sl = r & 1
    for k in range(8):
        E(f'v_pk_mul_f32 {vr(src+2*k, 2)}, {vr(src+2*k, 2)}, {vr(ev, 2)} op_sel:[0,{sl}] op_sel_hi:[1,{sl}]')
    for k in range(8):
        E(f'v_cvt_pk_bf16_f32 v{dst+k}, v{src+2*k}, v{src+2*k+1}')
A('s_waitcnt lgkmcnt(0)')
for G in range(3):
    for k in range(8):
        E(f'v_pk_mul_f32 {vr(VP+16*G+2*k, 2)}, {vr(VP+16*G+2*k, 2)}, {vr(vRROW+16*G+2*k, 2)}')
    for k in range(8):
        E(f'v_cvt_pk_bf16_f32 v{VP+8*G+k}, v{VP+16*G+2*k}, v{VP+16*G+2*k+1}')
for G in range(3): pk_scale_lane(KP + 8*G, KP + 16*G, vRR + G)
for G in range(3): pk_scale_lane(QP + 8*G, QP + 16*G, vRR + 3 + G)
SD = [40, 56]; SP = [72, 136]; OO = [184, 232]; PD = [152, 200]; PP = [248, 252]
MX = [26, 28]
E(f'v_mov_b32 v248, 0\nv_mov_b32 v249, 0\nv_mov_b32 v252, 0\nv_mov_b32 v253, 0')
def s_mm(G, e):
    E(mf(vr(SD[e], 16), vr(KP+8*G+4*e, 4), vr(QP+8*G+4*e, 4), vr(vMSK, 16)))
    if G: E(mf(vr(SP[e], 16), vr(KP+8*(G-1)+4*e, 4), vr(QP+8*G+4*e, 4), vr(vMSK+4, 16)))
def soft(G, e):
    s = SD[e]; sp = SP[e] + 12
    mx = MX[e]; o1 = mx + 1
    vals = [s + i for i in range(16)] + ([sp + i for i in range(4)] if G else [])
    E(f'v_max3_f32 v{mx}, v{vals[0]}, v{vals[1]}, v{vals[2]}')
    E(f'v_max3_f32 v{o1}, v{vals[3]}, v{vals[4]}, v{vals[5]}')
    rest = vals[6:]; tgt = [mx, o1]; i = 0
    while rest:
        E(f'v_max3_f32 v{tgt[i&1]}, v{tgt[i&1]}, v{rest[0]}, v{rest[1]}'); rest = rest[2:]; i += 1
    E(f'v_max_f32 v{mx}, v{mx}, v{o1}')
    E(f'v_mov_b32 v{o1}, v{mx}')
    E(f'v_permlane32_swap_b32 v{mx}, v{o1}')
    E(f'v_max_f32 v{mx}, v{mx}, v{o1}')
    prs = [vals[i] for i in range(0, len(vals), 2)]
    for r in prs:
        E(f'v_pk_add_f32 {vr(r, 2)}, {vr(r, 2)}, {vr(mx, 2)} op_sel:[0,0] op_sel_hi:[1,0] neg_lo:[0,1] neg_hi:[0,1]')
    for r in vals: E(f'v_exp_f32 v{r}, v{r}')
    for k in range(8): E(f'v_cvt_pk_bf16_f32 v{PD[e]+k}, v{s+2*k}, v{s+2*k+1}')
    if G:
        for k in range(2): E(f'v_cvt_pk_bf16_f32 v{PP[e]+2+k}, v{sp+2*k}, v{sp+2*k+1}')
    while len(prs) > 1:
        nxt = []
        for i in range(0, len(prs) - 1, 2):
            E(f'v_pk_add_f32 {vr(prs[i], 2)}, {vr(prs[i], 2)}, {vr(prs[i+1], 2)}'); nxt.append(prs[i])
        if len(prs) & 1: nxt.append(prs[-1])
        prs = nxt
    E(f'v_add_f32 v{mx}, v{prs[0]}, v{prs[0]+1}')
    E(mf(vr(OO[e], 16), vr(VP+8*G, 4), vr(PD[e], 4), '0'))
    E(f'v_mov_b32 v{o1}, v{mx}')
    E(mf(vr(OO[e], 16), vr(VP+8*G+4, 4), vr(PD[e]+4, 4), vr(OO[e], 16)))
    E(f'v_permlane32_swap_b32 v{mx}, v{o1}')
    if G: E(mf(vr(OO[e], 16), vr(VP+8*(G-1)+4, 4), vr(PP[e], 4), vr(OO[e], 16)))
    E(f'v_add_f32 v{mx}, v{mx}, v{o1}')
    E(f'v_rcp_f32 v{mx}, v{mx}')
def fin(G, e):
    mx = MX[e]
    o = OO[e] + 8 * e
    for k in range(4):
        E(f'v_pk_mul_f32 {vr(o+2*k, 2)}, {vr(o+2*k, 2)}, {vr(mx, 2)} op_sel:[0,0] op_sel_hi:[1,0]')
    d = OO[e] + 8 * (1 - e)
    for k in range(4): E(f'v_cvt_pk_bf16_f32 v{d+k}, v{o+2*k}, v{o+2*k+1}')
    off = ' offset:1024' if e else ''
    E(f'buffer_store_dwordx4 {vr(d, 4)}, v{vDMA+1+G}, {srd(SRD_ACT)}, s{sOX} offen{off} sc1'); vm.issue('st')
E.flush()
for j in range(4): A(f'v_mov_b32 v{12+j}, v{vMSK+j}')
A(f's_cmp_lg_u32 s{sA}, 0\ns_cbranch_scc1 L_anomask')
for j in range(4): A(f'v_mov_b32 v{vMSK+j}, v{vTMP+20}')
A.label('L_anomask')
s_mm(0, 0); s_mm(0, 1)
A(f's_waitcnt vmcnt({vm.need({"v9"})}) lgkmcnt(0)\ns_barrier')
stamp()
for j in range(4): A(f'v_mov_b32 v{vMSK+j}, v{12+j}')
E.push(mix(breg_groups(1), static_groups(1, vm)), 4)
for G in range(3):
    soft(G, 0)
    if G < 2: s_mm(G + 1, 0)
    soft(G, 1)
    if G < 2: s_mm(G + 1, 1)
    if G == 0:
        E.flush()
        A('s_waitcnt lgkmcnt(0)\ns_barrier')
        E.push(static_groups(2, vm), 10)
    if G == 2: E.flush()
    fin(G, 0); fin(G, 1)
A(f'''s_lshl_b32 s{sFLAG}, s{sA}, 5
s_lshl_b32 s{sT0}, s{sB}, 2
s_add_u32 s{sFLAG}, s{sFLAG}, s{sT0}
s_add_u32 s{sFLAG}, s{sFLAG}, {FLAG_A}''')
assert nstamp[0] == nst_save, (nstamp[0], nst_save)

A.label('L_phase2')
stamp()
vF, vS = 192, 224
vXR = 24
vRING = 40; NRING = 38
vAO = 4; vPO = 5; vOO = 6; vEX = 7
aLB = 192
baddr_final()
A(f'''v_and_b32 v1, 31, v{vL}
v_lshrrev_b32 v2, 5, v{vL}
s_and_b32 s{sT0}, s{sW}, 1
s_lshr_b32 s{sT1}, s{sW}, 1
s_lshl_b32 s{sT2}, s{sR}, 6
s_add_u32 s{sT2}, s{sT2}, s{sT0}
s_lshl_b32 s{sT2}, s{sT2}, 10
s_lshl_b32 s{sT3}, s{sCB}, 7
s_add_u32 s{sT2}, s{sT2}, s{sT3}
s_lshl_b32 s{sT3}, s{sT1}, 6
s_add_u32 s{sT2}, s{sT2}, s{sT3}
v_lshlrev_b32 v{vOO}, 11, v1
v_lshl_add_u32 v{vOO}, v2, 4, v{vOO}
v_add_u32 v{vOO}, s{sT2}, v{vOO}
buffer_load_dwordx4 v[8:11], v{vOO}, {srd(SRD_XR)}, 0 offen
buffer_load_dwordx4 v[12:15], v{vOO}, {srd(SRD_XR)}, 0 offen offset:32
v_lshlrev_b32 v{vAO}, 4, v{vL}
s_lshl_b32 s{sT2}, s{sR}, 1
s_add_u32 s{sT2}, s{sT2}, s{sT0}
s_mul_i32 s{sOX}, s{sT2}, {TG_STRIDE}
s_mul_i32 s{sT3}, s{sT1}, {27*1024}
s_mul_i32 s{sT2}, s{sT1}, {32*1024}
s_add_u32 s{sOW}, s{sOX}, {86*1024}
s_sub_u32 s{sOW}, s{sOW}, s{sT2}
s_add_u32 s{sOX}, s{sOX}, s{sT3}''')
A(f'''v_and_b32 v1, 15, v{vL}
s_lshr_b32 s{sT2}, s{sR}, 1
s_lshl_b32 s{sT2}, s{sT2}, 7
s_mul_i32 s{sT3}, s{sT1}, 12
s_add_u32 s{sT3}, s{sT3}, s{sT2}
v_min_u32 v2, 2, v1
v_lshl_add_u32 v2, v2, 2, s{sT3}
s_lshl_b32 s{sT3}, s{sR}, 6
s_mul_i32 s{sT4}, s{sT3}, 745
s_lshr_b32 s{sT4}, s{sT4}, 17
s_add_u32 s{sT3}, s{sT3}, 63
s_mul_i32 s{sT3}, s{sT3}, 745
s_lshr_b32 s{sT3}, s{sT3}, 17
s_sub_u32 s{sT3}, s{sT3}, s{sT4}
s_lshl_b32 s{sT3}, s{sT3}, 3
s_add_u32 s{sT3}, s{sT3}, 7
s_lshl_b32 s{sT4}, s{sT4}, 5
s_add_u32 s{sT4}, s{sT4}, {FLAG_A}
s_add_u32 s{sT2}, s{sT2}, 24
s_cmp_eq_u32 s{sT1}, 0
s_cselect_b32 s{sT3}, s{sT3}, 3
s_cselect_b32 s{sT4}, s{sT4}, s{sT2}
v_min_u32 v3, s{sT3}, v1
v_lshl_add_u32 v3, v3, 2, s{sT4}
v_bfe_u32 v1, v{vL}, 4, 1
v_cmp_eq_u32 vcc, 0, v1
v_cndmask_b32 v{vPO}, v3, v2, vcc
v_mov_b32 v1, s{sFLAG}
v_mov_b32 v2, s{sTAG}''')
for i in range(64): A(f'v_mov_b32 v{vF+i}, 0')
A(f'''s_waitcnt vmcnt(0)
s_barrier
s_cmp_lg_u32 s{sW}, 0
s_cbranch_scc1 L_noflag
s_mov_b64 exec, 1
buffer_store_dword v2, v1, {srd(SRD_AUX)}, 0 offen sc1
s_mov_b64 exec, -1
L_noflag:''')
stamp()
A(f'''buffer_load_dword v3, v{vPO}, {srd(SRD_AUX)}, 0 offen sc1
v_permlane32_swap_b32 v8, v10
v_permlane32_swap_b32 v9, v11
v_permlane32_swap_b32 v12, v14
v_permlane32_swap_b32 v13, v15''')
for i in range(8):
    A(f'v_lshlrev_b32 v{vXR+2*i}, 16, v{8+i}\nv_and_b32 v{vXR+2*i+1}, 0xffff0000, v{8+i}')
A(f'''s_mov_b32 s{sT0}, 0
L_poll1:
s_waitcnt vmcnt(0)
v_cmp_eq_u32 vcc, s{sTAG}, v3
s_and_b32 s{sT1}, vcc_lo, 0xffff
s_cmp_eq_u32 s{sT1}, 0xffff
s_cbranch_scc1 L_poll1ok
buffer_load_dword v3, v{vPO}, {srd(SRD_AUX)}, 0 offen sc1
s_add_u32 s{sT0}, s{sT0}, 1
s_cmp_lt_u32 s{sT0}, {SPIN}
s_cbranch_scc1 L_poll1
L_poll1ok:
s_mov_b32 s{sROLE}, vcc_lo''')
stamp()
vm = Q(63); lg = Q(15)
def a_load(st):
    so = sOX if st < 27 else sOW
    k = st if st < 27 else st - 27
    if k and k % 4 == 0: A(f's_add_u32 s{so}, s{so}, 4096')
    off = f' offset:{(k % 4)*1024}' if k % 4 else ''
    A(f'buffer_load_dwordx4 {vr(vRING + 4*(st % NRING), 4)}, v{vAO}, {srd(SRD_ACT)}, s{so} offen{off} sc1')
    vm.issue(st)
def b_read(st, ct):
    r = [i for i, (a, b) in enumerate(REG_STEPS) if a <= st < b][0]
    off = (st - REG_STEPS[r][0]) * 2048
    for hf in range(2):
        A(f'ds_read_b64_tr_b16 {ar(aLB + (st % 4)*8 + ct*4 + hf*2, 2)}, v{vB + 2*r + ct} offset:{off + hf*1024}')
        lg.issue(st)
NB = OPT['burst']
for st in range(NB): a_load(st)
P2AT = 27 - NB
nextld = NB
for st in range(59):
    if st == P2AT:
        A(f'''s_cmp_eq_u32 s{sROLE}, -1
s_cbranch_scc1 L_poll2ok
s_mov_b32 s{sT0}, 0
L_poll2:
buffer_load_dword v3, v{vPO}, {srd(SRD_AUX)}, 0 offen sc1
s_waitcnt vmcnt(0)
v_cmp_eq_u32 vcc, s{sTAG}, v3
s_add_u32 s{sT0}, s{sT0}, 1
s_cmp_eq_u32 vcc_lo, -1
s_cbranch_scc1 L_poll2ok
s_cmp_lt_u32 s{sT0}, {SPIN}
s_cbranch_scc1 L_poll2
L_poll2ok:''')
    w = []
    c = vm.need({st})
    if c is not None: w.append(f'vmcnt({c})')
    c = lg.need({st})
    if c is not None: w.append(f'lgkmcnt({c})')
    if w: A('s_waitcnt ' + ' '.join(w))
    acc = vF if st < 27 else vS
    for ct in range(2):
        b = ar(st*8 + ct*4, 4) if st < NREG else ar(aLB + (st % 4)*8 + ct*4, 4)
        mfma(vr(acc + 16*ct, 16), b, vr(vRING + 4*(st % NRING), 4), vr(acc + 16*ct, 16))
        if NREG <= st + 3 < 59: b_read(st + 3, ct)
        if ct == 0 and nextld < 59:
            a_load(nextld); nextld += 1
stamp()
A(f'''s_and_b32 s{sT0}, s{sW}, 1
s_mul_i32 s{sT0}, s{sT0}, 12288
s_add_u32 s{sT0}, s{sT0}, {SLOT}
v_add_u32 v{vEX}, s{sT0}, v{vAO}
s_barrier
s_cmp_ge_u32 s{sW}, 2
s_cbranch_scc1 L_kh1''')
for i in range(4): A(f'ds_write_b128 v{vEX}, {vr(vF+16+4*i, 4)} offset:{i*1024}')
for i in range(4): A(f'ds_write_b128 v{vEX}, {vr(vS+16+4*i, 4)} offset:{4096+i*1024}')
A('s_waitcnt lgkmcnt(0)\ns_barrier')
for i in range(4): A(f'ds_read_b128 {vr(vRING+4*i, 4)}, v{vEX} offset:{8192+i*1024}')
for i in range(8):
    if i % 2 == 0: A(f's_waitcnt lgkmcnt({3 - i//2})')
    A(f'v_pk_add_f32 {vr(vF+2*i, 2)}, {vr(vF+2*i, 2)}, {vr(vRING+2*i, 2)}')
A('s_branch L_final')
A.label('L_kh1')
for i in range(8): A(f'v_pk_add_f32 {vr(vF+2*i, 2)}, {vr(vF+2*i, 2)}, {vr(vS+2*i, 2)}')
for i in range(4): A(f'ds_write_b128 v{vEX}, {vr(vF+4*i, 4)} offset:{8192+i*1024}')
for i in range(8): A(f'v_pk_add_f32 {vr(vF+16+2*i, 2)}, {vr(vF+16+2*i, 2)}, {vr(vS+16+2*i, 2)}')
A('s_waitcnt lgkmcnt(0)\ns_barrier')
for i in range(4): A(f'ds_read_b128 {vr(vRING+4*i, 4)}, v{vEX} offset:{i*1024}')
for i in range(4): A(f'ds_read_b128 {vr(vS+4*i, 4)}, v{vEX} offset:{4096+i*1024}')
for i in range(8):
    if i % 2 == 0: A(f's_waitcnt lgkmcnt({7 - i//2})')
    A(f'v_pk_add_f32 {vr(vF+2*i, 2)}, {vr(vF+16+2*i, 2)}, {vr(vRING+2*i, 2)}')
A('s_waitcnt lgkmcnt(0)')
A.label('L_final')
t = vRING + 16
assert sT1 % 2 == 0
A(f's_mov_b32 s{sT1}, {f2u(-LOG2E)}\ns_mov_b32 s{sT1+1}, {f2u(-LOG2E)}')
for i in range(8): A(f'v_pk_mul_f32 {vr(t+2*i, 2)}, {vr(vF+2*i, 2)}, s[{sT1}:{sT1+1}]')
for i in range(16): A(f'v_exp_f32 v{t+i}, v{t+i}')
for i in range(8): A(f'v_pk_mul_f32 {vr(vS+2*i, 2)}, {vr(vS+2*i, 2)}, {vr(vF+2*i, 2)}')
for i in range(8): A(f'v_pk_add_f32 {vr(t+2*i, 2)}, {vr(t+2*i, 2)}, 1.0 op_sel_hi:[1,0]')
for i in range(16): A(f'v_rcp_f32 v{t+i}, v{t+i}')
for i in range(8): A(f'v_pk_fma_f32 {vr(t+2*i, 2)}, {vr(t+2*i, 2)}, {vr(vS+2*i, 2)}, {vr(vXR+2*i, 2)}')
for i in range(8): A(f'v_cvt_pk_bf16_f32 v{8+i}, v{t+2*i}, v{t+2*i+1}')
A(f'''v_permlane32_swap_b32 v8, v10
v_permlane32_swap_b32 v9, v11
v_permlane32_swap_b32 v12, v14
v_permlane32_swap_b32 v13, v15
buffer_store_dwordx4 v[8:11], v{vOO}, {srd(SRD_OUT)}, 0 offen
buffer_store_dwordx4 v[12:15], v{vOO}, {srd(SRD_OUT)}, 0 offen offset:32''')
if OPT['stamps']:
    stamp()
    A('s_waitcnt vmcnt(0)')
    stamp()
    A(f'''s_lshl_b32 s{sT0}, s2, 8
s_lshl_b32 s{sT1}, s{sW}, 6
s_add_u32 s{sT0}, s{sT0}, s{sT1}
s_add_u32 s{sT0}, s{sT0}, {STAMP_OFF}
v_mov_b32 v1, s{sT0}
global_store_dwordx4 v1, {ar(aST, 4)}, s[{sWS}:{sWS+1}]
global_store_dwordx4 v1, {ar(aST+4, 4)}, s[{sWS}:{sWS+1}] offset:16
global_store_dwordx4 v1, {ar(aST+8, 4)}, s[{sWS}:{sWS+1}] offset:32''')
    if OPT['dbgwg'] >= 0:
        A(f'''s_mov_b64 exec, 1
v_accvgpr_read_b32 v2, a{aST}
v_accvgpr_read_b32 v3, a{aST+nstamp[0]-1}
v_not_b32 v2, v2
v_mov_b32 v1, 0
global_atomic_umax v1, v3, s[{sDBG}:{sDBG+1}] offset:56
global_atomic_umax v1, v2, s[{sDBG}:{sDBG+1}] offset:60
s_lshl_b32 s{sT0}, s2, 2
s_add_u32 s{sT0}, s{sT0}, s{sW}
s_cmp_lg_u32 s{sT0}, {OPT['dbgwg']*4}
s_cbranch_scc1 L_end
global_store_dwordx4 v1, {ar(aST, 4)}, s[{sDBG}:{sDBG+1}] offset:8
global_store_dwordx4 v1, {ar(aST+4, 4)}, s[{sDBG}:{sDBG+1}] offset:24
global_store_dwordx2 v1, {ar(aST+8, 2)}, s[{sDBG}:{sDBG+1}] offset:40''')
A.label('L_end')
A('s_endpgm')

A.label('L_ah')
A(f"""s_cmp_eq_u32 s{sIT}, 5
s_cbranch_scc1 L_ah5""")
post_flag0('a')
A.label('L_ah5')
A(f'buffer_load_dword v30, v{vPL}, {srd(SRD_AUX)}, 0 offen sc1\ns_branch L_aback')

body = A.finish(verbose=False)
hdr = open('cdna_kernels/' + NAME + '.s.ref').read().split('; Override launch')[0]
out = hdr + f'''; @launch grid=(256,1,1) block=(256,1,1) lds={LDS_BYTES}
.amdgcn_target "amdgcn-amd-amdhsa--gfx950"
.text
.globl {NAME}_kernel
.p2align 8
.type {NAME}_kernel,@function
''' + body + f'''L_codeend:
.fill (33024 - (L_codeend - {NAME}_kernel)) / 4, 4, 0xbf810000
.section .rodata,"a"
.p2align 6
.amdhsa_kernel {NAME}_kernel
  .amdhsa_next_free_vgpr 512
  .amdhsa_next_free_sgpr 102
  .amdhsa_accum_offset 256
  .amdhsa_group_segment_fixed_size 0
  .amdhsa_kernarg_size 80
  .amdhsa_user_sgpr_count 2
  .amdhsa_user_sgpr_kernarg_segment_ptr 1
  .amdhsa_system_sgpr_workgroup_id_x 1
.end_amdhsa_kernel
'''
sys.stdout.write(out)
sys.stderr.write(f'nops inserted: {A.nops}\n')
```

```python
import sys, os, struct
sys.path.insert(0, os.path.dirname(os.path.abspath(__file__)))
from asmlib import Asm, Q

NAME = "recurrent_scan__sliding_local_dilated__swiglu_ffn__prompt"
OPT = dict(l2t=2, exp=0, sleep=3, stamps=0, sg=0, nodma=0, btouch=1, map2=0, burst=8, prio=0)
for a in sys.argv[1:]:
    k, v = a.split('=')
    assert k in OPT, k
    OPT[k] = int(v)

SLOT = 53504
UPOFF = 18560
LDS_BYTES = 163840
SCR = 2 * SLOT + 49152
ACT_OFF = 1 << 20
TG_STRIDE = 118 * 1024
ACT_BYTES = 64 * TG_STRIDE
FLAG_F = 0
FLAG_A = 0x800
FLAG_S = 0x1400
FLAG_C = 0x1800
STAT_OFF = 0x2000
CS_OFF = 0x8000
AUX_BYTES = 0x8000 + 10 * 9216
STAMP_OFF = 1 << 19
NREG = 12
LOG2E = 1.4426950408889634
OOB = 0x80000000
SPIN = 0x40000
def f2u(x): return struct.unpack('<I', struct.pack('<f', x))[0]

sW = 3
SRD_X, SRD_W, SRD_ACT, SRD_B, SRD_XR, SRD_OUT = 4, 8, 12, 16, 20, 24
sDBG, sWS = 28, 30
sKA = 32
sIT, sKS, sBX, sBW, sKQ, sMW, sOX, sOW = 48, 49, 50, 51, 52, 53, 54, 55
sD = 56
sN0 = 59
sSLOT, sDELTA, sONES, sRS = 60, 61, 62, 63
sR, sCB, sA, sB, sTAG, sT0, sT1, sT2, sT3 = 64, 65, 66, 67, 68, 69, 70, 71, 72
sMH, sST, sFLAG, sSOFF, sNW, sT4, sT5 = 73, 74, 75, 76, 77, 78, 79
SRD_AUX = 80
SRD_T = 84
sEX = 88
sCLK = 90
sSTAMP = 92
def srd(n): return f's[{n}:{n+3}]'

vL = 0
vDMA = 4
vRX, vRW = 11, 15
vST = 16
vPL, vFL, vTG = 22, 23, 24
vBP = 25
vL16 = 29
vAD = 30
vMSK = 36
vFR = 48
vACC = 80
def vr(b, n): return f'v[{b}:{b+n-1}]'
def ar(b, n): return f'a[{b}:{b+n-1}]'

A = Asm()
STI = 's_memtime' if OPT['stamps'] == 2 else 's_memrealtime'
nstamp = [0]
def stamp(grp=0):
    if not OPT['stamps'] or grp != OPT['sg']: return
    i = nstamp[0]; nstamp[0] += 1
    assert i < 10
    A(f'{STI} s[{sCLK}:{sCLK+1}]\ns_waitcnt lgkmcnt(0)\ns_mov_b32 s{sSTAMP+i}, s{sCLK}')

def mf32(d, a, b, c): return f'v_mfma_f32_32x32x16_bf16 {d}, {a}, {b}, {c}'
def mf16(d, a, b, c): return f'v_mfma_f32_16x16x32_bf16 {d}, {a}, {b}, {c}'
def mf16k(d, a, b, c): return f'v_mfma_f32_16x16x16_bf16 {d}, {a}, {b}, {c}'

def spread(groups, slots, into=None):
    out = {} if into is None else into
    n = len(groups)
    for i, g in enumerate(groups):
        out.setdefault(slots[(i * len(slots)) // n], []).extend(g)
    return out
def lines(L):
    for l in L: (l() if callable(l) else A(l))
def mix(a, b):
    out = []; a = list(a); b = list(b)
    while a or b:
        if a: out.append(a.pop(0))
        if b: out.append(b.pop(0))
    return out

class Inter:
    def __init__(self): self.g = []; self.every = 1; self.c = 0
    def push(self, groups, every): self.g += list(groups); self.every = every; self.c = 0
    def __call__(self, text):
        for l in text.split('\n'):
            l = l.strip()
            if not l: continue
            A(l); self.c += 1
            if self.g and self.c >= self.every:
                lines(self.g.pop(0)); self.c = 0
    def flush(self):
        while self.g: lines(self.g.pop(0))

def build_srd(n, plo, size, E=None):
    (E or A)(f'''s_mov_b32 s{n}, s{plo}
s_mov_b32 s{n+1}, s{plo+1}
s_mov_b32 s{n+2}, {size}
s_mov_b32 s{n+3}, 0x20000''')

SOFFX = [f's_lshl_b32 s{sOX}, s{sKS}, 7', f's_add_u32 s{sOX}, s{sOX}, s{sBX}']
SOFFW = [f's_mul_i32 s{sOW}, s{sKS}, s{sMW}', f's_add_u32 s{sOW}, s{sOW}, s{sBW}']
SOFFWN = [f's_mul_i32 s{sNW}, s{sKS}, s{sMW}', f's_add_u32 s{sNW}, s{sNW}, s{sBW}']
KSINC = [f's_add_u32 s{sKS}, s{sKS}, 1', f's_and_b32 s{sKS}, s{sKS}, 7']
SOFF = SOFFX + SOFFW + KSINC
ADV = [f's_add_u32 s{sSLOT}, s{sSLOT}, {SLOT}', f's_cmp_eq_u32 s{sSLOT}, {3*SLOT}', f's_cselect_b32 s{sSLOT}, 0, s{sSLOT}']
RDELTA = [f's_add_u32 s{sRS}, s{sRS}, 1', f's_mov_b32 s{sDELTA}, {SLOT}', f's_cmp_eq_u32 s{sRS}, 3',
          f's_cmov_b32 s{sDELTA}, {(-2*SLOT) & 0xffffffff}', f's_cmov_b32 s{sRS}, 0']

def dma(v, s_, o_, im, pre=None, flags=''):
    off = f' offset:{im}' if im else ''
    return (pre or []) + [f'buffer_load_dwordx4 v{v}, {srd(s_)}, s{o_} offen{off}{flags} lds']

vSR = 48
def stat_load():
    A(f'''s_lshl_b32 s{sT0}, s2, 13
s_lshl_b32 s{sT1}, s{sW}, 10
s_add_u32 s{sT0}, s{sT0}, s{sT1}
buffer_load_dwordx4 {vr(vSR, 4)}, v{vL16}, {srd(SRD_XR)}, s{sT0} offen''')

def stat_compute(E):
    sm, sq, t, t2 = 52, 53, 54, 55
    E(f'v_mov_b32 v{sm}, 0\nv_mov_b32 v{sq}, 0')
    for i in range(4):
        E(f'v_dot2c_f32_bf16 v{sm}, s{sONES}, v{vSR+i}\nv_dot2c_f32_bf16 v{sq}, v{vSR+i}, v{vSR+i}')
    for r in (1, 2, 4, 8):
        E(f'v_add_f32_dpp v{sm}, v{sm}, v{sm} row_ror:{r} row_mask:0xf bank_mask:0xf')
        E(f'v_add_f32_dpp v{sq}, v{sq}, v{sq} row_ror:{r} row_mask:0xf bank_mask:0xf')
    for sw in (16, 32):
        E(f'''v_mov_b32 v{t}, v{sm}
v_mov_b32 v{t2}, v{sq}
v_permlane{sw}_swap_b32 v{sm}, v{t}
v_permlane{sw}_swap_b32 v{sq}, v{t2}
v_add_f32 v{sm}, v{sm}, v{t}
v_add_f32 v{sq}, v{sq}, v{t2}''')
    E(f'''v_mul_f32 v{sm}, {f2u(1/512)}, v{sm}
v_mul_f32 v{sq}, {f2u(1/512)}, v{sq}
v_fma_f32 v{sq}, -v{sm}, v{sm}, v{sq}
v_max_f32 v{sq}, 0, v{sq}
v_cvt_pk_bf16_f32 v{sq}, v{sq}, v{sq}
v_lshlrev_b32 v{sq}, 16, v{sq}
v_add_f32 v{sq}, {f2u(1e-5)}, v{sq}
v_cvt_pk_bf16_f32 v{sq}, v{sq}, v{sq}
v_lshlrev_b32 v{sq}, 16, v{sq}
v_sqrt_f32 v{sq}, v{sq}
s_lshl_b32 s{sT0}, s2, 5
s_lshl_b32 s{sT1}, s{sW}, 2
s_add_u32 s{sT0}, s{sT0}, s{sT1}
s_add_u32 s{sT0}, s{sT0}, {STAT_OFF}
v_cvt_pk_bf16_f32 v{sq}, -v{sm}, v{sq}''')
    A(f'''s_mov_b64 exec, 1
buffer_store_dword v{sq}, off, {srd(SRD_AUX)}, s{sT0} sc1
s_mov_b64 exec, -1''')

uid = [0]
def publish_tag():
    uid[0] += 1; n = uid[0]
    A(f'''s_or_b32 s{sT0}, s2, s{sW}
s_cmp_lg_u32 s{sT0}, 0
s_cbranch_scc1 L_notag{n}
s_memrealtime s[{sT4}:{sT5}]
s_waitcnt lgkmcnt(0)
s_or_b32 s{sT4}, s{sT4}, 1
v_mov_b32 v1, 0
v_mov_b32 v2, s{sT4}
s_mov_b64 exec, 1
global_store_dword v1, v2, s[{sDBG}:{sDBG+1}] sc1
s_mov_b64 exec, -1
L_notag{n}:''')

def setup2():
    build_srd(SRD_AUX, sWS, AUX_BYTES)
    build_srd(SRD_OUT, sKA + 14, 2048 * 1024)
    A(f'''s_add_u32 s{SRD_ACT}, s{sWS}, {ACT_OFF}
s_addc_u32 s{SRD_ACT+1}, s{sWS+1}, 0
s_mov_b32 s{SRD_ACT+2}, {ACT_BYTES if OPT['exp'] != 2 else 0}
s_mov_b32 s{SRD_ACT+3}, 0x20000
s_lshr_b32 s{sKQ}, s{sW}, 1
s_lshr_b32 s{sT0}, s{sW}, 2
s_xor_b32 s{sKQ}, s{sKQ}, s{sT0}
s_and_b32 s{sMH}, s{sW}, 1
s_cmp_eq_u32 s{sKQ}, 0
s_cselect_b32 s{SRD_B}, s{sKA+4}, s{sKA+12}
s_cselect_b32 s{SRD_B+1}, s{sKA+5}, s{sKA+13}
s_mov_b32 s{SRD_B+2}, {1376*1024}
s_cmov_b32 s{SRD_B+2}, {512*1024}
s_mov_b32 s{SRD_B+3}, 0x20000
s_mov_b32 s{sIT}, 0
s_mov_b32 s{sRS}, 0
v_lshrrev_b32 v1, 3, v{vL}
v_and_b32 v2, 7, v{vL}
v_bfe_u32 v3, v{vL}, 4, 1
v_lshlrev_b32 v3, 2, v3
v_xor_b32 v2, v2, v3
v_lshlrev_b32 v2, 4, v2
v_lshl_add_u32 v{vBP}, v1, 10, v2''')
    for i in range(1, 4): A(f'v_add_u32 v{vBP+i}, {7168*i}, v{vBP}')
    A(f'''s_sub_u32 s{sT0}, s{sKQ}, 1
s_max_i32 s{sT0}, s{sT0}, 0
s_mul_i32 s{sSOFF}, s{sT0}, {464*1024}
s_lshl_b32 s{sT0}, s{sCB}, 7
s_add_u32 s{sSOFF}, s{sSOFF}, s{sT0}''')

def touches(vm):
    A(f'''s_lshl_b32 s{sT0}, s2, 3
s_add_u32 s{sT0}, s{sT0}, s{sW}
s_sub_u32 s{sT1}, s{sT0}, 1376
s_cmp_ge_u32 s{sT0}, 1376
s_cselect_b32 s{sT0}, s{sT1}, s{sT0}
s_cselect_b32 s{SRD_T}, s{sKA+4}, s{sKA+12}
s_cselect_b32 s{SRD_T+1}, s{sKA+5}, s{sKA+13}
s_mov_b32 s{SRD_T+2}, {1376*1024 if OPT['btouch'] else 0}
s_cmov_b32 s{SRD_T+2}, {512*1024 if OPT['btouch'] else 0}
s_mov_b32 s{SRD_T+3}, 0x20000
s_lshl_b32 s{sT0}, s{sT0}, 10
v_and_b32 v1, 7, v{vL}
v_lshlrev_b32 v1, 7, v1
buffer_load_dword v79, v1, {srd(SRD_T)}, s{sT0} offen
s_lshr_b32 s{sT0}, s2, 3
s_sub_u32 s{sT1}, s{sT0}, 22
s_cmp_ge_u32 s{sT0}, 22
s_cselect_b32 s{sT0}, s{sT1}, s{sT0}
s_cselect_b32 s{SRD_T}, s{sKA+4}, s{sKA+12}
s_cselect_b32 s{SRD_T+1}, s{sKA+5}, s{sKA+13}
s_mov_b32 s{SRD_T+2}, {1376*1024}
s_cmov_b32 s{SRD_T+2}, {512*1024}
s_lshl_b32 s{sT0}, s{sT0}, 16
s_lshl_b32 s{sT1}, s{sW}, 9
s_add_u32 s{sT0}, s{sT0}, s{sT1}
s_add_u32 s{sT0}, s{sT0}, 384
s_cmp_ge_u32 s{sW}, {OPT['l2t']}
s_cselect_b32 s{sT0}, {OOB}, s{sT0}
v_lshlrev_b32 v1, 10, v{vL}
buffer_load_dword v79, v1, {srd(SRD_T)}, s{sT0} offen
v_mov_b32 v1, 0
global_load_dword v{vTG}, v1, s[{sDBG}:{sDBG+1}] sc1''')
    vm.issue('touch'); vm.issue('touch'); vm.issue('tag')

def tail_setup():
    A(f'''s_mul_i32 s{sT0}, s{sMH}, {48*1024}
s_add_u32 s{sOX}, s{sSOFF}, s{sT0}
s_mul_i32 s{sD}, s{sKQ}, 12288
s_mul_i32 s{sT0}, s{sMH}, 6144
s_add_u32 s{sD}, s{sD}, s{sT0}''')
def tail_dma():
    out = [dma(vBP, SRD_B, sOX, 0, [f's_add_u32 m0, s{sSLOT}, s{sD}'])]
    for i in range(1, 4): out.append(dma(vBP + i, SRD_B, sOX, 1024 * i))
    out.append(dma(vBP, SRD_B, sOX, 0, ['s_add_u32 m0, m0, 4096', f's_add_u32 s{sOX}, s{sOX}, 32768']))
    out.append(dma(vBP + 1, SRD_B, sOX, 1024) + [f's_add_u32 s{sOX}, s{sOX}, {96*1024 - 32768}'])
    return out

def handlers(n):
    A(f'''L_{n}h:
s_cmp_eq_u32 s{sIT}, 5
s_cbranch_scc1 L_{n}h5
v_readfirstlane_b32 s{sTAG}, v{vTG}
s_mov_b32 s{sT0}, 0
L_tag{n}:
s_cmp_lg_u32 s{sTAG}, 0
s_cbranch_scc1 L_tagok{n}
v_mov_b32 v1, 0
global_load_dword v{vTG}, v1, s[{sDBG}:{sDBG+1}] sc1
s_waitcnt vmcnt(0)
v_readfirstlane_b32 s{sTAG}, v{vTG}
s_add_u32 s{sT0}, s{sT0}, 1
s_cmp_lt_u32 s{sT0}, {SPIN}
s_cbranch_scc1 L_tag{n}
L_tagok{n}:
s_cmp_lg_u32 s{sW}, 0
s_cbranch_scc1 L_{n}back
v_mov_b32 v1, s{sTAG}
s_mov_b64 exec, 3
buffer_store_dword v1, v{vFL}, {srd(SRD_AUX)}, 0 offen sc1
s_mov_b64 exec, -1
s_branch L_{n}back
L_{n}h5:
buffer_load_dword v{vTG}, v{vPL}, {srd(SRD_AUX)}, 0 offen sc1
s_branch L_{n}back''')
def hcheck(n): A(f's_bitcmp1_b32 0x22, s{sIT}\ns_cbranch_scc1 L_{n}h\nL_{n}back:')

def check_flag0(n):
    A(f'''s_mov_b32 s{sT0}, 0
L_f0{n}:
v_cmp_ne_u32 vcc, s{sTAG}, v{vTG}
s_cbranch_vccz L_f0ok{n}
buffer_load_dword v{vTG}, v{vPL}, {srd(SRD_AUX)}, 0 offen sc1
s_waitcnt vmcnt(0)
s_add_u32 s{sT0}, s{sT0}, 1
s_cmp_lt_u32 s{sT0}, {SPIN}
s_cbranch_scc1 L_f0{n}
L_f0ok{n}:''')

def split_hilo(r, t, E=None):
    (E or A)(f'''v_cvt_pk_bf16_f32 v{t}, v{r}, v{r}
v_lshlrev_b32 v{t}, 16, v{t}
v_sub_f32 v{t}, v{r}, v{t}
v_cvt_pk_bf16_f32 v{r}, v{r}, v{t}''')

vB = 4
REG_BASE = [SLOT, 2 * SLOT, 0]
REG_T = [(0, 6), (6, 12), (12, 20)]
def baddr_setup():
    A(f'''v_lshrrev_b32 v1, 5, v{vL}
v_bfe_u32 v2, v{vL}, 2, 2
v_lshl_add_u32 v1, v1, 2, v2
v_lshlrev_b32 v1, 7, v1
v_bfe_u32 v2, v{vL}, 3, 1
v_lshl_add_u32 v1, v2, 6, v1
v_bfe_u32 v2, v{vL}, 4, 1
v_lshl_add_u32 v1, v2, 5, v1
v_and_b32 v2, 3, v{vL}
v_lshl_add_u32 v10, v2, 3, v1
s_mul_i32 s{sD}, s{sKQ}, 12288
v_add_u32 v{vB+4}, s{sD}, v10
v_xor_b32 v{vB+5}, 64, v{vB+4}
v_add_u32 v{vB}, {SLOT}, v{vB+4}
v_add_u32 v{vB+1}, {SLOT}, v{vB+5}
v_add_u32 v{vB+2}, {2*SLOT}, v{vB+4}
v_add_u32 v{vB+3}, {2*SLOT}, v{vB+5}
v_add_u32 v11, {16384-2048}, v{vBP}
s_lshl_b32 s{sT0}, s{sMH}, 10
s_add_u32 s{sD}, s{sD}, s{sT0}
s_mul_i32 s{sD+1}, s{sKQ}, 10240
s_cmp_lg_u32 s{sKQ}, 0
s_cselect_b32 s{sT1}, 6144, 0
s_add_u32 s{sD+1}, s{sD+1}, s{sT1}
s_add_u32 s{sD+2}, s{sD+1}, s{sT0}
s_lshl_b32 s{sT0}, s{sMH}, 13
s_add_u32 s{sSOFF}, s{sSOFF}, s{sT0}
s_add_u32 s{sSOFF}, s{sSOFF}, {NREG*16384 if OPT['exp'] != 1 else OOB}''')
def breg_groups(half):
    out = []
    for st in range(6 * half, 6 * half + 6):
        for ct in range(2):
            base = vB + (2 if half == 0 else 4) + ct
            out.append([f'ds_read_b64_tr_b16 {ar(st*8 + ct*4 + hf*2, 2)}, v{base} offset:{(st % 6)*2048 + hf*1024}' for hf in range(2)])
    return out
def static_groups(r, vm, n):
    out = []
    a, b = REG_T[r]
    for t in range(a, b):
        g = []
        if t == 16: g += [f's_cmp_eq_u32 s{sKQ}, 3', f's_cbranch_scc1 L_sdone{n}']
        if t == 17: g += [f's_cmp_lg_u32 s{sKQ}, 0', f's_cbranch_scc1 L_sdone{n}']
        if t % 2 == 0:
            if t: g.append(f's_add_u32 s{sSOFF}, s{sSOFF}, 32768')
            g.append(f's_add_u32 m0, s{sD if r < 2 else sD+2}, {REG_BASE[r] + (t - a)*2048}')
            g += dma(vBP, SRD_B, sSOFF, 0)
        else:
            g += dma(11, SRD_B, sSOFF, 2048)
        g.append(lambda: vm.issue('dma'))
        out.append(g)
    if r == 2:
        tail = sum(out[4:], []) + [f'L_sdone{n}:']
        out = out[:4] + [tail]
    return out

A(f'{NAME}_kernel:')
A(f'''s_load_dwordx16 s[{sKA}:{sKA+15}], s[0:1], 0
s_load_dwordx4 s[{sDBG}:{sDBG+3}], s[0:1], 64
s_cmp_ge_u32 s2, 256
s_cbranch_scc1 L_end
s_getpc_b64 s[{sT4}:{sT5}]
v_lshlrev_b32 v1, 6, v0
global_load_dword v79, v1, s[{sT4}:{sT5}]
v_lshrrev_b32 v1, 6, v0
v_and_b32 v{vL}, 63, v0
v_readfirstlane_b32 s{sW}, v1
s_and_b32 s{sT0}, s2, 7
s_lshr_b32 s{sT1}, s2, 3
s_lshr_b32 s{sT2}, s{sT0}, 1
s_and_b32 s{sT3}, s{sT0}, 1''')
if OPT['stamps']:
    A(f'{STI} s[{sCLK}:{sCLK+1}]'); nstamp[0] = 1
if OPT['map2'] == 0:
    A(f'''s_lshl_b32 s{sR}, s{sT0}, 2
s_lshr_b32 s{sCB}, s{sT1}, 3
s_add_u32 s{sR}, s{sR}, s{sCB}
s_and_b32 s{sCB}, s{sT1}, 7''')
else:
    A(f'''s_lshl_b32 s{sR}, s{sT2}, 3
s_lshr_b32 s{sCB}, s{sT1}, 2
s_add_u32 s{sR}, s{sR}, s{sCB}
s_and_b32 s{sCB}, s{sT1}, 3
s_lshl_b32 s{sA}, s{sT3}, 2
s_add_u32 s{sCB}, s{sCB}, s{sA}''')
if OPT['exp'] == 3: A(f's_add_u32 s{sCB}, s{sCB}, 1\ns_and_b32 s{sCB}, s{sCB}, 7')
A(f'''s_mov_b32 s{sONES}, 0x3f803f80
v_lshrrev_b32 v30, 3, v{vL}
v_and_b32 v31, 7, v{vL}
v_lshrrev_b32 v32, 4, v{vL}
v_lshlrev_b32 v{vL16}, 4, v{vL}
v_xor_b32 v1, v31, v32
v_lshlrev_b32 v1, 4, v1
v_lshl_add_u32 v{vDMA}, v30, 11, v1
s_mov_b32 s{sSLOT}, 0
s_cmp_ge_u32 s{sT1}, 20
s_cbranch_scc1 L_attn''')

A(f'''s_mul_i32 s{sA}, s{sT1}, 52
s_lshr_b32 s{sA}, s{sA}, 8
s_mul_i32 s{sB}, s{sA}, 5
s_sub_u32 s{sB}, s{sT1}, s{sB}
s_mul_i32 s{sT3}, s{sT3}, 5
s_add_u32 s{sB}, s{sB}, s{sT3}
s_lshl_b32 s{sT2}, s{sT2}, 2
s_add_u32 s{sA}, s{sA}, s{sT2}
v_xor_b32 v{vDMA+1}, 64, v{vDMA}
v_add_u32 v{vDMA+1}, {16384-1024}, v{vDMA+1}
s_lshr_b32 s{sT0}, s{sW}, 2
s_and_b32 s{sT1}, s{sW}, 1
s_add_u32 s{sT2}, s{sT0}, 4
s_mul_i32 s{sT2}, s{sT2}, s{sT1}
s_lshl_b32 s{sT3}, s{sT0}, 3
s_add_u32 s{sT2}, s{sT2}, s{sT3}
s_lshl_b32 s{sT3}, s{sT2}, 6
v_add_u32 v1, s{sT3}, v{vL}
s_movk_i32 s{sT4}, 3641
s_movk_i32 s{sT5}, 2464''')
for i in range(5):
    A(f'''v_mul_u32_u24 v2, s{sT4}, v1
v_lshrrev_b32 v2, 16, v2
v_mul_u32_u24 v2, s{sT5}, v2
v_lshl_add_u32 v{vDMA+2+i}, v1, 4, v2''')
    if i % 4: A(f'v_subrev_u32 v{vDMA+2+i}, {(i % 4)*1024}, v{vDMA+2+i}')
    if i < 4: A('v_add_u32 v1, 64, v1')
A(f'''s_bfe_u32 s{sT3}, s{sW}, 0x10001
s_mul_i32 s{sD+1}, s{sT3}, {UPOFF}
s_lshl_b32 s{sT2}, s{sT2}, 10
s_add_u32 s{sD+1}, s{sD+1}, s{sT2}
s_add_u32 s{sD+1}, s{sD+1}, 16384
s_lshl_b32 s{sD}, s{sW}, 11
s_mul_i32 s{sST}, s{sB}, 9
s_sub_u32 s{sT2}, s{sB}, 6
s_max_i32 s{sT2}, s{sT2}, 0
s_sub_u32 s{sST}, s{sST}, s{sT2}
s_lshl_b32 s{sBW}, s{sST}, 5
s_lshl_b32 s{sBX}, s{sA}, 7
s_lshl_b32 s{sT2}, s{sT0}, 6
s_add_u32 s{sBX}, s{sBX}, s{sT2}
s_add_u32 s{sBX}, s{sBX}, s{sT3}
s_lshl_b32 s{sT2}, s{sT1}, 5
s_add_u32 s{sBX}, s{sBX}, s{sT2}
s_lshl_b32 s{sBX}, s{sBX}, 10
s_mov_b32 s{sMW}, {64*2752}
s_lshr_b32 s{sKS}, s{sA}, 1
s_cmp_lt_u32 s{sB}, 6
s_cselect_b32 s{sN0}, 5, 4''')
lines(SOFF)
A(f'''s_cmp_eq_u32 s{sT3}, 1
s_waitcnt lgkmcnt(0)
s_cselect_b32 s{SRD_W}, s{sKA+10}, s{sKA+8}
s_cselect_b32 s{SRD_W+1}, s{sKA+11}, s{sKA+9}
s_mov_b32 s{SRD_W+2}, {512*2752}
s_mov_b32 s{SRD_W+3}, 0x20000''')
if OPT['stamps']: A(f's_mov_b32 s{sSTAMP}, s{sCLK}')
build_srd(SRD_XR, sKA, 2048 * 1024)
stat_load()
build_srd(SRD_X, sKA, 2048 * 1024)
FX = [dma(vDMA, SRD_X, sOX, 0, [f's_add_u32 m0, s{sSLOT}, s{sD}']), dma(vDMA + 1, SRD_X, sOX, 1024)]
FW = [dma(vDMA + 2, SRD_W, sOW, 0, [f's_add_u32 m0, s{sSLOT}, s{sD+1}'])] + [dma(vDMA + 2 + i, SRD_W, sOW, 1024 * i) for i in range(1, 4)]
FW5 = dma(vDMA + 6, SRD_W, sOW, 0, ['s_add_u32 m0, m0, 4096'])
def fw5_guarded(tag):
    uid[0] += 1
    A(f's_cmp_lt_u32 s{sW}, 4\ns_cbranch_scc1 L_no5{uid[0]}'); lines(FW5); A(f'L_no5{uid[0]}:')
stamp(1)
vm = Q(63); vm.issue('code'); vm.issue('sr')
for g in FW: lines(g); vm.issue('w0')
fw5_guarded('w0')
for g in FX: lines(g); vm.issue('x0')
publish_tag()
stamp(1)
lines(ADV); lines(SOFF)
setup2()
A('v_mov_b32 v56, 0\nv_mov_b32 v57, 0\nv_mov_b32 v58, 0\nv_mov_b32 v59, 0')
for T in range(5): A(mf32(vr(vACC + 16*T, 16), 'v[56:59]', 'v[56:59]', '0'))
A(f'''v_and_b32 v1, 31, v{vL}
s_and_b32 s{sT0}, s{sW}, 3
s_lshl_b32 s{sT0}, s{sT0}, 5
v_add_u32 v1, s{sT0}, v1
v_bfe_u32 v2, v1, 1, 3
v_lshrrev_b32 v3, 5, v{vL}
v_xor_b32 v2, v2, v3
v_lshlrev_b32 v2, 4, v2
v_lshl_add_u32 v{vRX}, v1, 7, v2
v_xor_b32 v{vRX+1}, 32, v{vRX}
v_xor_b32 v{vRX+2}, 64, v{vRX}
v_xor_b32 v{vRX+3}, 96, v{vRX}
v_bfe_u32 v1, v{vL}, 2, 2
v_and_b32 v2, 3, v{vL}
v_lshlrev_b32 v2, 3, v2
s_movk_i32 s{sT0}, 288
v_mad_u32_u24 v35, v1, s{sT0}, v2
v_mul_u32_u24 v2, 2304, v3
v_bfe_u32 v1, v{vL}, 4, 1
v_mul_u32_u24 v{vRW}, {UPOFF}, v1
v_add3_u32 v{vRW}, v{vRW}, v2, v35
s_lshr_b32 s{sT0}, s{sW}, 2
s_mul_i32 s{sT0}, s{sT0}, s{sN0}
s_lshl_b32 s{sT0}, s{sT0}, 5
s_add_u32 s{sT0}, s{sT0}, 16384
v_add_u32 v{vRW}, s{sT0}, v{vRW}
s_and_b32 s{sT0}, s{sW}, 1
s_mul_i32 s{sT0}, s{sT0}, {UPOFF}
s_add_u32 s{sT0}, s{sT0}, 16384
v_add_u32 v35, s{sT0}, v35
v_mul_u32_u24 v34, 1152, v32
v_add_u32 v34, v34, v35
v_mul_u32_u24 v33, 1152, v3
v_lshl_add_u32 v33, v1, 7, v33
s_lshr_b32 s{sT1}, s{sW}, 1
s_lshl_b32 s{sT2}, s{sT1}, 5
v_add3_u32 v33, v33, v35, s{sT2}''')
A(f'''s_lshl_b32 s{sT0}, s2, 2
s_add_u32 s{sT0}, s{sT0}, {FLAG_S}
s_lshl_b32 s{sT3}, s{sB}, 5
s_add_u32 s{sT3}, s{sT3}, {FLAG_C}
s_lshl_b32 s{sT2}, s{sA}, 1
s_add_u32 s{sT4}, s{sT2}, s{sT3}
s_bitcmp0_b32 s{sA}, 0
s_cselect_b32 s{sT4}, s{sT4}, s{sT0}
v_mov_b32 v{vFL}, s{sT4}
v_writelane_b32 v{vFL}, s{sT0}, 0
s_lshl_b32 s{sT0}, s{sA}, 6
s_add_u32 s{sT0}, s{sT0}, {FLAG_S}
v_and_b32 v2, 15, v{vL}
v_lshl_add_u32 v3, v2, 2, s{sT0}
v_lshl_add_u32 v31, v31, 2, s{sT3}
v_cmp_gt_u32 vcc, 32, v{vL}
v_cndmask_b32 v{vPL}, v31, v3, vcc
s_mul_i32 s{sT0}, s{sB}, 9216
s_add_u32 s{sT0}, s{sT0}, s{sT2}
s_and_b32 s{sT3}, s{sW}, 1
s_lshl_b32 s{sT3}, s{sT3}, 9
s_add_u32 s{sT0}, s{sT0}, s{sT3}
s_add_u32 s{sT0}, s{sT0}, {CS_OFF}
v_lshl_add_u32 v2, v2, 5, s{sT0}
s_lshl_b32 s{sT3}, s{sT1}, 10
v_lshlrev_b32 v35, 12, v1
v_add3_u32 v35, v35, v2, s{sT3}
v_mov_b32 v3, {OOB}
v_cndmask_b32 v35, v3, v35, vcc
v_add_u32 v32, 8192, v2
s_cmp_eq_u32 s{sT1}, 0
s_cselect_b32 s{sT3}, 16, 0
v_cmp_gt_u32 vcc, s{sT3}, v{vL}
v_cndmask_b32 v32, v3, v32, vcc''')
stamp(1)
A(f's_waitcnt vmcnt({vm.need({"sr"})})')
stamp(1)
E = Inter()
E.push([g + [lambda: vm.issue('s1')] for g in FW], 10)
stat_compute(E); vm.issue('st')
E.flush()
fw5_guarded('s1')
A(f's_waitcnt vmcnt({vm.need({"w0"})})\ns_barrier')
for g in FX: lines(g); vm.issue('s1')
stamp(1)
A(f's_bitcmp1_b32 s{sA}, 0\ns_cbranch_scc1 L_nocs')
A('v_mov_b32 v52, 0\nv_mov_b32 v53, 0')
for n in range(8): A(f'ds_read_b64_tr_b16 {vr(56+2*n, 2)}, v33 offset:{n*2304}')
for n in range(4): A(f'ds_read_b64_tr_b16 {vr(72+2*n, 2)}, v34 offset:{n*4608 + 256}')
for n in range(8):
    if n % 2 == 0: A(f's_waitcnt lgkmcnt({10 - n})')
    A(f'v_dot2c_f32_bf16 v52, s{sONES}, v{56+2*n}\nv_dot2c_f32_bf16 v52, s{sONES}, v{57+2*n}')
A('s_waitcnt lgkmcnt(0)')
for n in range(8): A(f'v_dot2c_f32_bf16 v53, s{sONES}, v{72+n}')
A('''v_mov_b32 v54, v52
v_mov_b32 v55, v53
v_permlane32_swap_b32 v52, v54
v_permlane32_swap_b32 v53, v55
v_add_f32 v52, v52, v54
v_add_f32 v53, v53, v55
v_mov_b32 v55, v53
v_permlane16_swap_b32 v53, v55
v_add_f32 v53, v53, v55''')
split_hilo(52, 54); split_hilo(53, 55)
A(f'''buffer_store_dword v52, v35, {srd(SRD_AUX)}, 0 offen sc1
buffer_store_dword v53, v32, {srd(SRD_AUX)}, 0 offen sc1
L_nocs:''')
lines(ADV); lines(SOFF)
touches(vm)
stamp(1)
A(f's_waitcnt vmcnt({vm.need({"x0"})})\ns_barrier')
stamp(); stamp(1)
A(f'''s_lshr_b32 s{sT0}, s{sW}, 2
s_add_u32 s{sT0}, s{sT0}, 4
s_cmp_lt_u32 s{sT0}, s{sN0}
s_cbranch_scc0 L_f4''')

lg = Q(15)
vC1, vIR = 17, 19
vBM = 36
vCL = 40
def ffn_role(nt, n):
    NM = 4 * nt
    NHD = 2
    def rw(m):
        p, T = divmod(m, nt); s = vFR + 8 + (m % nt) * 4
        A(f'ds_read_b64_tr_b16 {vr(s, 2)}, v{vRW} offset:{p*4608 + T*32}'); lg.issue(('w', m))
        A(f'ds_read_b64_tr_b16 {vr(s+2, 2)}, v{vRW} offset:{p*4608 + T*32 + 1152}'); lg.issue(('w', m))
    def rx(p):
        A(f'ds_read_b128 {vr(vFR + (p & 1)*4, 4)}, v{vRX+p}'); lg.issue(('x', p))
    def mm(m):
        p, T = divmod(m, nt); s = vFR + 8 + (m % nt) * 4
        A(mf32(vr(vACC + 16*T, 16), vr(s, 4), vr(vFR + (p & 1)*4, 4), vr(vACC + 16*T, 16)))
    D = nt - 1
    def five():
        uid[0] += 1
        return [f's_cmp_lt_u32 s{sW}, 4', f's_cbranch_scc1 L_no5{uid[0]}'] + FW5 + [f'L_no5{uid[0]}:']
    def fill_for(main):
        fill = {}
        dl = (FX + FW + ([five()] if nt == 4 else [])) if main else tail_dma()
        last = NM - 3
        if not OPT['nodma']: spread(dl, list(range(0, last + 1)), fill)
        spread([RDELTA[:2], RDELTA[2:]], [2, 3], fill)
        if main: spread([SOFFX, SOFFWN, KSINC, [f's_mov_b32 s{sOW}, s{sNW}']], [7, 8, 9, last], fill)
        spread([ADV], [last], fill)
        spread([[f'v_add_u32 v{vRX+i}, s{sDELTA}, v{vRX+i}'] for i in range(4)], [4, 6, 2*nt + 2, 3*nt + 2], fill)
        spread([[f'v_add_u32 v{vRW}, s{sDELTA}, v{vRW}']], [NM - 2], fill)
        return fill
    def head(fill, with_mfma, extra=None):
        lg.drain()
        rw(0); rx(0)
        for i in range(1, D - NHD + 1): rw(i)
        for m in range(NHD):
            if with_mfma: mm(NM - NHD + m)
            if D - NHD + 1 + m < D: rw(D - NHD + 1 + m)
            if m == 0 and extra: extra()
            lines(fill.get(m, []))
    def rest(fill, last_it, label):
        for m in range(NM - NHD):
            p, T = divmod(m, nt)
            if m == NM - NHD - 1:
                A('s_waitcnt vmcnt(6) lgkmcnt(0)'); lg.drain()
            c = lg.need({('w', m), ('x', p)})
            if c is not None: A(f's_waitcnt lgkmcnt({c})')
            mm(m)
            if m + D < NM: rw(m + D)
            if T == 1 and p < 3: rx(p + 1)
            lines(fill.get(m + NHD, []))
            if m == NM - NHD - 2: A(f's_add_u32 s{sIT}, s{sIT}, 1\ns_cmp_lt_u32 s{sIT}, {last_it}')
        A(f's_barrier\ns_cbranch_scc1 {label}')
    fm = fill_for(True)
    head(fm, False)
    A(f's_branch L_{n}ent\nL_{n}loop:')
    fm = fill_for(True)
    head(fm, True, lambda: hcheck(n))
    A(f'L_{n}ent:')
    rest(fm, 6, f'L_{n}loop')
    def inter():
        check_flag0(n)
        A(f'''v_and_b32 v1, 31, v{vL}
v_lshlrev_b32 v2, 3, v1
s_lshl_b32 s{sT0}, s{sA}, 7
s_bfe_u32 s{sT1}, s{sW}, 0x10001
s_lshl_b32 s{sT1}, s{sT1}, 6
s_add_u32 s{sT0}, s{sT0}, s{sT1}
s_add_u32 s{sT0}, s{sT0}, s{sMH}
s_lshl_b32 s{sT0}, s{sT0}, 2
s_add_u32 s{sT0}, s{sT0}, {STAT_OFF}
buffer_load_dword v{vST}, v2, {srd(SRD_AUX)}, s{sT0} offen sc1
v_lshlrev_b32 v1, 5, v1
v_lshrrev_b32 v2, 5, v{vL}
v_lshl_add_u32 v{vAD}, v2, 4, v1
s_mul_i32 s{sT0}, s{sB}, 9216
s_add_u32 s{sT0}, s{sT0}, {CS_OFF}
s_lshr_b32 s{sT2}, s{sW}, 2
s_mul_i32 s{sT2}, s{sT2}, s{sN0}
s_add_u32 s{sT1}, s{sT2}, {nt-1}
s_lshl_b32 s{sT1}, s{sT1}, 10
s_add_u32 s{sT1}, s{sT1}, s{sT0}
buffer_load_dwordx4 {vr(vCL, 4)}, v{vAD}, {srd(SRD_AUX)}, s{sT1} offen sc1
s_min_u32 s{sT1}, s{sW}, 6
s_lshl_b32 s{sT3}, s{sT1}, 10
s_add_u32 m0, s{sT3}, {SCR}
s_add_u32 s{sT1}, s{sT1}, 2
s_cmp_gt_u32 s{sT1}, s{sN0}
s_cselect_b32 s{sT1}, 1024, 0
s_add_u32 s{sT0}, s{sT0}, s{sT1}
s_add_u32 s{sT0}, s{sT0}, s{sT3}
buffer_load_dwordx4 v{vL16}, {srd(SRD_AUX)}, s{sT0} offen sc1 lds
s_sub_u32 s{sT1}, s{sT2}, 1
s_max_i32 s{sT1}, s{sT1}, 0
s_lshl_b32 s{sT1}, s{sT1}, 10
s_add_u32 s{sT1}, s{sT1}, {SCR}
v_add_u32 v{vAD}, s{sT1}, v{vAD}
s_lshl_b32 s{sT0}, s{sA}, 2
s_and_b32 s{sT1}, s{sW}, 3
s_add_u32 s{sT0}, s{sT0}, s{sT1}
s_mul_i32 s{sBX}, s{sT0}, {TG_STRIDE}
s_add_u32 s{sT0}, s{sST}, s{sT2}
s_lshl_b32 s{sT0}, s{sT0}, 10
s_add_u32 s{sBX}, s{sBX}, s{sT0}''')
        tail_setup()
    ft = fill_for(False)
    head(ft, True, inter)
    A(f's_branch L_{n}tent\nL_{n}tail:')
    head(ft, True)
    A(f'L_{n}tent:')
    rest(ft, 8, f'L_{n}tail')
    stamp()
    vCF = 20
    CF = [44, vFR, 32, 12]
    for t in range(nt - 1): A(f'ds_read_b128 {vr(CF[t], 4)}, v{vAD} offset:{t*1024}')
    mm(NM - 2)
    A(f'''v_and_b32 v1, 0xffff, v{vST}
v_and_b32 v{vST}, 0xffff0000, v{vST}
v_lshl_or_b32 v{vBM}, v1, 16, v1
v_rcp_f32 v{vC1}, v{vST}''')
    mm(NM - 1)
    A(f'''v_mov_b32 v{vBM+1}, v{vBM}
v_mov_b32 v{vBM+2}, v{vBM}
v_mov_b32 v{vBM+3}, v{vBM}
v_mul_f32 v{vIR}, v{vST}, v{vST}
v_mul_f32 v{vIR+2}, v{vST}, v{vST}
v_mul_f32 v{vC1}, {f2u(-LOG2E)}, v{vC1}
s_waitcnt lgkmcnt(0)''')
    for t in range(nt):
        A(mf32(vr(vACC + 16*t, 16), vr(CF[t] if t < nt - 1 else vCL, 4), vr(vBM, 4), vr(vACC + 16*t, 16)))
        if t == 0: baddr_setup()
    vm = Q(63)
    for i in range(6): vm.issue('v9')
    E = Inter()
    def tile(T):
        a = vACC + 16*T
        t = 52 if T & 1 else 32
        t = 52
        o = 68 + 4 * (T & 1)
        for k in range(4):
            E(f'v_pk_mul_f32 {vr(t+2*k, 2)}, {vr(a+2*k, 2)}, {vr(vC1-1, 2)} op_sel:[0,1] op_sel_hi:[1,1]')
        for k in range(8): E(f'v_exp_f32 v{t+k}, v{t+k}')
        for k in range(4):
            E(f'v_pk_mul_f32 {vr(t+8+2*k, 2)}, {vr(a+2*k, 2)}, {vr(a+8+2*k, 2)}')
        for k in range(4):
            E(f'v_pk_fma_f32 {vr(t+2*k, 2)}, {vr(t+2*k, 2)}, {vr(vIR-1, 2)}, {vr(vIR+1, 2)} op_sel:[0,1,1] op_sel_hi:[1,1,1]')
        for k in range(8): E(f'v_rcp_f32 v{t+k}, v{t+k}')
        for k in range(4):
            E(f'v_pk_mul_f32 {vr(t+2*k, 2)}, {vr(t+2*k, 2)}, {vr(t+8+2*k, 2)}')
        for k in range(4):
            E(f'v_cvt_pk_bf16_f32 v{o+k}, v{t+2*k}, v{t+2*k+1}')
        if T == 4: A(f's_add_u32 s{sBX}, s{sBX}, 4096')
        off = f' offset:{(T % 4)*1024}' if T % 4 else ''
        A(f'buffer_store_dwordx4 {vr(o, 4)}, v{vL16}, {srd(SRD_ACT)}, s{sBX} offen{off} sc1'); vm.issue('st')
    E.push(mix(breg_groups(0), static_groups(0, vm, n)), 2)
    tile(0); E.flush()
    A(f's_waitcnt vmcnt({vm.need({"v9"})}) lgkmcnt(0)\ns_barrier')
    stamp()
    E.push(mix(breg_groups(1), static_groups(1, vm, n)), 2)
    tile(1); E.flush()
    if nt == 5: tile(2)
    tile(nt - 2); tile(nt - 1)
    A(f'''s_lshl_b32 s{sFLAG}, s{sA}, 7
s_lshl_b32 s{sT0}, s{sB}, 2
s_add_u32 s{sFLAG}, s{sFLAG}, s{sT0}
s_branch L_phase2''')
    handlers(n)
ns0 = nstamp[0]
ffn_role(5, 'f5')
nst_save = nstamp[0]; nstamp[0] = ns0
A('L_f4:')
ffn_role(4, 'f4')

nstamp[0] = 1 if OPT['stamps'] else 0
A.label('L_attn')
A(f'''s_sub_u32 s{sT1}, s{sT1}, 20
s_lshr_b32 s{sA}, s{sT1}, 2
s_lshr_b32 s{sKS}, s{sA}, 1
s_lshl_b32 s{sT4}, s{sT2}, 1
s_add_u32 s{sKS}, s{sKS}, s{sT4}
s_mul_i32 s{sT2}, s{sT2}, 3
s_add_u32 s{sA}, s{sA}, s{sT2}
s_and_b32 s{sB}, s{sT1}, 3
s_lshl_b32 s{sT3}, s{sT3}, 2
s_add_u32 s{sB}, s{sB}, s{sT3}
s_and_b32 s{sT0}, s{sW}, 1
s_lshl_b32 s{sT1}, s{sT0}, 6
v_xor_b32 v{vDMA}, s{sT1}, v{vDMA}
v_xor_b32 v{vDMA+1}, 64, v{vDMA}
v_add_u32 v{vDMA+1}, {16384-1024}, v{vDMA+1}
v_add_u32 v{vDMA+2}, {2*(16384-1024)}, v{vDMA}
v_and_b32 v1, 1, v32
s_lshl_b32 s{sT1}, s{sT0}, 1
v_add_u32 v1, s{sT1}, v1
v_lshlrev_b32 v1, 1, v1
v_xor_b32 v1, v31, v1
v_lshlrev_b32 v1, 4, v1
v_mul_u32_u24 v2, 3072, v30
s_mul_i32 s{sT1}, s{sW}, 24576
v_add3_u32 v{vDMA+3}, v1, v2, s{sT1}
s_mul_i32 s{sST}, s{sA}, 176
s_and_b32 s{sT1}, s{sW}, 3
s_mul_i32 s{sT2}, s{sT1}, 48
s_lshr_b32 s{sT3}, s{sW}, 2
s_add_u32 s{sBX}, s{sST}, s{sT2}
s_add_u32 s{sBX}, s{sBX}, s{sT3}
s_lshl_b32 s{sBX}, s{sBX}, 10
s_lshl_b32 s{sBW}, s{sB}, 7
s_mov_b32 s{sMW}, {64*3072}
s_mul_i32 s{sD}, s{sW}, 3072
s_add_u32 s{sD+1}, s{sD}, 24576
s_mov_b64 s[{sEX}:{sEX+1}], -1
s_cmp_eq_u32 s{sT1}, 0
s_cmov_b32 s{sEX}, 0xffffff00
s_or_b32 s{sT1}, s{sT1}, s{sA}
s_cmp_eq_u32 s{sT1}, 0
s_cselect_b32 s{sT1}, {OOB}, 0
v_add_u32 v{vDMA}, s{sT1}, v{vDMA}''')
lines(SOFF)
A('s_waitcnt lgkmcnt(0)')
if OPT['stamps']: A(f's_mov_b32 s{sSTAMP}, s{sCLK}')
build_srd(SRD_XR, sKA, 2048 * 1024)
stat_load()
build_srd(SRD_W, sKA + 2, 512 * 3072)
A(f'''s_sub_u32 s{SRD_X}, s{sKA}, 16384
s_subb_u32 s{SRD_X+1}, s{sKA+1}, 0
s_mov_b32 s{SRD_X+2}, {2048*1024 + 16384}
s_mov_b32 s{SRD_X+3}, 0x20000''')
AX = [[f's_add_u32 m0, s{sSLOT}, s{sD}', f's_mov_b64 exec, s[{sEX}:{sEX+1}]'] + dma(vDMA, SRD_X, sOX, 0) + ['s_mov_b64 exec, -1'],
      dma(vDMA + 1, SRD_X, sOX, 1024), dma(vDMA + 2, SRD_X, sOX, 2048)]
AW = [dma(vDMA + 3, SRD_W, sOW, 0, [f's_add_u32 m0, s{sSLOT}, s{sD+1}']), dma(vDMA + 3, SRD_W, sOW, 1024), dma(vDMA + 3, SRD_W, sOW, 2048)]
stamp(1)
vm = Q(63); vm.issue('code'); vm.issue('sr')
for g in AX + AW: lines(g); vm.issue('s0')
publish_tag()
stamp(1)
lines(ADV); lines(SOFF)
setup2()
A('v_mov_b32 v56, 0\nv_mov_b32 v57, 0\nv_mov_b32 v58, 0\nv_mov_b32 v59, 0')
for T in range(5): A(mf32(vr(vACC + 16*T, 16), 'v[56:59]', 'v[56:59]', '0'))
A(f'''v_min_u32 v1, 5, v30
v_lshrrev_b32 v2, 1, v1
v_mul_u32_u24 v2, {SLOT}, v2
v_and_b32 v1, 1, v1
v_mul_u32_u24 v1, 12288, v1
v_add_u32 v1, v1, v2
v_lshl_add_u32 v1, v31, 4, v1
v_mov_b32 v60, s{sONES}
v_mov_b32 v61, s{sONES}
v_mov_b32 v62, s{sONES}
v_mov_b32 v63, s{sONES}
ds_write_b128 v1, v[60:63]
v_and_b32 v33, 15, v{vL}
s_mul_i32 s{sT0}, s{sMH}, 96
v_add_u32 v1, s{sT0}, v33
v_bfe_u32 v2, v1, 1, 3
v_xor_b32 v2, v2, v32
v_lshlrev_b32 v2, 4, v2
v_lshl_add_u32 v{vRX}, v1, 7, v2
v_xor_b32 v{vRX+1}, 64, v{vRX}
v_mul_u32_u24 v1, 3072, v32
v_bfe_u32 v2, v{vL}, 2, 2
v_lshl_add_u32 v1, v2, 7, v1
v_bfe_u32 v2, v{vL}, 3, 2
s_lshr_b32 s{sT0}, s{sW}, 1
v_xor_b32 v2, s{sT0}, v2
v_lshl_add_u32 v1, v2, 5, v1
v_and_b32 v2, 3, v{vL}
v_lshl_add_u32 v1, v2, 3, v1
v_add_u32 v{vRW}, 24576, v1
s_lshl_b32 s{sT0}, s2, 2
s_add_u32 s{sT0}, s{sT0}, {FLAG_S}
v_mov_b32 v{vFL}, s{sT0}
s_lshr_b32 s{sT0}, s{sST}, 3
s_sub_u32 s{sT0}, s{sT0}, 2
v_min_u32 v1, 23, v{vL}
v_add_u32 v1, s{sT0}, v1
v_max_i32 v1, 0, v1
v_min_u32 v1, 255, v1
v_lshlrev_b32 v1, 2, v1
v_add_u32 v{vPL}, {FLAG_S}, v1
v_lshlrev_b32 v2, 2, v32
v_sub_u32 v2, v33, v2
v_mov_b32 v3, 0xff800000''')
for j in range(4):
    A(f'''v_add_u32 v{vMSK+j}, {16-j}, v2
v_subrev_u32 v{vMSK+4+j}, {j}, v2
v_cmp_gt_u32 vcc, 8, v{vMSK+j}
v_cmp_gt_u32 s[{sT4}:{sT5}], 8, v{vMSK+4+j}
v_cndmask_b32 v{vMSK+j}, v3, 0, vcc
v_cndmask_b32 v{vMSK+4+j}, v3, 0, s[{sT4}:{sT5}]''')
A(f'''s_cmp_eq_u32 s{sA}, 0
s_cselect_b32 s{sT0}, 32, 0
v_cmp_gt_u32 vcc, s{sT0}, v{vL}''')
for j in range(4): A(f'v_cndmask_b32 v{vMSK+8+j}, v{vMSK+4+j}, v3, vcc')
A(f'''v_lshlrev_b32 v1, 1, v33
s_add_u32 s{sT0}, s{sMH}, s{sST}
s_sub_u32 s{sT0}, s{sT0}, 16
v_add_u32 v1, s{sT0}, v1
v_mov_b32 v3, {OOB}''')
for t in range(6):
    A(f'''v_cmp_gt_u32 vcc, 2048, v1
v_lshlrev_b32 v2, 2, v1
v_add_u32 v2, {STAT_OFF}, v2
v_cndmask_b32 v{vAD+t}, v3, v2, vcc''')
    if t < 5: A('v_add_u32 v1, 32, v1')
stamp(1)
A(f's_waitcnt vmcnt({vm.need({"sr"})})')
stamp(1)
E = Inter()
E.push([g + [lambda: vm.issue('s1')] for g in AX + AW], 8)
stat_compute(E); vm.issue('st')
E.flush()
stamp(1)
lines(ADV); lines(SOFF)
touches(vm)
stamp(1)
A(f's_waitcnt vmcnt({vm.need({"s0"})}) lgkmcnt(0)\ns_barrier')
stamp(); stamp(1)
def xf(j, t): return 36 * j + 4 * t
def wf(j, m): return 36 * j + 24 + 4 * m
RORD = [('w', 0), ('x', 0), ('w', 1), ('w', 2), ('x', 1), ('x', 2), ('x', 3), ('x', 4), ('x', 5)]
def a_rd(j, k):
    kind, i = RORD[k]
    if kind == 'x':
        A(f'ds_read_b128 {ar(xf(j, i), 4)}, v{vRX+j} offset:{i*2048}'); lg.issue(('x', j, i))
    else:
        A(f'ds_read_b64_tr_b16 {ar(wf(j, i), 2)}, v{vRW} offset:{j*12288 + i*1024}'); lg.issue(('w', j, i))
        A(f'ds_read_b64_tr_b16 {ar(wf(j, i)+2, 2)}, v{vRW} offset:{j*12288 + i*1024 + 512}'); lg.issue(('w', j, i))
QD, KD, VD = vACC, vACC + 24, vACC + 48
def a_mm(n):
    j, r = divmod(n, 18); t, m = divmod(r, 3)
    acc = vr(vACC + 24*m + 4*t, 4)
    if m < 2: A(mf16(acc, ar(wf(j, m), 4), ar(xf(j, t), 4), acc))
    else: A(mf16(acc, ar(xf(j, t), 4), ar(wf(j, m), 4), acc))
NH = 12
def a_fill(main):
    fill = {}
    if not OPT['nodma']: spread((AX + AW) if main else tail_dma(), [0, 6, 12, 18, 24, 30], fill)
    spread([RDELTA[:2], RDELTA[2:]], [9, 10], fill)
    if main: spread([SOFFX, SOFFWN, KSINC, [f's_mov_b32 s{sOW}, s{sNW}']], [14, 15, 16, 31], fill)
    spread([ADV], [31], fill)
    spread([[f'v_add_u32 v{vRX}, s{sDELTA}, v{vRX}'], [f'v_add_u32 v{vRX+1}, s{sDELTA}, v{vRX+1}'], [f'v_add_u32 v{vRW}, s{sDELTA}, v{vRW}']], [11, 27, 28], fill)
    return fill
def a_head(fill, with_mfma, extra=None):
    lg.drain()
    a_rd(0, 0)
    for m in range(NH):
        if with_mfma: a_mm(36 - NH + m)
        if m < 8: a_rd(0, m + 1)
        if m == 0 and extra: extra()
        lines(fill.get(m, []))
def a_rest(fill, last_it, label):
    for n in range(36 - NH):
        j, r = divmod(n, 18); t, m = divmod(r, 3)
        if n == 35 - NH:
            A('s_waitcnt vmcnt(6) lgkmcnt(0)'); lg.drain()
        c = lg.need({('w', j, m), ('x', j, t)})
        if c is not None: A(f's_waitcnt lgkmcnt({c})')
        a_mm(n)
        if 1 <= n <= 9: a_rd(1, n - 1)
        lines(fill.get(n + NH, []))
        if n == 34 - NH: A(f's_add_u32 s{sIT}, s{sIT}, 1\ns_cmp_lt_u32 s{sIT}, {last_it}')
    A(f's_barrier\ns_cbranch_scc1 {label}')
am, at = a_fill(True), a_fill(False)
a_head(am, False)
A('s_branch L_aent\nL_aloop:')
a_head(am, True, lambda: hcheck('a'))
A('L_aent:')
a_rest(am, 6, 'L_aloop')
def a_inter():
    check_flag0('a')
    for t in range(6): A(f'buffer_load_dword v{vST+t}, v{vAD+t}, {srd(SRD_AUX)}, 0 offen sc1')
    tail_setup()
a_head(at, True, a_inter)
A('s_branch L_atent\nL_atail:')
a_head(at, True)
A('L_atent:')
a_rest(at, 8, 'L_atail')
stamp()
vMR = 48
A(f'''s_mul_i32 s{sT0}, s{sW}, 768
s_add_u32 s{sT0}, s{sT0}, {SCR}
v_and_b32 v1, 15, v{vL}
v_lshl_add_u32 v30, v1, 2, s{sT0}
v_and_b32 v1, 48, v{vL}
v_add_u32 v31, s{sT0}, v1''')
for t in range(6):
    a_mm(24 + 2*t)
    A(f'''v_lshlrev_b32 v{vMR+2*t}, 16, v{vST+t}
v_and_b32 v{vMR+2*t+1}, 0xffff0000, v{vST+t}
v_max_f32 v{vMR+2*t+1}, {f2u(1e-3)}, v{vMR+2*t+1}''')
    a_mm(25 + 2*t)
    A(f'''v_rcp_f32 v{vMR+2*t+1}, v{vMR+2*t+1}
ds_write2_b32 v30, v{vMR+2*t}, v{vMR+2*t+1} offset0:{16*t} offset1:{96+16*t}''')
baddr_setup()
vm = Q(63)
for i in range(6): vm.issue('v9')
E = Inter()
vCQ, vCK, vCV = 60, 64, 68
for j in range(4):
    A(f'v_mov_b32_dpp v{vCQ+j}, v{QD+j} row_newbcast:0 row_mask:0xf bank_mask:0xf')
    A(f'v_mov_b32_dpp v{vCK+j}, v{KD+j} row_newbcast:0 row_mask:0xf bank_mask:0xf')
A(f'''v_mov_b32 v{vCV}, v{VD}
v_mov_b32 v{vCV+1}, v{VD}
v_permlane16_swap_b32 v{vCV}, v{vCV+1}
v_mov_b32 v{vCV+1}, v{vCV}
v_permlane32_swap_b32 v{vCV}, v{vCV+1}''')
ROW = [70, 12]
def row_read(t):
    b = ROW[t & 1]
    A(f'ds_read_b128 {vr(b, 4)}, v31 offset:{64*t}\nds_read_b128 {vr(b+4, 4)}, v31 offset:{384 + 64*t}')
row_read(0); row_read(1)
QP, KP, VP = QD, KD, VD + 2
for t in range(6):
    for k in range(2):
        E(f'v_pk_fma_f32 {vr(KD+4*t+2*k, 2)}, {vr(vCK+2*k, 2)}, {vr(vMR+2*t, 2)}, {vr(KD+4*t+2*k, 2)} op_sel:[0,0,0] op_sel_hi:[1,0,1]')
        E(f'v_pk_fma_f32 {vr(QD+4*t+2*k, 2)}, {vr(vCQ+2*k, 2)}, {vr(vMR+2*t, 2)}, {vr(QD+4*t+2*k, 2)} op_sel:[0,0,0] op_sel_hi:[1,0,1]')
    for k in range(2):
        E(f'v_pk_mul_f32 {vr(KD+4*t+2*k, 2)}, {vr(KD+4*t+2*k, 2)}, {vr(vMR+2*t, 2)} op_sel:[0,1] op_sel_hi:[1,1]')
        E(f'v_cvt_pk_bf16_f32 v{QP+2*t+k}, v{QD+4*t+2*k}, v{QD+4*t+2*k+1}')
    for k in range(2):
        E(f'v_cvt_pk_bf16_f32 v{KP+2*t+k}, v{KD+4*t+2*k}, v{KD+4*t+2*k+1}')
    E(f'v_mul_f32 v{vMR+2*t}, {f2u(0.25*LOG2E)}, v{vMR+2*t+1}')
SB = [92, 116, 144, 60]
def s_mm(t):
    s = SB[t % 4]
    if t: A(mf16k(vr(s, 4), vr(KP+2*(t-1), 2), vr(QP+2*t, 2), vr(vMSK, 4)))
    A(mf16k(vr(s+4, 4), vr(KP+2*t, 2), vr(QP+2*t, 2), vr(vMSK + (4 if t else 8), 4)))
s_mm(0); s_mm(1)
lgv = Q(15)
for t in range(6):
    b = ROW[t & 1]
    A(f's_waitcnt lgkmcnt({2 if t < 5 else 0})')
    for k in range(2):
        E(f'v_pk_fma_f32 {vr(VD+4*t+2*k, 2)}, {vr(b+2*k, 2)}, {vr(vCV, 2)}, {vr(VD+4*t+2*k, 2)} op_sel:[0,0,0] op_sel_hi:[1,0,1]')
    for k in range(2):
        E(f'v_pk_mul_f32 {vr(VD+4*t+2*k, 2)}, {vr(VD+4*t+2*k, 2)}, {vr(b+4+2*k, 2)}')
    if t < 4: row_read(t + 2)
    if t == 0:
        E(f'v_cvt_pk_bf16_f32 v{VD+2}, v{VD+2}, v{VD+3}\nv_cvt_pk_bf16_f32 v{VD+3}, v{VD}, v{VD+1}\nv_swap_b32 v{VD+2}, v{VD+3}')
    else:
        for k in range(2): E(f'v_cvt_pk_bf16_f32 v{VP+2*t+k}, v{VD+4*t+2*k}, v{VD+4*t+2*k+1}')
A(f'''v_and_b32 v1, 15, v{vL}
v_lshrrev_b32 v2, 5, v{vL}
v_lshl_add_u32 v1, v2, 4, v1
s_lshr_b32 s{sT0}, s{sST}, 1
s_sub_u32 s{sT0}, s{sT0}, 8
v_add_u32 v2, s{sT0}, v1
s_mul_i32 s{sT2}, s{sMH}, {TG_STRIDE}
s_lshl_b32 s{sT3}, s{sB}, 2
s_lshr_b32 s{sT4}, s{sW}, 1
s_add_u32 s{sT3}, s{sT3}, s{sT4}
s_add_u32 s{sT3}, s{sT3}, 86
s_lshl_b32 s{sT3}, s{sT3}, 10
s_add_u32 s{sBX}, s{sT2}, s{sT3}
s_mov_b32 s{sT2}, {2*TG_STRIDE}
v_bfe_u32 v3, v{vL}, 4, 1
v_lshlrev_b32 v3, 9, v3
v_cmp_le_u32 vcc, 8, v1''')
for i in range(3):
    A(f'''v_lshrrev_b32 v{30+i}, 5, v2
v_mul_lo_u32 v{30+i}, v{30+i}, s{sT2}
v_and_b32 v1, 31, v2
v_lshl_add_u32 v1, v1, 4, v3
v_add_u32 v{30+i}, v{30+i}, v1''')
    if i < 2: A('v_add_u32 v2, 32, v2')
A(f'v_mov_b32 v1, {OOB}\nv_cndmask_b32 v30, v1, v30, vcc')
for i in range(4): A(f'v_mov_b32 v{72+i}, s{sONES}')
PB = [100, 124]
OB = [152, 12]; LB = [156, 16]
A(f'v_mov_b32 v{PB[0]}, 0\nv_mov_b32 v{PB[0]+1}, 0\nv_mov_b32 v{VD}, 0\nv_mov_b32 v{VD+1}, 0')
E.push(mix(breg_groups(0), static_groups(0, vm, 'a')), 2)
def pair(t):
    mx = [20, 21]
    for e in range(2):
        s = SB[(t + e) % 4]
        if t + e == 0:
            E(f'v_max3_f32 v{mx[e]}, v{s+4}, v{s+5}, v{s+6}\nv_max_f32 v{mx[e]}, v{mx[e]}, v{s+7}')
        else:
            E(f'''v_max3_f32 v{mx[e]}, v{s}, v{s+1}, v{s+2}
v_max3_f32 v{mx[e]}, v{mx[e]}, v{s+3}, v{s+4}
v_max3_f32 v{mx[e]}, v{mx[e]}, v{s+5}, v{s+6}
v_max_f32 v{mx[e]}, v{mx[e]}, v{s+7}''')
    E('''v_permlane32_swap_b32 v20, v21
v_max_f32 v20, v20, v21
v_mov_b32 v21, v20
v_permlane16_swap_b32 v20, v21
v_max_f32 v20, v20, v21
v_mov_b32 v21, v20
v_permlane32_swap_b32 v20, v21''')
    if t < 4: s_mm(t + 2); s_mm(t + 3)
    for e in range(2):
        s = SB[(t + e) % 4]; c = vMR + 2 * (t + e)
        k0 = 2 if t + e == 0 else 0
        E(f'v_mul_f32 v{mx[e]}, -v{c}, v{mx[e]}')
        for k in range(k0, 4):
            E(f'v_pk_fma_f32 {vr(s+2*k, 2)}, {vr(s+2*k, 2)}, {vr(c, 2)}, v[20:21] op_sel:[0,0,{e}] op_sel_hi:[1,0,{e}]')
        for k in range(2*k0, 8): E(f'v_exp_f32 v{s+k}, v{s+k}')
        for k in range(k0, 4): E(f'v_cvt_pk_bf16_f32 v{PB[e]+k}, v{s+2*k}, v{s+2*k+1}')
        E(mf16(vr(LB[e], 4), 'v[72:75]', vr(PB[e], 4), '0'))
        E(mf16(vr(OB[e], 4), vr(VP + 2*(t + e - 1), 4), vr(PB[e], 4), '0'))
    x = 76 if (t & 2) == 0 else 32 + 1 + 1
    x = 76
    for e in range(2):
        E(f'v_rcp_f32 v{LB[e]}, v{LB[e]}')
        for k in range(2):
            E(f'v_pk_mul_f32 {vr(OB[e]+2*k, 2)}, {vr(OB[e]+2*k, 2)}, {vr(LB[e], 2)} op_sel:[0,0] op_sel_hi:[1,0]')
        for k in range(2): E(f'v_cvt_pk_bf16_f32 v{x+2*e+k}, v{OB[e]+2*k}, v{OB[e]+2*k+1}')
    E(f'v_permlane32_swap_b32 v{x}, v{x+2}\nv_permlane32_swap_b32 v{x+1}, v{x+3}')
    A(f'buffer_store_dwordx4 {vr(x, 4)}, v{30 + t//2}, {srd(SRD_ACT)}, s{sBX} offen sc1'); vm.issue('st')
pair(0); E.flush()
A(f's_waitcnt vmcnt({vm.need({"v9"})}) lgkmcnt(0)\ns_barrier')
stamp()
E.push(mix(breg_groups(1), static_groups(1, vm, 'a')), 2)
pair(2); E.flush()
pair(4)
A(f'''s_lshl_b32 s{sFLAG}, s{sA}, 7
s_lshl_b32 s{sT0}, s{sB}, 2
s_add_u32 s{sFLAG}, s{sFLAG}, s{sT0}
s_add_u32 s{sFLAG}, s{sFLAG}, {FLAG_A}''')
assert nstamp[0] == nst_save, (nstamp[0], nst_save)

A.label('L_phase2')
stamp()
vP = 128
vRING = 80; NRING = 12
vLB = 48
vXR = 36
vPO, vOO, vEX = 12, 13, 14
A(f'''v_add_u32 v{vB+4}, s{sD+1}, v10
v_xor_b32 v{vB+5}, 64, v{vB+4}
v_and_b32 v1, 31, v{vL}
v_lshrrev_b32 v2, 5, v{vL}
s_lshl_b32 s{sT2}, s{sR}, 6
s_add_u32 s{sT2}, s{sT2}, s{sMH}
s_lshl_b32 s{sT2}, s{sT2}, 10
s_lshl_b32 s{sT3}, s{sCB}, 7
s_add_u32 s{sT2}, s{sT2}, s{sT3}
s_lshl_b32 s{sT3}, s{sKQ}, 5
s_add_u32 s{sT2}, s{sT2}, s{sT3}
v_lshlrev_b32 v{vOO}, 11, v1
v_lshl_add_u32 v{vOO}, v2, 4, v{vOO}
v_add_u32 v{vOO}, s{sT2}, v{vOO}
buffer_load_dwordx4 v[44:47], v{vOO}, {srd(SRD_XR)}, 0 offen
s_lshl_b32 s{sT2}, s{sR}, 1
s_add_u32 s{sT2}, s{sT2}, s{sMH}
s_mul_i32 s{sOX}, s{sT2}, {TG_STRIDE}
s_sub_u32 s{sT1}, s{sKQ}, 1
s_mul_i32 s{sT3}, s{sT1}, {29*1024}
s_cmp_eq_u32 s{sKQ}, 0
s_cselect_b32 s{sT3}, {86*1024}, s{sT3}
s_add_u32 s{sOX}, s{sOX}, s{sT3}
s_add_u32 s{sOW}, s{sOX}, {28*1024}
s_cmp_eq_u32 s{sKQ}, 0
s_cselect_b32 s{sNW}, s{sOW}, {OOB}
s_cmp_eq_u32 s{sKQ}, 3
s_cselect_b32 s{sOW}, {OOB}, s{sOW}
s_lshr_b32 s{sT2}, s{sR}, 1
s_lshl_b32 s{sT2}, s{sT2}, 7
s_mul_i32 s{sT3}, s{sT1}, 12
s_add_u32 s{sT2}, s{sT2}, s{sT3}
s_lshl_b32 s{sT3}, s{sR}, 6
s_mul_i32 s{sT4}, s{sT3}, 745
s_lshr_b32 s{sT4}, s{sT4}, 17
s_add_u32 s{sT3}, s{sT3}, 63
s_mul_i32 s{sT3}, s{sT3}, 745
s_lshr_b32 s{sT3}, s{sT3}, 17
s_sub_u32 s{sT3}, s{sT3}, s{sT4}
s_lshl_b32 s{sT3}, s{sT3}, 3
s_add_u32 s{sT3}, s{sT3}, 7
s_lshl_b32 s{sT4}, s{sT4}, 7
s_add_u32 s{sT4}, s{sT4}, {FLAG_A}
s_cmp_eq_u32 s{sKQ}, 0
s_cselect_b32 s{sT3}, s{sT3}, 3
s_cselect_b32 s{sT4}, s{sT4}, s{sT2}
v_min_u32 v3, s{sT3}, v{vL}
v_lshrrev_b32 v2, 3, v3
v_mul_u32_u24 v2, 96, v2
v_lshl_add_u32 v{vPO}, v3, 2, s{sT4}
v_add_u32 v{vPO}, v{vPO}, v2
s_lshl_b32 s{sT0}, s{sMH}, 15
v_add_u32 v{vEX}, s{sT0}, v{vL16}
v_mov_b32 v2, s{sTAG}
s_waitcnt vmcnt(0) lgkmcnt(0)
s_barrier
s_cmp_lg_u32 s{sW}, 0
s_cbranch_scc1 L_noflag
s_mov_b64 exec, 1
buffer_store_dword v2, off, {srd(SRD_AUX)}, s{sFLAG} sc1
s_mov_b64 exec, -1
L_noflag:''')
stamp()
for g in static_groups(2, Q(63), 'p'): lines(g)
A(f'''buffer_load_dword v3, v{vPO}, {srd(SRD_AUX)}, 0 offen sc1
v_permlane32_swap_b32 v44, v46
v_permlane32_swap_b32 v45, v47''')
for i in range(4):
    A(f'v_lshlrev_b32 v{vXR+2*i}, 16, v{44+i}\nv_and_b32 v{vXR+2*i+1}, 0xffff0000, v{44+i}')
A(f'''s_mov_b32 s{sT0}, 0
s_waitcnt vmcnt(1)
s_barrier
L_poll:
s_waitcnt vmcnt(0)
v_cmp_ne_u32 vcc, s{sTAG}, v3
s_cbranch_vccz L_pollok
s_sleep {OPT['sleep']}
buffer_load_dword v3, v{vPO}, {srd(SRD_AUX)}, 0 offen sc1
s_add_u32 s{sT0}, s{sT0}, 1
s_cmp_lt_u32 s{sT0}, {SPIN}
s_cbranch_scc1 L_poll
L_pollok:''')
stamp()
vm = Q(63); lg = Q(15)
def a_load(st):
    so = sOX if st < 28 else (sOW if st == 28 else sNW)
    if st and st % 4 == 0 and st < 28: A(f's_add_u32 s{sOX}, s{sOX}, 4096')
    off = f' offset:{(st % 4)*1024}' if st % 4 else ''
    A(f'buffer_load_dwordx4 {vr(vRING + 4*(st % NRING), 4)}, v{vL16}, {srd(SRD_ACT)}, s{so} offen{off} sc1')
    vm.issue(st)
def b_read(st, ct):
    t = st - NREG
    r = [i for i, (a, b) in enumerate(REG_T) if a <= t < b][0]
    off = (t - REG_T[r][0]) * 2048
    for hf in range(2):
        A(f'ds_read_b64_tr_b16 {vr(vLB + (st % 4)*8 + ct*4 + hf*2, 2)}, v{vB + 2*r + ct} offset:{off + hf*1024}')
        lg.issue(st)
NB = OPT['burst']
for st in range(NB): a_load(st)
for st in range(32):
    if st == 28: A(f's_cmp_eq_u32 s{sKQ}, 3\ns_cbranch_scc1 L_p2done')
    if st == 29: A(f's_cmp_lg_u32 s{sKQ}, 0\ns_cbranch_scc1 L_p2done')
    w = []
    c = vm.need({st})
    if c is not None: w.append(f'vmcnt({c})')
    c = lg.need({st})
    if c is not None: w.append(f'lgkmcnt({c})')
    if w: A('s_waitcnt ' + ' '.join(w))
    for ct in range(2):
        b = ar(st*8 + ct*4, 4) if st < NREG else vr(vLB + (st % 4)*8 + ct*4, 4)
        acc = vr(vP + 16*ct, 16)
        A(mf32(acc, b, vr(vRING + 4*(st % NRING), 4), acc if st else '0'))
        if NREG <= st + 2 < 32: b_read(st + 2, ct)
        if ct == 0 and st + NB < 32: a_load(st + NB)
A('L_p2done:')
stamp()
vF, vS, vR1 = 48, 56, 64
A(f'''s_waitcnt lgkmcnt(0)
s_barrier
s_cmp_eq_u32 s{sKQ}, 1
s_cbranch_scc1 L_red1
s_cmp_eq_u32 s{sKQ}, 2
s_cbranch_scc1 L_red2
s_cmp_eq_u32 s{sKQ}, 3
s_cbranch_scc1 L_red3''')
for q in range(4):
    if q: A(f'L_red{q}:')
    for c in range(4):
        if c == q: continue
        for i in range(2): A(f'ds_write_b128 v{vEX}, {vr(vP + 8*c + 4*i, 4)} offset:{q*8192 + c*2048 + i*1024}')
    A('s_waitcnt lgkmcnt(0)\ns_barrier')
    srcs = [s for s in range(4) if s != q]
    dst = {}
    for n_, s in enumerate(srcs):
        dst[s] = vS if s == 0 else vR1 + 8 * n_
        for i in range(2): A(f'ds_read_b128 {vr(dst[s] + 4*i, 4)}, v{vEX} offset:{s*8192 + q*2048 + i*1024}')
    dst[q] = vP + 8 * q
    if q == 0:
        for i in range(4): A(f'v_pk_mul_f32 {vr(vS+2*i, 2)}, {vr(vP+2*i, 2)}, 1.0 op_sel_hi:[1,0]')
    fs = [q] + [s for s in srcs if s] if q else [1, 2, 3]
    A('s_waitcnt lgkmcnt(2)')
    for i in range(4): A(f'v_pk_add_f32 {vr(vF+2*i, 2)}, {vr(dst[fs[0]]+2*i, 2)}, {vr(dst[fs[1]]+2*i, 2)}')
    A('s_waitcnt lgkmcnt(0)')
    for i in range(4): A(f'v_pk_add_f32 {vr(vF+2*i, 2)}, {vr(vF+2*i, 2)}, {vr(dst[fs[2]]+2*i, 2)}')
    if q < 3: A('s_branch L_final')
A.label('L_final')
t = 88
assert sT1 % 2 == 0
A(f's_mov_b32 s{sT1}, {f2u(-LOG2E)}\ns_mov_b32 s{sT1+1}, {f2u(-LOG2E)}')
for i in range(4): A(f'v_pk_mul_f32 {vr(t+2*i, 2)}, {vr(vF+2*i, 2)}, s[{sT1}:{sT1+1}]')
for i in range(8): A(f'v_exp_f32 v{t+i}, v{t+i}')
for i in range(4): A(f'v_pk_mul_f32 {vr(vS+2*i, 2)}, {vr(vS+2*i, 2)}, {vr(vF+2*i, 2)}')
for i in range(4): A(f'v_pk_add_f32 {vr(t+2*i, 2)}, {vr(t+2*i, 2)}, 1.0 op_sel_hi:[1,0]')
for i in range(8): A(f'v_rcp_f32 v{t+i}, v{t+i}')
for i in range(4): A(f'v_pk_fma_f32 {vr(t+2*i, 2)}, {vr(t+2*i, 2)}, {vr(vS+2*i, 2)}, {vr(vXR+2*i, 2)}')
for i in range(4): A(f'v_cvt_pk_bf16_f32 v{44+i}, v{t+2*i}, v{t+2*i+1}')
A(f'''v_permlane32_swap_b32 v44, v46
v_permlane32_swap_b32 v45, v47
buffer_store_dwordx4 v[44:47], v{vOO}, {srd(SRD_OUT)}, 0 offen''')
if OPT['stamps']:
    stamp()
    A('s_waitcnt vmcnt(0)')
    stamp()
    A(f'''s_lshl_b32 s{sT0}, s2, 9
s_lshl_b32 s{sT1}, s{sW}, 6
s_add_u32 s{sT0}, s{sT0}, s{sT1}
s_add_u32 s{sT0}, s{sT0}, {STAMP_OFF}
v_mov_b32 v1, s{sT0}''')
    for i in range(10): A(f'v_mov_b32 v{48+i}, s{sSTAMP+i}')
    A(f'''global_store_dwordx4 v1, v[48:51], s[{sWS}:{sWS+1}]
global_store_dwordx4 v1, v[52:55], s[{sWS}:{sWS+1}] offset:16
global_store_dwordx2 v1, v[56:57], s[{sWS}:{sWS+1}] offset:32''')
A.label('L_end')
A('s_endpgm')
handlers('a')

body = A.finish(verbose=False)
hdr = open('cdna_kernels/' + NAME + '.s.ref').read().split('; Override launch')[0]
out = hdr + f'''; @launch grid=(256,1,1) block=(512,1,1) lds={LDS_BYTES}
.amdgcn_target "amdgcn-amd-amdhsa--gfx950"
.text
.globl {NAME}_kernel
.p2align 8
.type {NAME}_kernel,@function
''' + body + f'''L_codeend:
.fill (33024 - (L_codeend - {NAME}_kernel)) / 4, 4, 0xbf810000
.section .rodata,"a"
.p2align 6
.amdhsa_kernel {NAME}_kernel
  .amdhsa_next_free_vgpr 256
  .amdhsa_next_free_sgpr 102
  .amdhsa_accum_offset 160
  .amdhsa_group_segment_fixed_size 0
  .amdhsa_kernarg_size 80
  .amdhsa_user_sgpr_count 2
  .amdhsa_user_sgpr_kernarg_segment_ptr 1
  .amdhsa_system_sgpr_workgroup_id_x 1
.end_amdhsa_kernel
'''
sys.stdout.write(out)
sys.stderr.write(f'nops inserted: {A.nops}\n')
```

```python
import sys, os, struct
sys.path.insert(0, os.path.dirname(os.path.abspath(__file__)))
from asmlib import Asm, Q

NAME = "recurrent_scan__sliding_local_dilated__swiglu_ffn__prompt"
OPT = dict(ost=0, l2t=2, exp=0, sleep=3, stamps=0, sg=0, nodma=0, btouch=1, map2=0, burst=8, prio=0)
for a in sys.argv[1:]:
    k, v = a.split('=')
    assert k in OPT, k
    OPT[k] = int(v)

SLOT = 53504
UPOFF = 18560
LDS_BYTES = 163840
SCR = 2 * SLOT + 49152
ACT_OFF = 1 << 20
TG_STRIDE = 118 * 1024
ACT_BYTES = 64 * TG_STRIDE
FLAG_F = 0
FLAG_A = 0x2000
FLAG_S = 0x2c00
FLAG_C = 0x3000
STAT_OFF = 0x4000
CS_OFF = 0x8000
AUX_BYTES = 0x8000 + 10 * 9216
STAMP_OFF = 1 << 19
NREG = 12
LOG2E = 1.4426950408889634
OOB = 0x80000000
SPIN = 0x40000
def f2u(x): return struct.unpack('<I', struct.pack('<f', x))[0]

sW = 3
SRD_X, SRD_W, SRD_ACT, SRD_B, SRD_XR, SRD_OUT = 4, 8, 12, 16, 20, 24
sDBG, sWS = 28, 30
sKA = 32
sIT, sKS, sBX, sBW, sKQ, sMW, sOX, sOW = 48, 49, 50, 51, 52, 53, 54, 55
sD = 56
sN0 = 59
sSLOT, sDELTA, sONES, sRS = 60, 61, 62, 63
sR, sCB, sA, sB, sTAG, sT0, sT1, sT2, sT3 = 64, 65, 66, 67, 68, 69, 70, 71, 72
sMH, sST, sFLAG, sSOFF, sNW, sT4, sT5 = 73, 74, 75, 76, 77, 78, 79
SRD_AUX = 80
SRD_T = 84
sEX = 88
sCLK = 90
sSTAMP = 92
sHM = 0
sP0, sP1, sP2, sP3, sP4, sP5 = 32, 33, 34, 35, 38, 39
def srd(n): return f's[{n}:{n+3}]'

vL = 0
vDMA = 4
vRX, vRW = 11, 15
vST = 16
vPL, vFL, vTG = 22, 23, 24
vBP = 25
vL16 = 29
vTCH = 19
vAD = 30
vMSK = 36
vFR = 48
vACC = 80
def vr(b, n): return f'v[{b}:{b+n-1}]'
def ar(b, n): return f'a[{b}:{b+n-1}]'

A = Asm()
STI = 's_memtime' if OPT['stamps'] == 2 else 's_memrealtime'
nstamp = [0]
def stamp(grp=0):
    if not OPT['stamps'] or grp != OPT['sg']: return
    i = nstamp[0]; nstamp[0] += 1
    assert i < 10
    A(f'{STI} s[{sCLK}:{sCLK+1}]\ns_waitcnt lgkmcnt(0)\ns_mov_b32 s{sSTAMP+i}, s{sCLK}')

def itstamp():
    if OPT['stamps'] and OPT['sg'] == 2:
        A(f'''{STI} s[{sCLK}:{sCLK+1}]
s_waitcnt lgkmcnt(0)
v_mov_b32 v77, s{sCLK}
v_cmp_eq_u32 vcc, s{sIT}, v{vL}
v_cndmask_b32 v78, v78, v77, vcc''')
def itdump():
    if OPT['stamps'] and OPT['sg'] == 2:
        itstamp()
        A(f'''s_lshl_b32 s{sT0}, s2, 9
s_lshl_b32 s{sT1}, s{sW}, 6
s_add_u32 s{sT0}, s{sT0}, s{sT1}
s_add_u32 s{sT0}, s{sT0}, {STAMP_OFF}
v_lshl_add_u32 v77, v{vL}, 2, s{sT0}
s_mov_b64 exec, 0x3ff
global_store_dword v77, v78, s[{sWS}:{sWS+1}]
s_mov_b64 exec, -1''')
def mf32(d, a, b, c): return f'v_mfma_f32_32x32x16_bf16 {d}, {a}, {b}, {c}'
def mf16(d, a, b, c): return f'v_mfma_f32_16x16x32_bf16 {d}, {a}, {b}, {c}'
def mf16k(d, a, b, c): return f'v_mfma_f32_16x16x16_bf16 {d}, {a}, {b}, {c}'

def spread(groups, slots, into=None):
    out = {} if into is None else into
    n = len(groups)
    for i, g in enumerate(groups):
        out.setdefault(slots[(i * len(slots)) // n], []).extend(g)
    return out
def lines(L):
    for l in L: (l() if callable(l) else A(l))
def mix(a, b):
    out = []; a = list(a); b = list(b)
    while a or b:
        if a: out.append(a.pop(0))
        if b: out.append(b.pop(0))
    return out

class Inter:
    def __init__(self): self.g = []; self.every = 1; self.c = 0
    def push(self, groups, every): self.g += list(groups); self.every = every; self.c = 0
    def __call__(self, text):
        for l in text.split('\n'):
            l = l.strip()
            if not l: continue
            A(l); self.c += 1
            if self.g and self.c >= self.every:
                lines(self.g.pop(0)); self.c = 0
    def flush(self):
        while self.g: lines(self.g.pop(0))

def build_srd(n, plo, size, E=None):
    (E or A)(f'''s_mov_b32 s{n}, s{plo}
s_mov_b32 s{n+1}, s{plo+1}
s_mov_b32 s{n+2}, {size}
s_mov_b32 s{n+3}, 0x20000''')

SOFFX = [f's_lshl_b32 s{sOX}, s{sKS}, 7', f's_add_u32 s{sOX}, s{sOX}, s{sBX}']
SOFFW = [f's_mul_i32 s{sOW}, s{sKS}, s{sMW}', f's_add_u32 s{sOW}, s{sOW}, s{sBW}']
SOFFWN = [f's_mul_i32 s{sNW}, s{sKS}, s{sMW}', f's_add_u32 s{sNW}, s{sNW}, s{sBW}']
KSINC = [f's_add_u32 s{sKS}, s{sKS}, 1', f's_and_b32 s{sKS}, s{sKS}, 7']
SOFF = SOFFX + SOFFW + KSINC
ADV = [f's_add_u32 s{sSLOT}, s{sSLOT}, {SLOT}', f's_cmp_eq_u32 s{sSLOT}, {3*SLOT}', f's_cselect_b32 s{sSLOT}, 0, s{sSLOT}']
RDELTA = [f's_add_u32 s{sRS}, s{sRS}, 1', f's_mov_b32 s{sDELTA}, {SLOT}', f's_cmp_eq_u32 s{sRS}, 3',
          f's_cmov_b32 s{sDELTA}, {(-2*SLOT) & 0xffffffff}', f's_cmov_b32 s{sRS}, 0']

def dma(v, s_, o_, im, pre=None, flags=''):
    off = f' offset:{im}' if im else ''
    return (pre or []) + [f'buffer_load_dwordx4 v{v}, {srd(s_)}, s{o_} offen{off}{flags} lds']

vSR = 48
def stat_load():
    A(f'''s_lshl_b32 s{sT0}, s2, 13
s_lshl_b32 s{sT1}, s{sW}, 10
s_add_u32 s{sT0}, s{sT0}, s{sT1}
buffer_load_dwordx4 {vr(vSR, 4)}, v{vL16}, {srd(SRD_XR)}, s{sT0} offen''')

def stat_compute(E):
    sm, sq, t, t2 = 52, 53, 54, 55
    E(f'v_mov_b32 v{sm}, 0\nv_mov_b32 v{sq}, 0')
    for i in range(4):
        E(f'v_dot2c_f32_bf16 v{sm}, s{sONES}, v{vSR+i}\nv_dot2c_f32_bf16 v{sq}, v{vSR+i}, v{vSR+i}')
    for r in (1, 2, 4, 8):
        E(f'v_add_f32_dpp v{sm}, v{sm}, v{sm} row_ror:{r} row_mask:0xf bank_mask:0xf')
        E(f'v_add_f32_dpp v{sq}, v{sq}, v{sq} row_ror:{r} row_mask:0xf bank_mask:0xf')
    for sw in (16, 32):
        E(f'''v_mov_b32 v{t}, v{sm}
v_mov_b32 v{t2}, v{sq}
v_permlane{sw}_swap_b32 v{sm}, v{t}
v_permlane{sw}_swap_b32 v{sq}, v{t2}
v_add_f32 v{sm}, v{sm}, v{t}
v_add_f32 v{sq}, v{sq}, v{t2}''')
    E(f'''v_mul_f32 v{sm}, {f2u(1/512)}, v{sm}
v_mul_f32 v{sq}, {f2u(1/512)}, v{sq}
v_fma_f32 v{sq}, -v{sm}, v{sm}, v{sq}
v_max_f32 v{sq}, 0, v{sq}
v_cvt_pk_bf16_f32 v{sq}, v{sq}, v{sq}
v_lshlrev_b32 v{sq}, 16, v{sq}
v_add_f32 v{sq}, {f2u(1e-5)}, v{sq}
v_cvt_pk_bf16_f32 v{sq}, v{sq}, v{sq}
v_lshlrev_b32 v{sq}, 16, v{sq}
v_sqrt_f32 v{sq}, v{sq}
s_lshl_b32 s{sT0}, s2, 5
s_lshl_b32 s{sT1}, s{sW}, 2
s_add_u32 s{sT0}, s{sT0}, s{sT1}
s_add_u32 s{sT0}, s{sT0}, {STAT_OFF}
v_cvt_pk_bf16_f32 v{sq}, -v{sm}, v{sq}''')
    A(f'''s_mov_b64 exec, 1
buffer_store_dword v{sq}, off, {srd(SRD_AUX)}, s{sT0} sc1
s_mov_b64 exec, -1''')

uid = [0]
def publish_tag():
    uid[0] += 1; n = uid[0]
    A(f'''s_or_b32 s{sT0}, s2, s{sW}
s_cmp_lg_u32 s{sT0}, 0
s_cbranch_scc1 L_notag{n}
s_memrealtime s[{sT4}:{sT5}]
s_waitcnt lgkmcnt(0)
s_or_b32 s{sT4}, s{sT4}, 1
v_mov_b32 v1, 0
v_mov_b32 v2, s{sT4}
s_mov_b64 exec, 1
global_store_dword v1, v2, s[{sDBG}:{sDBG+1}] sc1
s_mov_b64 exec, -1
L_notag{n}:''')

def setup2():
    build_srd(SRD_AUX, sWS, AUX_BYTES)
    build_srd(SRD_OUT, sKA + 14, 2048 * 1024)
    A(f'''s_add_u32 s{SRD_ACT}, s{sWS}, {ACT_OFF}
s_addc_u32 s{SRD_ACT+1}, s{sWS+1}, 0
s_mov_b32 s{SRD_ACT+2}, {ACT_BYTES if OPT['exp'] != 2 else 0}
s_mov_b32 s{SRD_ACT+3}, 0x20000
s_lshr_b32 s{sKQ}, s{sW}, 1
s_lshr_b32 s{sT0}, s{sW}, 2
s_xor_b32 s{sKQ}, s{sKQ}, s{sT0}
s_and_b32 s{sMH}, s{sW}, 1
s_cmp_eq_u32 s{sKQ}, 0
s_cselect_b32 s{SRD_B}, s{sKA+4}, s{sKA+12}
s_cselect_b32 s{SRD_B+1}, s{sKA+5}, s{sKA+13}
s_mov_b32 s{SRD_B+2}, {1376*1024}
s_cmov_b32 s{SRD_B+2}, {512*1024}
s_mov_b32 s{SRD_B+3}, 0x20000
s_mov_b32 s{sIT}, 0
s_mov_b32 s{sRS}, 0
s_cmp_eq_u32 s{sW}, 0
s_cselect_b32 s{sHM}, 0x22, 32
v_lshrrev_b32 v1, 3, v{vL}
v_and_b32 v2, 7, v{vL}
v_bfe_u32 v3, v{vL}, 4, 1
v_lshlrev_b32 v3, 2, v3
v_xor_b32 v2, v2, v3
v_lshlrev_b32 v2, 4, v2
v_lshl_add_u32 v{vBP}, v1, 10, v2''')
    for i in range(1, 4): A(f'v_add_u32 v{vBP+i}, {7168*i}, v{vBP}')
    A(f'''s_sub_u32 s{sT0}, s{sKQ}, 1
s_max_i32 s{sT0}, s{sT0}, 0
s_mul_i32 s{sSOFF}, s{sT0}, {464*1024}
s_lshl_b32 s{sT0}, s{sCB}, 7
s_add_u32 s{sSOFF}, s{sSOFF}, s{sT0}''')

def touches(vm):
    A(f'''s_lshl_b32 s{sT0}, s2, 3
s_add_u32 s{sT0}, s{sT0}, s{sW}
s_sub_u32 s{sT1}, s{sT0}, 1376
s_cmp_ge_u32 s{sT0}, 1376
s_cselect_b32 s{sT0}, s{sT1}, s{sT0}
s_cselect_b32 s{SRD_T}, s{sKA+4}, s{sKA+12}
s_cselect_b32 s{SRD_T+1}, s{sKA+5}, s{sKA+13}
s_mov_b32 s{SRD_T+2}, {1376*1024 if OPT['btouch'] else 0}
s_cmov_b32 s{SRD_T+2}, {512*1024 if OPT['btouch'] else 0}
s_mov_b32 s{SRD_T+3}, 0x20000
s_lshl_b32 s{sT0}, s{sT0}, 10
v_and_b32 v1, 7, v{vL}
v_lshlrev_b32 v1, 7, v1
buffer_load_dword v{vTCH}, v1, {srd(SRD_T)}, s{sT0} offen
s_lshr_b32 s{sT0}, s2, 3
s_sub_u32 s{sT1}, s{sT0}, 22
s_cmp_ge_u32 s{sT0}, 22
s_cselect_b32 s{sT0}, s{sT1}, s{sT0}
s_cselect_b32 s{SRD_T}, s{sKA+4}, s{sKA+12}
s_cselect_b32 s{SRD_T+1}, s{sKA+5}, s{sKA+13}
s_mov_b32 s{SRD_T+2}, {1376*1024}
s_cmov_b32 s{SRD_T+2}, {512*1024}
s_lshl_b32 s{sT0}, s{sT0}, 16
s_lshl_b32 s{sT1}, s{sW}, 9
s_add_u32 s{sT0}, s{sT0}, s{sT1}
s_add_u32 s{sT0}, s{sT0}, 384
s_cmp_ge_u32 s{sW}, {OPT['l2t']}
s_cselect_b32 s{sT0}, {OOB}, s{sT0}
v_lshlrev_b32 v1, 10, v{vL}
buffer_load_dword v{vTCH}, v1, {srd(SRD_T)}, s{sT0} offen
v_mov_b32 v1, 0
global_load_dword v{vTG}, v1, s[{sDBG}:{sDBG+1}] sc1''')
    vm.issue('touch'); vm.issue('touch'); vm.issue('tag')

def tail_prepare():
    A(f'''s_mul_i32 s{sT0}, s{sMH}, {48*1024}
s_add_u32 s{sP0}, s{sSOFF}, s{sT0}
s_mul_i32 s{sP1}, s{sKQ}, 12288
s_mul_i32 s{sT0}, s{sMH}, 6144
s_add_u32 s{sP1}, s{sP1}, s{sT0}''')
def tail_setup(): A(f's_mov_b32 s{sOX}, s{sP0}\ns_mov_b32 s{sD}, s{sP1}')
def tail_dma():
    out = [dma(vBP, SRD_B, sOX, 0, [f's_add_u32 m0, s{sSLOT}, s{sD}'])]
    for i in range(1, 4): out.append(dma(vBP + i, SRD_B, sOX, 1024 * i))
    out.append(dma(vBP, SRD_B, sOX, 0, ['s_add_u32 m0, m0, 4096', f's_add_u32 s{sOX}, s{sOX}, 32768']))
    out.append(dma(vBP + 1, SRD_B, sOX, 1024) + [f's_add_u32 s{sOX}, s{sOX}, {96*1024 - 32768}'])
    return out

def handlers(n):
    A(f'''L_{n}h:
v_readfirstlane_b32 s{sTAG}, v{vTG}
s_mov_b32 s{sT0}, 0
L_tag{n}:
s_cmp_lg_u32 s{sTAG}, 0
s_cbranch_scc1 L_tagok{n}
v_mov_b32 v1, 0
global_load_dword v{vTG}, v1, s[{sDBG}:{sDBG+1}] sc1
s_waitcnt vmcnt(0)
v_readfirstlane_b32 s{sTAG}, v{vTG}
s_add_u32 s{sT0}, s{sT0}, 1
s_cmp_lt_u32 s{sT0}, {SPIN}
s_cbranch_scc1 L_tag{n}
L_tagok{n}:
s_cmp_eq_u32 s{sIT}, 5
s_cbranch_scc1 L_{n}h5
v_mov_b32 v1, s{sTAG}
s_mov_b64 exec, 3
buffer_store_dword v1, v{vFL}, {srd(SRD_AUX)}, 0 offen sc1
s_mov_b64 exec, -1
s_branch L_{n}back
L_{n}h5:
buffer_load_dword v{vTG}, v{vPL}, {srd(SRD_AUX)}, 0 offen sc1
s_branch L_{n}back''')
def hcheck(n): A(f's_bitcmp1_b32 s{sHM}, s{sIT}\ns_cbranch_scc1 L_{n}h\nL_{n}back:')

def check_flag0(n):
    A(f'''s_mov_b32 s{sT0}, 0
L_f0{n}:
v_cmp_ne_u32 vcc, s{sTAG}, v{vTG}
s_cbranch_vccz L_f0ok{n}
buffer_load_dword v{vTG}, v{vPL}, {srd(SRD_AUX)}, 0 offen sc1
s_waitcnt vmcnt(0)
s_add_u32 s{sT0}, s{sT0}, 1
s_cmp_lt_u32 s{sT0}, {SPIN}
s_cbranch_scc1 L_f0{n}
L_f0ok{n}:''')

def split_hilo(r, t, E=None):
    (E or A)(f'''v_cvt_pk_bf16_f32 v{t}, v{r}, v{r}
v_lshlrev_b32 v{t}, 16, v{t}
v_sub_f32 v{t}, v{r}, v{t}
v_cvt_pk_bf16_f32 v{r}, v{r}, v{t}''')

vB = 4
REG_BASE = [SLOT, 2 * SLOT, 0]
REG_T = [(0, 6), (6, 12), (12, 20)]
def baddr_setup():
    A(f'''v_lshrrev_b32 v1, 5, v{vL}
v_bfe_u32 v2, v{vL}, 2, 2
v_lshl_add_u32 v1, v1, 2, v2
v_lshlrev_b32 v1, 7, v1
v_bfe_u32 v2, v{vL}, 3, 1
v_lshl_add_u32 v1, v2, 6, v1
v_bfe_u32 v2, v{vL}, 4, 1
v_lshl_add_u32 v1, v2, 5, v1
v_and_b32 v2, 3, v{vL}
v_lshl_add_u32 v10, v2, 3, v1
s_mul_i32 s{sD}, s{sKQ}, 12288
v_add_u32 v{vB+4}, s{sD}, v10
v_xor_b32 v{vB+5}, 64, v{vB+4}
v_add_u32 v{vB}, {SLOT}, v{vB+4}
v_add_u32 v{vB+1}, {SLOT}, v{vB+5}
v_add_u32 v{vB+2}, {2*SLOT}, v{vB+4}
v_add_u32 v{vB+3}, {2*SLOT}, v{vB+5}
v_add_u32 v11, {16384-2048}, v{vBP}
s_lshl_b32 s{sT0}, s{sMH}, 10
s_add_u32 s{sD}, s{sD}, s{sT0}
s_mul_i32 s{sD+1}, s{sKQ}, 10240
s_cmp_lg_u32 s{sKQ}, 0
s_cselect_b32 s{sT1}, 6144, 0
s_add_u32 s{sD+1}, s{sD+1}, s{sT1}
s_add_u32 s{sD+2}, s{sD+1}, s{sT0}
s_lshl_b32 s{sT0}, s{sMH}, 13
s_add_u32 s{sSOFF}, s{sSOFF}, s{sT0}
s_add_u32 s{sSOFF}, s{sSOFF}, {NREG*16384 if OPT['exp'] != 1 else OOB}''')
def breg_groups(half):
    out = []
    for st in range(6 * half, 6 * half + 6):
        for ct in range(2):
            base = vB + (2 if half == 0 else 4) + ct
            out.append([f'ds_read_b64_tr_b16 {ar(st*8 + ct*4 + hf*2, 2)}, v{base} offset:{(st % 6)*2048 + hf*1024}' for hf in range(2)])
    return out
def static_groups(r, vm, n):
    out = []
    a, b = REG_T[r]
    for t in range(a, b):
        g = []
        if t == 16: g += [f's_cmp_eq_u32 s{sKQ}, 3', f's_cbranch_scc1 L_sdone{n}']
        if t == 17: g += [f's_cmp_lg_u32 s{sKQ}, 0', f's_cbranch_scc1 L_sdone{n}']
        if t % 2 == 0:
            if t: g.append(f's_add_u32 s{sSOFF}, s{sSOFF}, 32768')
            g.append(f's_add_u32 m0, s{sD if r < 2 else sD+2}, {REG_BASE[r] + (t - a)*2048}')
            g += dma(vBP, SRD_B, sSOFF, 0)
        else:
            g += dma(11, SRD_B, sSOFF, 2048)
        g.append(lambda: vm.issue('dma'))
        out.append(g)
    if r == 2:
        tail = sum(out[4:], []) + [f'L_sdone{n}:']
        out = out[:4] + [tail]
    return out

A(f'{NAME}_kernel:')
A(f'''s_load_dwordx16 s[{sKA}:{sKA+15}], s[0:1], 0
s_load_dwordx4 s[{sDBG}:{sDBG+3}], s[0:1], 64
s_cmp_ge_u32 s2, 256
s_cbranch_scc1 L_end
s_getpc_b64 s[{sT4}:{sT5}]
v_lshlrev_b32 v1, 6, v0
global_load_dword v{vTCH}, v1, s[{sT4}:{sT5}]
v_lshrrev_b32 v1, 6, v0
v_and_b32 v{vL}, 63, v0
v_readfirstlane_b32 s{sW}, v1
s_and_b32 s{sT0}, s2, 7
s_lshr_b32 s{sT1}, s2, 3
s_lshr_b32 s{sT2}, s{sT0}, 1
s_and_b32 s{sT3}, s{sT0}, 1''')
if OPT['stamps']:
    A(f'{STI} s[{sCLK}:{sCLK+1}]'); nstamp[0] = 1
if OPT['map2'] == 0:
    A(f'''s_lshl_b32 s{sR}, s{sT0}, 2
s_lshr_b32 s{sCB}, s{sT1}, 3
s_add_u32 s{sR}, s{sR}, s{sCB}
s_and_b32 s{sCB}, s{sT1}, 7''')
else:
    A(f'''s_lshl_b32 s{sR}, s{sT2}, 3
s_lshr_b32 s{sCB}, s{sT1}, 2
s_add_u32 s{sR}, s{sR}, s{sCB}
s_and_b32 s{sCB}, s{sT1}, 3
s_lshl_b32 s{sA}, s{sT3}, 2
s_add_u32 s{sCB}, s{sCB}, s{sA}''')
if OPT['exp'] == 3: A(f's_add_u32 s{sCB}, s{sCB}, 1\ns_and_b32 s{sCB}, s{sCB}, 7')
A(f'''s_mov_b32 s{sONES}, 0x3f803f80
v_lshrrev_b32 v30, 3, v{vL}
v_and_b32 v31, 7, v{vL}
v_lshrrev_b32 v32, 4, v{vL}
v_lshlrev_b32 v{vL16}, 4, v{vL}
v_xor_b32 v1, v31, v32
v_lshlrev_b32 v1, 4, v1
v_lshl_add_u32 v{vDMA}, v30, 11, v1
s_mov_b32 s{sSLOT}, 0
s_cmp_ge_u32 s{sT1}, 20
s_cbranch_scc1 L_attn''')

A(f'''s_mul_i32 s{sA}, s{sT1}, 52
s_lshr_b32 s{sA}, s{sA}, 8
s_mul_i32 s{sB}, s{sA}, 5
s_sub_u32 s{sB}, s{sT1}, s{sB}
s_mul_i32 s{sT3}, s{sT3}, 5
s_add_u32 s{sB}, s{sB}, s{sT3}
s_lshl_b32 s{sT2}, s{sT2}, 2
s_add_u32 s{sA}, s{sA}, s{sT2}
v_xor_b32 v{vDMA+1}, 64, v{vDMA}
v_add_u32 v{vDMA+1}, {16384-1024}, v{vDMA+1}
s_lshr_b32 s{sT0}, s{sW}, 2
s_and_b32 s{sT1}, s{sW}, 1
s_add_u32 s{sT2}, s{sT0}, 4
s_mul_i32 s{sT2}, s{sT2}, s{sT1}
s_lshl_b32 s{sT3}, s{sT0}, 3
s_add_u32 s{sT2}, s{sT2}, s{sT3}
s_lshl_b32 s{sT3}, s{sT2}, 6
v_add_u32 v1, s{sT3}, v{vL}
s_movk_i32 s{sT4}, 3641
s_movk_i32 s{sT5}, 2464''')
for i in range(5):
    A(f'''v_mul_u32_u24 v2, s{sT4}, v1
v_lshrrev_b32 v2, 16, v2
v_mul_u32_u24 v2, s{sT5}, v2
v_lshl_add_u32 v{vDMA+2+i}, v1, 4, v2''')
    if i % 4: A(f'v_subrev_u32 v{vDMA+2+i}, {(i % 4)*1024}, v{vDMA+2+i}')
    if i < 4: A('v_add_u32 v1, 64, v1')
A(f'''s_bfe_u32 s{sT3}, s{sW}, 0x10001
s_mul_i32 s{sD+1}, s{sT3}, {UPOFF}
s_lshl_b32 s{sT2}, s{sT2}, 10
s_add_u32 s{sD+1}, s{sD+1}, s{sT2}
s_add_u32 s{sD+1}, s{sD+1}, 16384
s_lshl_b32 s{sD}, s{sW}, 11
s_mul_i32 s{sST}, s{sB}, 9
s_sub_u32 s{sT2}, s{sB}, 6
s_max_i32 s{sT2}, s{sT2}, 0
s_sub_u32 s{sST}, s{sST}, s{sT2}
s_lshl_b32 s{sBW}, s{sST}, 5
s_lshl_b32 s{sBX}, s{sA}, 7
s_lshl_b32 s{sT2}, s{sT0}, 6
s_add_u32 s{sBX}, s{sBX}, s{sT2}
s_add_u32 s{sBX}, s{sBX}, s{sT3}
s_lshl_b32 s{sT2}, s{sT1}, 5
s_add_u32 s{sBX}, s{sBX}, s{sT2}
s_lshl_b32 s{sBX}, s{sBX}, 10
s_mov_b32 s{sMW}, {64*2752}
s_lshr_b32 s{sKS}, s{sA}, 1
s_cmp_lt_u32 s{sB}, 6
s_cselect_b32 s{sN0}, 5, 4''')
lines(SOFF)
A(f'''s_cmp_eq_u32 s{sT3}, 1
s_waitcnt lgkmcnt(0)
s_cselect_b32 s{SRD_W}, s{sKA+10}, s{sKA+8}
s_cselect_b32 s{SRD_W+1}, s{sKA+11}, s{sKA+9}
s_mov_b32 s{SRD_W+2}, {512*2752}
s_mov_b32 s{SRD_W+3}, 0x20000''')
if OPT['stamps']: A(f's_mov_b32 s{sSTAMP}, s{sCLK}')
build_srd(SRD_XR, sKA, 2048 * 1024)
stat_load()
build_srd(SRD_X, sKA, 2048 * 1024)
FX = [dma(vDMA, SRD_X, sOX, 0, [f's_add_u32 m0, s{sSLOT}, s{sD}']), dma(vDMA + 1, SRD_X, sOX, 1024)]
FW = [dma(vDMA + 2, SRD_W, sOW, 0, [f's_add_u32 m0, s{sSLOT}, s{sD+1}'])] + [dma(vDMA + 2 + i, SRD_W, sOW, 1024 * i) for i in range(1, 4)]
FW5 = dma(vDMA + 6, SRD_W, sOW, 0, ['s_add_u32 m0, m0, 4096'])
def fw5_guarded(tag):
    uid[0] += 1
    A(f's_cmp_lt_u32 s{sW}, 4\ns_cbranch_scc1 L_no5{uid[0]}'); lines(FW5); A(f'L_no5{uid[0]}:')
stamp(1)
vm = Q(63); vm.issue('code'); vm.issue('sr')
for g in FW: lines(g); vm.issue('w0')
fw5_guarded('w0')
for g in FX: lines(g); vm.issue('x0')
publish_tag()
stamp(1)
lines(ADV); lines(SOFF)
setup2()
A('v_mov_b32 v56, 0\nv_mov_b32 v57, 0\nv_mov_b32 v58, 0\nv_mov_b32 v59, 0')
for T in range(5): A(mf32(vr(vACC + 16*T, 16), 'v[56:59]', 'v[56:59]', '0'))
A(f'''v_and_b32 v1, 31, v{vL}
s_and_b32 s{sT0}, s{sW}, 3
s_lshl_b32 s{sT0}, s{sT0}, 5
v_add_u32 v1, s{sT0}, v1
v_bfe_u32 v2, v1, 1, 3
v_lshrrev_b32 v3, 5, v{vL}
v_xor_b32 v2, v2, v3
v_lshlrev_b32 v2, 4, v2
v_lshl_add_u32 v{vRX}, v1, 7, v2
v_xor_b32 v{vRX+1}, 32, v{vRX}
v_xor_b32 v{vRX+2}, 64, v{vRX}
v_xor_b32 v{vRX+3}, 96, v{vRX}
v_bfe_u32 v1, v{vL}, 2, 2
v_and_b32 v2, 3, v{vL}
v_lshlrev_b32 v2, 3, v2
s_movk_i32 s{sT0}, 288
v_mad_u32_u24 v35, v1, s{sT0}, v2
v_mul_u32_u24 v2, 2304, v3
v_bfe_u32 v1, v{vL}, 4, 1
v_mul_u32_u24 v{vRW}, {UPOFF}, v1
v_add3_u32 v{vRW}, v{vRW}, v2, v35
s_lshr_b32 s{sT0}, s{sW}, 2
s_mul_i32 s{sT0}, s{sT0}, s{sN0}
s_lshl_b32 s{sT0}, s{sT0}, 5
s_add_u32 s{sT0}, s{sT0}, 16384
v_add_u32 v{vRW}, s{sT0}, v{vRW}
s_and_b32 s{sT0}, s{sW}, 1
s_mul_i32 s{sT0}, s{sT0}, {UPOFF}
s_add_u32 s{sT0}, s{sT0}, 16384
v_add_u32 v35, s{sT0}, v35
v_mul_u32_u24 v34, 1152, v32
v_add_u32 v34, v34, v35
v_mul_u32_u24 v33, 1152, v3
v_lshl_add_u32 v33, v1, 7, v33
s_lshr_b32 s{sT1}, s{sW}, 1
s_lshl_b32 s{sT2}, s{sT1}, 5
v_add3_u32 v33, v33, v35, s{sT2}''')
A(f'''s_lshl_b32 s{sT0}, s2, 2
s_add_u32 s{sT0}, s{sT0}, {FLAG_S}
s_lshl_b32 s{sT3}, s{sB}, 5
s_add_u32 s{sT3}, s{sT3}, {FLAG_C}
s_lshl_b32 s{sT2}, s{sA}, 1
s_add_u32 s{sT4}, s{sT2}, s{sT3}
s_bitcmp0_b32 s{sA}, 0
s_cselect_b32 s{sT4}, s{sT4}, s{sT0}
v_mov_b32 v{vFL}, s{sT4}
v_writelane_b32 v{vFL}, s{sT0}, 0
s_lshl_b32 s{sT0}, s{sA}, 6
s_add_u32 s{sT0}, s{sT0}, {FLAG_S}
v_and_b32 v2, 15, v{vL}
v_lshl_add_u32 v3, v2, 2, s{sT0}
v_lshl_add_u32 v31, v31, 2, s{sT3}
v_cmp_gt_u32 vcc, 32, v{vL}
v_cndmask_b32 v{vPL}, v31, v3, vcc
s_mul_i32 s{sT0}, s{sB}, 9216
s_add_u32 s{sT0}, s{sT0}, s{sT2}
s_and_b32 s{sT3}, s{sW}, 1
s_lshl_b32 s{sT3}, s{sT3}, 9
s_add_u32 s{sT0}, s{sT0}, s{sT3}
s_add_u32 s{sT0}, s{sT0}, {CS_OFF}
v_lshl_add_u32 v2, v2, 5, s{sT0}
s_lshl_b32 s{sT3}, s{sT1}, 10
v_lshlrev_b32 v35, 12, v1
v_add3_u32 v35, v35, v2, s{sT3}
v_mov_b32 v3, {OOB}
v_cndmask_b32 v35, v3, v35, vcc
v_add_u32 v32, 8192, v2
s_cmp_eq_u32 s{sT1}, 0
s_cselect_b32 s{sT3}, 16, 0
v_cmp_gt_u32 vcc, s{sT3}, v{vL}
v_cndmask_b32 v32, v3, v32, vcc''')
A(f'''v_and_b32 v1, 31, v{vL}
s_lshl_b32 s{sT0}, s{sA}, 7
s_bfe_u32 s{sT1}, s{sW}, 0x10001
s_lshl_b32 s{sT1}, s{sT1}, 6
s_add_u32 s{sT0}, s{sT0}, s{sT1}
s_add_u32 s{sT0}, s{sT0}, s{sMH}
s_lshl_b32 s{sT0}, s{sT0}, 2
s_add_u32 s{sT0}, s{sT0}, {STAT_OFF}
v_lshl_add_u32 v20, v1, 3, s{sT0}
v_lshlrev_b32 v1, 5, v1
v_lshrrev_b32 v2, 5, v{vL}
v_lshl_add_u32 v21, v2, 4, v1
s_mul_i32 s{sT0}, s{sB}, 9216
s_add_u32 s{sT0}, s{sT0}, {CS_OFF}
s_lshr_b32 s{sT4}, s{sW}, 2
s_mul_i32 s{sT2}, s{sT4}, s{sN0}
s_sub_u32 s{sT1}, s{sN0}, 1
s_cmp_eq_u32 s{sT4}, 1
s_cselect_b32 s{sT1}, 3, s{sT1}
s_add_u32 s{sT1}, s{sT1}, s{sT2}
s_lshl_b32 s{sT1}, s{sT1}, 10
s_add_u32 s{sP2}, s{sT1}, s{sT0}
s_min_u32 s{sT1}, s{sW}, 6
s_lshl_b32 s{sT3}, s{sT1}, 10
s_add_u32 s{sP3}, s{sT3}, {SCR}
s_add_u32 s{sT1}, s{sT1}, 2
s_cmp_gt_u32 s{sT1}, s{sN0}
s_cselect_b32 s{sT1}, 1024, 0
s_add_u32 s{sT0}, s{sT0}, s{sT1}
s_add_u32 s{sP4}, s{sT0}, s{sT3}
s_sub_u32 s{sT1}, s{sT2}, 1
s_max_i32 s{sT1}, s{sT1}, 0
s_lshl_b32 s{sT1}, s{sT1}, 10
s_add_u32 s{sT1}, s{sT1}, {SCR}
v_add_u32 v{vAD}, s{sT1}, v21
s_lshl_b32 s{sT0}, s{sA}, 2
s_and_b32 s{sT1}, s{sW}, 3
s_add_u32 s{sT0}, s{sT0}, s{sT1}
s_mul_i32 s{sP5}, s{sT0}, {TG_STRIDE}
s_lshl_b32 s{sFLAG}, s{sA}, 7
s_add_u32 s{sT0}, s{sST}, s{sT2}
s_lshl_b32 s{sT0}, s{sT0}, 10
s_add_u32 s{sP5}, s{sP5}, s{sT0}
s_lshl_b32 s{sT0}, s{sB}, 2
s_add_u32 s{sFLAG}, s{sFLAG}, s{sT0}''')
tail_prepare()
stamp(1)
A(f's_waitcnt vmcnt({vm.need({"sr"})})')
stamp(1)
E = Inter()
E.push([g + [lambda: vm.issue('s1')] for g in FW], 10)
stat_compute(E); vm.issue('st')
E.flush()
fw5_guarded('s1')
for g in FX: lines(g); vm.issue('s1')
lines(ADV); lines(SOFF)
touches(vm)
A('v_mov_b32 v52, 0\nv_mov_b32 v53, 0\nv_mov_b32 v54, 0\nv_mov_b32 v55, 0')
A(f's_waitcnt vmcnt({vm.need({"w0"})})\ns_barrier')
stamp(1)
A(f's_bitcmp1_b32 s{sA}, 0\ns_cbranch_scc1 L_nocs')
for n in range(8): A(f'ds_read_b64_tr_b16 {vr(56+2*n, 2)}, v33 offset:{n*2304}')
for n in range(4): A(f'ds_read_b64_tr_b16 {vr(72+2*n, 2)}, v34 offset:{n*4608 + 256}')
for n in range(8):
    if n % 2 == 0: A(f's_waitcnt lgkmcnt({10 - n})')
    A(f'v_dot2c_f32_bf16 v52, s{sONES}, v{56+2*n}\nv_dot2c_f32_bf16 v54, s{sONES}, v{57+2*n}')
A('s_waitcnt lgkmcnt(0)')
for n in range(8): A(f'v_dot2c_f32_bf16 v{53 + 2*(n & 1)}, s{sONES}, v{72+n}')
A('''v_add_f32 v52, v52, v54
v_add_f32 v53, v53, v55
v_mov_b32 v54, v52
v_mov_b32 v55, v53
v_permlane32_swap_b32 v52, v54
v_permlane32_swap_b32 v53, v55
v_add_f32 v52, v52, v54
v_add_f32 v53, v53, v55
v_mov_b32 v55, v53
v_permlane16_swap_b32 v53, v55
v_add_f32 v53, v53, v55''')
split_hilo(52, 54); split_hilo(53, 55)
A(f'''buffer_store_dword v52, v35, {srd(SRD_AUX)}, 0 offen sc1
buffer_store_dword v53, v32, {srd(SRD_AUX)}, 0 offen sc1
L_nocs:''')
stamp(1)
A(f's_waitcnt vmcnt({vm.need({"x0"})})\ns_barrier')
stamp(); stamp(1)
A(f'''s_lshr_b32 s{sT0}, s{sW}, 2
s_add_u32 s{sT0}, s{sT0}, 4
s_cmp_lt_u32 s{sT0}, s{sN0}
s_cbranch_scc0 L_f4''')

lg = Q(15)
vC1, vIR = 18, 20
vBM = 36
vCL = 40
def ffn_role(nt, n):
    NM = 4 * nt
    NHD = nt - 2
    def rw(m):
        p, T = divmod(m, nt); s = vFR + 8 + (m % nt) * 4
        A(f'ds_read_b64_tr_b16 {vr(s, 2)}, v{vRW} offset:{p*4608 + T*32}'); lg.issue(('w', m))
        A(f'ds_read_b64_tr_b16 {vr(s+2, 2)}, v{vRW} offset:{p*4608 + T*32 + 1152}'); lg.issue(('w', m))
    def rx(p):
        A(f'ds_read_b128 {vr(vFR + (p & 1)*4, 4)}, v{vRX+p}'); lg.issue(('x', p))
    def mm(m):
        p, T = divmod(m, nt); s = vFR + 8 + (m % nt) * 4
        A(mf32(vr(vACC + 16*T, 16), vr(s, 4), vr(vFR + (p & 1)*4, 4), vr(vACC + 16*T, 16)))
    D = nt - 1
    def five():
        uid[0] += 1
        return [f's_cmp_lt_u32 s{sW}, 4', f's_cbranch_scc1 L_no5{uid[0]}'] + FW5 + [f'L_no5{uid[0]}:']
    def fill_for(main):
        fill = {}
        dl = (FX + FW + ([five()] if nt == 4 else [])) if main else tail_dma()
        last = NM - 3
        if not OPT['nodma']: spread(dl, list(range(0, last + 1)), fill)
        spread([RDELTA[:2], RDELTA[2:]], [2, 3], fill)
        if main: spread([SOFFX, SOFFWN, KSINC, [f's_mov_b32 s{sOW}, s{sNW}']], [7, 8, 9, last], fill)
        spread([ADV], [last], fill)
        spread([[f'v_add_u32 v{vRX+i}, s{sDELTA}, v{vRX+i}'] for i in range(4)], [4, 6, nt + 1 + NHD, 2*nt + 1 + NHD], fill)
        spread([[f'v_add_u32 v{vRW}, s{sDELTA}, v{vRW}']], [NM - nt + NHD], fill)
        return fill
    def head(fill, with_mfma, extra=None):
        itstamp()
        lg.drain()
        nxt = 0
        for m in range(NHD):
            if with_mfma: mm(NM - NHD + m)
            while nxt <= nt - NHD + m and nxt < D:
                rw(nxt)
                if nxt == 0: rx(0)
                nxt += 1
            if extra and extra[m]: extra[m]()
            lines(fill.get(m, []))
    def rest(fill, last_it, label):
        for m in range(NM - NHD):
            p, T = divmod(m, nt)
            if m == NM - NHD - 1:
                A('s_waitcnt vmcnt(6) lgkmcnt(0)'); lg.drain()
            c = lg.need({('w', m), ('x', p)})
            if c is not None: A(f's_waitcnt lgkmcnt({c})')
            mm(m)
            if m + D < NM: rw(m + D)
            if T == 1 and p < 3: rx(p + 1)
            lines(fill.get(m + NHD, []))
            if m == NM - NHD - 2: A(f's_add_u32 s{sIT}, s{sIT}, 1\ns_cmp_lt_u32 s{sIT}, {last_it}')
        A(f's_cbranch_scc1 {label}\ns_barrier')
    fm = fill_for(True)
    head(fm, False)
    A(f's_branch L_{n}ent\nL_{n}loop:\ns_barrier')
    fm = fill_for(True)
    head(fm, True, [lambda: hcheck(n), None, None])
    A(f'L_{n}ent:')
    rest(fm, 6, f'L_{n}loop')
    def inter():
        check_flag0(n)
        tail_setup()
        A(f'''buffer_load_dword v{vST}, v20, {srd(SRD_AUX)}, 0 offen sc1
s_mov_b32 m0, s{sP3}
buffer_load_dwordx4 {vr(vCL, 4)}, v21, {srd(SRD_AUX)}, s{sP2} offen sc1
buffer_load_dwordx4 v{vL16}, {srd(SRD_AUX)}, s{sP4} offen sc1 lds''')
    ft = fill_for(False)
    head(ft, True, [inter, None, None])
    A(f's_branch L_{n}tent\nL_{n}tail:\ns_barrier')
    head(ft, True)
    A(f'L_{n}tent:')
    rest(ft, 8, f'L_{n}tail')
    stamp(); itdump()
    vCF = 20
    CF = [44, vFR, 32, 12]
    for t in range(nt - 1): A(f'ds_read_b128 {vr(CF[t], 4)}, v{vAD} offset:{t*1024}')
    if NHD == 3: mm(NM - 3)
    A(f'''v_and_b32 v1, 0xffff, v{vST}
v_and_b32 v{vST}, 0xffff0000, v{vST}
v_lshl_or_b32 v{vBM}, v1, 16, v1
v_rcp_f32 v{vC1}, v{vST}''')
    mm(NM - 2)
    A(f'''v_mov_b32 v{vBM+1}, v{vBM}
v_mov_b32 v{vBM+2}, v{vBM}
v_mov_b32 v{vBM+3}, v{vBM}''')
    mm(NM - 1)
    A(f'''v_mul_f32 v{vIR}, v{vST}, v{vST}
v_mul_f32 v{vIR+2}, v{vST}, v{vST}
v_mul_f32 v{vC1}, {f2u(-LOG2E)}, v{vC1}
s_waitcnt lgkmcnt(0)''')
    for t in range(nt):
        A(mf32(vr(vACC + 16*t, 16), vr(CF[t] if t < nt - 1 else vCL, 4), vr(vBM, 4), vr(vACC + 16*t, 16)))
        if t == 0: baddr_setup()
    vm = Q(63)
    for i in range(6): vm.issue('v9')
    E = Inter()
    def tile(T):
        a = vACC + 16*T
        t = 52 if T & 1 else 32
        t = 52
        o = 68 + 4 * (T & 1)
        for k in range(4):
            E(f'v_pk_mul_f32 {vr(t+2*k, 2)}, {vr(a+2*k, 2)}, {vr(vC1, 2)} op_sel_hi:[1,0]')
        for k in range(8): E(f'v_exp_f32 v{t+k}, v{t+k}')
        for k in range(4):
            E(f'v_pk_mul_f32 {vr(t+8+2*k, 2)}, {vr(a+2*k, 2)}, {vr(a+8+2*k, 2)}')
        for k in range(4):
            E(f'v_pk_fma_f32 {vr(t+2*k, 2)}, {vr(t+2*k, 2)}, {vr(vIR, 2)}, {vr(vIR+2, 2)} op_sel_hi:[1,0,0]')
        for k in range(8): E(f'v_rcp_f32 v{t+k}, v{t+k}')
        for k in range(4):
            E(f'v_pk_mul_f32 {vr(t+2*k, 2)}, {vr(t+2*k, 2)}, {vr(t+8+2*k, 2)}')
        for k in range(4):
            E(f'v_cvt_pk_bf16_f32 v{o+k}, v{t+2*k}, v{t+2*k+1}')
        if T == 4: A(f's_add_u32 s{sP5}, s{sP5}, 4096')
        off = f' offset:{(T % 4)*1024}' if T % 4 else ''
        A(f'buffer_store_dwordx4 {vr(o, 4)}, v{vL16}, {srd(SRD_ACT)}, s{sP5} offen{off} sc1'); vm.issue('st')
    E.push(static_groups(0, vm, n), 12)
    for T in range(nt): tile(T)
    E.flush()
    A('s_branch L_phase2')
    handlers(n)
ns0 = nstamp[0]
ffn_role(5, 'f5')
nst_save = nstamp[0]; nstamp[0] = ns0
A('L_f4:')
ffn_role(4, 'f4')

nstamp[0] = 1 if OPT['stamps'] else 0
A.label('L_attn')
A(f'''s_sub_u32 s{sT1}, s{sT1}, 20
s_lshr_b32 s{sA}, s{sT1}, 2
s_lshr_b32 s{sKS}, s{sA}, 1
s_lshl_b32 s{sT4}, s{sT2}, 1
s_add_u32 s{sKS}, s{sKS}, s{sT4}
s_mul_i32 s{sT2}, s{sT2}, 3
s_add_u32 s{sA}, s{sA}, s{sT2}
s_and_b32 s{sB}, s{sT1}, 3
s_lshl_b32 s{sT3}, s{sT3}, 2
s_add_u32 s{sB}, s{sB}, s{sT3}
s_and_b32 s{sT0}, s{sW}, 1
s_lshl_b32 s{sT1}, s{sT0}, 6
v_xor_b32 v{vDMA}, s{sT1}, v{vDMA}
v_xor_b32 v{vDMA+1}, 64, v{vDMA}
v_add_u32 v{vDMA+1}, {16384-1024}, v{vDMA+1}
v_add_u32 v{vDMA+2}, {2*(16384-1024)}, v{vDMA}
v_and_b32 v1, 1, v32
s_lshl_b32 s{sT1}, s{sT0}, 1
v_add_u32 v1, s{sT1}, v1
v_lshlrev_b32 v1, 1, v1
v_xor_b32 v1, v31, v1
v_lshlrev_b32 v1, 4, v1
v_mul_u32_u24 v2, 3072, v30
s_mul_i32 s{sT1}, s{sW}, 24576
v_add3_u32 v{vDMA+3}, v1, v2, s{sT1}
s_mul_i32 s{sST}, s{sA}, 176
s_and_b32 s{sT1}, s{sW}, 3
s_mul_i32 s{sT2}, s{sT1}, 48
s_lshr_b32 s{sT3}, s{sW}, 2
s_add_u32 s{sBX}, s{sST}, s{sT2}
s_add_u32 s{sBX}, s{sBX}, s{sT3}
s_lshl_b32 s{sBX}, s{sBX}, 10
s_lshl_b32 s{sBW}, s{sB}, 7
s_mov_b32 s{sMW}, {64*3072}
s_mul_i32 s{sD}, s{sW}, 3072
s_add_u32 s{sD+1}, s{sD}, 24576
s_mov_b64 s[{sEX}:{sEX+1}], -1
s_cmp_eq_u32 s{sT1}, 0
s_cmov_b32 s{sEX}, 0xffffff00
s_or_b32 s{sT1}, s{sT1}, s{sA}
s_cmp_eq_u32 s{sT1}, 0
s_cselect_b32 s{sT1}, {OOB}, 0
v_add_u32 v{vDMA}, s{sT1}, v{vDMA}''')
lines(SOFF)
A('s_waitcnt lgkmcnt(0)')
if OPT['stamps']: A(f's_mov_b32 s{sSTAMP}, s{sCLK}')
build_srd(SRD_XR, sKA, 2048 * 1024)
stat_load()
build_srd(SRD_W, sKA + 2, 512 * 3072)
A(f'''s_sub_u32 s{SRD_X}, s{sKA}, 16384
s_subb_u32 s{SRD_X+1}, s{sKA+1}, 0
s_mov_b32 s{SRD_X+2}, {2048*1024 + 16384}
s_mov_b32 s{SRD_X+3}, 0x20000''')
AX = [[f's_add_u32 m0, s{sSLOT}, s{sD}', f's_mov_b64 exec, s[{sEX}:{sEX+1}]'] + dma(vDMA, SRD_X, sOX, 0) + ['s_mov_b64 exec, -1'],
      dma(vDMA + 1, SRD_X, sOX, 1024), dma(vDMA + 2, SRD_X, sOX, 2048)]
AW = [dma(vDMA + 3, SRD_W, sOW, 0, [f's_add_u32 m0, s{sSLOT}, s{sD+1}']), dma(vDMA + 3, SRD_W, sOW, 1024), dma(vDMA + 3, SRD_W, sOW, 2048)]
stamp(1)
vm = Q(63); vm.issue('code'); vm.issue('sr')
for g in AX + AW: lines(g); vm.issue('s0')
publish_tag()
stamp(1)
lines(ADV); lines(SOFF)
setup2()
A('v_mov_b32 v56, 0\nv_mov_b32 v57, 0\nv_mov_b32 v58, 0\nv_mov_b32 v59, 0')
for T in range(5): A(mf32(vr(vACC + 16*T, 16), 'v[56:59]', 'v[56:59]', '0'))
A(f'''v_min_u32 v1, 5, v30
v_lshrrev_b32 v2, 1, v1
v_mul_u32_u24 v2, {SLOT}, v2
v_and_b32 v1, 1, v1
v_mul_u32_u24 v1, 12288, v1
v_add_u32 v1, v1, v2
v_lshl_add_u32 v1, v31, 4, v1
v_mov_b32 v60, s{sONES}
v_mov_b32 v61, s{sONES}
v_mov_b32 v62, s{sONES}
v_mov_b32 v63, s{sONES}
ds_write_b128 v1, v[60:63]
v_and_b32 v33, 15, v{vL}
s_mul_i32 s{sT0}, s{sMH}, 96
v_add_u32 v1, s{sT0}, v33
v_bfe_u32 v2, v1, 1, 3
v_xor_b32 v2, v2, v32
v_lshlrev_b32 v2, 4, v2
v_lshl_add_u32 v{vRX}, v1, 7, v2
v_xor_b32 v{vRX+1}, 64, v{vRX}
v_mul_u32_u24 v1, 3072, v32
v_bfe_u32 v2, v{vL}, 2, 2
v_lshl_add_u32 v1, v2, 7, v1
v_bfe_u32 v2, v{vL}, 3, 2
s_lshr_b32 s{sT0}, s{sW}, 1
v_xor_b32 v2, s{sT0}, v2
v_lshl_add_u32 v1, v2, 5, v1
v_and_b32 v2, 3, v{vL}
v_lshl_add_u32 v1, v2, 3, v1
v_add_u32 v{vRW}, 24576, v1
s_lshl_b32 s{sT0}, s2, 2
s_add_u32 s{sT0}, s{sT0}, {FLAG_S}
v_mov_b32 v{vFL}, s{sT0}
s_lshr_b32 s{sT0}, s{sST}, 3
s_sub_u32 s{sT0}, s{sT0}, 2
v_min_u32 v1, 23, v{vL}
v_add_u32 v1, s{sT0}, v1
v_max_i32 v1, 0, v1
v_min_u32 v1, 255, v1
v_lshlrev_b32 v1, 2, v1
v_add_u32 v{vPL}, {FLAG_S}, v1
v_lshlrev_b32 v2, 2, v32
v_sub_u32 v2, v33, v2
v_mov_b32 v3, 0xff800000''')
for j in range(4):
    A(f'''v_add_u32 v{vMSK+j}, {16-j}, v2
v_subrev_u32 v{vMSK+4+j}, {j}, v2
v_cmp_gt_u32 vcc, 8, v{vMSK+j}
v_cmp_gt_u32 s[{sT4}:{sT5}], 8, v{vMSK+4+j}
v_cndmask_b32 v{vMSK+j}, v3, 0, vcc
v_cndmask_b32 v{vMSK+4+j}, v3, 0, s[{sT4}:{sT5}]''')
A(f'''s_cmp_eq_u32 s{sA}, 0
s_cselect_b32 s{sT0}, 32, 0
v_cmp_gt_u32 vcc, s{sT0}, v{vL}''')
for j in range(4): A(f'v_cndmask_b32 v{vMSK+8+j}, v{vMSK+4+j}, v3, vcc')
A(f'''v_lshlrev_b32 v1, 1, v33
s_add_u32 s{sT0}, s{sMH}, s{sST}
s_sub_u32 s{sT0}, s{sT0}, 16
v_add_u32 v1, s{sT0}, v1
v_mov_b32 v3, {OOB}''')
for t in range(6):
    A(f'''v_cmp_gt_u32 vcc, 2048, v1
v_lshlrev_b32 v2, 2, v1
v_add_u32 v2, {STAT_OFF}, v2
v_cndmask_b32 v{vAD+t}, v3, v2, vcc''')
    if t < 5: A('v_add_u32 v1, 32, v1')
tail_prepare()
A(f'''s_lshl_b32 s{sFLAG}, s{sA}, 7
s_lshl_b32 s{sT3}, s{sB}, 2
s_add_u32 s{sFLAG}, s{sFLAG}, s{sT3}
s_lshr_b32 s{sT4}, s{sW}, 1
s_add_u32 s{sT3}, s{sT3}, s{sT4}
s_add_u32 s{sFLAG}, s{sFLAG}, {FLAG_A}
s_mul_i32 s{sT2}, s{sMH}, {TG_STRIDE}
s_add_u32 s{sT3}, s{sT3}, 86
s_lshl_b32 s{sT3}, s{sT3}, 10
s_add_u32 s{sP5}, s{sT2}, s{sT3}''')
stamp(1)
A(f's_waitcnt vmcnt({vm.need({"sr"})})')
stamp(1)
E = Inter()
E.push([g + [lambda: vm.issue('s1')] for g in AX + AW], 8)
stat_compute(E); vm.issue('st')
E.flush()
stamp(1)
lines(ADV); lines(SOFF)
touches(vm)
stamp(1)
A(f's_waitcnt vmcnt({vm.need({"s0"})}) lgkmcnt(0)\ns_barrier')
stamp(); stamp(1)
def xf(j, t): return 36 * j + 4 * t
def wf(j, m): return 36 * j + 24 + 4 * m
RORD = [('w', 0), ('x', 0), ('w', 1), ('w', 2), ('x', 1), ('x', 2), ('x', 3), ('x', 4), ('x', 5)]
def a_rd(j, k):
    kind, i = RORD[k]
    if kind == 'x':
        A(f'ds_read_b128 {ar(xf(j, i), 4)}, v{vRX+j} offset:{i*2048}'); lg.issue(('x', j, i))
    else:
        A(f'ds_read_b64_tr_b16 {ar(wf(j, i), 2)}, v{vRW} offset:{j*12288 + i*1024}'); lg.issue(('w', j, i))
        A(f'ds_read_b64_tr_b16 {ar(wf(j, i)+2, 2)}, v{vRW} offset:{j*12288 + i*1024 + 512}'); lg.issue(('w', j, i))
QD, KD, VD = vACC, vACC + 24, vACC + 48
def a_mm(n):
    j, r = divmod(n, 18); t, m = divmod(r, 3)
    acc = vr(vACC + 24*m + 4*t, 4)
    if m < 2: A(mf16(acc, ar(wf(j, m), 4), ar(xf(j, t), 4), acc))
    else: A(mf16(acc, ar(xf(j, t), 4), ar(wf(j, m), 4), acc))
NH = 12
def a_fill(main):
    fill = {}
    if not OPT['nodma']: spread((AX + AW) if main else tail_dma(), [2, 7, 13, 19, 24, 30], fill)
    spread([RDELTA[:2], RDELTA[2:]], [9, 10], fill)
    if main: spread([SOFFX, SOFFWN, KSINC, [f's_mov_b32 s{sOW}, s{sNW}']], [14, 15, 16, 31], fill)
    spread([ADV], [31], fill)
    spread([[f'v_add_u32 v{vRX}, s{sDELTA}, v{vRX}'], [f'v_add_u32 v{vRX+1}, s{sDELTA}, v{vRX+1}'], [f'v_add_u32 v{vRW}, s{sDELTA}, v{vRW}']], [11, 27, 28], fill)
    return fill
def a_head(fill, with_mfma, extra=None):
    itstamp()
    lg.drain()
    for m in range(NH):
        if with_mfma: a_mm(36 - NH + m)
        if m < 9: a_rd(0, m)
        if m == 1 and extra: extra()
        lines(fill.get(m, []))
def a_rest(fill, last_it, label):
    for n in range(36 - NH):
        j, r = divmod(n, 18); t, m = divmod(r, 3)
        if n == 35 - NH:
            A('s_waitcnt vmcnt(6) lgkmcnt(0)'); lg.drain()
        c = lg.need({('w', j, m), ('x', j, t)})
        if c is not None: A(f's_waitcnt lgkmcnt({c})')
        a_mm(n)
        if 1 <= n <= 9: a_rd(1, n - 1)
        lines(fill.get(n + NH, []))
        if n == 34 - NH: A(f's_add_u32 s{sIT}, s{sIT}, 1\ns_cmp_lt_u32 s{sIT}, {last_it}')
    A(f's_cbranch_scc1 {label}\ns_barrier')
am, at = a_fill(True), a_fill(False)
a_head(am, False)
A('s_branch L_aent\nL_aloop:\ns_barrier')
a_head(am, True, lambda: hcheck('a'))
A('L_aent:')
a_rest(am, 6, 'L_aloop')
def a_inter():
    check_flag0('a')
    tail_setup()
    for t in range(6): A(f'buffer_load_dword v{vST+t}, v{vAD+t}, {srd(SRD_AUX)}, 0 offen sc1')
a_head(at, True, a_inter)
A('s_branch L_atent\nL_atail:\ns_barrier')
a_head(at, True)
A('L_atent:')
a_rest(at, 8, 'L_atail')
stamp(); itdump(); stamp(4)
vMR = 48
RR = [152, 154, 156, 158, 32, 34]
A(f'''s_mul_i32 s{sT0}, s{sW}, 768
s_add_u32 s{sT0}, s{sT0}, {SCR}
v_and_b32 v1, 15, v{vL}
v_lshl_add_u32 v30, v1, 2, s{sT0}
v_and_b32 v1, 48, v{vL}
v_add_u32 v31, s{sT0}, v1''')
for t in range(6):
    a_mm(24 + 2*t)
    A(f'''v_lshlrev_b32 v{vMR+2*t}, 16, v{vST+t}
v_and_b32 v{RR[t]}, 0xffff0000, v{vST+t}
v_max_f32 v{RR[t]}, {f2u(1e-3)}, v{RR[t]}''')
    a_mm(25 + 2*t)
    A(f'''v_rcp_f32 v{RR[t]}, v{RR[t]}
s_nop 0
ds_write2_b32 v30, v{vMR+2*t}, v{RR[t]} offset0:{16*t} offset1:{96+16*t}''')
stamp(4)
baddr_setup()
stamp(4)
vm = Q(63)
for i in range(6): vm.issue('v9')
E = Inter()
vCQ, vCK, vCV = 60, 64, 68
for j in range(4):
    A(f'v_mov_b32_dpp v{vCQ+j}, v{QD+j} row_newbcast:0 row_mask:0xf bank_mask:0xf')
    A(f'v_mov_b32_dpp v{vCK+j}, v{KD+j} row_newbcast:0 row_mask:0xf bank_mask:0xf')
A(f'''v_mov_b32 v{vCV}, v{VD}
v_mov_b32 v{vCV+1}, v{VD}
v_permlane16_swap_b32 v{vCV}, v{vCV+1}
v_mov_b32 v{vCV+1}, v{vCV}
v_permlane32_swap_b32 v{vCV}, v{vCV+1}''')
ROW = [70, 12]
def row_read(t):
    b = ROW[t & 1]
    A(f'ds_read_b128 {vr(b, 4)}, v31 offset:{64*t}\nds_read_b128 {vr(b+4, 4)}, v31 offset:{384 + 64*t}')
row_read(0); row_read(1)
QP, KP, VP = QD, KD, VD + 2
for t in range(6):
    for k in range(2):
        E(f'v_pk_fma_f32 {vr(KD+4*t+2*k, 2)}, {vr(vCK+2*k, 2)}, {vr(vMR+2*t, 2)}, {vr(KD+4*t+2*k, 2)} op_sel_hi:[1,0,1]')
        E(f'v_pk_fma_f32 {vr(QD+4*t+2*k, 2)}, {vr(vCQ+2*k, 2)}, {vr(vMR+2*t, 2)}, {vr(QD+4*t+2*k, 2)} op_sel_hi:[1,0,1]')
    for k in range(2):
        E(f'v_pk_mul_f32 {vr(KD+4*t+2*k, 2)}, {vr(KD+4*t+2*k, 2)}, {vr(RR[t], 2)} op_sel_hi:[1,0]')
        E(f'v_cvt_pk_bf16_f32 v{QP+2*t+k}, v{QD+4*t+2*k}, v{QD+4*t+2*k+1}')
    for k in range(2):
        E(f'v_cvt_pk_bf16_f32 v{KP+2*t+k}, v{KD+4*t+2*k}, v{KD+4*t+2*k+1}')
    E(f'v_mul_f32 v{vMR+2*t}, {f2u(0.25*LOG2E)}, v{RR[t]}')
SB = [92, 116, 144, 60]
def s_mm(t):
    s = SB[t % 4]
    if t: A(mf16k(vr(s, 4), vr(KP+2*(t-1), 2), vr(QP+2*t, 2), vr(vMSK, 4)))
    A(mf16k(vr(s+4, 4), vr(KP+2*t, 2), vr(QP+2*t, 2), vr(vMSK + (4 if t else 8), 4)))
stamp(4)
s_mm(0); s_mm(1)
lgv = Q(15)
for t in range(6):
    b = ROW[t & 1]
    A(f's_waitcnt lgkmcnt({2 if t < 5 else 0})')
    for k in range(2):
        E(f'v_pk_fma_f32 {vr(VD+4*t+2*k, 2)}, {vr(b+2*k, 2)}, {vr(vCV, 2)}, {vr(VD+4*t+2*k, 2)} op_sel_hi:[1,0,1]')
    for k in range(2):
        E(f'v_pk_mul_f32 {vr(VD+4*t+2*k, 2)}, {vr(VD+4*t+2*k, 2)}, {vr(b+4+2*k, 2)}')
    if t < 4: row_read(t + 2)
    if t == 0:
        E(f'v_cvt_pk_bf16_f32 v{VD+2}, v{VD+2}, v{VD+3}\nv_cvt_pk_bf16_f32 v{VD+3}, v{VD}, v{VD+1}\nv_swap_b32 v{VD+2}, v{VD+3}')
    else:
        for k in range(2): E(f'v_cvt_pk_bf16_f32 v{VP+2*t+k}, v{VD+4*t+2*k}, v{VD+4*t+2*k+1}')
stamp(4)
A(f'''v_and_b32 v1, 15, v{vL}
v_lshrrev_b32 v2, 5, v{vL}
v_lshl_add_u32 v1, v2, 4, v1
s_lshr_b32 s{sT0}, s{sST}, 1
s_sub_u32 s{sT0}, s{sT0}, 8
v_add_u32 v2, s{sT0}, v1
s_mov_b32 s{sT2}, {2*TG_STRIDE}
v_bfe_u32 v3, v{vL}, 4, 1
v_lshlrev_b32 v3, 9, v3
v_cmp_le_u32 vcc, 8, v1''')
for i in range(3):
    A(f'''v_lshrrev_b32 v{30+i}, 5, v2
v_mul_lo_u32 v{30+i}, v{30+i}, s{sT2}
v_and_b32 v1, 31, v2
v_lshl_add_u32 v1, v1, 4, v3
v_add_u32 v{30+i}, v{30+i}, v1''')
    if i < 2: A('v_add_u32 v2, 32, v2')
A(f'v_mov_b32 v1, {OOB}\nv_cndmask_b32 v30, v1, v30, vcc')
for i in range(4): A(f'v_mov_b32 v{72+i}, s{sONES}')
PB = [100, 124]
OB = [152, 12]; LB = [156, 16]
A(f'v_mov_b32 v{PB[0]}, 0\nv_mov_b32 v{PB[0]+1}, 0\nv_mov_b32 v{VD}, 0\nv_mov_b32 v{VD+1}, 0')
E.push(static_groups(0, vm, 'a'), 12)
def pair(t):
    mx = [20, 21]
    for e in range(2):
        s = SB[(t + e) % 4]
        if t + e == 0:
            E(f'v_max3_f32 v{mx[e]}, v{s+4}, v{s+5}, v{s+6}\nv_max_f32 v{mx[e]}, v{mx[e]}, v{s+7}')
        else:
            E(f'''v_max3_f32 v{mx[e]}, v{s}, v{s+1}, v{s+2}
v_max3_f32 v{mx[e]}, v{mx[e]}, v{s+3}, v{s+4}
v_max3_f32 v{mx[e]}, v{mx[e]}, v{s+5}, v{s+6}
v_max_f32 v{mx[e]}, v{mx[e]}, v{s+7}''')
    E('''v_permlane32_swap_b32 v20, v21
v_max_f32 v20, v20, v21
v_mov_b32 v21, v20
v_permlane16_swap_b32 v20, v21
v_max_f32 v20, v20, v21
v_mov_b32 v21, v20
v_permlane32_swap_b32 v20, v21''')
    if t < 4: s_mm(t + 2); s_mm(t + 3)
    for e in range(2):
        s = SB[(t + e) % 4]; c = vMR + 2 * (t + e)
        k0 = 2 if t + e == 0 else 0
        E(f'v_mul_f32 v{20+2*e}, -v{c}, v{mx[e]}')
        for k in range(k0, 4):
            E(f'v_pk_fma_f32 {vr(s+2*k, 2)}, {vr(s+2*k, 2)}, {vr(c, 2)}, {vr(20+2*e, 2)} op_sel_hi:[1,0,0]')
        for k in range(2*k0, 8): E(f'v_exp_f32 v{s+k}, v{s+k}')
        for k in range(k0, 4): E(f'v_cvt_pk_bf16_f32 v{PB[e]+k}, v{s+2*k}, v{s+2*k+1}')
        E(mf16(vr(LB[e], 4), 'v[72:75]', vr(PB[e], 4), '0'))
        E(mf16(vr(OB[e], 4), vr(VP + 2*(t + e - 1), 4), vr(PB[e], 4), '0'))
    x = 76 if (t & 2) == 0 else 32 + 1 + 1
    x = 76
    for e in range(2):
        E(f'v_rcp_f32 v{LB[e]}, v{LB[e]}')
        for k in range(2):
            E(f'v_pk_mul_f32 {vr(OB[e]+2*k, 2)}, {vr(OB[e]+2*k, 2)}, {vr(LB[e], 2)} op_sel_hi:[1,0]')
        for k in range(2): E(f'v_cvt_pk_bf16_f32 v{x+2*e+k}, v{OB[e]+2*k}, v{OB[e]+2*k+1}')
    E(f'v_permlane32_swap_b32 v{x}, v{x+2}\nv_permlane32_swap_b32 v{x+1}, v{x+3}')
    A(f'buffer_store_dwordx4 {vr(x, 4)}, v{30 + t//2}, {srd(SRD_ACT)}, s{sP5} offen sc1'); vm.issue('st')
stamp(4); pair(0); stamp(4); pair(2); stamp(4); pair(4); E.flush(); stamp(4)
assert nstamp[0] == nst_save or OPT['sg'] == 4, (nstamp[0], nst_save)

A.label('L_phase2')
stamp()
for g in breg_groups(0): lines(g)
A('s_waitcnt vmcnt(9) lgkmcnt(0)\ns_barrier')
stamp()
for g in mix(breg_groups(1), static_groups(1, Q(63), 'p')): lines(g)
vP = 128
vRING = 80; NRING = 12
vLB = 48
vXR = 36
vPO, vOO, vEX = 12, 13, 14
A(f'''v_and_b32 v1, 31, v{vL}
v_lshrrev_b32 v2, 5, v{vL}
s_lshl_b32 s{sT2}, s{sR}, 6
s_add_u32 s{sT2}, s{sT2}, s{sMH}
s_lshl_b32 s{sT2}, s{sT2}, 10
s_lshl_b32 s{sT3}, s{sCB}, 7
s_add_u32 s{sT2}, s{sT2}, s{sT3}
s_lshl_b32 s{sT3}, s{sKQ}, 5
s_add_u32 s{sT2}, s{sT2}, s{sT3}
v_lshlrev_b32 v{vOO}, 11, v1
v_lshl_add_u32 v{vOO}, v2, 4, v{vOO}
v_add_u32 v{vOO}, s{sT2}, v{vOO}
buffer_load_dwordx4 v[44:47], v{vOO}, {srd(SRD_XR)}, 0 offen
s_lshl_b32 s{sT2}, s{sR}, 1
s_add_u32 s{sT2}, s{sT2}, s{sMH}
s_mul_i32 s{sOX}, s{sT2}, {TG_STRIDE}
s_sub_u32 s{sT1}, s{sKQ}, 1
s_mul_i32 s{sT3}, s{sT1}, {29*1024}
s_cmp_eq_u32 s{sKQ}, 0
s_cselect_b32 s{sT3}, {86*1024}, s{sT3}
s_add_u32 s{sOX}, s{sOX}, s{sT3}
s_add_u32 s{sOW}, s{sOX}, {28*1024}
s_cmp_eq_u32 s{sKQ}, 0
s_cselect_b32 s{sNW}, s{sOW}, {OOB}
s_cmp_eq_u32 s{sKQ}, 3
s_cselect_b32 s{sOW}, {OOB}, s{sOW}
s_lshr_b32 s{sT2}, s{sR}, 1
s_lshl_b32 s{sT2}, s{sT2}, 7
s_mul_i32 s{sT3}, s{sT1}, 12
s_add_u32 s{sT2}, s{sT2}, s{sT3}
v_and_b32 v3, 3, v{vL}
v_lshl_add_u32 v{vPO}, v3, 2, s{sT2}
s_lshl_b32 s{sT3}, s{sR}, 6
s_mul_i32 s{sT4}, s{sT3}, 745
s_lshr_b32 s{sT4}, s{sT4}, 17
s_add_u32 s{sT3}, s{sT3}, 63
s_mul_i32 s{sT3}, s{sT3}, 745
s_lshr_b32 s{sT3}, s{sT3}, 17
s_sub_u32 s{sT3}, s{sT3}, s{sT4}
s_lshl_b32 s{sT3}, s{sT3}, 7
s_lshl_b32 s{sT4}, s{sT4}, 7
s_add_u32 s{sT4}, s{sT4}, {FLAG_A}
v_mul_u32_u24 v2, s{sT3}, v2
v_and_b32 v1, 7, v{vL}
v_lshl_add_u32 v1, v1, 2, s{sT4}
v_add_u32 v1, v1, v2
s_cmp_eq_u32 s{sKQ}, 0
s_cselect_b64 vcc, -1, 0
v_cndmask_b32 v{vPO}, v{vPO}, v1, vcc
s_lshl_b32 s{sT0}, s{sMH}, 15
v_add_u32 v{vEX}, s{sT0}, v{vL16}
v_mov_b32 v2, s{sTAG}
s_waitcnt vmcnt(7) lgkmcnt(0)
s_barrier
s_cmp_lg_u32 s{sW}, 0
s_cbranch_scc1 L_noflag
s_mov_b64 exec, 1
buffer_store_dword v2, off, {srd(SRD_AUX)}, s{sFLAG} sc1
s_mov_b64 exec, -1
L_noflag:
v_add_u32 v{vB+4}, s{sD+1}, v10
v_xor_b32 v{vB+5}, 64, v{vB+4}''')
stamp(); stamp(3)
for g in static_groups(2, Q(63), 'p'): lines(g)
stamp(3)
A(f'''buffer_load_dword v3, v{vPO}, {srd(SRD_AUX)}, 0 offen sc1
s_mov_b32 s{sT0}, 0
s_waitcnt vmcnt(1)''')
stamp(3)
A('s_barrier')
stamp(3)
A(f'''
v_permlane32_swap_b32 v44, v46
v_permlane32_swap_b32 v45, v47''')
for i in range(4):
    A(f'v_lshlrev_b32 v{vXR+2*i}, 16, v{44+i}\nv_and_b32 v{vXR+2*i+1}, 0xffff0000, v{44+i}')
A(f'''L_poll:
s_waitcnt vmcnt(0)
v_cmp_ne_u32 vcc, s{sTAG}, v3
s_cbranch_vccz L_pollok
s_sleep {OPT['sleep']}
buffer_load_dword v3, v{vPO}, {srd(SRD_AUX)}, 0 offen sc1
s_add_u32 s{sT0}, s{sT0}, 1
s_cmp_lt_u32 s{sT0}, {SPIN}
s_cbranch_scc1 L_poll
L_pollok:''')
stamp(); stamp(3)
vm = Q(63); lg = Q(15)
def a_load(st):
    so = sOX if st < 28 else (sOW if st == 28 else sNW)
    if st and st % 4 == 0 and st < 28: A(f's_add_u32 s{sOX}, s{sOX}, 4096')
    off = f' offset:{(st % 4)*1024}' if st % 4 else ''
    A(f'buffer_load_dwordx4 {vr(vRING + 4*(st % NRING), 4)}, v{vL16}, {srd(SRD_ACT)}, s{so} offen{off} sc1')
    vm.issue(st)
def b_read(st, ct):
    t = st - NREG
    r = [i for i, (a, b) in enumerate(REG_T) if a <= t < b][0]
    off = (t - REG_T[r][0]) * 2048
    for hf in range(2):
        A(f'ds_read_b64_tr_b16 {vr(vLB + (st % 4)*8 + ct*4 + hf*2, 2)}, v{vB + 2*r + ct} offset:{off + hf*1024}')
        lg.issue(st)
NB = OPT['burst']
for st in range(NB): a_load(st)
for st in range(32):
    if st == 28: A(f's_cmp_eq_u32 s{sKQ}, 3\ns_cbranch_scc1 L_p2done')
    if st == 29: A(f's_cmp_lg_u32 s{sKQ}, 0\ns_cbranch_scc1 L_p2done')
    w = []
    c = vm.need({st})
    if c is not None: w.append(f'vmcnt({c})')
    c = lg.need({st})
    if c is not None: w.append(f'lgkmcnt({c})')
    if w: A('s_waitcnt ' + ' '.join(w))
    if st in (0, 12): stamp(3)
    for ct in range(2):
        b = ar(st*8 + ct*4, 4) if st < NREG else vr(vLB + (st % 4)*8 + ct*4, 4)
        acc = vr(vP + 16*ct, 16)
        A(mf32(acc, b, vr(vRING + 4*(st % NRING), 4), acc if st else '0'))
        if NREG <= st + 2 < 32: b_read(st + 2, ct)
        if ct == 0 and st + NB < 32: a_load(st + NB)
A('L_p2done:')
stamp(); stamp(3)
vF, vS, vR1 = 48, 56, 64
A(f'''s_waitcnt lgkmcnt(0)
s_barrier
s_cmp_eq_u32 s{sKQ}, 1
s_cbranch_scc1 L_red1
s_cmp_eq_u32 s{sKQ}, 2
s_cbranch_scc1 L_red2
s_cmp_eq_u32 s{sKQ}, 3
s_cbranch_scc1 L_red3''')
for q in range(4):
    if q: A(f'L_red{q}:')
    for c in range(4):
        if c == q: continue
        for i in range(2): A(f'ds_write_b128 v{vEX}, {vr(vP + 8*c + 4*i, 4)} offset:{q*8192 + c*2048 + i*1024}')
    A('s_waitcnt lgkmcnt(0)\ns_barrier')
    srcs = [s for s in range(4) if s != q]
    dst = {}
    for n_, s in enumerate(srcs):
        dst[s] = vS if s == 0 else vR1 + 8 * n_
        for i in range(2): A(f'ds_read_b128 {vr(dst[s] + 4*i, 4)}, v{vEX} offset:{s*8192 + q*2048 + i*1024}')
    dst[q] = vP + 8 * q
    if q == 0:
        for i in range(4): A(f'v_pk_mul_f32 {vr(vS+2*i, 2)}, {vr(vP+2*i, 2)}, 1.0 op_sel_hi:[1,0]')
    fs = [q] + [s for s in srcs if s] if q else [1, 2, 3]
    A('s_waitcnt lgkmcnt(2)')
    for i in range(4): A(f'v_pk_add_f32 {vr(vF+2*i, 2)}, {vr(dst[fs[0]]+2*i, 2)}, {vr(dst[fs[1]]+2*i, 2)}')
    A('s_waitcnt lgkmcnt(0)')
    for i in range(4): A(f'v_pk_add_f32 {vr(vF+2*i, 2)}, {vr(vF+2*i, 2)}, {vr(dst[fs[2]]+2*i, 2)}')
    if q < 3: A('s_branch L_final')
A.label('L_final')
t = 88
assert sT1 % 2 == 0
A(f's_mov_b32 s{sT1}, {f2u(-LOG2E)}\ns_mov_b32 s{sT1+1}, {f2u(-LOG2E)}')
for i in range(4): A(f'v_pk_mul_f32 {vr(t+2*i, 2)}, {vr(vF+2*i, 2)}, s[{sT1}:{sT1+1}]')
for i in range(8): A(f'v_exp_f32 v{t+i}, v{t+i}')
for i in range(4): A(f'v_pk_mul_f32 {vr(vS+2*i, 2)}, {vr(vS+2*i, 2)}, {vr(vF+2*i, 2)}')
for i in range(4): A(f'v_pk_add_f32 {vr(t+2*i, 2)}, {vr(t+2*i, 2)}, 1.0 op_sel_hi:[1,0]')
for i in range(8): A(f'v_rcp_f32 v{t+i}, v{t+i}')
for i in range(4): A(f'v_pk_fma_f32 {vr(t+2*i, 2)}, {vr(t+2*i, 2)}, {vr(vS+2*i, 2)}, {vr(vXR+2*i, 2)}')
for i in range(4): A(f'v_cvt_pk_bf16_f32 v{44+i}, v{t+2*i}, v{t+2*i+1}')
A(f'''v_permlane32_swap_b32 v44, v46
v_permlane32_swap_b32 v45, v47
buffer_store_dwordx4 v[44:47], v{vOO}, {srd(SRD_OUT)}, 0 offen{['', ' sc1', ' nt', ' sc0 sc1'][OPT['ost']]}''')
if OPT['stamps'] and OPT['sg'] != 2:
    stamp(); stamp(3)
    A('s_waitcnt vmcnt(0)')
    stamp()
    A(f'''s_lshl_b32 s{sT0}, s2, 9
s_lshl_b32 s{sT1}, s{sW}, 6
s_add_u32 s{sT0}, s{sT0}, s{sT1}
s_add_u32 s{sT0}, s{sT0}, {STAMP_OFF}
v_mov_b32 v1, s{sT0}''')
    for i in range(10): A(f'v_mov_b32 v{48+i}, s{sSTAMP+i}')
    A(f'''global_store_dwordx4 v1, v[48:51], s[{sWS}:{sWS+1}]
global_store_dwordx4 v1, v[52:55], s[{sWS}:{sWS+1}] offset:16
global_store_dwordx2 v1, v[56:57], s[{sWS}:{sWS+1}] offset:32''')
A.label('L_end')
A('s_endpgm')
handlers('a')

body = A.finish(verbose=False)
hdr = open('cdna_kernels/' + NAME + '.s.ref').read().split('; Override launch')[0]
out = hdr + f'''; @launch grid=(256,1,1) block=(512,1,1) lds={LDS_BYTES}
.amdgcn_target "amdgcn-amd-amdhsa--gfx950"
.text
.globl {NAME}_kernel
.p2align 8
.type {NAME}_kernel,@function
''' + body + f'''L_codeend:
.fill (33024 - (L_codeend - {NAME}_kernel)) / 4, 4, 0xbf810000
.section .rodata,"a"
.p2align 6
.amdhsa_kernel {NAME}_kernel
  .amdhsa_next_free_vgpr 256
  .amdhsa_next_free_sgpr 102
  .amdhsa_accum_offset 160
  .amdhsa_group_segment_fixed_size 0
  .amdhsa_kernarg_size 80
  .amdhsa_user_sgpr_count 2
  .amdhsa_user_sgpr_kernarg_segment_ptr 1
  .amdhsa_system_sgpr_workgroup_id_x 1
.end_amdhsa_kernel
'''
sys.stdout.write(out)
sys.stderr.write(f'nops inserted: {A.nops}\n')
```

```python
import sys, os, struct
sys.path.insert(0, os.path.dirname(os.path.abspath(__file__)))
from asmlib import Asm, Q

NAME = "recurrent_scan__sliding_local_dilated__swiglu_ffn__prompt"
OPT = dict(ost=0, l2t=2, exp=0, sleep=3, stamps=0, sg=0, nodma=0, btouch=1, map2=0, burst=8, prio=0)
for a in sys.argv[1:]:
    k, v = a.split('=')
    assert k in OPT, k
    OPT[k] = int(v)

SLOT = 53504
UPOFF = 18560
LDS_BYTES = 163840
SCR = 2 * SLOT + 49152
ACT_OFF = 1 << 20
TG_STRIDE = 118 * 1024
ACT_BYTES = 64 * TG_STRIDE
FLAG_F = 0
FLAG_A = 0x2000
FLAG_S = 0x2c00
FLAG_C = 0x3000
STAT_OFF = 0x4000
CS_OFF = 0x8000
AUX_BYTES = 0x8000 + 10 * 9216
STAMP_OFF = 1 << 19
NREG = 12
LOG2E = 1.4426950408889634
OOB = 0x80000000
SPIN = 0x40000
def f2u(x): return struct.unpack('<I', struct.pack('<f', x))[0]

sW = 3
SRD_X, SRD_W, SRD_ACT, SRD_B, SRD_XR, SRD_OUT = 4, 8, 12, 16, 20, 24
sDBG, sWS = 28, 30
sKA = 32
sIT, sKS, sBX, sBW, sKQ, sMW, sOX, sOW = 48, 49, 50, 51, 52, 53, 54, 55
sD = 56
sN0 = 59
sSLOT, sDELTA, sONES, sRS = 60, 61, 62, 63
sR, sCB, sA, sB, sTAG, sT0, sT1, sT2, sT3 = 64, 65, 66, 67, 68, 69, 70, 71, 72
sMH, sST, sFLAG, sSOFF, sNW, sT4, sT5 = 73, 74, 75, 76, 77, 78, 79
SRD_AUX = 80
SRD_T = 84
sEX = 88
sCLK = 90
sSTAMP = 92
sHM = 0
sP0, sP1, sP2, sP3, sP4, sP5 = 32, 33, 34, 35, 38, 39
sQ0, sQ1, sQ2, sSO, sQ3, sL2 = 40, 41, 42, 43, 1, 46
def srd(n): return f's[{n}:{n+3}]'

vL = 0
vDMA = 4
vRX, vRW = 11, 15
vST = 16
vPL, vFL, vTG = 22, 23, 24
vBP = 25
vL16 = 29
vTCH = 19
vAD = 30
vMSK = 36
vFR = 48
vACC = 80
def vr(b, n): return f'v[{b}:{b+n-1}]'
def ar(b, n): return f'a[{b}:{b+n-1}]'

A = Asm()
STI = 's_memtime' if OPT['stamps'] == 2 else 's_memrealtime'
nstamp = [0]
def stamp(grp=0):
    if not OPT['stamps'] or grp != OPT['sg']: return
    i = nstamp[0]; nstamp[0] += 1
    assert i < 10
    A(f'{STI} s[{sCLK}:{sCLK+1}]\ns_waitcnt lgkmcnt(0)\ns_mov_b32 s{sSTAMP+i}, s{sCLK}')

def itstamp():
    if OPT['stamps'] and OPT['sg'] == 2:
        A(f'''{STI} s[{sCLK}:{sCLK+1}]
s_waitcnt lgkmcnt(0)
v_mov_b32 v77, s{sCLK}
v_cmp_eq_u32 vcc, s{sIT}, v{vL}
v_cndmask_b32 v78, v78, v77, vcc''')
def itdump():
    if OPT['stamps'] and OPT['sg'] == 2:
        itstamp()
        A(f'''s_lshl_b32 s{sT0}, s2, 9
s_lshl_b32 s{sT1}, s{sW}, 6
s_add_u32 s{sT0}, s{sT0}, s{sT1}
s_add_u32 s{sT0}, s{sT0}, {STAMP_OFF}
v_lshl_add_u32 v77, v{vL}, 2, s{sT0}
s_mov_b64 exec, 0x3ff
global_store_dword v77, v78, s[{sWS}:{sWS+1}]
s_mov_b64 exec, -1''')
def mf32(d, a, b, c): return f'v_mfma_f32_32x32x16_bf16 {d}, {a}, {b}, {c}'
def mf16(d, a, b, c): return f'v_mfma_f32_16x16x32_bf16 {d}, {a}, {b}, {c}'
def mf16k(d, a, b, c): return f'v_mfma_f32_16x16x16_bf16 {d}, {a}, {b}, {c}'

def spread(groups, slots, into=None):
    out = {} if into is None else into
    n = len(groups)
    for i, g in enumerate(groups):
        out.setdefault(slots[(i * len(slots)) // n], []).extend(g)
    return out
def lines(L):
    for l in L: (l() if callable(l) else A(l))
def mix(a, b):
    out = []; a = list(a); b = list(b)
    while a or b:
        if a: out.append(a.pop(0))
        if b: out.append(b.pop(0))
    return out

class Inter:
    def __init__(self): self.g = []; self.every = 1; self.c = 0
    def push(self, groups, every): self.g += list(groups); self.every = every; self.c = 0
    def __call__(self, text):
        for l in text.split('\n'):
            l = l.strip()
            if not l: continue
            A(l); self.c += 1
            if self.g and self.c >= self.every:
                lines(self.g.pop(0)); self.c = 0
    def flush(self):
        while self.g: lines(self.g.pop(0))

def build_srd(n, plo, size, E=None):
    (E or A)(f'''s_mov_b32 s{n}, s{plo}
s_mov_b32 s{n+1}, s{plo+1}
s_mov_b32 s{n+2}, {size}
s_mov_b32 s{n+3}, 0x20000''')

SOFFX = [f's_lshl_b32 s{sOX}, s{sKS}, 7', f's_add_u32 s{sOX}, s{sOX}, s{sBX}']
SOFFW = [f's_mul_i32 s{sOW}, s{sKS}, s{sMW}', f's_add_u32 s{sOW}, s{sOW}, s{sBW}']
SOFFWN = [f's_mul_i32 s{sNW}, s{sKS}, s{sMW}', f's_add_u32 s{sNW}, s{sNW}, s{sBW}']
KSINC = [f's_add_u32 s{sKS}, s{sKS}, 1', f's_and_b32 s{sKS}, s{sKS}, 7']
SOFF = SOFFX + SOFFW + KSINC
ADV = [f's_add_u32 s{sSLOT}, s{sSLOT}, {SLOT}', f's_cmp_eq_u32 s{sSLOT}, {3*SLOT}', f's_cselect_b32 s{sSLOT}, 0, s{sSLOT}']
RDELTA = [f's_add_u32 s{sRS}, s{sRS}, 1', f's_mov_b32 s{sDELTA}, {SLOT}', f's_cmp_eq_u32 s{sRS}, 3',
          f's_cmov_b32 s{sDELTA}, {(-2*SLOT) & 0xffffffff}', f's_cmov_b32 s{sRS}, 0']

def dma(v, s_, o_, im, pre=None, flags=''):
    off = f' offset:{im}' if im else ''
    return (pre or []) + [f'buffer_load_dwordx4 v{v}, {srd(s_)}, s{o_} offen{off}{flags} lds']

vSR = 48
def stat_load():
    A(f'''s_lshl_b32 s{sT0}, s2, 13
s_lshl_b32 s{sT1}, s{sW}, 10
s_add_u32 s{sT0}, s{sT0}, s{sT1}
buffer_load_dwordx4 {vr(vSR, 4)}, v{vL16}, {srd(SRD_XR)}, s{sT0} offen''')

def stat_compute(E):
    sm, sq, t, t2 = 52, 53, 54, 55
    E(f'v_mov_b32 v{sm}, 0\nv_mov_b32 v{sq}, 0')
    for i in range(4):
        E(f'v_dot2c_f32_bf16 v{sm}, s{sONES}, v{vSR+i}\nv_dot2c_f32_bf16 v{sq}, v{vSR+i}, v{vSR+i}')
    for r in (1, 2, 4, 8):
        E(f'v_add_f32_dpp v{sm}, v{sm}, v{sm} row_ror:{r} row_mask:0xf bank_mask:0xf')
        E(f'v_add_f32_dpp v{sq}, v{sq}, v{sq} row_ror:{r} row_mask:0xf bank_mask:0xf')
    for sw in (16, 32):
        E(f'''v_mov_b32 v{t}, v{sm}
v_mov_b32 v{t2}, v{sq}
v_permlane{sw}_swap_b32 v{sm}, v{t}
v_permlane{sw}_swap_b32 v{sq}, v{t2}
v_add_f32 v{sm}, v{sm}, v{t}
v_add_f32 v{sq}, v{sq}, v{t2}''')
    E(f'''v_mul_f32 v{sm}, {f2u(1/512)}, v{sm}
v_mul_f32 v{sq}, {f2u(1/512)}, v{sq}
v_fma_f32 v{sq}, -v{sm}, v{sm}, v{sq}
v_max_f32 v{sq}, 0, v{sq}
v_cvt_pk_bf16_f32 v{sq}, v{sq}, v{sq}
v_lshlrev_b32 v{sq}, 16, v{sq}
v_add_f32 v{sq}, {f2u(1e-5)}, v{sq}
v_cvt_pk_bf16_f32 v{sq}, v{sq}, v{sq}
v_lshlrev_b32 v{sq}, 16, v{sq}
v_sqrt_f32 v{sq}, v{sq}
s_lshl_b32 s{sT0}, s2, 5
s_lshl_b32 s{sT1}, s{sW}, 2
s_add_u32 s{sT0}, s{sT0}, s{sT1}
s_add_u32 s{sT0}, s{sT0}, {STAT_OFF}
v_cvt_pk_bf16_f32 v{sq}, -v{sm}, v{sq}''')
    A(f'''s_mov_b64 exec, 1
buffer_store_dword v{sq}, off, {srd(SRD_AUX)}, s{sT0} sc1
s_mov_b64 exec, -1''')

uid = [0]
def publish_tag():
    uid[0] += 1; n = uid[0]
    A(f'''s_or_b32 s{sT0}, s2, s{sW}
s_cmp_lg_u32 s{sT0}, 0
s_cbranch_scc1 L_notag{n}
s_memrealtime s[{sT4}:{sT5}]
s_waitcnt lgkmcnt(0)
s_or_b32 s{sT4}, s{sT4}, 1
v_mov_b32 v1, 0
v_mov_b32 v2, s{sT4}
s_mov_b64 exec, 1
global_store_dword v1, v2, s[{sDBG}:{sDBG+1}] sc1
s_mov_b64 exec, -1
L_notag{n}:''')

def setup2():
    build_srd(SRD_AUX, sWS, AUX_BYTES)
    build_srd(SRD_OUT, sKA + 14, 2048 * 1024)
    A(f'''s_add_u32 s{SRD_ACT}, s{sWS}, {ACT_OFF}
s_addc_u32 s{SRD_ACT+1}, s{sWS+1}, 0
s_mov_b32 s{SRD_ACT+2}, {ACT_BYTES if OPT['exp'] != 2 else 0}
s_mov_b32 s{SRD_ACT+3}, 0x20000
s_lshr_b32 s{sKQ}, s{sW}, 1
s_lshr_b32 s{sT0}, s{sW}, 2
s_xor_b32 s{sKQ}, s{sKQ}, s{sT0}
s_and_b32 s{sMH}, s{sW}, 1
s_cmp_eq_u32 s{sKQ}, 0
s_cselect_b32 s{SRD_B}, s{sKA+4}, s{sKA+12}
s_cselect_b32 s{SRD_B+1}, s{sKA+5}, s{sKA+13}
s_mov_b32 s{SRD_B+2}, {1376*1024}
s_cmov_b32 s{SRD_B+2}, {512*1024}
s_mov_b32 s{SRD_B+3}, 0x20000
s_mov_b32 s{sIT}, 0
s_mov_b32 s{sRS}, 0
s_cmp_eq_u32 s{sW}, 0
s_cselect_b32 s{sHM}, 0x22, 32
v_lshrrev_b32 v1, 3, v{vL}
v_and_b32 v2, 7, v{vL}
v_bfe_u32 v3, v{vL}, 4, 1
v_lshlrev_b32 v3, 2, v3
v_xor_b32 v2, v2, v3
v_lshlrev_b32 v2, 4, v2
v_lshl_add_u32 v{vBP}, v1, 10, v2''')
    for i in range(1, 4): A(f'v_add_u32 v{vBP+i}, {7168*i}, v{vBP}')
    A(f'''s_sub_u32 s{sT0}, s{sKQ}, 1
s_max_i32 s{sT0}, s{sT0}, 0
s_mul_i32 s{sSOFF}, s{sT0}, {464*1024}
s_lshl_b32 s{sT0}, s{sCB}, 7
s_add_u32 s{sSOFF}, s{sSOFF}, s{sT0}''')

def touches(vm):
    A(f'''s_lshl_b32 s{sT0}, s2, 3
s_add_u32 s{sT0}, s{sT0}, s{sW}
s_sub_u32 s{sT1}, s{sT0}, 1376
s_cmp_ge_u32 s{sT0}, 1376
s_cselect_b32 s{sT0}, s{sT1}, s{sT0}
s_cselect_b32 s{SRD_T}, s{sKA+4}, s{sKA+12}
s_cselect_b32 s{SRD_T+1}, s{sKA+5}, s{sKA+13}
s_mov_b32 s{SRD_T+2}, {1376*1024 if OPT['btouch'] else 0}
s_cmov_b32 s{SRD_T+2}, {512*1024 if OPT['btouch'] else 0}
s_mov_b32 s{SRD_T+3}, 0x20000
s_lshl_b32 s{sT0}, s{sT0}, 10
v_and_b32 v1, 7, v{vL}
v_lshlrev_b32 v1, 7, v1
buffer_load_dword v{vTCH}, v1, {srd(SRD_T)}, s{sT0} offen
v_mov_b32 v1, 0
global_load_dword v{vTG}, v1, s[{sDBG}:{sDBG+1}] sc1''')
    vm.issue('touch'); vm.issue('tag')

def tail_prepare():
    A(f'''s_mul_i32 s{sT0}, s{sMH}, {48*1024}
s_add_u32 s{sP0}, s{sSOFF}, s{sT0}
s_mul_i32 s{sP1}, s{sKQ}, 12288
s_mul_i32 s{sT0}, s{sMH}, 6144
s_add_u32 s{sP1}, s{sP1}, s{sT0}''')
    A(f'''s_and_b32 s{sT0}, s{sR}, 3
s_lshl_b32 s{sT0}, s{sT0}, 1
s_add_u32 s{sT0}, s{sT0}, s{sMH}
s_mul_i32 s{sT0}, s{sT0}, {40*1024}
s_add_u32 s{sL2}, s{sSOFF}, s{sT0}
s_add_u32 s{sL2}, s{sL2}, {192*1024}''')
def tail_setup():
    A(f's_mov_b32 s{sOX}, s{sP0}\ns_mov_b32 s{sD}, s{sP1}')
    if OPT['l2t']: A(f'v_min_u32 v1, 39, v{vL}\nv_lshlrev_b32 v1, 10, v1\nbuffer_load_dword v3, v1, {srd(SRD_B)}, s{sL2} offen')
def tail_dma():
    out = [dma(vBP, SRD_B, sOX, 0, [f's_add_u32 m0, s{sSLOT}, s{sD}'])]
    for i in range(1, 4): out.append(dma(vBP + i, SRD_B, sOX, 1024 * i))
    out.append(dma(vBP, SRD_B, sOX, 0, ['s_add_u32 m0, m0, 4096', f's_add_u32 s{sOX}, s{sOX}, 32768']))
    out.append(dma(vBP + 1, SRD_B, sOX, 1024) + [f's_add_u32 s{sOX}, s{sOX}, {96*1024 - 32768}'])
    return out

def handlers(n):
    A(f'''L_{n}h:
v_readfirstlane_b32 s{sTAG}, v{vTG}
s_mov_b32 s{sT0}, 0
L_tag{n}:
s_cmp_lg_u32 s{sTAG}, 0
s_cbranch_scc1 L_tagok{n}
v_mov_b32 v1, 0
global_load_dword v{vTG}, v1, s[{sDBG}:{sDBG+1}] sc1
s_waitcnt vmcnt(0)
v_readfirstlane_b32 s{sTAG}, v{vTG}
s_add_u32 s{sT0}, s{sT0}, 1
s_cmp_lt_u32 s{sT0}, {SPIN}
s_cbranch_scc1 L_tag{n}
L_tagok{n}:
s_cmp_eq_u32 s{sIT}, 5
s_cbranch_scc1 L_{n}h5
v_mov_b32 v1, s{sTAG}
s_mov_b64 exec, 3
buffer_store_dword v1, v{vFL}, {srd(SRD_AUX)}, 0 offen sc1
s_mov_b64 exec, -1
s_branch L_{n}back
L_{n}h5:
buffer_load_dword v{vTG}, v{vPL}, {srd(SRD_AUX)}, 0 offen sc1
s_branch L_{n}back''')
def hcheck(n): A(f's_bitcmp1_b32 s{sHM}, s{sIT}\ns_cbranch_scc1 L_{n}h\nL_{n}back:')

def check_flag0(n):
    A(f'''s_mov_b32 s{sT0}, 0
L_f0{n}:
v_cmp_ne_u32 vcc, s{sTAG}, v{vTG}
s_cbranch_vccz L_f0ok{n}
buffer_load_dword v{vTG}, v{vPL}, {srd(SRD_AUX)}, 0 offen sc1
s_waitcnt vmcnt(0)
s_add_u32 s{sT0}, s{sT0}, 1
s_cmp_lt_u32 s{sT0}, {SPIN}
s_cbranch_scc1 L_f0{n}
L_f0ok{n}:''')

def split_hilo(r, t, E=None):
    (E or A)(f'''v_cvt_pk_bf16_f32 v{t}, v{r}, v{r}
v_lshlrev_b32 v{t}, 16, v{t}
v_sub_f32 v{t}, v{r}, v{t}
v_cvt_pk_bf16_f32 v{r}, v{r}, v{t}''')

vB = 4
REG_BASE = [SLOT, 2 * SLOT, 0]
REG_T = [(0, 6), (6, 12), (12, 20)]
def baddr_early(dst):
    A(f'''v_lshrrev_b32 v1, 5, v{vL}
v_bfe_u32 v2, v{vL}, 2, 2
v_lshl_add_u32 v1, v1, 2, v2
v_lshlrev_b32 v1, 7, v1
v_bfe_u32 v2, v{vL}, 3, 1
v_lshl_add_u32 v1, v2, 6, v1
v_bfe_u32 v2, v{vL}, 4, 1
v_lshl_add_u32 v1, v2, 5, v1
v_and_b32 v2, 3, v{vL}
v_lshl_add_u32 v{dst}, v2, 3, v1
s_mul_i32 s{sQ3}, s{sKQ}, 12288
s_lshl_b32 s{sT0}, s{sMH}, 10
s_add_u32 s{sQ0}, s{sQ3}, s{sT0}
s_min_u32 s{sT1}, s{sKQ}, 1
s_mul_i32 s{sT1}, s{sT1}, 6144
s_mul_i32 s{sQ1}, s{sKQ}, 10240
s_add_u32 s{sQ1}, s{sQ1}, s{sT1}
s_add_u32 s{sQ2}, s{sQ1}, s{sT0}
s_lshl_b32 s{sT0}, s{sMH}, 13
s_add_u32 s{sSO}, s{sSOFF}, s{sT0}
s_add_u32 s{sSO}, s{sSO}, {NREG*16384}''')
def baddr_first(src):
    A(f'''v_add_u32 v{vB}, s{sQ3}, v{src}
v_add_u32 v{vB+2}, {2*SLOT}, v{vB}
v_xor_b32 v{vB+3}, 64, v{vB+2}
v_add_u32 v11, {16384-2048}, v{vBP}''')
def breg_groups(half):
    out = []
    for st in range(6 * half, 6 * half + 6):
        for ct in range(2):
            base = vB + (2 if half == 0 else 0) + ct
            out.append([f'ds_read_b64_tr_b16 {ar(st*8 + ct*4 + hf*2, 2)}, v{base} offset:{(st % 6)*2048 + hf*1024}' for hf in range(2)])
    return out
def static_groups(r, vm, n):
    out = []
    a, b = REG_T[r]
    for t in range(a, b):
        g = []
        if t == 16: g += [f's_cmp_eq_u32 s{sKQ}, 3', f's_cbranch_scc1 L_sdone{n}']
        if t == 17: g += [f's_cmp_lg_u32 s{sKQ}, 0', f's_cbranch_scc1 L_sdone{n}']
        if t % 2 == 0:
            if t: g.append(f's_add_u32 s{sSO}, s{sSO}, 32768')
            g.append(f's_add_u32 m0, s{sQ0 if r < 2 else sQ2}, {REG_BASE[r] + (t - a)*2048}')
            g += dma(vBP, SRD_B, sSO, 0)
        else:
            g += dma(11, SRD_B, sSO, 2048)
        g.append(lambda: vm.issue('dma'))
        out.append(g)
    if r == 2:
        tail = sum(out[4:], []) + [f'L_sdone{n}:']
        out = out[:4] + [tail]
    return out

A(f'{NAME}_kernel:')
A(f'''s_load_dwordx16 s[{sKA}:{sKA+15}], s[0:1], 0
s_load_dwordx4 s[{sDBG}:{sDBG+3}], s[0:1], 64
s_cmp_ge_u32 s2, 256
s_cbranch_scc1 L_end
s_getpc_b64 s[{sT4}:{sT5}]
v_lshlrev_b32 v1, 6, v0
global_load_dword v{vTCH}, v1, s[{sT4}:{sT5}]
v_lshrrev_b32 v1, 6, v0
v_and_b32 v{vL}, 63, v0
v_readfirstlane_b32 s{sW}, v1
s_and_b32 s{sT0}, s2, 7
s_lshr_b32 s{sT1}, s2, 3
s_lshr_b32 s{sT2}, s{sT0}, 1
s_and_b32 s{sT3}, s{sT0}, 1''')
if OPT['stamps']:
    A(f'{STI} s[{sCLK}:{sCLK+1}]'); nstamp[0] = 1
if OPT['map2'] == 0:
    A(f'''s_lshl_b32 s{sR}, s{sT0}, 2
s_lshr_b32 s{sCB}, s{sT1}, 3
s_add_u32 s{sR}, s{sR}, s{sCB}
s_and_b32 s{sCB}, s{sT1}, 7''')
else:
    A(f'''s_lshl_b32 s{sR}, s{sT2}, 3
s_lshr_b32 s{sCB}, s{sT1}, 2
s_add_u32 s{sR}, s{sR}, s{sCB}
s_and_b32 s{sCB}, s{sT1}, 3
s_lshl_b32 s{sA}, s{sT3}, 2
s_add_u32 s{sCB}, s{sCB}, s{sA}''')
if OPT['exp'] == 3: A(f's_add_u32 s{sCB}, s{sCB}, 1\ns_and_b32 s{sCB}, s{sCB}, 7')
A(f'''s_mov_b32 s{sONES}, 0x3f803f80
v_lshrrev_b32 v30, 3, v{vL}
v_and_b32 v31, 7, v{vL}
v_lshrrev_b32 v32, 4, v{vL}
v_lshlrev_b32 v{vL16}, 4, v{vL}
v_xor_b32 v1, v31, v32
v_lshlrev_b32 v1, 4, v1
v_lshl_add_u32 v{vDMA}, v30, 11, v1
s_mov_b32 s{sSLOT}, 0
s_cmp_ge_u32 s{sT1}, 20
s_cbranch_scc1 L_attn''')

A(f'''s_mul_i32 s{sA}, s{sT1}, 52
s_lshr_b32 s{sA}, s{sA}, 8
s_mul_i32 s{sB}, s{sA}, 5
s_sub_u32 s{sB}, s{sT1}, s{sB}
s_mul_i32 s{sT3}, s{sT3}, 5
s_add_u32 s{sB}, s{sB}, s{sT3}
s_lshl_b32 s{sT2}, s{sT2}, 2
s_add_u32 s{sA}, s{sA}, s{sT2}
v_xor_b32 v{vDMA+1}, 64, v{vDMA}
v_add_u32 v{vDMA+1}, {16384-1024}, v{vDMA+1}
s_lshr_b32 s{sT0}, s{sW}, 2
s_and_b32 s{sT1}, s{sW}, 1
s_add_u32 s{sT2}, s{sT0}, 4
s_mul_i32 s{sT2}, s{sT2}, s{sT1}
s_lshl_b32 s{sT3}, s{sT0}, 3
s_add_u32 s{sT2}, s{sT2}, s{sT3}
s_lshl_b32 s{sT3}, s{sT2}, 6
v_add_u32 v1, s{sT3}, v{vL}
s_movk_i32 s{sT4}, 3641
s_movk_i32 s{sT5}, 2464''')
for i in range(5):
    A(f'''v_mul_u32_u24 v2, s{sT4}, v1
v_lshrrev_b32 v2, 16, v2
v_mul_u32_u24 v2, s{sT5}, v2
v_lshl_add_u32 v{vDMA+2+i}, v1, 4, v2''')
    if i % 4: A(f'v_subrev_u32 v{vDMA+2+i}, {(i % 4)*1024}, v{vDMA+2+i}')
    if i < 4: A('v_add_u32 v1, 64, v1')
A(f'''s_bfe_u32 s{sT3}, s{sW}, 0x10001
s_mul_i32 s{sD+1}, s{sT3}, {UPOFF}
s_lshl_b32 s{sT2}, s{sT2}, 10
s_add_u32 s{sD+1}, s{sD+1}, s{sT2}
s_add_u32 s{sD+1}, s{sD+1}, 16384
s_lshl_b32 s{sD}, s{sW}, 11
s_mul_i32 s{sST}, s{sB}, 9
s_sub_u32 s{sT2}, s{sB}, 6
s_max_i32 s{sT2}, s{sT2}, 0
s_sub_u32 s{sST}, s{sST}, s{sT2}
s_lshl_b32 s{sBW}, s{sST}, 5
s_lshl_b32 s{sBX}, s{sA}, 7
s_lshl_b32 s{sT2}, s{sT0}, 6
s_add_u32 s{sBX}, s{sBX}, s{sT2}
s_add_u32 s{sBX}, s{sBX}, s{sT3}
s_lshl_b32 s{sT2}, s{sT1}, 5
s_add_u32 s{sBX}, s{sBX}, s{sT2}
s_lshl_b32 s{sBX}, s{sBX}, 10
s_mov_b32 s{sMW}, {64*2752}
s_lshr_b32 s{sKS}, s{sA}, 1
s_cmp_lt_u32 s{sB}, 6
s_cselect_b32 s{sN0}, 5, 4''')
lines(SOFF)
A(f'''s_cmp_eq_u32 s{sT3}, 1
s_waitcnt lgkmcnt(0)
s_cselect_b32 s{SRD_W}, s{sKA+10}, s{sKA+8}
s_cselect_b32 s{SRD_W+1}, s{sKA+11}, s{sKA+9}
s_mov_b32 s{SRD_W+2}, {512*2752}
s_mov_b32 s{SRD_W+3}, 0x20000''')
if OPT['stamps']: A(f's_mov_b32 s{sSTAMP}, s{sCLK}')
build_srd(SRD_XR, sKA, 2048 * 1024)
stat_load()
build_srd(SRD_X, sKA, 2048 * 1024)
FX = [dma(vDMA, SRD_X, sOX, 0, [f's_add_u32 m0, s{sSLOT}, s{sD}']), dma(vDMA + 1, SRD_X, sOX, 1024)]
FW = [dma(vDMA + 2, SRD_W, sOW, 0, [f's_add_u32 m0, s{sSLOT}, s{sD+1}'])] + [dma(vDMA + 2 + i, SRD_W, sOW, 1024 * i) for i in range(1, 4)]
FW5 = dma(vDMA + 6, SRD_W, sOW, 0, ['s_add_u32 m0, m0, 4096'])
def fw5_guarded(tag):
    uid[0] += 1
    A(f's_cmp_lt_u32 s{sW}, 4\ns_cbranch_scc1 L_no5{uid[0]}'); lines(FW5); A(f'L_no5{uid[0]}:')
stamp(1)
vm = Q(63); vm.issue('code'); vm.issue('sr')
for g in FW: lines(g); vm.issue('w0')
fw5_guarded('w0')
for g in FX: lines(g); vm.issue('x0')
publish_tag()
stamp(1)
lines(ADV); lines(SOFF)
setup2()
A('v_mov_b32 v56, 0\nv_mov_b32 v57, 0\nv_mov_b32 v58, 0\nv_mov_b32 v59, 0')
for T in range(5): A(mf32(vr(vACC + 16*T, 16), 'v[56:59]', 'v[56:59]', '0'))
A(f'''v_and_b32 v1, 31, v{vL}
s_and_b32 s{sT0}, s{sW}, 3
s_lshl_b32 s{sT0}, s{sT0}, 5
v_add_u32 v1, s{sT0}, v1
v_bfe_u32 v2, v1, 1, 3
v_lshrrev_b32 v3, 5, v{vL}
v_xor_b32 v2, v2, v3
v_lshlrev_b32 v2, 4, v2
v_lshl_add_u32 v{vRX}, v1, 7, v2
v_xor_b32 v{vRX+1}, 32, v{vRX}
v_xor_b32 v{vRX+2}, 64, v{vRX}
v_xor_b32 v{vRX+3}, 96, v{vRX}
v_bfe_u32 v1, v{vL}, 2, 2
v_and_b32 v2, 3, v{vL}
v_lshlrev_b32 v2, 3, v2
s_movk_i32 s{sT0}, 288
v_mad_u32_u24 v35, v1, s{sT0}, v2
v_mul_u32_u24 v2, 2304, v3
v_bfe_u32 v1, v{vL}, 4, 1
v_mul_u32_u24 v{vRW}, {UPOFF}, v1
v_add3_u32 v{vRW}, v{vRW}, v2, v35
s_lshr_b32 s{sT0}, s{sW}, 2
s_mul_i32 s{sT0}, s{sT0}, s{sN0}
s_lshl_b32 s{sT0}, s{sT0}, 5
s_add_u32 s{sT0}, s{sT0}, 16384
v_add_u32 v{vRW}, s{sT0}, v{vRW}
s_and_b32 s{sT0}, s{sW}, 1
s_mul_i32 s{sT0}, s{sT0}, {UPOFF}
s_add_u32 s{sT0}, s{sT0}, 16384
v_add_u32 v35, s{sT0}, v35
v_mul_u32_u24 v34, 1152, v32
v_add_u32 v34, v34, v35
v_mul_u32_u24 v33, 1152, v3
v_lshl_add_u32 v33, v1, 7, v33
s_lshr_b32 s{sT1}, s{sW}, 1
s_lshl_b32 s{sT2}, s{sT1}, 5
v_add3_u32 v33, v33, v35, s{sT2}''')
A(f'''s_lshl_b32 s{sT0}, s2, 2
s_add_u32 s{sT0}, s{sT0}, {FLAG_S}
s_lshl_b32 s{sT3}, s{sB}, 5
s_add_u32 s{sT3}, s{sT3}, {FLAG_C}
s_lshl_b32 s{sT2}, s{sA}, 1
s_add_u32 s{sT4}, s{sT2}, s{sT3}
s_bitcmp0_b32 s{sA}, 0
s_cselect_b32 s{sT4}, s{sT4}, s{sT0}
v_mov_b32 v{vFL}, s{sT4}
v_writelane_b32 v{vFL}, s{sT0}, 0
s_lshl_b32 s{sT0}, s{sA}, 6
s_add_u32 s{sT0}, s{sT0}, {FLAG_S}
v_and_b32 v2, 15, v{vL}
v_lshl_add_u32 v3, v2, 2, s{sT0}
v_lshl_add_u32 v31, v31, 2, s{sT3}
v_cmp_gt_u32 vcc, 32, v{vL}
v_cndmask_b32 v{vPL}, v31, v3, vcc
s_mul_i32 s{sT0}, s{sB}, 9216
s_add_u32 s{sT0}, s{sT0}, s{sT2}
s_and_b32 s{sT3}, s{sW}, 1
s_lshl_b32 s{sT3}, s{sT3}, 9
s_add_u32 s{sT0}, s{sT0}, s{sT3}
s_add_u32 s{sT0}, s{sT0}, {CS_OFF}
v_lshl_add_u32 v2, v2, 5, s{sT0}
s_lshl_b32 s{sT3}, s{sT1}, 10
v_lshlrev_b32 v35, 12, v1
v_add3_u32 v35, v35, v2, s{sT3}
v_mov_b32 v3, {OOB}
v_cndmask_b32 v35, v3, v35, vcc
v_add_u32 v32, 8192, v2
s_cmp_eq_u32 s{sT1}, 0
s_cselect_b32 s{sT3}, 16, 0
v_cmp_gt_u32 vcc, s{sT3}, v{vL}
v_cndmask_b32 v32, v3, v32, vcc''')
A(f'''v_and_b32 v1, 31, v{vL}
s_lshl_b32 s{sT0}, s{sA}, 7
s_bfe_u32 s{sT1}, s{sW}, 0x10001
s_lshl_b32 s{sT1}, s{sT1}, 6
s_add_u32 s{sT0}, s{sT0}, s{sT1}
s_add_u32 s{sT0}, s{sT0}, s{sMH}
s_lshl_b32 s{sT0}, s{sT0}, 2
s_add_u32 s{sT0}, s{sT0}, {STAT_OFF}
v_lshl_add_u32 v20, v1, 3, s{sT0}
v_lshlrev_b32 v1, 5, v1
v_lshrrev_b32 v2, 5, v{vL}
v_lshl_add_u32 v21, v2, 4, v1
s_mul_i32 s{sT0}, s{sB}, 9216
s_add_u32 s{sT0}, s{sT0}, {CS_OFF}
s_lshr_b32 s{sT4}, s{sW}, 2
s_mul_i32 s{sT2}, s{sT4}, s{sN0}
s_sub_u32 s{sT1}, s{sN0}, 1
s_cmp_eq_u32 s{sT4}, 1
s_cselect_b32 s{sT1}, 3, s{sT1}
s_add_u32 s{sT1}, s{sT1}, s{sT2}
s_lshl_b32 s{sT1}, s{sT1}, 10
s_add_u32 s{sP2}, s{sT1}, s{sT0}
s_min_u32 s{sT1}, s{sW}, 6
s_lshl_b32 s{sT3}, s{sT1}, 10
s_add_u32 s{sP3}, s{sT3}, {SCR}
s_add_u32 s{sT1}, s{sT1}, 2
s_cmp_gt_u32 s{sT1}, s{sN0}
s_cselect_b32 s{sT1}, 1024, 0
s_add_u32 s{sT0}, s{sT0}, s{sT1}
s_add_u32 s{sP4}, s{sT0}, s{sT3}
s_sub_u32 s{sT1}, s{sT2}, 1
s_max_i32 s{sT1}, s{sT1}, 0
s_lshl_b32 s{sT1}, s{sT1}, 10
s_add_u32 s{sT1}, s{sT1}, {SCR}
v_add_u32 v{vAD}, s{sT1}, v21
s_lshl_b32 s{sT0}, s{sA}, 2
s_and_b32 s{sT1}, s{sW}, 3
s_add_u32 s{sT0}, s{sT0}, s{sT1}
s_mul_i32 s{sP5}, s{sT0}, {TG_STRIDE}
s_lshl_b32 s{sFLAG}, s{sA}, 7
s_add_u32 s{sT0}, s{sST}, s{sT2}
s_lshl_b32 s{sT0}, s{sT0}, 10
s_add_u32 s{sP5}, s{sP5}, s{sT0}
s_lshl_b32 s{sT0}, s{sB}, 2
s_add_u32 s{sFLAG}, s{sFLAG}, s{sT0}''')
tail_prepare(); baddr_early(31)
stamp(1)
A(f's_waitcnt vmcnt({vm.need({"sr"})})')
stamp(1)
E = Inter()
E.push([g + [lambda: vm.issue('s1')] for g in FW], 10)
stat_compute(E); vm.issue('st')
E.flush()
fw5_guarded('s1')
for g in FX: lines(g); vm.issue('s1')
lines(ADV); lines(SOFF)
touches(vm)
A('v_mov_b32 v52, 0\nv_mov_b32 v53, 0\nv_mov_b32 v54, 0\nv_mov_b32 v55, 0')
A(f's_waitcnt vmcnt({vm.need({"w0"})})\ns_barrier')
stamp(1)
A(f's_bitcmp1_b32 s{sA}, 0\ns_cbranch_scc1 L_nocs')
for n in range(8): A(f'ds_read_b64_tr_b16 {vr(56+2*n, 2)}, v33 offset:{n*2304}')
for n in range(4): A(f'ds_read_b64_tr_b16 {vr(72+2*n, 2)}, v34 offset:{n*4608 + 256}')
for n in range(8):
    if n % 2 == 0: A(f's_waitcnt lgkmcnt({10 - n})')
    A(f'v_dot2c_f32_bf16 v52, s{sONES}, v{56+2*n}\nv_dot2c_f32_bf16 v54, s{sONES}, v{57+2*n}')
A('s_waitcnt lgkmcnt(0)')
for n in range(8): A(f'v_dot2c_f32_bf16 v{53 + 2*(n & 1)}, s{sONES}, v{72+n}')
A('''v_add_f32 v52, v52, v54
v_add_f32 v53, v53, v55
v_mov_b32 v54, v52
v_mov_b32 v55, v53
v_permlane32_swap_b32 v52, v54
v_permlane32_swap_b32 v53, v55
v_add_f32 v52, v52, v54
v_add_f32 v53, v53, v55
v_mov_b32 v55, v53
v_permlane16_swap_b32 v53, v55
v_add_f32 v53, v53, v55''')
split_hilo(52, 54); split_hilo(53, 55)
A(f'''buffer_store_dword v52, v35, {srd(SRD_AUX)}, 0 offen sc1
buffer_store_dword v53, v32, {srd(SRD_AUX)}, 0 offen sc1
L_nocs:''')
stamp(1)
A(f's_waitcnt vmcnt({vm.need({"x0"})})\ns_barrier')
stamp(); stamp(1)
A(f'''s_lshr_b32 s{sT0}, s{sW}, 2
s_add_u32 s{sT0}, s{sT0}, 4
s_cmp_lt_u32 s{sT0}, s{sN0}
s_cbranch_scc0 L_f4''')

lg = Q(15)
vC1, vIR = 18, 20
vBM = 36
vCL = 40
def ffn_role(nt, n):
    NM = 4 * nt
    NHD = nt - 2
    def rw(m):
        p, T = divmod(m, nt); s = vFR + 8 + (m % nt) * 4
        A(f'ds_read_b64_tr_b16 {vr(s, 2)}, v{vRW} offset:{p*4608 + T*32}'); lg.issue(('w', m))
        A(f'ds_read_b64_tr_b16 {vr(s+2, 2)}, v{vRW} offset:{p*4608 + T*32 + 1152}'); lg.issue(('w', m))
    def rx(p):
        A(f'ds_read_b128 {vr(vFR + (p & 1)*4, 4)}, v{vRX+p}'); lg.issue(('x', p))
    def mm(m):
        p, T = divmod(m, nt); s = vFR + 8 + (m % nt) * 4
        A(mf32(vr(vACC + 16*T, 16), vr(s, 4), vr(vFR + (p & 1)*4, 4), vr(vACC + 16*T, 16)))
    D = nt - 1
    def five():
        uid[0] += 1
        return [f's_cmp_lt_u32 s{sW}, 4', f's_cbranch_scc1 L_no5{uid[0]}'] + FW5 + [f'L_no5{uid[0]}:']
    def fill_for(main):
        fill = {}
        dl = (FX + FW + ([five()] if nt == 4 else [])) if main else tail_dma()
        last = NM - 3
        if not OPT['nodma']: spread(dl, list(range(0, last + 1)), fill)
        spread([RDELTA[:2], RDELTA[2:]], [2, 3], fill)
        if main: spread([SOFFX, SOFFWN, KSINC, [f's_mov_b32 s{sOW}, s{sNW}']], [7, 8, 9, last], fill)
        spread([ADV], [last], fill)
        spread([[f'v_add_u32 v{vRX+i}, s{sDELTA}, v{vRX+i}'] for i in range(4)], [4, 6, nt + 1 + NHD, 2*nt + 1 + NHD], fill)
        spread([[f'v_add_u32 v{vRW}, s{sDELTA}, v{vRW}']], [NM - nt + NHD], fill)
        return fill
    def head(fill, with_mfma, extra=None):
        itstamp()
        lg.drain()
        nxt = 0
        for m in range(NHD):
            if with_mfma: mm(NM - NHD + m)
            while nxt <= nt - NHD + m and nxt < D:
                rw(nxt)
                if nxt == 0: rx(0)
                nxt += 1
            if extra and extra[m]: extra[m]()
            lines(fill.get(m, []))
    def rest(fill, last_it, label):
        for m in range(NM - NHD):
            p, T = divmod(m, nt)
            if m == NM - NHD - 1:
                A('s_waitcnt vmcnt(6) lgkmcnt(0)'); lg.drain()
            c = lg.need({('w', m), ('x', p)})
            if c is not None: A(f's_waitcnt lgkmcnt({c})')
            mm(m)
            if m + D < NM: rw(m + D)
            if T == 1 and p < 3: rx(p + 1)
            lines(fill.get(m + NHD, []))
            if m == NM - NHD - 2: A(f's_add_u32 s{sIT}, s{sIT}, 1\ns_cmp_lt_u32 s{sIT}, {last_it}')
        A(f's_cbranch_scc1 {label}\ns_barrier')
    fm = fill_for(True)
    head(fm, False)
    A(f's_branch L_{n}ent\nL_{n}loop:\ns_barrier')
    fm = fill_for(True)
    head(fm, True, [lambda: hcheck(n), None, None])
    A(f'L_{n}ent:')
    rest(fm, 6, f'L_{n}loop')
    def inter():
        check_flag0(n)
        tail_setup()
        A(f'''buffer_load_dword v{vST}, v20, {srd(SRD_AUX)}, 0 offen sc1
s_mov_b32 m0, s{sP3}
buffer_load_dwordx4 {vr(vCL, 4)}, v21, {srd(SRD_AUX)}, s{sP2} offen sc1
buffer_load_dwordx4 v{vL16}, {srd(SRD_AUX)}, s{sP4} offen sc1 lds''')
    ft = fill_for(False)
    head(ft, True, [inter, None, None])
    A(f's_branch L_{n}tent\nL_{n}tail:\ns_barrier')
    head(ft, True)
    A(f'L_{n}tent:')
    rest(ft, 8, f'L_{n}tail')
    stamp(); itdump()
    vCF = 20
    CF = [44, vFR, 32, 12]
    for t in range(nt - 1): A(f'ds_read_b128 {vr(CF[t], 4)}, v{vAD} offset:{t*1024}')
    if NHD == 3: mm(NM - 3)
    A(f'''v_and_b32 v1, 0xffff, v{vST}
v_and_b32 v{vST}, 0xffff0000, v{vST}
v_lshl_or_b32 v{vBM}, v1, 16, v1
v_rcp_f32 v{vC1}, v{vST}''')
    mm(NM - 2)
    A(f'''v_mov_b32 v{vBM+1}, v{vBM}
v_mov_b32 v{vBM+2}, v{vBM}
v_mov_b32 v{vBM+3}, v{vBM}''')
    mm(NM - 1)
    A(f'''v_mul_f32 v{vIR}, v{vST}, v{vST}
v_mul_f32 v{vIR+2}, v{vST}, v{vST}
v_mul_f32 v{vC1}, {f2u(-LOG2E)}, v{vC1}
s_waitcnt lgkmcnt(0)''')
    for t in range(nt):
        A(mf32(vr(vACC + 16*t, 16), vr(CF[t] if t < nt - 1 else vCL, 4), vr(vBM, 4), vr(vACC + 16*t, 16)))
        if t == 0: A('v_mov_b32 v10, v31'); baddr_first(31)
    vm = Q(63)
    for i in range(6): vm.issue('v9')
    E = Inter()
    def tile(T):
        a = vACC + 16*T
        t = 52 if T & 1 else 32
        t = 52
        o = 68 + 4 * (T & 1)
        for k in range(4):
            E(f'v_pk_mul_f32 {vr(t+2*k, 2)}, {vr(a+2*k, 2)}, {vr(vC1, 2)} op_sel_hi:[1,0]')
        for k in range(8): E(f'v_exp_f32 v{t+k}, v{t+k}')
        for k in range(4):
            E(f'v_pk_mul_f32 {vr(t+8+2*k, 2)}, {vr(a+2*k, 2)}, {vr(a+8+2*k, 2)}')
        for k in range(4):
            E(f'v_pk_fma_f32 {vr(t+2*k, 2)}, {vr(t+2*k, 2)}, {vr(vIR, 2)}, {vr(vIR+2, 2)} op_sel_hi:[1,0,0]')
        for k in range(8): E(f'v_rcp_f32 v{t+k}, v{t+k}')
        for k in range(4):
            E(f'v_pk_mul_f32 {vr(t+2*k, 2)}, {vr(t+2*k, 2)}, {vr(t+8+2*k, 2)}')
        for k in range(4):
            E(f'v_cvt_pk_bf16_f32 v{o+k}, v{t+2*k}, v{t+2*k+1}')
        if T == 4: A(f's_add_u32 s{sP5}, s{sP5}, 4096')
        off = f' offset:{(T % 4)*1024}' if T % 4 else ''
        A(f'buffer_store_dwordx4 {vr(o, 4)}, v{vL16}, {srd(SRD_ACT)}, s{sP5} offen{off} sc1'); vm.issue('st')
    E.push(breg_groups(0), 2)
    tile(0); E.flush()
    A(f's_waitcnt vmcnt({vm.need({"v9"})}) lgkmcnt(0)\ns_barrier')
    E.push(static_groups(0, vm, n) + static_groups(1, vm, n), 7)
    for T in range(1, nt): tile(T)
    E.flush()
    A('s_branch L_phase2')
    handlers(n)
ns0 = nstamp[0]
ffn_role(5, 'f5')
nst_save = nstamp[0]; nstamp[0] = ns0
A('L_f4:')
ffn_role(4, 'f4')

nstamp[0] = 1 if OPT['stamps'] else 0
A.label('L_attn')
A(f'''s_sub_u32 s{sT1}, s{sT1}, 20
s_lshr_b32 s{sA}, s{sT1}, 2
s_lshr_b32 s{sKS}, s{sA}, 1
s_lshl_b32 s{sT4}, s{sT2}, 1
s_add_u32 s{sKS}, s{sKS}, s{sT4}
s_mul_i32 s{sT2}, s{sT2}, 3
s_add_u32 s{sA}, s{sA}, s{sT2}
s_and_b32 s{sB}, s{sT1}, 3
s_lshl_b32 s{sT3}, s{sT3}, 2
s_add_u32 s{sB}, s{sB}, s{sT3}
s_and_b32 s{sT0}, s{sW}, 1
s_lshl_b32 s{sT1}, s{sT0}, 6
v_xor_b32 v{vDMA}, s{sT1}, v{vDMA}
v_xor_b32 v{vDMA+1}, 64, v{vDMA}
v_add_u32 v{vDMA+1}, {16384-1024}, v{vDMA+1}
v_add_u32 v{vDMA+2}, {2*(16384-1024)}, v{vDMA}
v_and_b32 v1, 1, v32
s_lshl_b32 s{sT1}, s{sT0}, 1
v_add_u32 v1, s{sT1}, v1
v_lshlrev_b32 v1, 1, v1
v_xor_b32 v1, v31, v1
v_lshlrev_b32 v1, 4, v1
v_mul_u32_u24 v2, 3072, v30
s_mul_i32 s{sT1}, s{sW}, 24576
v_add3_u32 v{vDMA+3}, v1, v2, s{sT1}
s_mul_i32 s{sST}, s{sA}, 176
s_and_b32 s{sT1}, s{sW}, 3
s_mul_i32 s{sT2}, s{sT1}, 48
s_lshr_b32 s{sT3}, s{sW}, 2
s_add_u32 s{sBX}, s{sST}, s{sT2}
s_add_u32 s{sBX}, s{sBX}, s{sT3}
s_lshl_b32 s{sBX}, s{sBX}, 10
s_lshl_b32 s{sBW}, s{sB}, 7
s_mov_b32 s{sMW}, {64*3072}
s_mul_i32 s{sD}, s{sW}, 3072
s_add_u32 s{sD+1}, s{sD}, 24576
s_mov_b64 s[{sEX}:{sEX+1}], -1
s_cmp_eq_u32 s{sT1}, 0
s_cmov_b32 s{sEX}, 0xffffff00
s_or_b32 s{sT1}, s{sT1}, s{sA}
s_cmp_eq_u32 s{sT1}, 0
s_cselect_b32 s{sT1}, {OOB}, 0
v_add_u32 v{vDMA}, s{sT1}, v{vDMA}''')
lines(SOFF)
A('s_waitcnt lgkmcnt(0)')
if OPT['stamps']: A(f's_mov_b32 s{sSTAMP}, s{sCLK}')
build_srd(SRD_XR, sKA, 2048 * 1024)
stat_load()
build_srd(SRD_W, sKA + 2, 512 * 3072)
A(f'''s_sub_u32 s{SRD_X}, s{sKA}, 16384
s_subb_u32 s{SRD_X+1}, s{sKA+1}, 0
s_mov_b32 s{SRD_X+2}, {2048*1024 + 16384}
s_mov_b32 s{SRD_X+3}, 0x20000''')
AX = [[f's_add_u32 m0, s{sSLOT}, s{sD}', f's_mov_b64 exec, s[{sEX}:{sEX+1}]'] + dma(vDMA, SRD_X, sOX, 0) + ['s_mov_b64 exec, -1'],
      dma(vDMA + 1, SRD_X, sOX, 1024), dma(vDMA + 2, SRD_X, sOX, 2048)]
AW = [dma(vDMA + 3, SRD_W, sOW, 0, [f's_add_u32 m0, s{sSLOT}, s{sD+1}']), dma(vDMA + 3, SRD_W, sOW, 1024), dma(vDMA + 3, SRD_W, sOW, 2048)]
stamp(1)
vm = Q(63); vm.issue('code'); vm.issue('sr')
for g in AX + AW: lines(g); vm.issue('s0')
publish_tag()
stamp(1)
lines(ADV); lines(SOFF)
setup2()
A('v_mov_b32 v56, 0\nv_mov_b32 v57, 0\nv_mov_b32 v58, 0\nv_mov_b32 v59, 0')
for T in range(5): A(mf32(vr(vACC + 16*T, 16), 'v[56:59]', 'v[56:59]', '0'))
A(f'''v_min_u32 v1, 5, v30
v_lshrrev_b32 v2, 1, v1
v_mul_u32_u24 v2, {SLOT}, v2
v_and_b32 v1, 1, v1
v_mul_u32_u24 v1, 12288, v1
v_add_u32 v1, v1, v2
v_lshl_add_u32 v1, v31, 4, v1
v_mov_b32 v60, s{sONES}
v_mov_b32 v61, s{sONES}
v_mov_b32 v62, s{sONES}
v_mov_b32 v63, s{sONES}
ds_write_b128 v1, v[60:63]
v_and_b32 v33, 15, v{vL}
s_mul_i32 s{sT0}, s{sMH}, 96
v_add_u32 v1, s{sT0}, v33
v_bfe_u32 v2, v1, 1, 3
v_xor_b32 v2, v2, v32
v_lshlrev_b32 v2, 4, v2
v_lshl_add_u32 v{vRX}, v1, 7, v2
v_xor_b32 v{vRX+1}, 64, v{vRX}
v_mul_u32_u24 v1, 3072, v32
v_bfe_u32 v2, v{vL}, 2, 2
v_lshl_add_u32 v1, v2, 7, v1
v_bfe_u32 v2, v{vL}, 3, 2
s_lshr_b32 s{sT0}, s{sW}, 1
v_xor_b32 v2, s{sT0}, v2
v_lshl_add_u32 v1, v2, 5, v1
v_and_b32 v2, 3, v{vL}
v_lshl_add_u32 v1, v2, 3, v1
v_add_u32 v{vRW}, 24576, v1
s_lshl_b32 s{sT0}, s2, 2
s_add_u32 s{sT0}, s{sT0}, {FLAG_S}
v_mov_b32 v{vFL}, s{sT0}
s_lshr_b32 s{sT0}, s{sST}, 3
s_sub_u32 s{sT0}, s{sT0}, 2
v_min_u32 v1, 23, v{vL}
v_add_u32 v1, s{sT0}, v1
v_max_i32 v1, 0, v1
v_min_u32 v1, 255, v1
v_lshlrev_b32 v1, 2, v1
v_add_u32 v{vPL}, {FLAG_S}, v1
v_lshlrev_b32 v2, 2, v32
v_sub_u32 v2, v33, v2
v_mov_b32 v3, 0xff800000''')
for j in range(4):
    A(f'''v_add_u32 v{vMSK+j}, {16-j}, v2
v_subrev_u32 v{vMSK+4+j}, {j}, v2
v_cmp_gt_u32 vcc, 8, v{vMSK+j}
v_cmp_gt_u32 s[{sT4}:{sT5}], 8, v{vMSK+4+j}
v_cndmask_b32 v{vMSK+j}, v3, 0, vcc
v_cndmask_b32 v{vMSK+4+j}, v3, 0, s[{sT4}:{sT5}]''')
A(f'''s_cmp_eq_u32 s{sA}, 0
s_cselect_b32 s{sT0}, 32, 0
v_cmp_gt_u32 vcc, s{sT0}, v{vL}''')
for j in range(4): A(f'v_cndmask_b32 v{vMSK+8+j}, v{vMSK+4+j}, v3, vcc')
A(f'''v_lshlrev_b32 v1, 1, v33
s_add_u32 s{sT0}, s{sMH}, s{sST}
s_sub_u32 s{sT0}, s{sT0}, 16
v_add_u32 v1, s{sT0}, v1
v_mov_b32 v3, {OOB}''')
for t in range(6):
    A(f'''v_cmp_gt_u32 vcc, 2048, v1
v_lshlrev_b32 v2, 2, v1
v_add_u32 v2, {STAT_OFF}, v2
v_cndmask_b32 v{vAD+t}, v3, v2, vcc''')
    if t < 5: A('v_add_u32 v1, 32, v1')
tail_prepare(); baddr_early(10)
OO = [8, 9, 13]
A(f'''v_and_b32 v1, 15, v{vL}
s_mul_i32 s{sP2}, s{sW}, 768
s_add_u32 s{sP2}, s{sP2}, {SCR}
v_lshl_add_u32 v14, v1, 2, s{sP2}
v_lshrrev_b32 v2, 5, v{vL}
v_lshl_add_u32 v1, v2, 4, v1
s_lshr_b32 s{sT0}, s{sST}, 1
s_sub_u32 s{sT0}, s{sT0}, 8
v_add_u32 v2, s{sT0}, v1
s_mov_b32 s{sT2}, {2*TG_STRIDE}
v_bfe_u32 v3, v{vL}, 4, 1
v_lshlrev_b32 v3, 9, v3
v_cmp_le_u32 vcc, 8, v1''')
for i in range(3):
    A(f'''v_lshrrev_b32 v{OO[i]}, 5, v2
v_mul_lo_u32 v{OO[i]}, v{OO[i]}, s{sT2}
v_and_b32 v1, 31, v2
v_lshl_add_u32 v1, v1, 4, v3
v_add_u32 v{OO[i]}, v{OO[i]}, v1''')
    if i < 2: A('v_add_u32 v2, 32, v2')
A(f'v_mov_b32 v1, {OOB}\nv_cndmask_b32 v{OO[0]}, v1, v{OO[0]}, vcc')
A(f'''s_lshl_b32 s{sFLAG}, s{sA}, 7
s_lshl_b32 s{sT3}, s{sB}, 2
s_add_u32 s{sFLAG}, s{sFLAG}, s{sT3}
s_lshr_b32 s{sT4}, s{sW}, 1
s_add_u32 s{sT3}, s{sT3}, s{sT4}
s_add_u32 s{sFLAG}, s{sFLAG}, {FLAG_A}
s_mul_i32 s{sT2}, s{sMH}, {TG_STRIDE}
s_add_u32 s{sT3}, s{sT3}, 86
s_lshl_b32 s{sT3}, s{sT3}, 10
s_add_u32 s{sP5}, s{sT2}, s{sT3}''')
stamp(1)
A(f's_waitcnt vmcnt({vm.need({"sr"})})')
stamp(1)
E = Inter()
E.push([g + [lambda: vm.issue('s1')] for g in AX + AW], 8)
stat_compute(E); vm.issue('st')
E.flush()
stamp(1)
lines(ADV); lines(SOFF)
touches(vm)
stamp(1)
A(f's_waitcnt vmcnt({vm.need({"s0"})}) lgkmcnt(0)\ns_barrier')
stamp(); stamp(1)
def xf(j, t): return 36 * j + 4 * t
def wf(j, m): return 36 * j + 24 + 4 * m
RORD = [('w', 0), ('x', 0), ('w', 1), ('w', 2), ('x', 1), ('x', 2), ('x', 3), ('x', 4), ('x', 5)]
def a_rd(j, k):
    kind, i = RORD[k]
    if kind == 'x':
        A(f'ds_read_b128 {ar(xf(j, i), 4)}, v{vRX+j} offset:{i*2048}'); lg.issue(('x', j, i))
    else:
        A(f'ds_read_b64_tr_b16 {ar(wf(j, i), 2)}, v{vRW} offset:{j*12288 + i*1024}'); lg.issue(('w', j, i))
        A(f'ds_read_b64_tr_b16 {ar(wf(j, i)+2, 2)}, v{vRW} offset:{j*12288 + i*1024 + 512}'); lg.issue(('w', j, i))
QD, KD, VD = vACC, vACC + 24, vACC + 48
def a_mm(n):
    j, r = divmod(n, 18); t, m = divmod(r, 3)
    acc = vr(vACC + 24*m + 4*t, 4)
    if m < 2: A(mf16(acc, ar(wf(j, m), 4), ar(xf(j, t), 4), acc))
    else: A(mf16(acc, ar(xf(j, t), 4), ar(wf(j, m), 4), acc))
NH = 12
def a_fill(main):
    fill = {}
    if not OPT['nodma']: spread((AX + AW) if main else tail_dma(), [2, 7, 13, 19, 24, 30], fill)
    spread([RDELTA[:2], RDELTA[2:]], [9, 10], fill)
    if main: spread([SOFFX, SOFFWN, KSINC, [f's_mov_b32 s{sOW}, s{sNW}']], [14, 15, 16, 31], fill)
    spread([ADV], [31], fill)
    spread([[f'v_add_u32 v{vRX}, s{sDELTA}, v{vRX}'], [f'v_add_u32 v{vRX+1}, s{sDELTA}, v{vRX+1}'], [f'v_add_u32 v{vRW}, s{sDELTA}, v{vRW}']], [11, 27, 28], fill)
    return fill
def a_head(fill, with_mfma, extra=None):
    itstamp()
    lg.drain()
    for m in range(NH):
        if with_mfma: a_mm(36 - NH + m)
        if m < 9: a_rd(0, m)
        if m == 1 and extra: extra()
        lines(fill.get(m, []))
def a_rest(fill, last_it, label):
    for n in range(36 - NH):
        j, r = divmod(n, 18); t, m = divmod(r, 3)
        if n == 35 - NH:
            A('s_waitcnt vmcnt(6) lgkmcnt(0)'); lg.drain()
        c = lg.need({('w', j, m), ('x', j, t)})
        if c is not None: A(f's_waitcnt lgkmcnt({c})')
        a_mm(n)
        if 1 <= n <= 9: a_rd(1, n - 1)
        lines(fill.get(n + NH, []))
        if n == 34 - NH: A(f's_add_u32 s{sIT}, s{sIT}, 1\ns_cmp_lt_u32 s{sIT}, {last_it}')
    A(f's_cbranch_scc1 {label}\ns_barrier')
am, at = a_fill(True), a_fill(False)
a_head(am, False)
A('s_branch L_aent\nL_aloop:\ns_barrier')
a_head(am, True, lambda: hcheck('a'))
A('L_aent:')
a_rest(am, 6, 'L_aloop')
def a_inter():
    check_flag0('a')
    tail_setup()
    for t in range(6): A(f'buffer_load_dword v{vST+t}, v{vAD+t}, {srd(SRD_AUX)}, 0 offen sc1')
a_head(at, True, a_inter)
A('s_branch L_atent\nL_atail:\ns_barrier')
a_head(at, True)
A('L_atent:')
a_rest(at, 8, 'L_atail')
stamp(); itdump(); stamp(4)
vMR = 48
RR = [152, 154, 156, 158, 32, 34]
A(f'v_and_b32 v31, 48, v{vL}\nv_add_u32 v31, s{sP2}, v31')
for t in range(6):
    a_mm(24 + 2*t)
    A(f"""v_and_b32 v{RR[t]}, 0xffff0000, v{vST+t}
v_max_f32 v{RR[t]}, {f2u(1e-3)}, v{RR[t]}""")
    a_mm(25 + 2*t)
    A(f"""v_rcp_f32 v{RR[t]}, v{RR[t]}
v_lshlrev_b32 v{vMR+2*t}, 16, v{vST+t}
ds_write2_b32 v14, v{vMR+2*t}, v{RR[t]} offset0:{16*t} offset1:{96+16*t}""")
baddr_first(10)
ROW = [70, 16, 92]
def row_read(t):
    b = ROW[t % 3]
    A(f'ds_read_b128 {vr(b, 4)}, v31 offset:{64*t}\nds_read_b128 {vr(b+4, 4)}, v31 offset:{384 + 64*t}')
row_read(0); row_read(1)
stamp(4)
vm = Q(63)
for i in range(6): vm.issue('v9')
E = Inter()
vCQ, vCK, vCV = 60, 64, 68
A(f'v_mov_b32 v{vCV}, v{VD}\nv_mov_b32 v{vCV+1}, v{VD}')
for j in range(4): A(f'v_mov_b32_dpp v{vCK+j}, v{KD+j} row_newbcast:0 row_mask:0xf bank_mask:0xf')
A(f'v_permlane16_swap_b32 v{vCV}, v{vCV+1}')
for j in range(2): A(f'v_mov_b32_dpp v{vCQ+j}, v{QD+j} row_newbcast:0 row_mask:0xf bank_mask:0xf')
A(f'v_mov_b32 v{vCV+1}, v{vCV}')
for j in range(2, 4): A(f'v_mov_b32_dpp v{vCQ+j}, v{QD+j} row_newbcast:0 row_mask:0xf bank_mask:0xf')
A(f'v_permlane32_swap_b32 v{vCV}, v{vCV+1}')
QP, KP, VP = QD, KD, VD + 2
E.push(breg_groups(0), 4)
for t in range(6):
    for k in range(2): E(f'v_pk_fma_f32 {vr(QD+4*t+2*k, 2)}, {vr(vCQ+2*k, 2)}, {vr(vMR+2*t, 2)}, {vr(QD+4*t+2*k, 2)} op_sel_hi:[1,0,1]')
for t in range(6):
    for k in range(2): E(f'v_pk_fma_f32 {vr(KD+4*t+2*k, 2)}, {vr(vCK+2*k, 2)}, {vr(vMR+2*t, 2)}, {vr(KD+4*t+2*k, 2)} op_sel_hi:[1,0,1]')
for t in range(6):
    for k in range(2): E(f'v_cvt_pk_bf16_f32 v{QP+2*t+k}, v{QD+4*t+2*k}, v{QD+4*t+2*k+1}')
E.flush()
row_read(2)
for t in range(6):
    for k in range(2): A(f'v_pk_mul_f32 {vr(KD+4*t+2*k, 2)}, {vr(KD+4*t+2*k, 2)}, {vr(RR[t], 2)} op_sel_hi:[1,0]')
for t in range(6): A(f'v_mul_f32 v{vMR+2*t}, {f2u(0.25*LOG2E)}, v{RR[t]}')
for t in range(6):
    for k in range(2): A(f'v_cvt_pk_bf16_f32 v{KP+2*t+k}, v{KD+4*t+2*k}, v{KD+4*t+2*k+1}')
SB = [116, 60, 144, 92]
def s_mm(t):
    s = SB[t % 4]
    if t: A(mf16k(vr(s, 4), vr(KP+2*(t-1), 2), vr(QP+2*t, 2), vr(vMSK, 4)))
    A(mf16k(vr(s+4, 4), vr(KP+2*t, 2), vr(QP+2*t, 2), vr(vMSK + (4 if t else 8), 4)))
stamp(4)
A(f's_waitcnt vmcnt({vm.need({"v9"})}) lgkmcnt(0)\ns_barrier')
s_mm(0); s_mm(1)
E.push(static_groups(0, vm, 'a') + static_groups(1, vm, 'a'), 14)
for half in range(2):
    ts = range(3*half, 3*half + 3)
    if half: A('s_waitcnt lgkmcnt(0)')
    for t in ts:
        for k in range(2): E(f'v_pk_fma_f32 {vr(VD+4*t+2*k, 2)}, {vr(ROW[t%3]+2*k, 2)}, {vr(vCV, 2)}, {vr(VD+4*t+2*k, 2)} op_sel_hi:[1,0,1]')
    for t in ts:
        for k in range(2): E(f'v_pk_mul_f32 {vr(VD+4*t+2*k, 2)}, {vr(VD+4*t+2*k, 2)}, {vr(ROW[t%3]+4+2*k, 2)}')
    if half == 0:
        for t in range(3, 6): row_read(t)
    for t in ts:
        if t == 0: E(f'v_cvt_pk_bf16_f32 v{VD+2}, v{VD+2}, v{VD+3}\nv_cvt_pk_bf16_f32 v{VD+3}, v{VD}, v{VD+1}\nv_swap_b32 v{VD+2}, v{VD+3}')
        else:
            for k in range(2): E(f'v_cvt_pk_bf16_f32 v{VP+2*t+k}, v{VD+4*t+2*k}, v{VD+4*t+2*k+1}')
    if half == 0: rowmax = True
PB = [100, 124]
OB = [152, 16]; LB = [156, 20]
MXS = {0: (32, 33, 34), 2: (2, 3, 24), 4: (32, 33, 34)}
stamp(4)
def pmax(t):
    m0, m1, _ = MXS[t]
    ch = []
    for e, m in ((0, m0), (1, m1)):
        s = SB[(t + e) % 4]
        if t + e == 0: ch.append([f'v_max3_f32 v{m}, v{s+4}, v{s+5}, v{s+6}', f'v_max_f32 v{m}, v{m}, v{s+7}'])
        else: ch.append([f'v_max3_f32 v{m}, v{s}, v{s+1}, v{s+2}', f'v_max3_f32 v{m}, v{m}, v{s+3}, v{s+4}',
                         f'v_max3_f32 v{m}, v{m}, v{s+5}, v{s+6}', f'v_max_f32 v{m}, v{m}, v{s+7}'])
    return mix(ch[1], ch[0]), [f'v_permlane32_swap_b32 v{m0}, v{m1}', f'v_max_f32 v{m0}, v{m0}, v{m1}', f'v_mov_b32 v{m1}, v{m0}',
                               f'v_permlane16_swap_b32 v{m0}, v{m1}', f'v_max_f32 v{m0}, v{m0}, v{m1}', f'v_mov_b32 v{m1}, v{m0}',
                               f'v_permlane32_swap_b32 v{m0}, v{m1}']
def weave(chain, fill):
    fill = list(fill)
    for c in chain:
        E(c)
        for _ in range(2):
            if fill: E(fill.pop(0))
    for f in fill: E(f)
def pexp(t):
    m0, m1, n1 = MXS[t]
    E(f'v_mul_f32 v{n1}, -v{vMR+2*t+2}, v{m1}\nv_mul_f32 v{m0}, -v{vMR+2*t}, v{m0}')
    for e in range(2):
        s = SB[(t + e) % 4]; c = vMR + 2 * (t + e); k0 = 2 if t + e == 0 else 0
        for k in range(k0, 4): E(f'v_pk_fma_f32 {vr(s+2*k, 2)}, {vr(s+2*k, 2)}, {vr(c, 2)}, {vr(n1 if e else m0, 2)} op_sel_hi:[1,0,0]')
    for e in range(2):
        s = SB[(t + e) % 4]; k0 = 2 if t + e == 0 else 0
        for k in range(2*k0, 8): E(f'v_exp_f32 v{s+k}, v{s+k}')
        for k in range(k0, 4): E(f'v_cvt_pk_bf16_f32 v{PB[e]+k}, v{s+2*k}, v{s+2*k+1}')
        E(mf16(vr(LB[e], 4), 'v[72:75]', vr(PB[e], 4), '0'))
        E(mf16(vr(OB[e], 4), vr(VP + 2*(t + e - 1), 4), vr(PB[e], 4), '0'))
def pfin(t):
    x = 76
    out = [f'v_rcp_f32 v{LB[0]}, v{LB[0]}', f'v_rcp_f32 v{LB[1]}, v{LB[1]}']
    for e in range(2):
        for k in range(2): out.append(f'v_pk_mul_f32 {vr(OB[e]+2*k, 2)}, {vr(OB[e]+2*k, 2)}, {vr(LB[e], 2)} op_sel_hi:[1,0]')
    for e in range(2):
        for k in range(2): out.append(f'v_cvt_pk_bf16_f32 v{x+2*e+k}, v{OB[e]+2*k}, v{OB[e]+2*k+1}')
    return out
def pstore(t):
    x = 76
    E(f'v_permlane32_swap_b32 v{x}, v{x+2}\nv_permlane32_swap_b32 v{x+1}, v{x+3}')
    A(f'buffer_store_dwordx4 {vr(x, 4)}, v{OO[t//2]}, {srd(SRD_ACT)}, s{sP5} offen sc1'); vm.issue('st')
loc, crs = pmax(0)
for l in loc: E(l)
weave(crs, [f'v_mov_b32 v{72+i}, s{sONES}' for i in range(4)] + [f'v_mov_b32 v{PB[0]}, 0', f'v_mov_b32 v{PB[0]+1}, 0', f'v_mov_b32 v{VD}, 0', f'v_mov_b32 v{VD+1}, 0'])
for t in (0, 2, 4):
    if t < 4: s_mm(t + 2); s_mm(t + 3)
    pexp(t)
    if t < 4:
        loc, crs = pmax(t + 2)
        for l in loc: E(l)
        weave(crs, pfin(t))
    else:
        E.flush()
        for l in pfin(t): E(l)
    pstore(t)
    stamp(4)
assert nstamp[0] == nst_save or OPT['sg'] == 4, (nstamp[0], nst_save)

A.label('L_phase2')
stamp()
A(f'v_xor_b32 v{vB+1}, 64, v{vB}')
for g in breg_groups(1): lines(g)
vP = 128
vRING = 80; NRING = 12
vLB = 48
vXR = 36
vPO, vOO, vEX = 12, 13, 14
A(f'''v_and_b32 v1, 31, v{vL}
v_lshrrev_b32 v2, 5, v{vL}
s_lshl_b32 s{sT2}, s{sR}, 6
s_add_u32 s{sT2}, s{sT2}, s{sMH}
s_lshl_b32 s{sT2}, s{sT2}, 10
s_lshl_b32 s{sT3}, s{sCB}, 7
s_add_u32 s{sT2}, s{sT2}, s{sT3}
s_lshl_b32 s{sT3}, s{sKQ}, 5
s_add_u32 s{sT2}, s{sT2}, s{sT3}
v_lshlrev_b32 v{vOO}, 11, v1
v_lshl_add_u32 v{vOO}, v2, 4, v{vOO}
v_add_u32 v{vOO}, s{sT2}, v{vOO}
s_lshl_b32 s{sT2}, s{sR}, 1
s_add_u32 s{sT2}, s{sT2}, s{sMH}
s_mul_i32 s{sOX}, s{sT2}, {TG_STRIDE}
s_sub_u32 s{sT1}, s{sKQ}, 1
s_mul_i32 s{sT3}, s{sT1}, {29*1024}
s_cmp_eq_u32 s{sKQ}, 0
s_cselect_b32 s{sT3}, {86*1024}, s{sT3}
s_add_u32 s{sOX}, s{sOX}, s{sT3}
s_add_u32 s{sOW}, s{sOX}, {28*1024}
s_cmp_eq_u32 s{sKQ}, 0
s_cselect_b32 s{sNW}, s{sOW}, {OOB}
s_cmp_eq_u32 s{sKQ}, 3
s_cselect_b32 s{sOW}, {OOB}, s{sOW}
s_lshr_b32 s{sT2}, s{sR}, 1
s_lshl_b32 s{sT2}, s{sT2}, 7
s_mul_i32 s{sT3}, s{sT1}, 12
s_add_u32 s{sT2}, s{sT2}, s{sT3}
v_and_b32 v3, 3, v{vL}
v_lshl_add_u32 v{vPO}, v3, 2, s{sT2}
s_lshl_b32 s{sT3}, s{sR}, 6
s_mul_i32 s{sT4}, s{sT3}, 745
s_lshr_b32 s{sT4}, s{sT4}, 17
s_add_u32 s{sT3}, s{sT3}, 63
s_mul_i32 s{sT3}, s{sT3}, 745
s_lshr_b32 s{sT3}, s{sT3}, 17
s_sub_u32 s{sT3}, s{sT3}, s{sT4}
s_lshl_b32 s{sT3}, s{sT3}, 7
s_lshl_b32 s{sT4}, s{sT4}, 7
s_add_u32 s{sT4}, s{sT4}, {FLAG_A}
v_mul_u32_u24 v2, s{sT3}, v2
v_and_b32 v1, 7, v{vL}
v_lshl_add_u32 v1, v1, 2, s{sT4}
v_add_u32 v1, v1, v2
s_cmp_eq_u32 s{sKQ}, 0
s_cselect_b64 vcc, -1, 0
v_cndmask_b32 v{vPO}, v{vPO}, v1, vcc
s_lshl_b32 s{sT0}, s{sMH}, 15
v_add_u32 v{vEX}, s{sT0}, v{vL16}
v_mov_b32 v2, s{sTAG}
s_waitcnt vmcnt(0) lgkmcnt(0)
s_barrier
s_cmp_lg_u32 s{sW}, 0
s_cbranch_scc1 L_noflag
s_mov_b64 exec, 1
buffer_store_dword v2, off, {srd(SRD_AUX)}, s{sFLAG} sc1
s_mov_b64 exec, -1
L_noflag:
v_add_u32 v{vB+4}, s{sQ1}, v10
v_xor_b32 v{vB+5}, 64, v{vB+4}
v_add_u32 v{vB}, {SLOT}, v{vB}
v_add_u32 v{vB+1}, {SLOT}, v{vB+1}''')
stamp(); stamp(3)
for g in static_groups(2, Q(63), 'p'): lines(g)
stamp(3)
A(f'''buffer_load_dword v3, v{vPO}, {srd(SRD_AUX)}, 0 offen sc1
s_mov_b32 s{sT0}, 0
s_waitcnt vmcnt(1)''')
stamp(3)
A('s_barrier')
stamp(3)
A(f'''L_poll:
s_waitcnt vmcnt(0)
v_cmp_ne_u32 vcc, s{sTAG}, v3
s_cbranch_vccz L_pollok
s_sleep {OPT['sleep']}
buffer_load_dword v3, v{vPO}, {srd(SRD_AUX)}, 0 offen sc1
s_add_u32 s{sT0}, s{sT0}, 1
s_cmp_lt_u32 s{sT0}, {SPIN}
s_cbranch_scc1 L_poll
L_pollok:''')
stamp(); stamp(3)
vm = Q(63); lg = Q(15)
def a_load(st):
    so = sOX if st < 28 else (sOW if st == 28 else sNW)
    if st and st % 4 == 0 and st < 28: A(f's_add_u32 s{sOX}, s{sOX}, 4096')
    off = f' offset:{(st % 4)*1024}' if st % 4 else ''
    A(f'buffer_load_dwordx4 {vr(vRING + 4*(st % NRING), 4)}, v{vL16}, {srd(SRD_ACT)}, s{so} offen{off} sc1')
    vm.issue(st)
def b_read(st, ct):
    t = st - NREG
    r = [i for i, (a, b) in enumerate(REG_T) if a <= t < b][0]
    off = (t - REG_T[r][0]) * 2048
    for hf in range(2):
        A(f'ds_read_b64_tr_b16 {vr(vLB + (st % 4)*8 + ct*4 + hf*2, 2)}, v{vB + 2*r + ct} offset:{off + hf*1024}')
        lg.issue(st)
NB = OPT['burst']
for st in range(NB): a_load(st)
for st in range(32):
    if st == 28: A(f's_cmp_eq_u32 s{sKQ}, 3\ns_cbranch_scc1 L_p2done')
    if st == 29: A(f's_cmp_lg_u32 s{sKQ}, 0\ns_cbranch_scc1 L_p2done')
    w = []
    c = vm.need({st})
    if c is not None: w.append(f'vmcnt({c})')
    c = lg.need({st})
    if c is not None: w.append(f'lgkmcnt({c})')
    if w: A('s_waitcnt ' + ' '.join(w))
    if st in (0, 12): stamp(3)
    for ct in range(2):
        b = ar(st*8 + ct*4, 4) if st < NREG else vr(vLB + (st % 4)*8 + ct*4, 4)
        acc = vr(vP + 16*ct, 16)
        A(mf32(acc, b, vr(vRING + 4*(st % NRING), 4), acc if st else '0'))
        if NREG <= st + 2 < 32: b_read(st + 2, ct)
        if ct == 0 and st + NB < 32: a_load(st + NB)
        if ct == 1 and st + NB == 31:
            A(f'buffer_load_dwordx4 v[44:47], v{vOO}, {srd(SRD_XR)}, 0 offen'); vm.issue('x')
A('L_p2done:')
stamp(); stamp(3)
vF, vS, vR1 = 48, 56, 64
A(f'''s_waitcnt lgkmcnt(0)
s_barrier
s_cmp_eq_u32 s{sKQ}, 1
s_cbranch_scc1 L_red1
s_cmp_eq_u32 s{sKQ}, 2
s_cbranch_scc1 L_red2
s_cmp_eq_u32 s{sKQ}, 3
s_cbranch_scc1 L_red3''')
for q in range(4):
    if q: A(f'L_red{q}:')
    for c in range(4):
        if c == q: continue
        for i in range(2): A(f'ds_write_b128 v{vEX}, {vr(vP + 8*c + 4*i, 4)} offset:{q*8192 + c*2048 + i*1024}')
    A('s_waitcnt lgkmcnt(0)\ns_barrier')
    srcs = [s for s in range(4) if s != q]
    dst = {}
    for n_, s in enumerate(srcs):
        dst[s] = vS if s == 0 else vR1 + 8 * n_
        for i in range(2): A(f'ds_read_b128 {vr(dst[s] + 4*i, 4)}, v{vEX} offset:{s*8192 + q*2048 + i*1024}')
    dst[q] = vP + 8 * q
    if q == 0:
        for i in range(4): A(f'v_pk_mul_f32 {vr(vS+2*i, 2)}, {vr(vP+2*i, 2)}, 1.0 op_sel_hi:[1,0]')
    fs = [q] + [s for s in srcs if s] if q else [1, 2, 3]
    A('s_waitcnt lgkmcnt(2)')
    for i in range(4): A(f'v_pk_add_f32 {vr(vF+2*i, 2)}, {vr(dst[fs[0]]+2*i, 2)}, {vr(dst[fs[1]]+2*i, 2)}')
    A('s_waitcnt lgkmcnt(0)')
    for i in range(4): A(f'v_pk_add_f32 {vr(vF+2*i, 2)}, {vr(vF+2*i, 2)}, {vr(dst[fs[2]]+2*i, 2)}')
    if q < 3: A('s_branch L_final')
A.label('L_final')
A('s_waitcnt vmcnt(0)\nv_permlane32_swap_b32 v44, v46\nv_permlane32_swap_b32 v45, v47')
for i in range(4):
    A(f'v_lshlrev_b32 v{vXR+2*i}, 16, v{44+i}\nv_and_b32 v{vXR+2*i+1}, 0xffff0000, v{44+i}')
t = 88
assert sT1 % 2 == 0
A(f's_mov_b32 s{sT1}, {f2u(-LOG2E)}\ns_mov_b32 s{sT1+1}, {f2u(-LOG2E)}')
for i in range(4): A(f'v_pk_mul_f32 {vr(t+2*i, 2)}, {vr(vF+2*i, 2)}, s[{sT1}:{sT1+1}]')
for i in range(8): A(f'v_exp_f32 v{t+i}, v{t+i}')
for i in range(4): A(f'v_pk_mul_f32 {vr(vS+2*i, 2)}, {vr(vS+2*i, 2)}, {vr(vF+2*i, 2)}')
for i in range(4): A(f'v_pk_add_f32 {vr(t+2*i, 2)}, {vr(t+2*i, 2)}, 1.0 op_sel_hi:[1,0]')
for i in range(8): A(f'v_rcp_f32 v{t+i}, v{t+i}')
for i in range(4): A(f'v_pk_fma_f32 {vr(t+2*i, 2)}, {vr(t+2*i, 2)}, {vr(vS+2*i, 2)}, {vr(vXR+2*i, 2)}')
for i in range(4): A(f'v_cvt_pk_bf16_f32 v{44+i}, v{t+2*i}, v{t+2*i+1}')
A(f'''v_permlane32_swap_b32 v44, v46
v_permlane32_swap_b32 v45, v47
buffer_store_dwordx4 v[44:47], v{vOO}, {srd(SRD_OUT)}, 0 offen{['', ' sc1', ' nt', ' sc0 sc1'][OPT['ost']]}''')
if OPT['stamps'] and OPT['sg'] != 2:
    stamp(); stamp(3)
    A('s_waitcnt vmcnt(0)')
    stamp()
    A(f'''s_lshl_b32 s{sT0}, s2, 9
s_lshl_b32 s{sT1}, s{sW}, 6
s_add_u32 s{sT0}, s{sT0}, s{sT1}
s_add_u32 s{sT0}, s{sT0}, {STAMP_OFF}
v_mov_b32 v1, s{sT0}''')
    for i in range(10): A(f'v_mov_b32 v{48+i}, s{sSTAMP+i}')
    A(f'''global_store_dwordx4 v1, v[48:51], s[{sWS}:{sWS+1}]
global_store_dwordx4 v1, v[52:55], s[{sWS}:{sWS+1}] offset:16
global_store_dwordx2 v1, v[56:57], s[{sWS}:{sWS+1}] offset:32''')
A.label('L_end')
A('s_endpgm')
handlers('a')

body = A.finish(verbose=False)
hdr = open('cdna_kernels/' + NAME + '.s.ref').read().split('; Override launch')[0]
out = hdr + f'''; @launch grid=(256,1,1) block=(512,1,1) lds={LDS_BYTES}
.amdgcn_target "amdgcn-amd-amdhsa--gfx950"
.text
.globl {NAME}_kernel
.p2align 8
.type {NAME}_kernel,@function
''' + body + f'''L_codeend:
.fill (33024 - (L_codeend - {NAME}_kernel)) / 4, 4, 0xbf810000
.section .rodata,"a"
.p2align 6
.amdhsa_kernel {NAME}_kernel
  .amdhsa_next_free_vgpr 256
  .amdhsa_next_free_sgpr 102
  .amdhsa_accum_offset 160
  .amdhsa_group_segment_fixed_size 0
  .amdhsa_kernarg_size 80
  .amdhsa_user_sgpr_count 2
  .amdhsa_user_sgpr_kernarg_segment_ptr 1
  .amdhsa_system_sgpr_workgroup_id_x 1
.end_amdhsa_kernel
'''
sys.stdout.write(out)
sys.stderr.write(f'nops inserted: {A.nops}\n')
```

```python
import sys, os, struct
sys.path.insert(0, os.path.dirname(os.path.abspath(__file__)))
from asmlib import Asm, Q

NAME = "recurrent_scan__sliding_local_dilated__swiglu_ffn__prompt"
OPT = dict(rot=1, l2r=2, lateb=0, ost=0, l2t=0, exp=0, sleep=1, stamps=0, sg=0, nodma=0, btouch=1, map2=0, burst=8, prio=0)
for a in sys.argv[1:]:
    k, v = a.split('=')
    assert k in OPT, k
    OPT[k] = int(v)

SLOT = 53504
UPOFF = 18560
LDS_BYTES = 163840
SCR = 2 * SLOT + 49152
ACT_OFF = 1 << 20
TG_STRIDE = 118 * 1024
ACT_BYTES = 64 * TG_STRIDE
FLAG_F = 0
FLAG_A = 0x2000
FLAG_S = 0x2c00
FLAG_C = 0x3000
STAT_OFF = 0x4000
CS_OFF = 0x8000
AUX_BYTES = 0x8000 + 10 * 9216
STAMP_OFF = 1 << 19
NREG = 12
LOG2E = 1.4426950408889634
OOB = 0x80000000
SPIN = 0x40000
def f2u(x): return struct.unpack('<I', struct.pack('<f', x))[0]

sW = 3
SRD_X, SRD_W, SRD_ACT, SRD_B, SRD_XR, SRD_OUT = 4, 8, 12, 16, 20, 24
sDBG, sWS = 28, 30
sKA = 32
sIT, sKS, sBX, sBW, sKQ, sMW, sOX, sOW = 48, 49, 50, 51, 52, 53, 54, 55
sD = 56
sN0 = 59
sSLOT, sDELTA, sONES, sRS = 60, 61, 62, 63
sR, sCB, sA, sB, sTAG, sT0, sT1, sT2, sT3 = 64, 65, 66, 67, 68, 69, 70, 71, 72
sMH, sST, sFLAG, sSOFF, sNW, sT4, sT5 = 73, 74, 75, 76, 77, 78, 79
SRD_AUX = 80
SRD_T = 84
sEX = 88
sCLK = 90
sSTAMP = 92
sHM = 0
sP0, sP1, sP2, sP3, sP4, sP5 = 32, 33, 34, 35, 38, 39
sQ0, sQ1, sQ2, sSO, sQ3, sL2 = 40, 41, 42, 43, 1, 46
def srd(n): return f's[{n}:{n+3}]'

vL = 0
vDMA = 4
vRX, vRW = 11, 15
vST = 16
vPL, vFL, vTG = 22, 23, 24
vBP = 25
vL16 = 29
vTCH = 19
vAD = 30
vMSK = 36
vFR = 48
vACC = 80
def vr(b, n): return f'v[{b}:{b+n-1}]'
def ar(b, n): return f'a[{b}:{b+n-1}]'

A = Asm()
STI = 's_memtime' if OPT['stamps'] == 2 else 's_memrealtime'
nstamp = [0]
def stamp(grp=0):
    if not OPT['stamps'] or grp != OPT['sg']: return
    i = nstamp[0]; nstamp[0] += 1
    assert i < 10
    A(f'{STI} s[{sCLK}:{sCLK+1}]\ns_waitcnt lgkmcnt(0)\ns_mov_b32 s{sSTAMP+i}, s{sCLK}')

def itstamp():
    if OPT['stamps'] and OPT['sg'] == 2:
        A(f'''{STI} s[{sCLK}:{sCLK+1}]
s_waitcnt lgkmcnt(0)
v_mov_b32 v77, s{sCLK}
v_cmp_eq_u32 vcc, s{sIT}, v{vL}
v_cndmask_b32 v78, v78, v77, vcc''')
def itdump():
    if OPT['stamps'] and OPT['sg'] == 2:
        itstamp()
        A(f'''s_lshl_b32 s{sT0}, s2, 9
s_lshl_b32 s{sT1}, s{sW}, 6
s_add_u32 s{sT0}, s{sT0}, s{sT1}
s_add_u32 s{sT0}, s{sT0}, {STAMP_OFF}
v_lshl_add_u32 v77, v{vL}, 2, s{sT0}
s_mov_b64 exec, 0x3ff
global_store_dword v77, v78, s[{sWS}:{sWS+1}]
s_mov_b64 exec, -1''')
def mf32(d, a, b, c): return f'v_mfma_f32_32x32x16_bf16 {d}, {a}, {b}, {c}'
def mf16(d, a, b, c): return f'v_mfma_f32_16x16x32_bf16 {d}, {a}, {b}, {c}'
def mf16k(d, a, b, c): return f'v_mfma_f32_16x16x16_bf16 {d}, {a}, {b}, {c}'

def spread(groups, slots, into=None):
    out = {} if into is None else into
    n = len(groups)
    for i, g in enumerate(groups):
        out.setdefault(slots[(i * len(slots)) // n], []).extend(g)
    return out
def lines(L):
    for l in L: (l() if callable(l) else A(l))
def mix(a, b):
    out = []; a = list(a); b = list(b)
    while a or b:
        if a: out.append(a.pop(0))
        if b: out.append(b.pop(0))
    return out

class Inter:
    def __init__(self): self.g = []; self.every = 1; self.c = 0
    def push(self, groups, every): self.g += list(groups); self.every = every; self.c = 0
    def __call__(self, text):
        for l in text.split('\n'):
            l = l.strip()
            if not l: continue
            A(l); self.c += 1
            if self.g and self.c >= self.every:
                lines(self.g.pop(0)); self.c = 0
    def flush(self):
        while self.g: lines(self.g.pop(0))

def build_srd(n, plo, size, E=None):
    (E or A)(f'''s_mov_b32 s{n}, s{plo}
s_mov_b32 s{n+1}, s{plo+1}
s_mov_b32 s{n+2}, {size}
s_mov_b32 s{n+3}, 0x20000''')

SOFFX = [f's_lshl_b32 s{sOX}, s{sKS}, 7', f's_add_u32 s{sOX}, s{sOX}, s{sBX}']
SOFFW = [f's_mul_i32 s{sOW}, s{sKS}, s{sMW}', f's_add_u32 s{sOW}, s{sOW}, s{sBW}']
SOFFWN = [f's_mul_i32 s{sNW}, s{sKS}, s{sMW}', f's_add_u32 s{sNW}, s{sNW}, s{sBW}']
KSINC = [f's_add_u32 s{sKS}, s{sKS}, 1', f's_and_b32 s{sKS}, s{sKS}, 7']
SOFF = SOFFX + SOFFW + KSINC
ADV = [f's_add_u32 s{sSLOT}, s{sSLOT}, {SLOT}', f's_cmp_eq_u32 s{sSLOT}, {3*SLOT}', f's_cselect_b32 s{sSLOT}, 0, s{sSLOT}']
RDELTA = [f's_add_u32 s{sRS}, s{sRS}, 1', f's_mov_b32 s{sDELTA}, {SLOT}', f's_cmp_eq_u32 s{sRS}, 3',
          f's_cmov_b32 s{sDELTA}, {(-2*SLOT) & 0xffffffff}', f's_cmov_b32 s{sRS}, 0']

def dma(v, s_, o_, im, pre=None, flags=''):
    off = f' offset:{im}' if im else ''
    return (pre or []) + [f'buffer_load_dwordx4 v{v}, {srd(s_)}, s{o_} offen{off}{flags} lds']

vSR = 48
def stat_load():
    A(f'''s_lshl_b32 s{sT0}, s2, 13
s_lshl_b32 s{sT1}, s{sW}, 10
s_add_u32 s{sT0}, s{sT0}, s{sT1}
buffer_load_dwordx4 {vr(vSR, 4)}, v{vL16}, {srd(SRD_XR)}, s{sT0} offen''')

def stat_compute(E):
    sm, sq, t, t2 = 52, 53, 54, 55
    E(f'v_mov_b32 v{sm}, 0\nv_mov_b32 v{sq}, 0')
    for i in range(4):
        E(f'v_dot2c_f32_bf16 v{sm}, s{sONES}, v{vSR+i}\nv_dot2c_f32_bf16 v{sq}, v{vSR+i}, v{vSR+i}')
    for r in (1, 2, 4, 8):
        E(f'v_add_f32_dpp v{sm}, v{sm}, v{sm} row_ror:{r} row_mask:0xf bank_mask:0xf')
        E(f'v_add_f32_dpp v{sq}, v{sq}, v{sq} row_ror:{r} row_mask:0xf bank_mask:0xf')
    for sw in (16, 32):
        E(f'''v_mov_b32 v{t}, v{sm}
v_mov_b32 v{t2}, v{sq}
v_permlane{sw}_swap_b32 v{sm}, v{t}
v_permlane{sw}_swap_b32 v{sq}, v{t2}
v_add_f32 v{sm}, v{sm}, v{t}
v_add_f32 v{sq}, v{sq}, v{t2}''')
    E(f'''v_mul_f32 v{sm}, {f2u(1/512)}, v{sm}
v_mul_f32 v{sq}, {f2u(1/512)}, v{sq}
v_fma_f32 v{sq}, -v{sm}, v{sm}, v{sq}
v_max_f32 v{sq}, 0, v{sq}
v_cvt_pk_bf16_f32 v{sq}, v{sq}, v{sq}
v_lshlrev_b32 v{sq}, 16, v{sq}
v_add_f32 v{sq}, {f2u(1e-5)}, v{sq}
v_cvt_pk_bf16_f32 v{sq}, v{sq}, v{sq}
v_lshlrev_b32 v{sq}, 16, v{sq}
v_sqrt_f32 v{sq}, v{sq}
s_lshl_b32 s{sT0}, s2, 5
s_lshl_b32 s{sT1}, s{sW}, 2
s_add_u32 s{sT0}, s{sT0}, s{sT1}
s_add_u32 s{sT0}, s{sT0}, {STAT_OFF}
v_cvt_pk_bf16_f32 v{sq}, -v{sm}, v{sq}''')
    A(f'''s_mov_b64 exec, 1
buffer_store_dword v{sq}, off, {srd(SRD_AUX)}, s{sT0} sc1
s_mov_b64 exec, -1''')

uid = [0]
def publish_tag():
    uid[0] += 1; n = uid[0]
    A(f'''s_or_b32 s{sT0}, s2, s{sW}
s_cmp_lg_u32 s{sT0}, 0
s_cbranch_scc1 L_notag{n}
s_memrealtime s[{sT4}:{sT5}]
s_waitcnt lgkmcnt(0)
s_or_b32 s{sT4}, s{sT4}, 1
v_mov_b32 v1, 0
v_mov_b32 v2, s{sT4}
s_mov_b64 exec, 1
global_store_dword v1, v2, s[{sDBG}:{sDBG+1}] sc1
s_mov_b64 exec, -1
L_notag{n}:''')

def setup2():
    build_srd(SRD_AUX, sWS, AUX_BYTES)
    build_srd(SRD_OUT, sKA + 14, 2048 * 1024)
    A(f'''s_add_u32 s{SRD_ACT}, s{sWS}, {ACT_OFF}
s_addc_u32 s{SRD_ACT+1}, s{sWS+1}, 0
s_mov_b32 s{SRD_ACT+2}, {ACT_BYTES if OPT['exp'] != 2 else 0}
s_mov_b32 s{SRD_ACT+3}, 0x20000
s_lshr_b32 s{sKQ}, s{sW}, 1
s_lshr_b32 s{sT0}, s{sW}, 2
s_xor_b32 s{sKQ}, s{sKQ}, s{sT0}
s_and_b32 s{sMH}, s{sW}, 1
s_cmp_eq_u32 s{sKQ}, 0
s_cselect_b32 s{SRD_B}, s{sKA+4}, s{sKA+12}
s_cselect_b32 s{SRD_B+1}, s{sKA+5}, s{sKA+13}
s_mov_b32 s{SRD_B+2}, {1376*1024}
s_cmov_b32 s{SRD_B+2}, {512*1024}
s_mov_b32 s{SRD_B+3}, 0x20000
s_mov_b32 s{sIT}, 0
s_mov_b32 s{sRS}, 0
s_cmp_eq_u32 s{sW}, 0
s_cselect_b32 s{sHM}, 0x22, 32''')
    if OPT['prio']:
        uid[0] += 1
        A(f's_cmp_{"ge" if OPT["prio"] == 1 else "lt"}_u32 s{sW}, 4\ns_cbranch_scc0 L_np{uid[0]}\ns_setprio 1\nL_np{uid[0]}:')
    A(f'''
v_lshrrev_b32 v1, 3, v{vL}
v_and_b32 v2, 7, v{vL}
v_bfe_u32 v3, v{vL}, 4, 1
v_lshlrev_b32 v3, 2, v3
v_xor_b32 v2, v2, v3
v_lshlrev_b32 v2, 4, v2
v_lshl_add_u32 v{vBP}, v1, 10, v2''')
    for i in range(1, 4): A(f'v_add_u32 v{vBP+i}, {7168*i}, v{vBP}')
    A(f'''s_sub_u32 s{sT0}, s{sKQ}, 1
s_max_i32 s{sT0}, s{sT0}, 0
s_mul_i32 s{sSOFF}, s{sT0}, {464*1024}
s_lshl_b32 s{sT0}, s{sCB}, 7
s_add_u32 s{sSOFF}, s{sSOFF}, s{sT0}''')

def touches(vm):
    A(f'''s_lshl_b32 s{sT0}, s2, 3
s_add_u32 s{sT0}, s{sT0}, s{sW}
s_sub_u32 s{sT1}, s{sT0}, 1376
s_cmp_ge_u32 s{sT0}, 1376
s_cselect_b32 s{sT0}, s{sT1}, s{sT0}
s_cselect_b32 s{SRD_T}, s{sKA+4}, s{sKA+12}
s_cselect_b32 s{SRD_T+1}, s{sKA+5}, s{sKA+13}
s_mov_b32 s{SRD_T+2}, {1376*1024 if OPT['btouch'] else 0}
s_cmov_b32 s{SRD_T+2}, {512*1024 if OPT['btouch'] else 0}
s_mov_b32 s{SRD_T+3}, 0x20000
s_lshl_b32 s{sT0}, s{sT0}, 10
v_and_b32 v1, 7, v{vL}
v_lshlrev_b32 v1, 7, v1
buffer_load_dword v{vTCH}, v1, {srd(SRD_T)}, s{sT0} offen
v_mov_b32 v1, 0
global_load_dword v{vTG}, v1, s[{sDBG}:{sDBG+1}] sc1''')
    vm.issue('touch'); vm.issue('tag')
    A(f'''s_lshr_b32 s{sT0}, s2, 3
s_lshl_b32 s{sT0}, s{sT0}, 3
s_add_u32 s{sT0}, s{sT0}, s{sW}
s_sub_u32 s{sT1}, s{sT0}, 172
s_cmp_ge_u32 s{sT0}, 172
s_cselect_b32 s{sT0}, s{sT1}, s{sT0}
s_cselect_b32 s{SRD_T}, s{sKA+4}, s{sKA+12}
s_cselect_b32 s{SRD_T+1}, s{sKA+5}, s{sKA+13}
s_mov_b32 s{sT2}, {1376*1024}
s_cmov_b32 s{sT2}, {512*1024}
s_lshl_b32 s{sL2}, s{sT0}, 13
s_add_u32 s{sT0}, s{sL2}, 8192
s_min_u32 s{SRD_T+2}, s{sT0}, s{sT2}
v_and_b32 v{vTP}, {8*OPT['l2r']-1}, v{vL}
v_lshlrev_b32 v{vTP}, 7, v{vTP}''')

vTP = 18
L2T = [[f'buffer_load_dword v{vTCH}, v{vTP}, {srd(SRD_T)}, s{sL2} offen', f's_add_u32 s{sL2}, s{sL2}, {1024*OPT["l2r"]}']] if OPT['l2t'] else []
def tail_prepare():
    A(f'''s_mul_i32 s{sT0}, s{sMH}, {48*1024}
s_add_u32 s{sP0}, s{sSOFF}, s{sT0}
s_mul_i32 s{sP1}, s{sKQ}, 12288
s_mul_i32 s{sT0}, s{sMH}, 6144
s_add_u32 s{sP1}, s{sP1}, s{sT0}''')
def tail_setup():
    A(f's_mov_b32 s{sOX}, s{sP0}\ns_mov_b32 s{sD}, s{sP1}')

def tail_dma():
    out = [dma(vBP, SRD_B, sOX, 0, [f's_add_u32 m0, s{sSLOT}, s{sD}'])]
    for i in range(1, 4): out.append(dma(vBP + i, SRD_B, sOX, 1024 * i))
    out.append(dma(vBP, SRD_B, sOX, 0, ['s_add_u32 m0, m0, 4096', f's_add_u32 s{sOX}, s{sOX}, 32768']))
    out.append(dma(vBP + 1, SRD_B, sOX, 1024) + [f's_add_u32 s{sOX}, s{sOX}, {96*1024 - 32768}'])
    return out

def handlers(n):
    A(f'''L_{n}h:
v_readfirstlane_b32 s{sTAG}, v{vTG}
s_mov_b32 s{sT0}, 0
L_tag{n}:
s_cmp_lg_u32 s{sTAG}, 0
s_cbranch_scc1 L_tagok{n}
v_mov_b32 v1, 0
global_load_dword v{vTG}, v1, s[{sDBG}:{sDBG+1}] sc1
s_waitcnt vmcnt(0)
v_readfirstlane_b32 s{sTAG}, v{vTG}
s_add_u32 s{sT0}, s{sT0}, 1
s_cmp_lt_u32 s{sT0}, {SPIN}
s_cbranch_scc1 L_tag{n}
L_tagok{n}:
s_cmp_eq_u32 s{sIT}, 5
s_cbranch_scc1 L_{n}h5
v_mov_b32 v1, s{sTAG}
s_mov_b64 exec, 3
buffer_store_dword v1, v{vFL}, {srd(SRD_AUX)}, 0 offen sc1
s_mov_b64 exec, -1
s_branch L_{n}back
L_{n}h5:
buffer_load_dword v{vTG}, v{vPL}, {srd(SRD_AUX)}, 0 offen sc1
s_branch L_{n}back''')
LB_ = '' if OPT['exp'] in (6, 7) else 's_barrier'
def hcheck(n): A(f's_bitcmp1_b32 s{sHM}, s{sIT}\ns_cbranch_scc1 L_{n}h\nL_{n}back:')

def check_flag0(n):
    A(f'''s_mov_b32 s{sT0}, 0
L_f0{n}:
v_cmp_ne_u32 vcc, s{sTAG}, v{vTG}
s_cbranch_vccz L_f0ok{n}
buffer_load_dword v{vTG}, v{vPL}, {srd(SRD_AUX)}, 0 offen sc1
s_waitcnt vmcnt(0)
s_add_u32 s{sT0}, s{sT0}, 1
s_cmp_lt_u32 s{sT0}, {SPIN}
s_cbranch_scc1 L_f0{n}
L_f0ok{n}:''')

def split_hilo(r, t, E=None):
    (E or A)(f'''v_cvt_pk_bf16_f32 v{t}, v{r}, v{r}
v_lshlrev_b32 v{t}, 16, v{t}
v_sub_f32 v{t}, v{r}, v{t}
v_cvt_pk_bf16_f32 v{r}, v{r}, v{t}''')

vB = 4
REG_BASE = [SLOT, 2 * SLOT, 0]
REG_T = [(0, 6), (6, 12), (12, 20)]
def baddr_early(dst):
    A(f'''v_lshrrev_b32 v1, 5, v{vL}
v_bfe_u32 v2, v{vL}, 2, 2
v_lshl_add_u32 v1, v1, 2, v2
v_lshlrev_b32 v1, 7, v1
v_bfe_u32 v2, v{vL}, 3, 1
v_lshl_add_u32 v1, v2, 6, v1
v_bfe_u32 v2, v{vL}, 4, 1
v_lshl_add_u32 v1, v2, 5, v1
v_and_b32 v2, 3, v{vL}
v_lshl_add_u32 v{dst}, v2, 3, v1
s_mul_i32 s{sQ3}, s{sKQ}, 12288
s_lshl_b32 s{sT0}, s{sMH}, 10
s_add_u32 s{sQ0}, s{sQ3}, s{sT0}
s_min_u32 s{sT1}, s{sKQ}, 1
s_mul_i32 s{sT1}, s{sT1}, 6144
s_mul_i32 s{sQ1}, s{sKQ}, 10240
s_add_u32 s{sQ1}, s{sQ1}, s{sT1}
s_add_u32 s{sQ2}, s{sQ1}, s{sT0}
s_lshl_b32 s{sT0}, s{sMH}, 13
s_add_u32 s{sSO}, s{sSOFF}, s{sT0}
s_add_u32 s{sSO}, s{sSO}, {NREG*16384}''')
def baddr_first(src):
    if OPT['exp'] == 9: A(f's_mov_b32 s{SRD_B+2}, 0')
    A(f'''v_add_u32 v{vB}, s{sQ3}, v{src}
v_add_u32 v{vB+2}, {2*SLOT}, v{vB}
v_xor_b32 v{vB+3}, 64, v{vB+2}
v_add_u32 v11, {16384-2048}, v{vBP}''')
def breg_groups(half):
    out = []
    for st in range(6 * half, 6 * half + 6):
        for ct in range(2):
            base = vB + (2 if half == 0 else 0) + ct
            out.append([f'ds_read_b64_tr_b16 {ar(st*8 + ct*4 + hf*2, 2)}, v{base} offset:{(st % 6)*2048 + hf*1024}' for hf in range(2)])
    return out
def static_groups(r, vm, n):
    out = []
    a, b = REG_T[r]
    for t in range(a, b):
        g = []
        if t == 16: g += [f's_cmp_eq_u32 s{sKQ}, 3', f's_cbranch_scc1 L_sdone{n}']
        if t == 17: g += [f's_cmp_lg_u32 s{sKQ}, 0', f's_cbranch_scc1 L_sdone{n}']
        if t % 2 == 0:
            if t: g.append(f's_add_u32 s{sSO}, s{sSO}, 32768')
            g.append(f's_add_u32 m0, s{sQ0 if r < 2 else sQ2}, {REG_BASE[r] + (t - a)*2048}')
            g += dma(vBP, SRD_B, sSO, 0)
        else:
            g += dma(11, SRD_B, sSO, 2048)
        g.append(lambda: vm.issue('dma'))
        out.append(g)
    if r == 2:
        tail = sum(out[4:], []) + [f'L_sdone{n}:']
        out = out[:4] + [tail]
    return out

A(f'{NAME}_kernel:')
A(f'''s_load_dwordx16 s[{sKA}:{sKA+15}], s[0:1], 0
s_load_dwordx4 s[{sDBG}:{sDBG+3}], s[0:1], 64
s_cmp_ge_u32 s2, 256
s_cbranch_scc1 L_end
s_getpc_b64 s[{sT4}:{sT5}]
v_lshlrev_b32 v1, 6, v0
global_load_dword v{vTCH}, v1, s[{sT4}:{sT5}]
v_lshrrev_b32 v1, 6, v0
v_and_b32 v{vL}, 63, v0
v_readfirstlane_b32 s{sW}, v1
s_and_b32 s{sT0}, s2, 7
s_lshr_b32 s{sT1}, s2, 3
s_lshr_b32 s{sT2}, s{sT0}, 1
s_and_b32 s{sT3}, s{sT0}, 1''')
if OPT['stamps']:
    A(f'{STI} s[{sCLK}:{sCLK+1}]'); nstamp[0] = 1
if OPT['map2'] == 0:
    A(f'''s_lshl_b32 s{sR}, s{sT0}, 2
s_lshr_b32 s{sCB}, s{sT1}, 3
s_add_u32 s{sR}, s{sR}, s{sCB}
s_and_b32 s{sCB}, s{sT1}, 7''')
else:
    A(f'''s_lshl_b32 s{sR}, s{sT2}, 3
s_lshr_b32 s{sCB}, s{sT1}, 2
s_add_u32 s{sR}, s{sR}, s{sCB}
s_and_b32 s{sCB}, s{sT1}, 3
s_lshl_b32 s{sA}, s{sT3}, 2
s_add_u32 s{sCB}, s{sCB}, s{sA}''')
if OPT['exp'] == 3: A(f's_add_u32 s{sCB}, s{sCB}, 1\ns_and_b32 s{sCB}, s{sCB}, 7')
A(f'''s_mov_b32 s{sONES}, 0x3f803f80
v_lshrrev_b32 v30, 3, v{vL}
v_and_b32 v31, 7, v{vL}
v_lshrrev_b32 v32, 4, v{vL}
v_lshlrev_b32 v{vL16}, 4, v{vL}
v_xor_b32 v1, v31, v32
v_lshlrev_b32 v1, 4, v1
v_lshl_add_u32 v{vDMA}, v30, 11, v1
s_mov_b32 s{sSLOT}, 0
s_cmp_ge_u32 s{sT1}, 20
s_cbranch_scc1 L_attn''')

A(f'''s_mul_i32 s{sA}, s{sT1}, 52
s_lshr_b32 s{sA}, s{sA}, 8
s_mul_i32 s{sB}, s{sA}, 5
s_sub_u32 s{sB}, s{sT1}, s{sB}
s_mul_i32 s{sT3}, s{sT3}, 5
s_add_u32 s{sB}, s{sB}, s{sT3}
s_lshl_b32 s{sT2}, s{sT2}, 2
s_add_u32 s{sA}, s{sA}, s{sT2}
v_xor_b32 v{vDMA+1}, 64, v{vDMA}
v_add_u32 v{vDMA+1}, {16384-1024}, v{vDMA+1}
s_lshr_b32 s{sT0}, s{sW}, 2
s_and_b32 s{sT1}, s{sW}, 1
s_add_u32 s{sT2}, s{sT0}, 4
s_mul_i32 s{sT2}, s{sT2}, s{sT1}
s_lshl_b32 s{sT3}, s{sT0}, 3
s_add_u32 s{sT2}, s{sT2}, s{sT3}
s_lshl_b32 s{sT3}, s{sT2}, 6
v_add_u32 v1, s{sT3}, v{vL}
s_movk_i32 s{sT4}, 3641
s_movk_i32 s{sT5}, 2464''')
for i in range(5):
    A(f'''v_mul_u32_u24 v2, s{sT4}, v1
v_lshrrev_b32 v2, 16, v2
v_mul_u32_u24 v2, s{sT5}, v2
v_lshl_add_u32 v{vDMA+2+i}, v1, 4, v2''')
    if i % 4: A(f'v_subrev_u32 v{vDMA+2+i}, {(i % 4)*1024}, v{vDMA+2+i}')
    if i < 4: A('v_add_u32 v1, 64, v1')
A(f'''s_bfe_u32 s{sT3}, s{sW}, 0x10001
s_mul_i32 s{sD+1}, s{sT3}, {UPOFF}
s_lshl_b32 s{sT2}, s{sT2}, 10
s_add_u32 s{sD+1}, s{sD+1}, s{sT2}
s_add_u32 s{sD+1}, s{sD+1}, 16384
s_lshl_b32 s{sD}, s{sW}, 11
s_mul_i32 s{sST}, s{sB}, 9
s_sub_u32 s{sT2}, s{sB}, 6
s_max_i32 s{sT2}, s{sT2}, 0
s_sub_u32 s{sST}, s{sST}, s{sT2}
s_lshl_b32 s{sBW}, s{sST}, 5
s_lshl_b32 s{sBX}, s{sA}, 7
s_lshl_b32 s{sT2}, s{sT0}, 6
s_add_u32 s{sBX}, s{sBX}, s{sT2}
s_add_u32 s{sBX}, s{sBX}, s{sT3}
s_lshl_b32 s{sT2}, s{sT1}, 5
s_add_u32 s{sBX}, s{sBX}, s{sT2}
s_lshl_b32 s{sBX}, s{sBX}, 10
s_mov_b32 s{sMW}, {64*2752}
s_lshr_b32 s{sKS}, s{sA}, 1''')
if OPT['rot'] == 2: A(f's_add_u32 s{sKS}, s{sKS}, s{sB}\ns_and_b32 s{sKS}, s{sKS}, 7')
A(f'''s_cmp_lt_u32 s{sB}, 6
s_cselect_b32 s{sN0}, 5, 4''')
lines(SOFF)
A(f'''s_cmp_eq_u32 s{sT3}, 1
s_waitcnt lgkmcnt(0)
s_cselect_b32 s{SRD_W}, s{sKA+10}, s{sKA+8}
s_cselect_b32 s{SRD_W+1}, s{sKA+11}, s{sKA+9}
s_mov_b32 s{SRD_W+2}, {512*2752}
s_mov_b32 s{SRD_W+3}, 0x20000''')
if OPT['stamps']: A(f's_mov_b32 s{sSTAMP}, s{sCLK}')
build_srd(SRD_XR, sKA, 2048 * 1024)
stat_load()
build_srd(SRD_X, sKA, 2048 * 1024)
FX = [dma(vDMA, SRD_X, sOX, 0, [f's_add_u32 m0, s{sSLOT}, s{sD}']), dma(vDMA + 1, SRD_X, sOX, 1024)]
FW = [dma(vDMA + 2, SRD_W, sOW, 0, [f's_add_u32 m0, s{sSLOT}, s{sD+1}'])] + [dma(vDMA + 2 + i, SRD_W, sOW, 1024 * i) for i in range(1, 4)]
FW5 = dma(vDMA + 6, SRD_W, sOW, 0, ['s_add_u32 m0, m0, 4096'])
def fw5_guarded(tag):
    uid[0] += 1
    A(f's_cmp_lt_u32 s{sW}, 4\ns_cbranch_scc1 L_no5{uid[0]}'); lines(FW5); A(f'L_no5{uid[0]}:')
stamp(1)
vm = Q(63); vm.issue('code'); vm.issue('sr')
for g in FW: lines(g); vm.issue('w0')
fw5_guarded('w0')
for g in FX: lines(g); vm.issue('x0')
publish_tag()
stamp(1)
lines(ADV); lines(SOFF)
setup2()
A('v_mov_b32 v56, 0\nv_mov_b32 v57, 0\nv_mov_b32 v58, 0\nv_mov_b32 v59, 0')
for T in range(5): A(mf32(vr(vACC + 16*T, 16), 'v[56:59]', 'v[56:59]', '0'))
A(f'''v_and_b32 v1, 31, v{vL}
s_and_b32 s{sT0}, s{sW}, 3
s_lshl_b32 s{sT0}, s{sT0}, 5
v_add_u32 v1, s{sT0}, v1
v_bfe_u32 v2, v1, 1, 3
v_lshrrev_b32 v3, 5, v{vL}
v_xor_b32 v2, v2, v3
v_lshlrev_b32 v2, 4, v2
v_lshl_add_u32 v{vRX}, v1, 7, v2
v_xor_b32 v{vRX+1}, 32, v{vRX}
v_xor_b32 v{vRX+2}, 64, v{vRX}
v_xor_b32 v{vRX+3}, 96, v{vRX}
v_bfe_u32 v1, v{vL}, 2, 2
v_and_b32 v2, 3, v{vL}
v_lshlrev_b32 v2, 3, v2
s_movk_i32 s{sT0}, 288
v_mad_u32_u24 v35, v1, s{sT0}, v2
v_mul_u32_u24 v2, 2304, v3
v_bfe_u32 v1, v{vL}, 4, 1
v_mul_u32_u24 v{vRW}, {UPOFF}, v1
v_add3_u32 v{vRW}, v{vRW}, v2, v35
s_lshr_b32 s{sT0}, s{sW}, 2
s_mul_i32 s{sT0}, s{sT0}, s{sN0}
s_lshl_b32 s{sT0}, s{sT0}, 5
s_add_u32 s{sT0}, s{sT0}, 16384
v_add_u32 v{vRW}, s{sT0}, v{vRW}
s_and_b32 s{sT0}, s{sW}, 1
s_mul_i32 s{sT0}, s{sT0}, {UPOFF}
s_add_u32 s{sT0}, s{sT0}, 16384
v_add_u32 v35, s{sT0}, v35
v_mul_u32_u24 v34, 1152, v32
v_add_u32 v34, v34, v35
v_mul_u32_u24 v33, 1152, v3
v_lshl_add_u32 v33, v1, 7, v33
s_lshr_b32 s{sT1}, s{sW}, 1
s_lshl_b32 s{sT2}, s{sT1}, 5
v_add3_u32 v33, v33, v35, s{sT2}''')
A(f'''s_lshl_b32 s{sT0}, s2, 2
s_add_u32 s{sT0}, s{sT0}, {FLAG_S}
s_lshl_b32 s{sT3}, s{sB}, 5
s_add_u32 s{sT3}, s{sT3}, {FLAG_C}
s_lshl_b32 s{sT2}, s{sA}, 1
s_add_u32 s{sT4}, s{sT2}, s{sT3}
s_bitcmp0_b32 s{sA}, 0
s_cselect_b32 s{sT4}, s{sT4}, s{sT0}
v_mov_b32 v{vFL}, s{sT4}
v_writelane_b32 v{vFL}, s{sT0}, 0
s_lshl_b32 s{sT0}, s{sA}, 6
s_add_u32 s{sT0}, s{sT0}, {FLAG_S}
v_and_b32 v2, 15, v{vL}
v_lshl_add_u32 v3, v2, 2, s{sT0}
v_lshl_add_u32 v31, v31, 2, s{sT3}
v_cmp_gt_u32 vcc, 32, v{vL}
v_cndmask_b32 v{vPL}, v31, v3, vcc
s_mul_i32 s{sT0}, s{sB}, 9216
s_add_u32 s{sT0}, s{sT0}, s{sT2}
s_and_b32 s{sT3}, s{sW}, 1
s_lshl_b32 s{sT3}, s{sT3}, 9
s_add_u32 s{sT0}, s{sT0}, s{sT3}
s_add_u32 s{sT0}, s{sT0}, {CS_OFF}
v_lshl_add_u32 v2, v2, 5, s{sT0}
s_lshl_b32 s{sT3}, s{sT1}, 10
v_lshlrev_b32 v35, 12, v1
v_add3_u32 v35, v35, v2, s{sT3}
v_mov_b32 v3, {OOB}
v_cndmask_b32 v35, v3, v35, vcc
v_add_u32 v32, 8192, v2
s_cmp_eq_u32 s{sT1}, 0
s_cselect_b32 s{sT3}, 16, 0
v_cmp_gt_u32 vcc, s{sT3}, v{vL}
v_cndmask_b32 v32, v3, v32, vcc''')
A(f'''v_and_b32 v1, 31, v{vL}
s_lshl_b32 s{sT0}, s{sA}, 7
s_bfe_u32 s{sT1}, s{sW}, 0x10001
s_lshl_b32 s{sT1}, s{sT1}, 6
s_add_u32 s{sT0}, s{sT0}, s{sT1}
s_add_u32 s{sT0}, s{sT0}, s{sMH}
s_lshl_b32 s{sT0}, s{sT0}, 2
s_add_u32 s{sT0}, s{sT0}, {STAT_OFF}
v_lshl_add_u32 v20, v1, 3, s{sT0}
v_lshlrev_b32 v1, 5, v1
v_lshrrev_b32 v2, 5, v{vL}
v_lshl_add_u32 v21, v2, 4, v1
s_mul_i32 s{sT0}, s{sB}, 9216
s_add_u32 s{sT0}, s{sT0}, {CS_OFF}
s_lshr_b32 s{sT4}, s{sW}, 2
s_mul_i32 s{sT2}, s{sT4}, s{sN0}
s_sub_u32 s{sT1}, s{sN0}, 1
s_cmp_eq_u32 s{sT4}, 1
s_cselect_b32 s{sT1}, 3, s{sT1}
s_add_u32 s{sT1}, s{sT1}, s{sT2}
s_lshl_b32 s{sT1}, s{sT1}, 10
s_add_u32 s{sP2}, s{sT1}, s{sT0}
s_min_u32 s{sT1}, s{sW}, 6
s_lshl_b32 s{sT3}, s{sT1}, 10
s_add_u32 s{sP3}, s{sT3}, {SCR}
s_add_u32 s{sT1}, s{sT1}, 2
s_cmp_gt_u32 s{sT1}, s{sN0}
s_cselect_b32 s{sT1}, 1024, 0
s_add_u32 s{sT0}, s{sT0}, s{sT1}
s_add_u32 s{sP4}, s{sT0}, s{sT3}
s_sub_u32 s{sT1}, s{sT2}, 1
s_max_i32 s{sT1}, s{sT1}, 0
s_lshl_b32 s{sT1}, s{sT1}, 10
s_add_u32 s{sT1}, s{sT1}, {SCR}
v_add_u32 v{vAD}, s{sT1}, v21
s_lshl_b32 s{sT0}, s{sA}, 2
s_and_b32 s{sT1}, s{sW}, 3
s_add_u32 s{sT0}, s{sT0}, s{sT1}
s_mul_i32 s{sP5}, s{sT0}, {TG_STRIDE}
s_lshl_b32 s{sFLAG}, s{sA}, 7
s_add_u32 s{sT0}, s{sST}, s{sT2}
s_lshl_b32 s{sT0}, s{sT0}, 10
s_add_u32 s{sP5}, s{sP5}, s{sT0}
s_lshl_b32 s{sT0}, s{sB}, 2
s_add_u32 s{sFLAG}, s{sFLAG}, s{sT0}''')
tail_prepare(); baddr_early(31)
stamp(1)
A(f's_waitcnt vmcnt({vm.need({"sr"})})')
stamp(1)
E = Inter()
E.push([g + [lambda: vm.issue('s1')] for g in FW], 10)
stat_compute(E); vm.issue('st')
E.flush()
fw5_guarded('s1')
for g in FX: lines(g); vm.issue('s1')
lines(ADV); lines(SOFF)
touches(vm)
A('v_mov_b32 v52, 0\nv_mov_b32 v53, 0\nv_mov_b32 v54, 0\nv_mov_b32 v55, 0')
A(f's_waitcnt vmcnt({vm.need({"w0"})})\ns_barrier')
stamp(1)
A(f's_bitcmp1_b32 s{sA}, 0\ns_cbranch_scc1 L_nocs')
for n in range(8): A(f'ds_read_b64_tr_b16 {vr(56+2*n, 2)}, v33 offset:{n*2304}')
for n in range(4): A(f'ds_read_b64_tr_b16 {vr(72+2*n, 2)}, v34 offset:{n*4608 + 256}')
for n in range(8):
    if n % 2 == 0: A(f's_waitcnt lgkmcnt({10 - n})')
    A(f'v_dot2c_f32_bf16 v52, s{sONES}, v{56+2*n}\nv_dot2c_f32_bf16 v54, s{sONES}, v{57+2*n}')
A('s_waitcnt lgkmcnt(0)')
for n in range(8): A(f'v_dot2c_f32_bf16 v{53 + 2*(n & 1)}, s{sONES}, v{72+n}')
A('''v_add_f32 v52, v52, v54
v_add_f32 v53, v53, v55
v_mov_b32 v54, v52
v_mov_b32 v55, v53
v_permlane32_swap_b32 v52, v54
v_permlane32_swap_b32 v53, v55
v_add_f32 v52, v52, v54
v_add_f32 v53, v53, v55
v_mov_b32 v55, v53
v_permlane16_swap_b32 v53, v55
v_add_f32 v53, v53, v55''')
split_hilo(52, 54); split_hilo(53, 55)
A(f'''buffer_store_dword v52, v35, {srd(SRD_AUX)}, 0 offen sc1
buffer_store_dword v53, v32, {srd(SRD_AUX)}, 0 offen sc1
L_nocs:''')
stamp(1)
A(f's_waitcnt vmcnt({vm.need({"x0"})})\ns_barrier')
stamp(); stamp(1)
if OPT['exp'] in (5, 7): A(f's_mov_b32 s{SRD_X+2}, 0\ns_mov_b32 s{SRD_W+2}, 0\ns_mov_b32 s{SRD_B+2}, 0')
A(f'''s_lshr_b32 s{sT0}, s{sW}, 2
s_add_u32 s{sT0}, s{sT0}, 4
s_cmp_lt_u32 s{sT0}, s{sN0}
s_cbranch_scc0 L_f4''')

lg = Q(15)
vC1, vIR = 18, 20
vBM = 36
vCL = 40
def ffn_role(nt, n):
    NM = 4 * nt
    NHD = nt - 2
    def rw(m):
        p, T = divmod(m, nt); s = vFR + 8 + (m % nt) * 4
        A(f'ds_read_b64_tr_b16 {vr(s, 2)}, v{vRW} offset:{p*4608 + T*32}'); lg.issue(('w', m))
        A(f'ds_read_b64_tr_b16 {vr(s+2, 2)}, v{vRW} offset:{p*4608 + T*32 + 1152}'); lg.issue(('w', m))
    def rx(p):
        A(f'ds_read_b128 {vr(vFR + (p & 1)*4, 4)}, v{vRX+p}'); lg.issue(('x', p))
    def mm(m):
        p, T = divmod(m, nt); s = vFR + 8 + (m % nt) * 4
        A(mf32(vr(vACC + 16*T, 16), vr(s, 4), vr(vFR + (p & 1)*4, 4), vr(vACC + 16*T, 16)))
    D = nt - 1
    def five():
        uid[0] += 1
        return [f's_cmp_lt_u32 s{sW}, 4', f's_cbranch_scc1 L_no5{uid[0]}'] + FW5 + [f'L_no5{uid[0]}:']
    def fill_for(main):
        fill = {}
        dl = (FX + FW + ([five()] if nt == 4 else [])) if main else tail_dma()
        last = NM - 3
        if main: dl = dl + L2T
        if not OPT['nodma']: spread(dl, list(range(0, last + 1)), fill)
        spread([RDELTA[:2], RDELTA[2:]], [2, 3], fill)
        if main: spread([SOFFX, SOFFWN, KSINC, [f's_mov_b32 s{sOW}, s{sNW}']], [7, 8, 9, last], fill)
        spread([ADV], [last], fill)
        spread([[f'v_add_u32 v{vRX+i}, s{sDELTA}, v{vRX+i}'] for i in range(4)], [4, 6, nt + 1 + NHD, 2*nt + 1 + NHD], fill)
        spread([[f'v_add_u32 v{vRW}, s{sDELTA}, v{vRW}']], [NM - nt + NHD], fill)
        return fill
    def head(fill, with_mfma, extra=None):
        itstamp()
        lg.drain()
        nxt = 0
        for m in range(NHD):
            if with_mfma: mm(NM - NHD + m)
            while nxt <= nt - NHD + m and nxt < D:
                rw(nxt)
                if nxt == 0: rx(0)
                nxt += 1
            if extra and extra[m]: extra[m]()
            lines(fill.get(m, []))
    def rest(fill, last_it, label):
        for m in range(NM - NHD):
            p, T = divmod(m, nt)
            if m == NM - NHD - 1:
                A(f's_waitcnt vmcnt({6 + len(L2T) if last_it == 6 else 6}) lgkmcnt(0)'); lg.drain()
            c = lg.need({('w', m), ('x', p)})
            if c is not None: A(f's_waitcnt lgkmcnt({c})')
            mm(m)
            if m + D < NM: rw(m + D)
            if T == 1 and p < 3: rx(p + 1)
            lines(fill.get(m + NHD, []))
            if m == NM - NHD - 2: A(f's_add_u32 s{sIT}, s{sIT}, 1\ns_cmp_lt_u32 s{sIT}, {last_it}')
        A(f's_cbranch_scc0 {label}\n{LB_}')
    fm = fill_for(True)
    head(fm, False)
    A(f'L_{n}loop:')
    rest(fm, 6, f'L_{n}exit')
    head(fm, True, [lambda: hcheck(n), None, None])
    A(f's_branch L_{n}loop\nL_{n}exit:\n{LB_}')
    def inter():
        check_flag0(n)
        tail_setup()
        A(f'''buffer_load_dword v{vST}, v20, {srd(SRD_AUX)}, 0 offen sc1
s_mov_b32 m0, s{sP3}
buffer_load_dwordx4 {vr(vCL, 4)}, v21, {srd(SRD_AUX)}, s{sP2} offen sc1
buffer_load_dwordx4 v{vL16}, {srd(SRD_AUX)}, s{sP4} offen sc1 lds''')
    ft = fill_for(False)
    head(ft, True, [inter, None, None])
    A(f'L_{n}tail:')
    rest(ft, 8, f'L_{n}texit')
    head(ft, True)
    A(f's_branch L_{n}tail\nL_{n}texit:\n{LB_}')
    stamp(); itdump()
    vCF = 20
    CF = [44, vFR, 32, 12]
    for t in range(nt - 1): A(f'ds_read_b128 {vr(CF[t], 4)}, v{vAD} offset:{t*1024}')
    if NHD == 3: mm(NM - 3)
    A(f'''v_and_b32 v1, 0xffff, v{vST}
v_and_b32 v{vST}, 0xffff0000, v{vST}
v_lshl_or_b32 v{vBM}, v1, 16, v1
v_rcp_f32 v{vC1}, v{vST}''')
    mm(NM - 2)
    A(f'''v_mov_b32 v{vBM+1}, v{vBM}
v_mov_b32 v{vBM+2}, v{vBM}
v_mov_b32 v{vBM+3}, v{vBM}''')
    mm(NM - 1)
    A(f'''v_mul_f32 v{vIR}, v{vST}, v{vST}
v_mul_f32 v{vIR+2}, v{vST}, v{vST}
v_mul_f32 v{vC1}, {f2u(-LOG2E)}, v{vC1}
s_waitcnt lgkmcnt(0)''')
    for t in range(nt):
        A(mf32(vr(vACC + 16*t, 16), vr(CF[t] if t < nt - 1 else vCL, 4), vr(vBM, 4), vr(vACC + 16*t, 16)))
        if t == 0: A('v_mov_b32 v10, v31'); baddr_first(31)
    vm = Q(63)
    for i in range(6): vm.issue('v9')
    E = Inter()
    def tile(T):
        a = vACC + 16*T
        t = 52 if T & 1 else 32
        t = 52
        o = 68 + 4 * (T & 1)
        for k in range(4):
            E(f'v_pk_mul_f32 {vr(t+2*k, 2)}, {vr(a+2*k, 2)}, {vr(vC1, 2)} op_sel_hi:[1,0]')
        for k in range(8): E(f'v_exp_f32 v{t+k}, v{t+k}')
        for k in range(4):
            E(f'v_pk_mul_f32 {vr(t+8+2*k, 2)}, {vr(a+2*k, 2)}, {vr(a+8+2*k, 2)}')
        for k in range(4):
            E(f'v_pk_fma_f32 {vr(t+2*k, 2)}, {vr(t+2*k, 2)}, {vr(vIR, 2)}, {vr(vIR+2, 2)} op_sel_hi:[1,0,0]')
        for k in range(8): E(f'v_rcp_f32 v{t+k}, v{t+k}')
        for k in range(4):
            E(f'v_pk_mul_f32 {vr(t+2*k, 2)}, {vr(t+2*k, 2)}, {vr(t+8+2*k, 2)}')
        for k in range(4):
            E(f'v_cvt_pk_bf16_f32 v{o+k}, v{t+2*k}, v{t+2*k+1}')
        if T == 4: A(f's_add_u32 s{sP5}, s{sP5}, 4096')
        off = f' offset:{(T % 4)*1024}' if T % 4 else ''
        A(f'buffer_store_dwordx4 {vr(o, 4)}, v{vL16}, {srd(SRD_ACT)}, s{sP5} offen{off} sc1'); vm.issue('st')
    E.push(breg_groups(0), 2)
    tile(0); E.flush()
    A(f's_waitcnt vmcnt({vm.need({"v9"})}) lgkmcnt(0)\ns_barrier')
    E.push(static_groups(0, vm, n) + static_groups(1, vm, n), 7)
    for T in range(1, nt): tile(T)
    E.flush()
    A('s_branch L_phase2')
    handlers(n)
ns0 = nstamp[0]
ffn_role(5, 'f5')
nst_save = nstamp[0]; nstamp[0] = ns0
A('L_f4:')
ffn_role(4, 'f4')

nstamp[0] = 1 if OPT['stamps'] else 0
A.label('L_attn')
A(f'''s_sub_u32 s{sT1}, s{sT1}, 20
s_lshr_b32 s{sA}, s{sT1}, 2
s_lshr_b32 s{sKS}, s{sA}, 1
s_lshl_b32 s{sT4}, s{sT2}, 1
s_add_u32 s{sKS}, s{sKS}, s{sT4}
s_mul_i32 s{sT2}, s{sT2}, 3
s_add_u32 s{sA}, s{sA}, s{sT2}
s_and_b32 s{sB}, s{sT1}, 3
s_lshl_b32 s{sT3}, s{sT3}, 2
s_add_u32 s{sB}, s{sB}, s{sT3}''')
if OPT['rot'] == 2: A(f's_add_u32 s{sKS}, s{sKS}, s{sB}\ns_and_b32 s{sKS}, s{sKS}, 7')
A(f'''s_and_b32 s{sT0}, s{sW}, 1
s_lshl_b32 s{sT1}, s{sT0}, 6
v_xor_b32 v{vDMA}, s{sT1}, v{vDMA}
v_xor_b32 v{vDMA+1}, 64, v{vDMA}
v_add_u32 v{vDMA+1}, {16384-1024}, v{vDMA+1}
v_add_u32 v{vDMA+2}, {2*(16384-1024)}, v{vDMA}
v_and_b32 v1, 1, v32
s_lshl_b32 s{sT1}, s{sT0}, 1
v_add_u32 v1, s{sT1}, v1
v_lshlrev_b32 v1, 1, v1
v_xor_b32 v1, v31, v1
v_lshlrev_b32 v1, 4, v1
v_mul_u32_u24 v2, 3072, v30
s_mul_i32 s{sT1}, s{sW}, 24576
v_add3_u32 v{vDMA+3}, v1, v2, s{sT1}
s_mul_i32 s{sST}, s{sA}, 176
s_and_b32 s{sT1}, s{sW}, 3
s_mul_i32 s{sT2}, s{sT1}, 48
s_lshr_b32 s{sT3}, s{sW}, 2
s_add_u32 s{sBX}, s{sST}, s{sT2}
s_add_u32 s{sBX}, s{sBX}, s{sT3}
s_lshl_b32 s{sBX}, s{sBX}, 10
s_lshl_b32 s{sBW}, s{sB}, 7
s_mov_b32 s{sMW}, {64*3072}
s_mul_i32 s{sD}, s{sW}, 3072
s_add_u32 s{sD+1}, s{sD}, 24576
s_mov_b64 s[{sEX}:{sEX+1}], -1
s_cmp_eq_u32 s{sT1}, 0
s_cmov_b32 s{sEX}, 0xffffff00
s_or_b32 s{sT1}, s{sT1}, s{sA}
s_cmp_eq_u32 s{sT1}, 0
s_cselect_b32 s{sT1}, {OOB}, 0
v_add_u32 v{vDMA}, s{sT1}, v{vDMA}''')
lines(SOFF)
A('s_waitcnt lgkmcnt(0)')
if OPT['stamps']: A(f's_mov_b32 s{sSTAMP}, s{sCLK}')
build_srd(SRD_XR, sKA, 2048 * 1024)
stat_load()
build_srd(SRD_W, sKA + 2, 512 * 3072)
A(f'''s_sub_u32 s{SRD_X}, s{sKA}, 16384
s_subb_u32 s{SRD_X+1}, s{sKA+1}, 0
s_mov_b32 s{SRD_X+2}, {2048*1024 + 16384}
s_mov_b32 s{SRD_X+3}, 0x20000''')
AX = [[f's_add_u32 m0, s{sSLOT}, s{sD}', f's_mov_b64 exec, s[{sEX}:{sEX+1}]'] + dma(vDMA, SRD_X, sOX, 0) + ['s_mov_b64 exec, -1'],
      dma(vDMA + 1, SRD_X, sOX, 1024), dma(vDMA + 2, SRD_X, sOX, 2048)]
AW = [dma(vDMA + 3, SRD_W, sOW, 0, [f's_add_u32 m0, s{sSLOT}, s{sD+1}']), dma(vDMA + 3, SRD_W, sOW, 1024), dma(vDMA + 3, SRD_W, sOW, 2048)]
stamp(1)
vm = Q(63); vm.issue('code'); vm.issue('sr')
for g in AX + AW: lines(g); vm.issue('s0')
publish_tag()
stamp(1)
lines(ADV); lines(SOFF)
setup2()
A('v_mov_b32 v56, 0\nv_mov_b32 v57, 0\nv_mov_b32 v58, 0\nv_mov_b32 v59, 0')
for T in range(5): A(mf32(vr(vACC + 16*T, 16), 'v[56:59]', 'v[56:59]', '0'))
A(f'''v_min_u32 v1, 5, v30
v_lshrrev_b32 v2, 1, v1
v_mul_u32_u24 v2, {SLOT}, v2
v_and_b32 v1, 1, v1
v_mul_u32_u24 v1, 12288, v1
v_add_u32 v1, v1, v2
v_lshl_add_u32 v1, v31, 4, v1
v_mov_b32 v60, s{sONES}
v_mov_b32 v61, s{sONES}
v_mov_b32 v62, s{sONES}
v_mov_b32 v63, s{sONES}
ds_write_b128 v1, v[60:63]
v_and_b32 v33, 15, v{vL}
s_mul_i32 s{sT0}, s{sMH}, 96
v_add_u32 v1, s{sT0}, v33
v_bfe_u32 v2, v1, 1, 3
v_xor_b32 v2, v2, v32
v_lshlrev_b32 v2, 4, v2
v_lshl_add_u32 v{vRX}, v1, 7, v2
v_xor_b32 v{vRX+1}, 64, v{vRX}
v_mul_u32_u24 v1, 3072, v32
v_bfe_u32 v2, v{vL}, 2, 2
v_lshl_add_u32 v1, v2, 7, v1
v_bfe_u32 v2, v{vL}, 3, 2
s_lshr_b32 s{sT0}, s{sW}, 1
v_xor_b32 v2, s{sT0}, v2
v_lshl_add_u32 v1, v2, 5, v1
v_and_b32 v2, 3, v{vL}
v_lshl_add_u32 v1, v2, 3, v1
v_add_u32 v{vRW}, 24576, v1
s_lshl_b32 s{sT0}, s2, 2
s_add_u32 s{sT0}, s{sT0}, {FLAG_S}
v_mov_b32 v{vFL}, s{sT0}
s_lshr_b32 s{sT0}, s{sST}, 3
s_sub_u32 s{sT0}, s{sT0}, 2
v_min_u32 v1, 23, v{vL}
v_add_u32 v1, s{sT0}, v1
v_max_i32 v1, 0, v1
v_min_u32 v1, 255, v1
v_lshlrev_b32 v1, 2, v1
v_add_u32 v{vPL}, {FLAG_S}, v1
v_lshlrev_b32 v2, 2, v32
v_sub_u32 v2, v33, v2
v_mov_b32 v3, 0xff800000''')
for j in range(4):
    A(f'''v_add_u32 v{vMSK+j}, {16-j}, v2
v_subrev_u32 v{vMSK+4+j}, {j}, v2
v_cmp_gt_u32 vcc, 8, v{vMSK+j}
v_cmp_gt_u32 s[{sT4}:{sT5}], 8, v{vMSK+4+j}
v_cndmask_b32 v{vMSK+j}, v3, 0, vcc
v_cndmask_b32 v{vMSK+4+j}, v3, 0, s[{sT4}:{sT5}]''')
A(f'''s_cmp_eq_u32 s{sA}, 0
s_cselect_b32 s{sT0}, 32, 0
v_cmp_gt_u32 vcc, s{sT0}, v{vL}''')
for j in range(4): A(f'v_cndmask_b32 v{vMSK+8+j}, v{vMSK+4+j}, v3, vcc')
A(f'''v_lshlrev_b32 v1, 1, v33
s_add_u32 s{sT0}, s{sMH}, s{sST}
s_sub_u32 s{sT0}, s{sT0}, 16
v_add_u32 v1, s{sT0}, v1
v_mov_b32 v3, {OOB}''')
for t in range(6):
    A(f'''v_cmp_gt_u32 vcc, 2048, v1
v_lshlrev_b32 v2, 2, v1
v_add_u32 v2, {STAT_OFF}, v2
v_cndmask_b32 v{vAD+t}, v3, v2, vcc''')
    if t < 5: A('v_add_u32 v1, 32, v1')
tail_prepare(); baddr_early(10)
OO = [8, 9, 13]
A(f'''v_and_b32 v1, 15, v{vL}
s_mul_i32 s{sP2}, s{sW}, 768
s_add_u32 s{sP2}, s{sP2}, {SCR}
v_lshl_add_u32 v14, v1, 2, s{sP2}
v_lshrrev_b32 v2, 5, v{vL}
v_lshl_add_u32 v1, v2, 4, v1
s_lshr_b32 s{sT0}, s{sST}, 1
s_sub_u32 s{sT0}, s{sT0}, 8
v_add_u32 v2, s{sT0}, v1
s_mov_b32 s{sT2}, {2*TG_STRIDE}
v_bfe_u32 v3, v{vL}, 4, 1
v_lshlrev_b32 v3, 9, v3
v_cmp_le_u32 vcc, 8, v1''')
for i in range(3):
    A(f'''v_lshrrev_b32 v{OO[i]}, 5, v2
v_mul_lo_u32 v{OO[i]}, v{OO[i]}, s{sT2}
v_and_b32 v1, 31, v2
v_lshl_add_u32 v1, v1, 4, v3
v_add_u32 v{OO[i]}, v{OO[i]}, v1''')
    if i < 2: A('v_add_u32 v2, 32, v2')
A(f'v_mov_b32 v1, {OOB}\nv_cndmask_b32 v{OO[0]}, v1, v{OO[0]}, vcc')
A(f'''s_lshl_b32 s{sFLAG}, s{sA}, 7
s_lshl_b32 s{sT3}, s{sB}, 2
s_add_u32 s{sFLAG}, s{sFLAG}, s{sT3}
s_lshr_b32 s{sT4}, s{sW}, 1
s_add_u32 s{sT3}, s{sT3}, s{sT4}
s_add_u32 s{sFLAG}, s{sFLAG}, {FLAG_A}
s_mul_i32 s{sT2}, s{sMH}, {TG_STRIDE}
s_add_u32 s{sT3}, s{sT3}, 86
s_lshl_b32 s{sT3}, s{sT3}, 10
s_add_u32 s{sP5}, s{sT2}, s{sT3}''')
stamp(1)
A(f's_waitcnt vmcnt({vm.need({"sr"})})')
stamp(1)
E = Inter()
E.push([g + [lambda: vm.issue('s1')] for g in AX + AW], 8)
stat_compute(E); vm.issue('st')
E.flush()
stamp(1)
lines(ADV); lines(SOFF)
touches(vm)
stamp(1)
A(f's_waitcnt vmcnt({vm.need({"s0"})}) lgkmcnt(0)\ns_barrier')
stamp(); stamp(1)
if OPT['exp'] in (5, 7): A(f's_mov_b32 s{SRD_X+2}, 0\ns_mov_b32 s{SRD_W+2}, 0\ns_mov_b32 s{SRD_B+2}, 0')
def xf(j, t): return 36 * j + 4 * t
def wf(j, m): return 36 * j + 24 + 4 * m
RORD = [('w', 0), ('x', 0), ('w', 1), ('w', 2), ('x', 1), ('x', 2), ('x', 3), ('x', 4), ('x', 5)]
def a_rd(j, k):
    kind, i = RORD[k]
    if kind == 'x':
        A(f'ds_read_b128 {ar(xf(j, i), 4)}, v{vRX+j} offset:{i*2048}'); lg.issue(('x', j, i))
    else:
        A(f'ds_read_b64_tr_b16 {ar(wf(j, i), 2)}, v{vRW} offset:{j*12288 + i*1024}'); lg.issue(('w', j, i))
        A(f'ds_read_b64_tr_b16 {ar(wf(j, i)+2, 2)}, v{vRW} offset:{j*12288 + i*1024 + 512}'); lg.issue(('w', j, i))
QD, KD, VD = vACC, vACC + 24, vACC + 48
def a_mm(n):
    j, r = divmod(n, 18); t, m = divmod(r, 3)
    acc = vr(vACC + 24*m + 4*t, 4)
    if m < 2: A(mf16(acc, ar(wf(j, m), 4), ar(xf(j, t), 4), acc))
    else: A(mf16(acc, ar(xf(j, t), 4), ar(wf(j, m), 4), acc))
NH = 12
def a_fill(main):
    fill = {}
    if not OPT['nodma']: spread((AX + AW) if main else tail_dma(), [2, 7, 13, 19, 24, 30], fill)
    if main and L2T: spread(L2T, [33], fill)
    spread([RDELTA[:2], RDELTA[2:]], [9, 10], fill)
    if main: spread([SOFFX, SOFFWN, KSINC, [f's_mov_b32 s{sOW}, s{sNW}']], [14, 15, 16, 31], fill)
    spread([ADV], [31], fill)
    spread([[f'v_add_u32 v{vRX}, s{sDELTA}, v{vRX}'], [f'v_add_u32 v{vRX+1}, s{sDELTA}, v{vRX+1}'], [f'v_add_u32 v{vRW}, s{sDELTA}, v{vRW}']], [11, 27, 28], fill)
    return fill
def a_head(fill, with_mfma, extra=None):
    itstamp()
    lg.drain()
    for m in range(NH):
        if with_mfma: a_mm(36 - NH + m)
        if m < 9: a_rd(0, m)
        if m == 1 and extra: extra()
        lines(fill.get(m, []))
def a_rest(fill, last_it, label):
    for n in range(36 - NH):
        j, r = divmod(n, 18); t, m = divmod(r, 3)
        if n == 35 - NH:
            A(f's_waitcnt vmcnt({6 + len(L2T) if last_it == 6 else 6}) lgkmcnt(0)'); lg.drain()
        c = lg.need({('w', j, m), ('x', j, t)})
        if c is not None: A(f's_waitcnt lgkmcnt({c})')
        a_mm(n)
        if 1 <= n <= 9: a_rd(1, n - 1)
        lines(fill.get(n + NH, []))
        if n == 34 - NH: A(f's_add_u32 s{sIT}, s{sIT}, 1\ns_cmp_lt_u32 s{sIT}, {last_it}')
    A(f's_cbranch_scc0 {label}\n{LB_}')
am, at = a_fill(True), a_fill(False)
a_head(am, False)
A('L_aloop:')
a_rest(am, 6, 'L_aexit')
a_head(am, True, lambda: hcheck('a'))
A(f's_branch L_aloop\nL_aexit:\n{LB_}')
def a_inter():
    check_flag0('a')
    tail_setup()
    for t in range(6): A(f'buffer_load_dword v{vST+t}, v{vAD+t}, {srd(SRD_AUX)}, 0 offen sc1')
a_head(at, True, a_inter)
A('L_atail:')
a_rest(at, 8, 'L_atexit')
a_head(at, True)
A(f's_branch L_atail\nL_atexit:\n{LB_}')
stamp(); itdump(); stamp(4)
vMR = 48
RR = [152, 154, 156, 158, 32, 34]
A(f'v_and_b32 v31, 48, v{vL}\nv_add_u32 v31, s{sP2}, v31')
for t in range(6):
    a_mm(24 + 2*t)
    A(f"""v_and_b32 v{RR[t]}, 0xffff0000, v{vST+t}
v_max_f32 v{RR[t]}, {f2u(1e-3)}, v{RR[t]}""")
    a_mm(25 + 2*t)
    A(f"""v_rcp_f32 v{RR[t]}, v{RR[t]}
v_lshlrev_b32 v{vMR+2*t}, 16, v{vST+t}
ds_write2_b32 v14, v{vMR+2*t}, v{RR[t]} offset0:{16*t} offset1:{96+16*t}""")
baddr_first(10)
ROW = [70, 16, 92]
def row_read(t):
    b = ROW[t % 3]
    A(f'ds_read_b128 {vr(b, 4)}, v31 offset:{64*t}\nds_read_b128 {vr(b+4, 4)}, v31 offset:{384 + 64*t}')
row_read(0); row_read(1)
stamp(4)
vm = Q(63)
for i in range(6): vm.issue('v9')
E = Inter()
vCQ, vCK, vCV = 60, 64, 68
A(f'v_mov_b32 v{vCV}, v{VD}\nv_mov_b32 v{vCV+1}, v{VD}')
for j in range(4): A(f'v_mov_b32_dpp v{vCK+j}, v{KD+j} row_newbcast:0 row_mask:0xf bank_mask:0xf')
A(f'v_permlane16_swap_b32 v{vCV}, v{vCV+1}')
for j in range(2): A(f'v_mov_b32_dpp v{vCQ+j}, v{QD+j} row_newbcast:0 row_mask:0xf bank_mask:0xf')
A(f'v_mov_b32 v{vCV+1}, v{vCV}')
for j in range(2, 4): A(f'v_mov_b32_dpp v{vCQ+j}, v{QD+j} row_newbcast:0 row_mask:0xf bank_mask:0xf')
A(f'v_permlane32_swap_b32 v{vCV}, v{vCV+1}')
QP, KP, VP = QD, KD, VD + 2
E.push(breg_groups(0), 4)
for t in range(6):
    for k in range(2): E(f'v_pk_fma_f32 {vr(QD+4*t+2*k, 2)}, {vr(vCQ+2*k, 2)}, {vr(vMR+2*t, 2)}, {vr(QD+4*t+2*k, 2)} op_sel_hi:[1,0,1]')
for t in range(6):
    for k in range(2): E(f'v_pk_fma_f32 {vr(KD+4*t+2*k, 2)}, {vr(vCK+2*k, 2)}, {vr(vMR+2*t, 2)}, {vr(KD+4*t+2*k, 2)} op_sel_hi:[1,0,1]')
for t in range(6):
    for k in range(2): E(f'v_cvt_pk_bf16_f32 v{QP+2*t+k}, v{QD+4*t+2*k}, v{QD+4*t+2*k+1}')
E.flush()
row_read(2)
for t in range(6):
    for k in range(2): A(f'v_pk_mul_f32 {vr(KD+4*t+2*k, 2)}, {vr(KD+4*t+2*k, 2)}, {vr(RR[t], 2)} op_sel_hi:[1,0]')
for t in range(6): A(f'v_mul_f32 v{vMR+2*t}, {f2u(0.25*LOG2E)}, v{RR[t]}')
for t in range(6):
    for k in range(2): A(f'v_cvt_pk_bf16_f32 v{KP+2*t+k}, v{KD+4*t+2*k}, v{KD+4*t+2*k+1}')
SB = [116, 60, 144, 92]
def s_mm(t):
    s = SB[t % 4]
    if t: A(mf16k(vr(s, 4), vr(KP+2*(t-1), 2), vr(QP+2*t, 2), vr(vMSK, 4)))
    A(mf16k(vr(s+4, 4), vr(KP+2*t, 2), vr(QP+2*t, 2), vr(vMSK + (4 if t else 8), 4)))
stamp(4)
A(f's_waitcnt vmcnt({vm.need({"v9"})}) lgkmcnt(0)\ns_barrier')
s_mm(0); s_mm(1)
E.push(static_groups(0, vm, 'a') + static_groups(1, vm, 'a'), 14)
for half in range(2):
    ts = range(3*half, 3*half + 3)
    if half: A('s_waitcnt lgkmcnt(0)')
    for t in ts:
        for k in range(2): E(f'v_pk_fma_f32 {vr(VD+4*t+2*k, 2)}, {vr(ROW[t%3]+2*k, 2)}, {vr(vCV, 2)}, {vr(VD+4*t+2*k, 2)} op_sel_hi:[1,0,1]')
    for t in ts:
        for k in range(2): E(f'v_pk_mul_f32 {vr(VD+4*t+2*k, 2)}, {vr(VD+4*t+2*k, 2)}, {vr(ROW[t%3]+4+2*k, 2)}')
    if half == 0:
        for t in range(3, 6): row_read(t)
    for t in ts:
        if t == 0: E(f'v_cvt_pk_bf16_f32 v{VD+2}, v{VD+2}, v{VD+3}\nv_cvt_pk_bf16_f32 v{VD+3}, v{VD}, v{VD+1}\nv_swap_b32 v{VD+2}, v{VD+3}')
        else:
            for k in range(2): E(f'v_cvt_pk_bf16_f32 v{VP+2*t+k}, v{VD+4*t+2*k}, v{VD+4*t+2*k+1}')
    if half == 0: rowmax = True
PB = [100, 124]
OB = [152, 16]; LB = [156, 20]
MXS = {0: (32, 33, 34), 2: (2, 3, 24), 4: (32, 33, 34)}
stamp(4)
def pmax(t):
    m0, m1, _ = MXS[t]
    ch = []
    for e, m in ((0, m0), (1, m1)):
        s = SB[(t + e) % 4]
        if t + e == 0: ch.append([f'v_max3_f32 v{m}, v{s+4}, v{s+5}, v{s+6}', f'v_max_f32 v{m}, v{m}, v{s+7}'])
        else: ch.append([f'v_max3_f32 v{m}, v{s}, v{s+1}, v{s+2}', f'v_max3_f32 v{m}, v{m}, v{s+3}, v{s+4}',
                         f'v_max3_f32 v{m}, v{m}, v{s+5}, v{s+6}', f'v_max_f32 v{m}, v{m}, v{s+7}'])
    return mix(ch[1], ch[0]), [f'v_permlane32_swap_b32 v{m0}, v{m1}', f'v_max_f32 v{m0}, v{m0}, v{m1}', f'v_mov_b32 v{m1}, v{m0}',
                               f'v_permlane16_swap_b32 v{m0}, v{m1}', f'v_max_f32 v{m0}, v{m0}, v{m1}', f'v_mov_b32 v{m1}, v{m0}',
                               f'v_permlane32_swap_b32 v{m0}, v{m1}']
def weave(chain, fill):
    fill = list(fill)
    for c in chain:
        E(c)
        for _ in range(2):
            if fill: E(fill.pop(0))
    for f in fill: E(f)
def pexp(t):
    m0, m1, n1 = MXS[t]
    E(f'v_mul_f32 v{n1}, -v{vMR+2*t+2}, v{m1}\nv_mul_f32 v{m0}, -v{vMR+2*t}, v{m0}')
    for e in range(2):
        s = SB[(t + e) % 4]; c = vMR + 2 * (t + e); k0 = 2 if t + e == 0 else 0
        for k in range(k0, 4): E(f'v_pk_fma_f32 {vr(s+2*k, 2)}, {vr(s+2*k, 2)}, {vr(c, 2)}, {vr(n1 if e else m0, 2)} op_sel_hi:[1,0,0]')
    for e in range(2):
        s = SB[(t + e) % 4]; k0 = 2 if t + e == 0 else 0
        for k in range(2*k0, 8): E(f'v_exp_f32 v{s+k}, v{s+k}')
        for k in range(k0, 4): E(f'v_cvt_pk_bf16_f32 v{PB[e]+k}, v{s+2*k}, v{s+2*k+1}')
        E(mf16(vr(LB[e], 4), 'v[72:75]', vr(PB[e], 4), '0'))
        E(mf16(vr(OB[e], 4), vr(VP + 2*(t + e - 1), 4), vr(PB[e], 4), '0'))
def pfin(t):
    x = 76
    out = [f'v_rcp_f32 v{LB[0]}, v{LB[0]}', f'v_rcp_f32 v{LB[1]}, v{LB[1]}']
    for e in range(2):
        for k in range(2): out.append(f'v_pk_mul_f32 {vr(OB[e]+2*k, 2)}, {vr(OB[e]+2*k, 2)}, {vr(LB[e], 2)} op_sel_hi:[1,0]')
    for e in range(2):
        for k in range(2): out.append(f'v_cvt_pk_bf16_f32 v{x+2*e+k}, v{OB[e]+2*k}, v{OB[e]+2*k+1}')
    return out
def pstore(t):
    x = 76
    E(f'v_permlane32_swap_b32 v{x}, v{x+2}\nv_permlane32_swap_b32 v{x+1}, v{x+3}')
    A(f'buffer_store_dwordx4 {vr(x, 4)}, v{OO[t//2]}, {srd(SRD_ACT)}, s{sP5} offen sc1'); vm.issue('st')
loc, crs = pmax(0)
for l in loc: E(l)
weave(crs, [f'v_mov_b32 v{72+i}, s{sONES}' for i in range(4)] + [f'v_mov_b32 v{PB[0]}, 0', f'v_mov_b32 v{PB[0]+1}, 0', f'v_mov_b32 v{VD}, 0', f'v_mov_b32 v{VD+1}, 0'])
for t in (0, 2, 4):
    if t < 4: s_mm(t + 2); s_mm(t + 3)
    pexp(t)
    if t < 4:
        loc, crs = pmax(t + 2)
        for l in loc: E(l)
        weave(crs, pfin(t))
    else:
        E.flush()
        for l in pfin(t): E(l)
    pstore(t)
    stamp(4)
assert nstamp[0] == nst_save or OPT['sg'] == 4, (nstamp[0], nst_save)

A.label('L_phase2')
stamp()
A(f'v_xor_b32 v{vB+1}, 64, v{vB}')
for g in breg_groups(1): lines(g)
vP = 128
vRING = 80; NRING = 12
vLB = 48
vXR = 36
vPO, vOO, vEX = 12, 13, 14
A(f'''v_and_b32 v1, 31, v{vL}
v_lshrrev_b32 v2, 5, v{vL}
s_lshl_b32 s{sT2}, s{sR}, 6
s_add_u32 s{sT2}, s{sT2}, s{sMH}
s_lshl_b32 s{sT2}, s{sT2}, 10
s_lshl_b32 s{sT3}, s{sCB}, 7
s_add_u32 s{sT2}, s{sT2}, s{sT3}
s_lshl_b32 s{sT3}, s{sKQ}, 5
s_add_u32 s{sT2}, s{sT2}, s{sT3}
v_lshlrev_b32 v{vOO}, 11, v1
v_lshl_add_u32 v{vOO}, v2, 4, v{vOO}
v_add_u32 v{vOO}, s{sT2}, v{vOO}
s_lshl_b32 s{sT2}, s{sR}, 1
s_add_u32 s{sT2}, s{sT2}, s{sMH}
s_mul_i32 s{sOX}, s{sT2}, {TG_STRIDE}
s_sub_u32 s{sT1}, s{sKQ}, 1
s_mul_i32 s{sT3}, s{sT1}, {29*1024}
s_cmp_eq_u32 s{sKQ}, 0
s_cselect_b32 s{sT3}, {86*1024}, s{sT3}
s_add_u32 s{sOX}, s{sOX}, s{sT3}
s_add_u32 s{sOW}, s{sOX}, {28*1024}
s_cmp_eq_u32 s{sKQ}, 0
s_cselect_b32 s{sNW}, s{sOW}, {OOB}
s_cmp_eq_u32 s{sKQ}, 3
s_cselect_b32 s{sOW}, {OOB}, s{sOW}
s_lshr_b32 s{sT2}, s{sR}, 1
s_lshl_b32 s{sT2}, s{sT2}, 7
v_min_u32 v3, 9, v{vL}
v_lshl_add_u32 v{vPO}, v3, 2, s{sT2}
s_lshl_b32 s{sT3}, s{sR}, 6
s_mul_i32 s{sT4}, s{sT3}, 745
s_lshr_b32 s{sT4}, s{sT4}, 17
s_add_u32 s{sT3}, s{sT3}, 63
s_mul_i32 s{sT3}, s{sT3}, 745
s_lshr_b32 s{sT3}, s{sT3}, 17
s_sub_u32 s{sT3}, s{sT3}, s{sT4}
s_lshl_b32 s{sT3}, s{sT3}, 7
s_lshl_b32 s{sT4}, s{sT4}, 7
s_add_u32 s{sT4}, s{sT4}, {FLAG_A}
v_mul_u32_u24 v2, s{sT3}, v2
v_and_b32 v1, 7, v{vL}
v_lshl_add_u32 v1, v1, 2, s{sT4}
v_add_u32 v1, v1, v2
s_cmp_eq_u32 s{sKQ}, 0
s_cselect_b64 vcc, -1, 0
v_cndmask_b32 v{vPO}, v{vPO}, v1, vcc
s_lshl_b32 s{sT0}, s{sMH}, 15
v_add_u32 v{vEX}, s{sT0}, v{vL16}
v_mov_b32 v2, s{sTAG}
s_waitcnt vmcnt(0) lgkmcnt(0)
s_barrier
s_cmp_lg_u32 s{sW}, 0
s_cbranch_scc1 L_noflag
s_mov_b64 exec, 1
buffer_store_dword v2, off, {srd(SRD_AUX)}, s{sFLAG} sc1
s_mov_b64 exec, -1
L_noflag:
v_add_u32 v{vB+4}, s{sQ1}, v10
v_xor_b32 v{vB+5}, 64, v{vB+4}
v_add_u32 v{vB}, {SLOT}, v{vB}
v_add_u32 v{vB+1}, {SLOT}, v{vB+1}''')
stamp(); stamp(3)
if OPT['exp'] == 8: A(f's_mov_b32 s{SRD_B+2}, 0')
for g in static_groups(2, Q(63), 'p'): lines(g)
stamp(3)
if not OPT['lateb']: A('s_waitcnt vmcnt(0)\ns_barrier')
A(f"""s_min_u32 s{sT1}, s{sKQ}, 1
s_lshl_b32 s{sT1}, s{sT1}, 2
s_add_u32 s{sT1}, s{sT1}, {LDS_BYTES - 8}
v_mov_b32 v1, s{sT1}
s_mov_b32 s{sT0}, 0
s_and_b32 s{sT2}, s{sW}, 5
s_cmp_lg_u32 s{sT2}, 0
s_cbranch_scc1 L_lpoll
L_poll:
buffer_load_dword v3, v{vPO}, {srd(SRD_AUX)}, 0 offen sc1
s_add_u32 s{sT0}, s{sT0}, 1
s_waitcnt vmcnt(0)
v_cmp_ne_u32 vcc, s{sTAG}, v3
s_cbranch_vccz L_ptell
s_sleep {OPT['sleep']}
s_cmp_lt_u32 s{sT0}, {SPIN}
s_cbranch_scc1 L_poll
L_ptell:
ds_write_b32 v1, v2
s_branch L_pollok
L_lpoll:
ds_read_b32 v3, v1
s_add_u32 s{sT0}, s{sT0}, 1
s_waitcnt lgkmcnt(0)
v_cmp_ne_u32 vcc, s{sTAG}, v3
s_cbranch_vccz L_pollok
s_sleep 1
s_cmp_lt_u32 s{sT0}, {SPIN*8}
s_cbranch_scc1 L_lpoll
L_pollok:""")
stamp(); stamp(3)
vm = Q(63); lg = Q(15)
def a_load(st):
    so = sOX if st < 28 else (sOW if st == 28 else sNW)
    if st and st % 4 == 0 and st < 28: A(f's_add_u32 s{sOX}, s{sOX}, 4096')
    off = f' offset:{(st % 4)*1024}' if st % 4 else ''
    A(f'buffer_load_dwordx4 {vr(vRING + 4*(st % NRING), 4)}, v{vL16}, {srd(SRD_ACT)}, s{so} offen{off} sc1')
    vm.issue(st)
def b_read(st, ct):
    t = st - NREG
    r = [i for i, (a, b) in enumerate(REG_T) if a <= t < b][0]
    off = (t - REG_T[r][0]) * 2048
    for hf in range(2):
        A(f'ds_read_b64_tr_b16 {vr(vLB + (st % 4)*8 + ct*4 + hf*2, 2)}, v{vB + 2*r + ct} offset:{off + hf*1024}')
        lg.issue(st)
NB = OPT['burst']
for st in range(NB): a_load(st)
for st in range(32):
    if st == 21 and OPT['lateb']: A('s_barrier')
    if st == 28: A(f's_cmp_eq_u32 s{sKQ}, 3\ns_cbranch_scc1 L_p2done')
    if st == 29: A(f's_cmp_lg_u32 s{sKQ}, 0\ns_cbranch_scc1 L_p2done')
    w = []
    c = vm.need({st})
    if c is not None: w.append(f'vmcnt({c})')
    c = lg.need({st})
    if c is not None: w.append(f'lgkmcnt({c})')
    if w: A('s_waitcnt ' + ' '.join(w))
    if st in (0, 12): stamp(3)
    for ct in range(2):
        b = ar(st*8 + ct*4, 4) if st < NREG else vr(vLB + (st % 4)*8 + ct*4, 4)
        acc = vr(vP + 16*ct, 16)
        A(mf32(acc, b, vr(vRING + 4*(st % NRING), 4), acc if st else '0'))
        if NREG <= st + 2 < 32: b_read(st + 2, ct)
        if ct == 0 and st + NB < 32: a_load(st + NB)
        if ct == 1 and st + NB == 31:
            A(f'buffer_load_dwordx4 v[44:47], v{vOO}, {srd(SRD_XR)}, 0 offen'); vm.issue('x')
A('L_p2done:')
stamp(); stamp(3)
vF, vS, vR1 = 48, 56, 64
A(f'''s_waitcnt lgkmcnt(0)
s_barrier
s_cmp_eq_u32 s{sKQ}, 1
s_cbranch_scc1 L_red1
s_cmp_eq_u32 s{sKQ}, 2
s_cbranch_scc1 L_red2
s_cmp_eq_u32 s{sKQ}, 3
s_cbranch_scc1 L_red3''')
for q in range(4):
    if q: A(f'L_red{q}:')
    for c in range(4):
        if c == q: continue
        for i in range(2): A(f'ds_write_b128 v{vEX}, {vr(vP + 8*c + 4*i, 4)} offset:{q*8192 + c*2048 + i*1024}')
    A('s_waitcnt lgkmcnt(0)\ns_barrier')
    srcs = [s for s in range(4) if s != q]
    dst = {}
    for n_, s in enumerate(srcs):
        dst[s] = vS if s == 0 else vR1 + 8 * n_
        for i in range(2): A(f'ds_read_b128 {vr(dst[s] + 4*i, 4)}, v{vEX} offset:{s*8192 + q*2048 + i*1024}')
    dst[q] = vP + 8 * q
    if q == 0:
        for i in range(4): A(f'v_pk_mul_f32 {vr(vS+2*i, 2)}, {vr(vP+2*i, 2)}, 1.0 op_sel_hi:[1,0]')
    fs = [q] + [s for s in srcs if s] if q else [1, 2, 3]
    A('s_waitcnt lgkmcnt(2)')
    for i in range(4): A(f'v_pk_add_f32 {vr(vF+2*i, 2)}, {vr(dst[fs[0]]+2*i, 2)}, {vr(dst[fs[1]]+2*i, 2)}')
    A('s_waitcnt lgkmcnt(0)')
    for i in range(4): A(f'v_pk_add_f32 {vr(vF+2*i, 2)}, {vr(vF+2*i, 2)}, {vr(dst[fs[2]]+2*i, 2)}')
    if q < 3: A('s_branch L_final')
A.label('L_final')
A('s_waitcnt vmcnt(0)\nv_permlane32_swap_b32 v44, v46\nv_permlane32_swap_b32 v45, v47')
for i in range(4):
    A(f'v_lshlrev_b32 v{vXR+2*i}, 16, v{44+i}\nv_and_b32 v{vXR+2*i+1}, 0xffff0000, v{44+i}')
t = 88
assert sT1 % 2 == 0
A(f's_mov_b32 s{sT1}, {f2u(-LOG2E)}\ns_mov_b32 s{sT1+1}, {f2u(-LOG2E)}')
for i in range(4): A(f'v_pk_mul_f32 {vr(t+2*i, 2)}, {vr(vF+2*i, 2)}, s[{sT1}:{sT1+1}]')
for i in range(8): A(f'v_exp_f32 v{t+i}, v{t+i}')
for i in range(4): A(f'v_pk_mul_f32 {vr(vS+2*i, 2)}, {vr(vS+2*i, 2)}, {vr(vF+2*i, 2)}')
for i in range(4): A(f'v_pk_add_f32 {vr(t+2*i, 2)}, {vr(t+2*i, 2)}, 1.0 op_sel_hi:[1,0]')
for i in range(8): A(f'v_rcp_f32 v{t+i}, v{t+i}')
for i in range(4): A(f'v_pk_fma_f32 {vr(t+2*i, 2)}, {vr(t+2*i, 2)}, {vr(vS+2*i, 2)}, {vr(vXR+2*i, 2)}')
for i in range(4): A(f'v_cvt_pk_bf16_f32 v{44+i}, v{t+2*i}, v{t+2*i+1}')
A(f'''v_permlane32_swap_b32 v44, v46
v_permlane32_swap_b32 v45, v47
buffer_store_dwordx4 v[44:47], v{vOO}, {srd(SRD_OUT)}, 0 offen{['', ' sc1', ' nt', ' sc0 sc1'][OPT['ost']]}''')
if OPT['stamps'] and OPT['sg'] != 2:
    stamp(); stamp(3)
    A('s_waitcnt vmcnt(0)')
    stamp()
    A(f'''s_lshl_b32 s{sT0}, s2, 9
s_lshl_b32 s{sT1}, s{sW}, 6
s_add_u32 s{sT0}, s{sT0}, s{sT1}
s_add_u32 s{sT0}, s{sT0}, {STAMP_OFF}
v_mov_b32 v1, s{sT0}''')
    for i in range(10): A(f'v_mov_b32 v{48+i}, s{sSTAMP+i}')
    A(f'''global_store_dwordx4 v1, v[48:51], s[{sWS}:{sWS+1}]
global_store_dwordx4 v1, v[52:55], s[{sWS}:{sWS+1}] offset:16
global_store_dwordx2 v1, v[56:57], s[{sWS}:{sWS+1}] offset:32''')
A.label('L_end')
A('s_endpgm')
handlers('a')

body = A.finish(verbose=False)
hdr = open('cdna_kernels/' + NAME + '.s.ref').read().split('; Override launch')[0]
out = hdr + f'''; @launch grid=(256,1,1) block=(512,1,1) lds={LDS_BYTES}
.amdgcn_target "amdgcn-amd-amdhsa--gfx950"
.text
.globl {NAME}_kernel
.p2align 8
.type {NAME}_kernel,@function
''' + body + f'''L_codeend:
.fill (33024 - (L_codeend - {NAME}_kernel)) / 4, 4, 0xbf810000
.section .rodata,"a"
.p2align 6
.amdhsa_kernel {NAME}_kernel
  .amdhsa_next_free_vgpr 256
  .amdhsa_next_free_sgpr 102
  .amdhsa_accum_offset 160
  .amdhsa_group_segment_fixed_size 0
  .amdhsa_kernarg_size 80
  .amdhsa_user_sgpr_count 2
  .amdhsa_user_sgpr_kernarg_segment_ptr 1
  .amdhsa_system_sgpr_workgroup_id_x 1
.end_amdhsa_kernel
'''
sys.stdout.write(out)
sys.stderr.write(f'nops inserted: {A.nops}\n')
```

```python
import sys, os, struct
sys.path.insert(0, os.path.dirname(os.path.abspath(__file__)))
from asmlib import Asm, Q

NAME = "recurrent_scan__sliding_local_dilated__swiglu_ffn__prompt"
OPT = dict(tit=0, rot=1, l2r=2, lateb=0, ost=0, l2t=0, exp=0, sleep=1, stamps=0, sg=0, nodma=0, btouch=1, map2=0, burst=8, prio=0)
for a in sys.argv[1:]:
    k, v = a.split('=')
    assert k in OPT, k
    OPT[k] = int(v)

SLOT = 53504
UPOFF = 18560
LDS_BYTES = 163840
SCR = 2 * SLOT + 49152
ACT_OFF = 1 << 20
TG_STRIDE = 118 * 1024
ACT_BYTES = 64 * TG_STRIDE
FLAG_F = 0
FLAG_A = 0x2000
FLAG_S = 0x2c00
FLAG_C = 0x3000
STAT_OFF = 0x4000
CS_OFF = 0x8000
AUX_BYTES = 0x8000 + 10 * 9216
STAMP_OFF = 1 << 19
NREG = 12
LOG2E = 1.4426950408889634
OOB = 0x80000000
SPIN = 0x40000
def f2u(x): return struct.unpack('<I', struct.pack('<f', x))[0]

sW = 3
SRD_X, SRD_W, SRD_ACT, SRD_B, SRD_XR, SRD_OUT = 4, 8, 12, 16, 20, 24
sDBG, sWS = 28, 30
sKA = 32
sIT, sKS, sBX, sBW, sKQ, sMW, sOX, sOW = 48, 49, 50, 51, 52, 53, 54, 55
sD = 56
sN0 = 59
sSLOT, sDELTA, sONES, sRS = 60, 61, 62, 63
sR, sCB, sA, sB, sTAG, sT0, sT1, sT2, sT3 = 64, 65, 66, 67, 68, 69, 70, 71, 72
sMH, sST, sFLAG, sSOFF, sNW, sT4, sT5 = 73, 74, 75, 76, 77, 78, 79
SRD_AUX = 80
SRD_T = 84
sEX = 88
sCLK = 90
sSTAMP = 92
sHM = 0
sP0, sP1, sP2, sP3, sP4, sP5 = 32, 33, 34, 35, 38, 39
sQ0, sQ1, sQ2, sSO, sQ3, sL2 = 40, 41, 42, 43, 1, 46
def srd(n): return f's[{n}:{n+3}]'

vL = 0
vDMA = 4
vRX, vRW = 11, 15
vST = 16
vPL, vFL, vTG = 22, 23, 24
vBP = 25
vL16 = 29
vTCH = 19
vAD = 30
vMSK = 36
vFR = 48
vACC = 80
def vr(b, n): return f'v[{b}:{b+n-1}]'
def ar(b, n): return f'a[{b}:{b+n-1}]'

A = Asm()
STI = 's_memtime' if OPT['stamps'] == 2 else 's_memrealtime'
nstamp = [0]
def stamp(grp=0):
    if not OPT['stamps'] or grp != OPT['sg']: return
    i = nstamp[0]; nstamp[0] += 1
    assert i < 10
    A(f'{STI} s[{sCLK}:{sCLK+1}]\ns_waitcnt lgkmcnt(0)\ns_mov_b32 s{sSTAMP+i}, s{sCLK}')

def itstamp():
    if OPT['stamps'] and OPT['sg'] == 2:
        A(f'''{STI} s[{sCLK}:{sCLK+1}]
s_waitcnt lgkmcnt(0)
v_mov_b32 v77, s{sCLK}
v_cmp_eq_u32 vcc, s{sIT}, v{vL}
v_cndmask_b32 v78, v78, v77, vcc''')
def itdump():
    if OPT['stamps'] and OPT['sg'] == 2:
        itstamp()
        A(f'''s_lshl_b32 s{sT0}, s2, 9
s_lshl_b32 s{sT1}, s{sW}, 6
s_add_u32 s{sT0}, s{sT0}, s{sT1}
s_add_u32 s{sT0}, s{sT0}, {STAMP_OFF}
v_lshl_add_u32 v77, v{vL}, 2, s{sT0}
s_mov_b64 exec, 0x3ff
global_store_dword v77, v78, s[{sWS}:{sWS+1}]
s_mov_b64 exec, -1''')
def mf32(d, a, b, c): return f'v_mfma_f32_32x32x16_bf16 {d}, {a}, {b}, {c}'
def mf16(d, a, b, c): return f'v_mfma_f32_16x16x32_bf16 {d}, {a}, {b}, {c}'
def mf16k(d, a, b, c): return f'v_mfma_f32_16x16x16_bf16 {d}, {a}, {b}, {c}'

def spread(groups, slots, into=None):
    out = {} if into is None else into
    n = len(groups)
    for i, g in enumerate(groups):
        out.setdefault(slots[(i * len(slots)) // n], []).extend(g)
    return out
def lines(L):
    for l in L: (l() if callable(l) else A(l))
def mix(a, b):
    out = []; a = list(a); b = list(b)
    while a or b:
        if a: out.append(a.pop(0))
        if b: out.append(b.pop(0))
    return out

class Inter:
    def __init__(self): self.g = []; self.every = 1; self.c = 0
    def push(self, groups, every): self.g += list(groups); self.every = every; self.c = 0
    def __call__(self, text):
        for l in text.split('\n'):
            l = l.strip()
            if not l: continue
            A(l); self.c += 1
            if self.g and self.c >= self.every:
                lines(self.g.pop(0)); self.c = 0
    def flush(self):
        while self.g: lines(self.g.pop(0))

def build_srd(n, plo, size, E=None):
    (E or A)(f'''s_mov_b32 s{n}, s{plo}
s_mov_b32 s{n+1}, s{plo+1}
s_mov_b32 s{n+2}, {size}
s_mov_b32 s{n+3}, 0x20000''')

SOFFX = [f's_lshl_b32 s{sOX}, s{sKS}, 7', f's_add_u32 s{sOX}, s{sOX}, s{sBX}']
SOFFW = [f's_mul_i32 s{sOW}, s{sKS}, s{sMW}', f's_add_u32 s{sOW}, s{sOW}, s{sBW}']
SOFFWN = [f's_mul_i32 s{sNW}, s{sKS}, s{sMW}', f's_add_u32 s{sNW}, s{sNW}, s{sBW}']
KSINC = [f's_add_u32 s{sKS}, s{sKS}, 1', f's_and_b32 s{sKS}, s{sKS}, 7']
SOFF = SOFFX + SOFFW + KSINC
ADV = [f's_add_u32 s{sSLOT}, s{sSLOT}, {SLOT}', f's_cmp_eq_u32 s{sSLOT}, {3*SLOT}', f's_cselect_b32 s{sSLOT}, 0, s{sSLOT}']
RDELTA = [f's_add_u32 s{sRS}, s{sRS}, 1', f's_mov_b32 s{sDELTA}, {SLOT}', f's_cmp_eq_u32 s{sRS}, 3',
          f's_cmov_b32 s{sDELTA}, {(-2*SLOT) & 0xffffffff}', f's_cmov_b32 s{sRS}, 0']

def dma(v, s_, o_, im, pre=None, flags=''):
    off = f' offset:{im}' if im else ''
    return (pre or []) + [f'buffer_load_dwordx4 v{v}, {srd(s_)}, s{o_} offen{off}{flags} lds']

vSR = 48
def stat_load():
    A(f'''s_lshl_b32 s{sT0}, s2, 13
s_lshl_b32 s{sT1}, s{sW}, 10
s_add_u32 s{sT0}, s{sT0}, s{sT1}
buffer_load_dwordx4 {vr(vSR, 4)}, v{vL16}, {srd(SRD_XR)}, s{sT0} offen''')

def stat_compute(E):
    sm, sq, t, t2 = 52, 53, 54, 55
    E(f'v_mov_b32 v{sm}, 0\nv_mov_b32 v{sq}, 0')
    for i in range(4):
        E(f'v_dot2c_f32_bf16 v{sm}, s{sONES}, v{vSR+i}\nv_dot2c_f32_bf16 v{sq}, v{vSR+i}, v{vSR+i}')
    for r in (1, 2, 4, 8):
        E(f'v_add_f32_dpp v{sm}, v{sm}, v{sm} row_ror:{r} row_mask:0xf bank_mask:0xf')
        E(f'v_add_f32_dpp v{sq}, v{sq}, v{sq} row_ror:{r} row_mask:0xf bank_mask:0xf')
    for sw in (16, 32):
        E(f'''v_mov_b32 v{t}, v{sm}
v_mov_b32 v{t2}, v{sq}
v_permlane{sw}_swap_b32 v{sm}, v{t}
v_permlane{sw}_swap_b32 v{sq}, v{t2}
v_add_f32 v{sm}, v{sm}, v{t}
v_add_f32 v{sq}, v{sq}, v{t2}''')
    E(f'''v_mul_f32 v{sm}, {f2u(1/512)}, v{sm}
v_mul_f32 v{sq}, {f2u(1/512)}, v{sq}
v_fma_f32 v{sq}, -v{sm}, v{sm}, v{sq}
v_max_f32 v{sq}, 0, v{sq}
v_cvt_pk_bf16_f32 v{sq}, v{sq}, v{sq}
v_lshlrev_b32 v{sq}, 16, v{sq}
v_add_f32 v{sq}, {f2u(1e-5)}, v{sq}
v_cvt_pk_bf16_f32 v{sq}, v{sq}, v{sq}
v_lshlrev_b32 v{sq}, 16, v{sq}
v_sqrt_f32 v{sq}, v{sq}
s_lshl_b32 s{sT0}, s2, 5
s_lshl_b32 s{sT1}, s{sW}, 2
s_add_u32 s{sT0}, s{sT0}, s{sT1}
s_add_u32 s{sT0}, s{sT0}, {STAT_OFF}
v_cvt_pk_bf16_f32 v{sq}, -v{sm}, v{sq}''')
    A(f'''s_mov_b64 exec, 1
buffer_store_dword v{sq}, off, {srd(SRD_AUX)}, s{sT0} sc1
s_mov_b64 exec, -1''')

uid = [0]
def publish_tag():
    uid[0] += 1; n = uid[0]
    A(f'''s_or_b32 s{sT0}, s2, s{sW}
s_cmp_lg_u32 s{sT0}, 0
s_cbranch_scc1 L_notag{n}
s_memrealtime s[{sT4}:{sT5}]
s_waitcnt lgkmcnt(0)
s_or_b32 s{sT4}, s{sT4}, 1
v_mov_b32 v1, 0
v_mov_b32 v2, s{sT4}
s_mov_b64 exec, 1
global_store_dword v1, v2, s[{sDBG}:{sDBG+1}] sc1
s_mov_b64 exec, -1
L_notag{n}:''')

def setup2():
    build_srd(SRD_AUX, sWS, AUX_BYTES)
    build_srd(SRD_OUT, sKA + 14, 2048 * 1024)
    A(f'''s_add_u32 s{SRD_ACT}, s{sWS}, {ACT_OFF}
s_addc_u32 s{SRD_ACT+1}, s{sWS+1}, 0
s_mov_b32 s{SRD_ACT+2}, {ACT_BYTES if OPT['exp'] != 2 else 0}
s_mov_b32 s{SRD_ACT+3}, 0x20000
s_lshr_b32 s{sKQ}, s{sW}, 1
s_lshr_b32 s{sT0}, s{sW}, 2
s_xor_b32 s{sKQ}, s{sKQ}, s{sT0}
s_and_b32 s{sMH}, s{sW}, 1
s_cmp_eq_u32 s{sKQ}, 0
s_cselect_b32 s{SRD_B}, s{sKA+4}, s{sKA+12}
s_cselect_b32 s{SRD_B+1}, s{sKA+5}, s{sKA+13}
s_mov_b32 s{SRD_B+2}, {1376*1024}
s_cmov_b32 s{SRD_B+2}, {512*1024}
s_mov_b32 s{SRD_B+3}, 0x20000
s_mov_b32 s{sIT}, 0
s_mov_b32 s{sRS}, 0
s_cmp_eq_u32 s{sW}, 0
s_cselect_b32 s{sHM}, {2 | ((1 << OPT['tit']) & ~1)}, {(1 << OPT['tit']) & ~1}''')
    if OPT['prio']:
        uid[0] += 1
        A(f's_cmp_{"ge" if OPT["prio"] == 1 else "lt"}_u32 s{sW}, 4\ns_cbranch_scc0 L_np{uid[0]}\ns_setprio 1\nL_np{uid[0]}:')
    A(f'''
v_lshrrev_b32 v1, 3, v{vL}
v_and_b32 v2, 7, v{vL}
v_bfe_u32 v3, v{vL}, 4, 1
v_lshlrev_b32 v3, 2, v3
v_xor_b32 v2, v2, v3
v_lshlrev_b32 v2, 4, v2
v_lshl_add_u32 v{vBP}, v1, 10, v2''')
    for i in range(1, 4): A(f'v_add_u32 v{vBP+i}, {7168*i}, v{vBP}')
    A(f'''s_sub_u32 s{sT0}, s{sKQ}, 1
s_max_i32 s{sT0}, s{sT0}, 0
s_mul_i32 s{sSOFF}, s{sT0}, {464*1024}
s_lshl_b32 s{sT0}, s{sCB}, 7
s_add_u32 s{sSOFF}, s{sSOFF}, s{sT0}''')

def touch_prepare():
    A(f'''s_lshl_b32 s{sT0}, s2, 3
s_add_u32 s{sT0}, s{sT0}, s{sW}
s_sub_u32 s{sT1}, s{sT0}, 1376
s_cmp_ge_u32 s{sT0}, 1376
s_cselect_b32 s{sT0}, s{sT1}, s{sT0}
s_cselect_b32 s{SRD_T}, s{sKA+4}, s{sKA+12}
s_cselect_b32 s{SRD_T+1}, s{sKA+5}, s{sKA+13}
s_mov_b32 s{SRD_T+2}, {1376*1024}
s_cmov_b32 s{SRD_T+2}, {512*1024}
s_mov_b32 s{SRD_T+3}, 0x20000
s_lshl_b32 s{sL2}, s{sT0}, 10
v_and_b32 v18, 7, v{vL}
v_lshlrev_b32 v18, 7, v18
v_mov_b32 v17, 0''')
TOUCH = f'buffer_load_dword v{vTCH}, v18, {srd(SRD_T)}, s{sL2} offen'
def touches(vm):
    if not OPT['tit']: A(TOUCH); vm.issue('touch')
    A(f'global_load_dword v{vTG}, v17, s[{sDBG}:{sDBG+1}] sc1'); vm.issue('tag')

vTP = 18
L2T = []
def tail_prepare():
    A(f'''s_mul_i32 s{sT0}, s{sMH}, {48*1024}
s_add_u32 s{sP0}, s{sSOFF}, s{sT0}
s_mul_i32 s{sP1}, s{sKQ}, 12288
s_mul_i32 s{sT0}, s{sMH}, 6144
s_add_u32 s{sP1}, s{sP1}, s{sT0}''')
def tail_setup():
    A(f's_mov_b32 s{sOX}, s{sP0}\ns_mov_b32 s{sD}, s{sP1}')

def tail_dma():
    out = [dma(vBP, SRD_B, sOX, 0, [f's_add_u32 m0, s{sSLOT}, s{sD}'])]
    for i in range(1, 4): out.append(dma(vBP + i, SRD_B, sOX, 1024 * i))
    out.append(dma(vBP, SRD_B, sOX, 0, ['s_add_u32 m0, m0, 4096', f's_add_u32 s{sOX}, s{sOX}, 32768']))
    out.append(dma(vBP + 1, SRD_B, sOX, 1024) + [f's_add_u32 s{sOX}, s{sOX}, {96*1024 - 32768}'])
    return out

def get_tag(n):
    A(f'''v_readfirstlane_b32 s{sTAG}, v{vTG}
s_mov_b32 s{sT0}, 0
L_tag{n}:
s_cmp_lg_u32 s{sTAG}, 0
s_cbranch_scc1 L_tagok{n}
v_mov_b32 v1, 0
global_load_dword v{vTG}, v1, s[{sDBG}:{sDBG+1}] sc1
s_waitcnt vmcnt(0)
v_readfirstlane_b32 s{sTAG}, v{vTG}
s_add_u32 s{sT0}, s{sT0}, 1
s_cmp_lt_u32 s{sT0}, {SPIN}
s_cbranch_scc1 L_tag{n}
L_tagok{n}:''')
def handlers(n):
    A(f'L_{n}h:')
    if OPT['tit']: A(f's_cmp_eq_u32 s{sIT}, 1\ns_cbranch_scc1 L_{n}h1\n{TOUCH}\ns_branch L_{n}back\nL_{n}h1:')
    get_tag(n + 'h')
    A(f'''v_mov_b32 v1, s{sTAG}
s_mov_b64 exec, 3
buffer_store_dword v1, v{vFL}, {srd(SRD_AUX)}, 0 offen sc1
s_mov_b64 exec, -1
s_branch L_{n}back''')
LB_ = '' if OPT['exp'] in (6, 7) else 's_barrier'
def hcheck(n): A(f's_bitcmp1_b32 s{sHM}, s{sIT}\ns_cbranch_scc1 L_{n}h\nL_{n}back:')

def check_flag0(n):
    A(f'''s_mov_b32 s{sT0}, 0
L_f0{n}:
v_cmp_ne_u32 vcc, s{sTAG}, v{vTG}
s_cbranch_vccz L_f0ok{n}
buffer_load_dword v{vTG}, v{vPL}, {srd(SRD_AUX)}, 0 offen sc1
s_waitcnt vmcnt(0)
s_add_u32 s{sT0}, s{sT0}, 1
s_cmp_lt_u32 s{sT0}, {SPIN}
s_cbranch_scc1 L_f0{n}
L_f0ok{n}:''')

def split_hilo(r, t, E=None):
    (E or A)(f'''v_cvt_pk_bf16_f32 v{t}, v{r}, v{r}
v_lshlrev_b32 v{t}, 16, v{t}
v_sub_f32 v{t}, v{r}, v{t}
v_cvt_pk_bf16_f32 v{r}, v{r}, v{t}''')

vB = 4
REG_BASE = [SLOT, 2 * SLOT, 0]
REG_T = [(0, 6), (6, 12), (12, 20)]
def baddr_early(dst):
    A(f'''v_lshrrev_b32 v1, 5, v{vL}
v_bfe_u32 v2, v{vL}, 2, 2
v_lshl_add_u32 v1, v1, 2, v2
v_lshlrev_b32 v1, 7, v1
v_bfe_u32 v2, v{vL}, 3, 1
v_lshl_add_u32 v1, v2, 6, v1
v_bfe_u32 v2, v{vL}, 4, 1
v_lshl_add_u32 v1, v2, 5, v1
v_and_b32 v2, 3, v{vL}
v_lshl_add_u32 v{dst}, v2, 3, v1
s_mul_i32 s{sQ3}, s{sKQ}, 12288
s_lshl_b32 s{sT0}, s{sMH}, 10
s_add_u32 s{sQ0}, s{sQ3}, s{sT0}
s_min_u32 s{sT1}, s{sKQ}, 1
s_mul_i32 s{sT1}, s{sT1}, 6144
s_mul_i32 s{sQ1}, s{sKQ}, 10240
s_add_u32 s{sQ1}, s{sQ1}, s{sT1}
s_add_u32 s{sQ2}, s{sQ1}, s{sT0}
s_lshl_b32 s{sT0}, s{sMH}, 13
s_add_u32 s{sSO}, s{sSOFF}, s{sT0}
s_add_u32 s{sSO}, s{sSO}, {NREG*16384}''')
def baddr_first(src):
    if OPT['exp'] == 9: A(f's_mov_b32 s{SRD_B+2}, 0')
    A(f'''v_add_u32 v{vB}, s{sQ3}, v{src}
v_add_u32 v{vB+2}, {2*SLOT}, v{vB}
v_xor_b32 v{vB+3}, 64, v{vB+2}
v_add_u32 v11, {16384-2048}, v{vBP}''')
def breg_groups(half):
    out = []
    for st in range(6 * half, 6 * half + 6):
        for ct in range(2):
            base = vB + (2 if half == 0 else 0) + ct
            out.append([f'ds_read_b64_tr_b16 {ar(st*8 + ct*4 + hf*2, 2)}, v{base} offset:{(st % 6)*2048 + hf*1024}' for hf in range(2)])
    return out
def static_groups(r, vm, n):
    out = []
    a, b = REG_T[r]
    for t in range(a, b):
        g = []
        if t == 16: g += [f's_cmp_eq_u32 s{sKQ}, 3', f's_cbranch_scc1 L_sdone{n}']
        if t == 17: g += [f's_cmp_lg_u32 s{sKQ}, 0', f's_cbranch_scc1 L_sdone{n}']
        if t % 2 == 0:
            if t: g.append(f's_add_u32 s{sSO}, s{sSO}, 32768')
            g.append(f's_add_u32 m0, s{sQ0 if r < 2 else sQ2}, {REG_BASE[r] + (t - a)*2048}')
            g += dma(vBP, SRD_B, sSO, 0)
        else:
            g += dma(11, SRD_B, sSO, 2048)
        g.append(lambda: vm.issue('dma'))
        out.append(g)
    if r == 2:
        tail = sum(out[4:], []) + [f'L_sdone{n}:']
        out = out[:4] + [tail]
    return out

A(f'{NAME}_kernel:')
A(f'''s_load_dwordx16 s[{sKA}:{sKA+15}], s[0:1], 0
s_load_dwordx4 s[{sDBG}:{sDBG+3}], s[0:1], 64
s_cmp_ge_u32 s2, 256
s_cbranch_scc1 L_end
s_getpc_b64 s[{sT4}:{sT5}]
v_lshlrev_b32 v1, 6, v0
global_load_dword v{vTCH}, v1, s[{sT4}:{sT5}]
v_lshrrev_b32 v1, 6, v0
v_and_b32 v{vL}, 63, v0
v_readfirstlane_b32 s{sW}, v1
s_and_b32 s{sT0}, s2, 7
s_lshr_b32 s{sT1}, s2, 3
s_lshr_b32 s{sT2}, s{sT0}, 1
s_and_b32 s{sT3}, s{sT0}, 1''')
if OPT['stamps']:
    A(f'{STI} s[{sCLK}:{sCLK+1}]'); nstamp[0] = 1
if OPT['map2'] == 0:
    A(f'''s_lshl_b32 s{sR}, s{sT0}, 2
s_lshr_b32 s{sCB}, s{sT1}, 3
s_add_u32 s{sR}, s{sR}, s{sCB}
s_and_b32 s{sCB}, s{sT1}, 7''')
else:
    A(f'''s_lshl_b32 s{sR}, s{sT2}, 3
s_lshr_b32 s{sCB}, s{sT1}, 2
s_add_u32 s{sR}, s{sR}, s{sCB}
s_and_b32 s{sCB}, s{sT1}, 3
s_lshl_b32 s{sA}, s{sT3}, 2
s_add_u32 s{sCB}, s{sCB}, s{sA}''')
if OPT['exp'] == 3: A(f's_add_u32 s{sCB}, s{sCB}, 1\ns_and_b32 s{sCB}, s{sCB}, 7')
A(f'''s_mov_b32 s{sONES}, 0x3f803f80
v_lshrrev_b32 v30, 3, v{vL}
v_and_b32 v31, 7, v{vL}
v_lshrrev_b32 v32, 4, v{vL}
v_lshlrev_b32 v{vL16}, 4, v{vL}
v_xor_b32 v1, v31, v32
v_lshlrev_b32 v1, 4, v1
v_lshl_add_u32 v{vDMA}, v30, 11, v1
s_mov_b32 s{sSLOT}, 0
s_cmp_ge_u32 s{sT1}, 20
s_cbranch_scc1 L_attn''')

A(f'''s_mul_i32 s{sA}, s{sT1}, 52
s_lshr_b32 s{sA}, s{sA}, 8
s_mul_i32 s{sB}, s{sA}, 5
s_sub_u32 s{sB}, s{sT1}, s{sB}
s_mul_i32 s{sT3}, s{sT3}, 5
s_add_u32 s{sB}, s{sB}, s{sT3}
s_lshl_b32 s{sT2}, s{sT2}, 2
s_add_u32 s{sA}, s{sA}, s{sT2}
v_xor_b32 v{vDMA+1}, 64, v{vDMA}
v_add_u32 v{vDMA+1}, {16384-1024}, v{vDMA+1}
s_lshr_b32 s{sT0}, s{sW}, 2
s_and_b32 s{sT1}, s{sW}, 1
s_add_u32 s{sT2}, s{sT0}, 4
s_mul_i32 s{sT2}, s{sT2}, s{sT1}
s_lshl_b32 s{sT3}, s{sT0}, 3
s_add_u32 s{sT2}, s{sT2}, s{sT3}
s_lshl_b32 s{sT3}, s{sT2}, 6
v_add_u32 v1, s{sT3}, v{vL}
s_movk_i32 s{sT4}, 3641
s_movk_i32 s{sT5}, 2464''')
for i in range(5):
    A(f'''v_mul_u32_u24 v2, s{sT4}, v1
v_lshrrev_b32 v2, 16, v2
v_mul_u32_u24 v2, s{sT5}, v2
v_lshl_add_u32 v{vDMA+2+i}, v1, 4, v2''')
    if i % 4: A(f'v_subrev_u32 v{vDMA+2+i}, {(i % 4)*1024}, v{vDMA+2+i}')
    if i < 4: A('v_add_u32 v1, 64, v1')
A(f'''s_bfe_u32 s{sT3}, s{sW}, 0x10001
s_mul_i32 s{sD+1}, s{sT3}, {UPOFF}
s_lshl_b32 s{sT2}, s{sT2}, 10
s_add_u32 s{sD+1}, s{sD+1}, s{sT2}
s_add_u32 s{sD+1}, s{sD+1}, 16384
s_lshl_b32 s{sD}, s{sW}, 11
s_mul_i32 s{sST}, s{sB}, 9
s_sub_u32 s{sT2}, s{sB}, 6
s_max_i32 s{sT2}, s{sT2}, 0
s_sub_u32 s{sST}, s{sST}, s{sT2}
s_lshl_b32 s{sBW}, s{sST}, 5
s_lshl_b32 s{sBX}, s{sA}, 7
s_lshl_b32 s{sT2}, s{sT0}, 6
s_add_u32 s{sBX}, s{sBX}, s{sT2}
s_add_u32 s{sBX}, s{sBX}, s{sT3}
s_lshl_b32 s{sT2}, s{sT1}, 5
s_add_u32 s{sBX}, s{sBX}, s{sT2}
s_lshl_b32 s{sBX}, s{sBX}, 10
s_mov_b32 s{sMW}, {64*2752}
s_lshr_b32 s{sKS}, s{sA}, 1''')
if OPT['rot'] == 2: A(f's_add_u32 s{sKS}, s{sKS}, s{sB}\ns_and_b32 s{sKS}, s{sKS}, 7')
A(f'''s_cmp_lt_u32 s{sB}, 6
s_cselect_b32 s{sN0}, 5, 4''')
lines(SOFF)
A(f'''s_cmp_eq_u32 s{sT3}, 1
s_waitcnt lgkmcnt(0)
s_cselect_b32 s{SRD_W}, s{sKA+10}, s{sKA+8}
s_cselect_b32 s{SRD_W+1}, s{sKA+11}, s{sKA+9}
s_mov_b32 s{SRD_W+2}, {512*2752}
s_mov_b32 s{SRD_W+3}, 0x20000''')
if OPT['stamps']: A(f's_mov_b32 s{sSTAMP}, s{sCLK}')
build_srd(SRD_XR, sKA, 2048 * 1024)
stat_load()
build_srd(SRD_X, sKA, 2048 * 1024)
FX = [dma(vDMA, SRD_X, sOX, 0, [f's_add_u32 m0, s{sSLOT}, s{sD}']), dma(vDMA + 1, SRD_X, sOX, 1024)]
FW = [dma(vDMA + 2, SRD_W, sOW, 0, [f's_add_u32 m0, s{sSLOT}, s{sD+1}'])] + [dma(vDMA + 2 + i, SRD_W, sOW, 1024 * i) for i in range(1, 4)]
FW5 = dma(vDMA + 6, SRD_W, sOW, 0, ['s_add_u32 m0, m0, 4096'])
def fw5_guarded(tag):
    uid[0] += 1
    A(f's_cmp_lt_u32 s{sW}, 4\ns_cbranch_scc1 L_no5{uid[0]}'); lines(FW5); A(f'L_no5{uid[0]}:')
stamp(1)
vm = Q(63); vm.issue('code'); vm.issue('sr')
for g in FW: lines(g); vm.issue('w0')
fw5_guarded('w0')
for g in FX: lines(g); vm.issue('x0')
publish_tag()
stamp(1)
lines(ADV); lines(SOFF)
setup2()
A('v_mov_b32 v56, 0\nv_mov_b32 v57, 0\nv_mov_b32 v58, 0\nv_mov_b32 v59, 0')
for T in range(5): A(mf32(vr(vACC + 16*T, 16), 'v[56:59]', 'v[56:59]', '0'))
A(f'''v_and_b32 v1, 31, v{vL}
s_and_b32 s{sT0}, s{sW}, 3
s_lshl_b32 s{sT0}, s{sT0}, 5
v_add_u32 v1, s{sT0}, v1
v_bfe_u32 v2, v1, 1, 3
v_lshrrev_b32 v3, 5, v{vL}
v_xor_b32 v2, v2, v3
v_lshlrev_b32 v2, 4, v2
v_lshl_add_u32 v{vRX}, v1, 7, v2
v_xor_b32 v{vRX+1}, 32, v{vRX}
v_xor_b32 v{vRX+2}, 64, v{vRX}
v_xor_b32 v{vRX+3}, 96, v{vRX}
v_bfe_u32 v1, v{vL}, 2, 2
v_and_b32 v2, 3, v{vL}
v_lshlrev_b32 v2, 3, v2
s_movk_i32 s{sT0}, 288
v_mad_u32_u24 v35, v1, s{sT0}, v2
v_mul_u32_u24 v2, 2304, v3
v_bfe_u32 v1, v{vL}, 4, 1
v_mul_u32_u24 v{vRW}, {UPOFF}, v1
v_add3_u32 v{vRW}, v{vRW}, v2, v35
s_lshr_b32 s{sT0}, s{sW}, 2
s_mul_i32 s{sT0}, s{sT0}, s{sN0}
s_lshl_b32 s{sT0}, s{sT0}, 5
s_add_u32 s{sT0}, s{sT0}, 16384
v_add_u32 v{vRW}, s{sT0}, v{vRW}
s_and_b32 s{sT0}, s{sW}, 1
s_mul_i32 s{sT0}, s{sT0}, {UPOFF}
s_add_u32 s{sT0}, s{sT0}, 16384
v_add_u32 v35, s{sT0}, v35
v_mul_u32_u24 v34, 1152, v32
v_add_u32 v34, v34, v35
v_mul_u32_u24 v33, 1152, v3
v_lshl_add_u32 v33, v1, 7, v33
s_lshr_b32 s{sT1}, s{sW}, 1
s_lshl_b32 s{sT2}, s{sT1}, 5
v_add3_u32 v33, v33, v35, s{sT2}''')
A(f'''s_lshl_b32 s{sT0}, s2, 2
s_add_u32 s{sT0}, s{sT0}, {FLAG_S}
s_lshl_b32 s{sT3}, s{sB}, 5
s_add_u32 s{sT3}, s{sT3}, {FLAG_C}
s_lshl_b32 s{sT2}, s{sA}, 1
s_add_u32 s{sT4}, s{sT2}, s{sT3}
s_bitcmp0_b32 s{sA}, 0
s_cselect_b32 s{sT4}, s{sT4}, s{sT0}
v_mov_b32 v{vFL}, s{sT4}
v_writelane_b32 v{vFL}, s{sT0}, 0
s_lshl_b32 s{sT0}, s{sA}, 6
s_add_u32 s{sT0}, s{sT0}, {FLAG_S}
v_and_b32 v2, 15, v{vL}
v_lshl_add_u32 v3, v2, 2, s{sT0}
v_lshl_add_u32 v31, v31, 2, s{sT3}
v_cmp_gt_u32 vcc, 32, v{vL}
v_cndmask_b32 v{vPL}, v31, v3, vcc
s_mul_i32 s{sT0}, s{sB}, 9216
s_add_u32 s{sT0}, s{sT0}, s{sT2}
s_and_b32 s{sT3}, s{sW}, 1
s_lshl_b32 s{sT3}, s{sT3}, 9
s_add_u32 s{sT0}, s{sT0}, s{sT3}
s_add_u32 s{sT0}, s{sT0}, {CS_OFF}
v_lshl_add_u32 v2, v2, 5, s{sT0}
s_lshl_b32 s{sT3}, s{sT1}, 10
v_lshlrev_b32 v35, 12, v1
v_add3_u32 v35, v35, v2, s{sT3}
v_mov_b32 v3, {OOB}
v_cndmask_b32 v35, v3, v35, vcc
v_add_u32 v32, 8192, v2
s_cmp_eq_u32 s{sT1}, 0
s_cselect_b32 s{sT3}, 16, 0
v_cmp_gt_u32 vcc, s{sT3}, v{vL}
v_cndmask_b32 v32, v3, v32, vcc''')
A(f'''v_and_b32 v1, 31, v{vL}
s_lshl_b32 s{sT0}, s{sA}, 7
s_bfe_u32 s{sT1}, s{sW}, 0x10001
s_lshl_b32 s{sT1}, s{sT1}, 6
s_add_u32 s{sT0}, s{sT0}, s{sT1}
s_add_u32 s{sT0}, s{sT0}, s{sMH}
s_lshl_b32 s{sT0}, s{sT0}, 2
s_add_u32 s{sT0}, s{sT0}, {STAT_OFF}
v_lshl_add_u32 v20, v1, 3, s{sT0}
v_lshlrev_b32 v1, 5, v1
v_lshrrev_b32 v2, 5, v{vL}
v_lshl_add_u32 v21, v2, 4, v1
s_mul_i32 s{sT0}, s{sB}, 9216
s_add_u32 s{sT0}, s{sT0}, {CS_OFF}
s_lshr_b32 s{sT4}, s{sW}, 2
s_mul_i32 s{sT2}, s{sT4}, s{sN0}
s_sub_u32 s{sT1}, s{sN0}, 1
s_cmp_eq_u32 s{sT4}, 1
s_cselect_b32 s{sT1}, 3, s{sT1}
s_add_u32 s{sT1}, s{sT1}, s{sT2}
s_lshl_b32 s{sT1}, s{sT1}, 10
s_add_u32 s{sP2}, s{sT1}, s{sT0}
s_min_u32 s{sT1}, s{sW}, 6
s_lshl_b32 s{sT3}, s{sT1}, 10
s_add_u32 s{sP3}, s{sT3}, {SCR}
s_add_u32 s{sT1}, s{sT1}, 2
s_cmp_gt_u32 s{sT1}, s{sN0}
s_cselect_b32 s{sT1}, 1024, 0
s_add_u32 s{sT0}, s{sT0}, s{sT1}
s_add_u32 s{sP4}, s{sT0}, s{sT3}
s_sub_u32 s{sT1}, s{sT2}, 1
s_max_i32 s{sT1}, s{sT1}, 0
s_lshl_b32 s{sT1}, s{sT1}, 10
s_add_u32 s{sT1}, s{sT1}, {SCR}
v_add_u32 v{vAD}, s{sT1}, v21
s_lshl_b32 s{sT0}, s{sA}, 2
s_and_b32 s{sT1}, s{sW}, 3
s_add_u32 s{sT0}, s{sT0}, s{sT1}
s_mul_i32 s{sP5}, s{sT0}, {TG_STRIDE}
s_lshl_b32 s{sFLAG}, s{sA}, 7
s_add_u32 s{sT0}, s{sST}, s{sT2}
s_lshl_b32 s{sT0}, s{sT0}, 10
s_add_u32 s{sP5}, s{sP5}, s{sT0}
s_lshl_b32 s{sT0}, s{sB}, 2
s_add_u32 s{sFLAG}, s{sFLAG}, s{sT0}''')
tail_prepare(); baddr_early(31); touch_prepare()
stamp(1)
A(f's_waitcnt vmcnt({vm.need({"sr"})})')
stamp(1)
E = Inter()
E.push([g + [lambda: vm.issue('s1')] for g in FW], 10)
stat_compute(E); vm.issue('st')
E.flush()
fw5_guarded('s1')
for g in FX: lines(g); vm.issue('s1')
lines(ADV); lines(SOFF)
touches(vm)
A('v_mov_b32 v52, 0\nv_mov_b32 v53, 0\nv_mov_b32 v54, 0\nv_mov_b32 v55, 0')
A(f's_waitcnt vmcnt({vm.need({"w0"})})\ns_barrier')
stamp(1)
A(f's_bitcmp1_b32 s{sA}, 0\ns_cbranch_scc1 L_nocs')
for n in range(8): A(f'ds_read_b64_tr_b16 {vr(56+2*n, 2)}, v33 offset:{n*2304}')
for n in range(4): A(f'ds_read_b64_tr_b16 {vr(72+2*n, 2)}, v34 offset:{n*4608 + 256}')
for n in range(8):
    if n % 2 == 0: A(f's_waitcnt lgkmcnt({10 - n})')
    A(f'v_dot2c_f32_bf16 v52, s{sONES}, v{56+2*n}\nv_dot2c_f32_bf16 v54, s{sONES}, v{57+2*n}')
A('s_waitcnt lgkmcnt(0)')
for n in range(8): A(f'v_dot2c_f32_bf16 v{53 + 2*(n & 1)}, s{sONES}, v{72+n}')
A('''v_add_f32 v52, v52, v54
v_add_f32 v53, v53, v55
v_mov_b32 v54, v52
v_mov_b32 v55, v53
v_permlane32_swap_b32 v52, v54
v_permlane32_swap_b32 v53, v55
v_add_f32 v52, v52, v54
v_add_f32 v53, v53, v55
v_mov_b32 v55, v53
v_permlane16_swap_b32 v53, v55
v_add_f32 v53, v53, v55''')
split_hilo(52, 54); split_hilo(53, 55)
A(f'''buffer_store_dword v52, v35, {srd(SRD_AUX)}, 0 offen sc1
buffer_store_dword v53, v32, {srd(SRD_AUX)}, 0 offen sc1
L_nocs:''')
stamp(1)
A(f's_waitcnt vmcnt({vm.need({"x0"})})\ns_barrier')
stamp(); stamp(1)
if OPT['exp'] in (5, 7): A(f's_mov_b32 s{SRD_X+2}, 0\ns_mov_b32 s{SRD_W+2}, 0\ns_mov_b32 s{SRD_B+2}, 0')
A(f'''s_lshr_b32 s{sT0}, s{sW}, 2
s_add_u32 s{sT0}, s{sT0}, 4
s_cmp_lt_u32 s{sT0}, s{sN0}
s_cbranch_scc0 L_f4''')

lg = Q(15)
vC1, vIR = 18, 20
vBM = 36
vCL = 40
def ffn_role(nt, n):
    NM = 4 * nt
    NHD = nt - 2
    def rw(m):
        p, T = divmod(m, nt); s = vFR + 8 + (m % nt) * 4
        A(f'ds_read_b64_tr_b16 {vr(s, 2)}, v{vRW} offset:{p*4608 + T*32}'); lg.issue(('w', m))
        A(f'ds_read_b64_tr_b16 {vr(s+2, 2)}, v{vRW} offset:{p*4608 + T*32 + 1152}'); lg.issue(('w', m))
    def rx(p):
        A(f'ds_read_b128 {vr(vFR + (p & 1)*4, 4)}, v{vRX+p}'); lg.issue(('x', p))
    def mm(m):
        p, T = divmod(m, nt); s = vFR + 8 + (m % nt) * 4
        A(mf32(vr(vACC + 16*T, 16), vr(s, 4), vr(vFR + (p & 1)*4, 4), vr(vACC + 16*T, 16)))
    D = nt - 1
    def five():
        uid[0] += 1
        return [f's_cmp_lt_u32 s{sW}, 4', f's_cbranch_scc1 L_no5{uid[0]}'] + FW5 + [f'L_no5{uid[0]}:']
    def fill_for(main):
        fill = {}
        dl = (FX + FW + ([five()] if nt == 4 else [])) if main else tail_dma()
        last = NM - 3
        if main: dl = dl + L2T
        if not OPT['nodma']: spread(dl, list(range(0, last + 1)), fill)
        spread([RDELTA[:2], RDELTA[2:]], [2, 3], fill)
        if main: spread([SOFFX, SOFFWN, KSINC, [f's_mov_b32 s{sOW}, s{sNW}']], [7, 8, 9, last], fill)
        spread([ADV], [last], fill)
        spread([[f'v_add_u32 v{vRX+i}, s{sDELTA}, v{vRX+i}'] for i in range(4)], [4, 6, nt + 1 + NHD, 2*nt + 1 + NHD], fill)
        spread([[f'v_add_u32 v{vRW}, s{sDELTA}, v{vRW}']], [NM - nt + NHD], fill)
        return fill
    def head(fill, with_mfma, extra=None):
        itstamp()
        lg.drain()
        nxt = 0
        for m in range(NHD):
            if with_mfma: mm(NM - NHD + m)
            while nxt <= nt - NHD + m and nxt < D:
                rw(nxt)
                if nxt == 0: rx(0)
                nxt += 1
            if extra and extra[m]: extra[m]()
            lines(fill.get(m, []))
    def rest(fill, last_it, label):
        for m in range(NM - NHD):
            p, T = divmod(m, nt)
            if m == NM - NHD - 1:
                A(f's_waitcnt vmcnt({6 + len(L2T) if last_it == 6 else 6}) lgkmcnt(0)'); lg.drain()
            c = lg.need({('w', m), ('x', p)})
            if c is not None: A(f's_waitcnt lgkmcnt({c})')
            mm(m)
            if m + D < NM: rw(m + D)
            if T == 1 and p < 3: rx(p + 1)
            lines(fill.get(m + NHD, []))
            if m == NM - NHD - 2: A(f's_add_u32 s{sIT}, s{sIT}, 1\ns_cmp_lt_u32 s{sIT}, {last_it}')
        A(f's_cbranch_scc0 {label}\n{LB_}')
    fm = fill_for(True)
    head(fm, False)
    A(f'L_{n}loop:')
    rest(fm, 6, f'L_{n}exit')
    head(fm, True, [lambda: hcheck(n), None, None])
    A(f's_branch L_{n}loop\nL_{n}exit:\n{LB_}')
    def inter():
        get_tag(n)
        tail_setup()
        A(f'buffer_load_dword v{vTG}, v{vPL}, {srd(SRD_AUX)}, 0 offen sc1')
    def inter2():
        check_flag0(n)
        A(f'''buffer_load_dword v{vST}, v20, {srd(SRD_AUX)}, 0 offen sc1
s_mov_b32 m0, s{sP3}
buffer_load_dwordx4 {vr(vCL, 4)}, v21, {srd(SRD_AUX)}, s{sP2} offen sc1
buffer_load_dwordx4 v{vL16}, {srd(SRD_AUX)}, s{sP4} offen sc1 lds''')
    ft = fill_for(False)
    head(ft, True, [inter, None, None])
    A(f'L_{n}tail:')
    rest(ft, 8, f'L_{n}texit')
    head(ft, True, [inter2, None, None])
    A(f's_branch L_{n}tail\nL_{n}texit:\n{LB_}')
    stamp(); itdump()
    vCF = 20
    CF = [44, vFR, 32, 12]
    for t in range(nt - 1): A(f'ds_read_b128 {vr(CF[t], 4)}, v{vAD} offset:{t*1024}')
    if NHD == 3: mm(NM - 3)
    A(f'''v_and_b32 v1, 0xffff, v{vST}
v_and_b32 v{vST}, 0xffff0000, v{vST}
v_lshl_or_b32 v{vBM}, v1, 16, v1
v_rcp_f32 v{vC1}, v{vST}''')
    mm(NM - 2)
    A(f'''v_mov_b32 v{vBM+1}, v{vBM}
v_mov_b32 v{vBM+2}, v{vBM}
v_mov_b32 v{vBM+3}, v{vBM}''')
    mm(NM - 1)
    A(f'''v_mul_f32 v{vIR}, v{vST}, v{vST}
v_mul_f32 v{vIR+2}, v{vST}, v{vST}
v_mul_f32 v{vC1}, {f2u(-LOG2E)}, v{vC1}
s_waitcnt lgkmcnt(0)''')
    for t in range(nt):
        A(mf32(vr(vACC + 16*t, 16), vr(CF[t] if t < nt - 1 else vCL, 4), vr(vBM, 4), vr(vACC + 16*t, 16)))
        if t == 0: A('v_mov_b32 v10, v31'); baddr_first(31)
    vm = Q(63)
    for i in range(6): vm.issue('v9')
    E = Inter()
    def tile(T):
        a = vACC + 16*T
        t = 52 if T & 1 else 32
        t = 52
        o = 68 + 4 * (T & 1)
        for k in range(4):
            E(f'v_pk_mul_f32 {vr(t+2*k, 2)}, {vr(a+2*k, 2)}, {vr(vC1, 2)} op_sel_hi:[1,0]')
        for k in range(8): E(f'v_exp_f32 v{t+k}, v{t+k}')
        for k in range(4):
            E(f'v_pk_mul_f32 {vr(t+8+2*k, 2)}, {vr(a+2*k, 2)}, {vr(a+8+2*k, 2)}')
        for k in range(4):
            E(f'v_pk_fma_f32 {vr(t+2*k, 2)}, {vr(t+2*k, 2)}, {vr(vIR, 2)}, {vr(vIR+2, 2)} op_sel_hi:[1,0,0]')
        for k in range(8): E(f'v_rcp_f32 v{t+k}, v{t+k}')
        for k in range(4):
            E(f'v_pk_mul_f32 {vr(t+2*k, 2)}, {vr(t+2*k, 2)}, {vr(t+8+2*k, 2)}')
        for k in range(4):
            E(f'v_cvt_pk_bf16_f32 v{o+k}, v{t+2*k}, v{t+2*k+1}')
        if T == 4: A(f's_add_u32 s{sP5}, s{sP5}, 4096')
        off = f' offset:{(T % 4)*1024}' if T % 4 else ''
        A(f'buffer_store_dwordx4 {vr(o, 4)}, v{vL16}, {srd(SRD_ACT)}, s{sP5} offen{off} sc1'); vm.issue('st')
    E.push(breg_groups(0), 2)
    tile(0); E.flush()
    A(f's_waitcnt vmcnt({vm.need({"v9"})}) lgkmcnt(0)\ns_barrier')
    E.push(static_groups(0, vm, n) + static_groups(1, vm, n), 7)
    for T in range(1, nt): tile(T)
    E.flush()
    A('s_branch L_phase2')
    handlers(n)
ns0 = nstamp[0]
ffn_role(5, 'f5')
nst_save = nstamp[0]; nstamp[0] = ns0
A('L_f4:')
ffn_role(4, 'f4')

nstamp[0] = 1 if OPT['stamps'] else 0
A.label('L_attn')
A(f'''s_sub_u32 s{sT1}, s{sT1}, 20
s_lshr_b32 s{sA}, s{sT1}, 2
s_lshr_b32 s{sKS}, s{sA}, 1
s_lshl_b32 s{sT4}, s{sT2}, 1
s_add_u32 s{sKS}, s{sKS}, s{sT4}
s_mul_i32 s{sT2}, s{sT2}, 3
s_add_u32 s{sA}, s{sA}, s{sT2}
s_and_b32 s{sB}, s{sT1}, 3
s_lshl_b32 s{sT3}, s{sT3}, 2
s_add_u32 s{sB}, s{sB}, s{sT3}''')
if OPT['rot'] == 2: A(f's_add_u32 s{sKS}, s{sKS}, s{sB}\ns_and_b32 s{sKS}, s{sKS}, 7')
A(f'''s_and_b32 s{sT0}, s{sW}, 1
s_lshl_b32 s{sT1}, s{sT0}, 6
v_xor_b32 v{vDMA}, s{sT1}, v{vDMA}
v_xor_b32 v{vDMA+1}, 64, v{vDMA}
v_add_u32 v{vDMA+1}, {16384-1024}, v{vDMA+1}
v_add_u32 v{vDMA+2}, {2*(16384-1024)}, v{vDMA}
v_and_b32 v1, 1, v32
s_lshl_b32 s{sT1}, s{sT0}, 1
v_add_u32 v1, s{sT1}, v1
v_lshlrev_b32 v1, 1, v1
v_xor_b32 v1, v31, v1
v_lshlrev_b32 v1, 4, v1
v_mul_u32_u24 v2, 3072, v30
s_mul_i32 s{sT1}, s{sW}, 24576
v_add3_u32 v{vDMA+3}, v1, v2, s{sT1}
s_mul_i32 s{sST}, s{sA}, 176
s_and_b32 s{sT1}, s{sW}, 3
s_mul_i32 s{sT2}, s{sT1}, 48
s_lshr_b32 s{sT3}, s{sW}, 2
s_add_u32 s{sBX}, s{sST}, s{sT2}
s_add_u32 s{sBX}, s{sBX}, s{sT3}
s_lshl_b32 s{sBX}, s{sBX}, 10
s_lshl_b32 s{sBW}, s{sB}, 7
s_mov_b32 s{sMW}, {64*3072}
s_mul_i32 s{sD}, s{sW}, 3072
s_add_u32 s{sD+1}, s{sD}, 24576
s_mov_b64 s[{sEX}:{sEX+1}], -1
s_cmp_eq_u32 s{sT1}, 0
s_cmov_b32 s{sEX}, 0xffffff00
s_or_b32 s{sT1}, s{sT1}, s{sA}
s_cmp_eq_u32 s{sT1}, 0
s_cselect_b32 s{sT1}, {OOB}, 0
v_add_u32 v{vDMA}, s{sT1}, v{vDMA}''')
lines(SOFF)
A('s_waitcnt lgkmcnt(0)')
if OPT['stamps']: A(f's_mov_b32 s{sSTAMP}, s{sCLK}')
build_srd(SRD_XR, sKA, 2048 * 1024)
stat_load()
build_srd(SRD_W, sKA + 2, 512 * 3072)
A(f'''s_sub_u32 s{SRD_X}, s{sKA}, 16384
s_subb_u32 s{SRD_X+1}, s{sKA+1}, 0
s_mov_b32 s{SRD_X+2}, {2048*1024 + 16384}
s_mov_b32 s{SRD_X+3}, 0x20000''')
AX = [[f's_add_u32 m0, s{sSLOT}, s{sD}', f's_mov_b64 exec, s[{sEX}:{sEX+1}]'] + dma(vDMA, SRD_X, sOX, 0) + ['s_mov_b64 exec, -1'],
      dma(vDMA + 1, SRD_X, sOX, 1024), dma(vDMA + 2, SRD_X, sOX, 2048)]
AW = [dma(vDMA + 3, SRD_W, sOW, 0, [f's_add_u32 m0, s{sSLOT}, s{sD+1}']), dma(vDMA + 3, SRD_W, sOW, 1024), dma(vDMA + 3, SRD_W, sOW, 2048)]
stamp(1)
vm = Q(63); vm.issue('code'); vm.issue('sr')
for g in AX + AW: lines(g); vm.issue('s0')
publish_tag()
stamp(1)
lines(ADV); lines(SOFF)
setup2()
A('v_mov_b32 v56, 0\nv_mov_b32 v57, 0\nv_mov_b32 v58, 0\nv_mov_b32 v59, 0')
for T in range(5): A(mf32(vr(vACC + 16*T, 16), 'v[56:59]', 'v[56:59]', '0'))
A(f'''v_min_u32 v1, 5, v30
v_lshrrev_b32 v2, 1, v1
v_mul_u32_u24 v2, {SLOT}, v2
v_and_b32 v1, 1, v1
v_mul_u32_u24 v1, 12288, v1
v_add_u32 v1, v1, v2
v_lshl_add_u32 v1, v31, 4, v1
v_mov_b32 v60, s{sONES}
v_mov_b32 v61, s{sONES}
v_mov_b32 v62, s{sONES}
v_mov_b32 v63, s{sONES}
ds_write_b128 v1, v[60:63]
v_and_b32 v33, 15, v{vL}
s_mul_i32 s{sT0}, s{sMH}, 96
v_add_u32 v1, s{sT0}, v33
v_bfe_u32 v2, v1, 1, 3
v_xor_b32 v2, v2, v32
v_lshlrev_b32 v2, 4, v2
v_lshl_add_u32 v{vRX}, v1, 7, v2
v_xor_b32 v{vRX+1}, 64, v{vRX}
v_mul_u32_u24 v1, 3072, v32
v_bfe_u32 v2, v{vL}, 2, 2
v_lshl_add_u32 v1, v2, 7, v1
v_bfe_u32 v2, v{vL}, 3, 2
s_lshr_b32 s{sT0}, s{sW}, 1
v_xor_b32 v2, s{sT0}, v2
v_lshl_add_u32 v1, v2, 5, v1
v_and_b32 v2, 3, v{vL}
v_lshl_add_u32 v1, v2, 3, v1
v_add_u32 v{vRW}, 24576, v1
s_lshl_b32 s{sT0}, s2, 2
s_add_u32 s{sT0}, s{sT0}, {FLAG_S}
v_mov_b32 v{vFL}, s{sT0}
s_lshr_b32 s{sT0}, s{sST}, 3
s_sub_u32 s{sT0}, s{sT0}, 2
v_min_u32 v1, 23, v{vL}
v_add_u32 v1, s{sT0}, v1
v_max_i32 v1, 0, v1
v_min_u32 v1, 255, v1
v_lshlrev_b32 v1, 2, v1
v_add_u32 v{vPL}, {FLAG_S}, v1
v_lshlrev_b32 v2, 2, v32
v_sub_u32 v2, v33, v2
v_mov_b32 v3, 0xff800000''')
for j in range(4):
    A(f'''v_add_u32 v{vMSK+j}, {16-j}, v2
v_subrev_u32 v{vMSK+4+j}, {j}, v2
v_cmp_gt_u32 vcc, 8, v{vMSK+j}
v_cmp_gt_u32 s[{sT4}:{sT5}], 8, v{vMSK+4+j}
v_cndmask_b32 v{vMSK+j}, v3, 0, vcc
v_cndmask_b32 v{vMSK+4+j}, v3, 0, s[{sT4}:{sT5}]''')
A(f'''s_cmp_eq_u32 s{sA}, 0
s_cselect_b32 s{sT0}, 32, 0
v_cmp_gt_u32 vcc, s{sT0}, v{vL}''')
for j in range(4): A(f'v_cndmask_b32 v{vMSK+8+j}, v{vMSK+4+j}, v3, vcc')
A(f'''v_lshlrev_b32 v1, 1, v33
s_add_u32 s{sT0}, s{sMH}, s{sST}
s_sub_u32 s{sT0}, s{sT0}, 16
v_add_u32 v1, s{sT0}, v1
v_mov_b32 v3, {OOB}''')
for t in range(6):
    A(f'''v_cmp_gt_u32 vcc, 2048, v1
v_lshlrev_b32 v2, 2, v1
v_add_u32 v2, {STAT_OFF}, v2
v_cndmask_b32 v{vAD+t}, v3, v2, vcc''')
    if t < 5: A('v_add_u32 v1, 32, v1')
tail_prepare(); baddr_early(10); touch_prepare()
OO = [8, 9, 13]
A(f'''v_and_b32 v1, 15, v{vL}
s_mul_i32 s{sP2}, s{sW}, 768
s_add_u32 s{sP2}, s{sP2}, {SCR}
v_lshl_add_u32 v14, v1, 2, s{sP2}
v_lshrrev_b32 v2, 5, v{vL}
v_lshl_add_u32 v1, v2, 4, v1
s_lshr_b32 s{sT0}, s{sST}, 1
s_sub_u32 s{sT0}, s{sT0}, 8
v_add_u32 v2, s{sT0}, v1
s_mov_b32 s{sT2}, {2*TG_STRIDE}
v_bfe_u32 v3, v{vL}, 4, 1
v_lshlrev_b32 v3, 9, v3
v_cmp_le_u32 vcc, 8, v1''')
for i in range(3):
    A(f'''v_lshrrev_b32 v{OO[i]}, 5, v2
v_mul_lo_u32 v{OO[i]}, v{OO[i]}, s{sT2}
v_and_b32 v1, 31, v2
v_lshl_add_u32 v1, v1, 4, v3
v_add_u32 v{OO[i]}, v{OO[i]}, v1''')
    if i < 2: A('v_add_u32 v2, 32, v2')
A(f'v_mov_b32 v1, {OOB}\nv_cndmask_b32 v{OO[0]}, v1, v{OO[0]}, vcc')
A(f'''s_lshl_b32 s{sFLAG}, s{sA}, 7
s_lshl_b32 s{sT3}, s{sB}, 2
s_add_u32 s{sFLAG}, s{sFLAG}, s{sT3}
s_lshr_b32 s{sT4}, s{sW}, 1
s_add_u32 s{sT3}, s{sT3}, s{sT4}
s_add_u32 s{sFLAG}, s{sFLAG}, {FLAG_A}
s_mul_i32 s{sT2}, s{sMH}, {TG_STRIDE}
s_add_u32 s{sT3}, s{sT3}, 86
s_lshl_b32 s{sT3}, s{sT3}, 10
s_add_u32 s{sP5}, s{sT2}, s{sT3}''')
stamp(1)
A(f's_waitcnt vmcnt({vm.need({"sr"})})')
stamp(1)
E = Inter()
E.push([g + [lambda: vm.issue('s1')] for g in AX + AW], 8)
stat_compute(E); vm.issue('st')
E.flush()
stamp(1)
lines(ADV); lines(SOFF)
touches(vm)
stamp(1)
A(f's_waitcnt vmcnt({vm.need({"s0"})}) lgkmcnt(0)\ns_barrier')
stamp(); stamp(1)
if OPT['exp'] in (5, 7): A(f's_mov_b32 s{SRD_X+2}, 0\ns_mov_b32 s{SRD_W+2}, 0\ns_mov_b32 s{SRD_B+2}, 0')
def xf(j, t): return 36 * j + 4 * t
def wf(j, m): return 36 * j + 24 + 4 * m
RORD = [('w', 0), ('x', 0), ('w', 1), ('w', 2), ('x', 1), ('x', 2), ('x', 3), ('x', 4), ('x', 5)]
def a_rd(j, k):
    kind, i = RORD[k]
    if kind == 'x':
        A(f'ds_read_b128 {ar(xf(j, i), 4)}, v{vRX+j} offset:{i*2048}'); lg.issue(('x', j, i))
    else:
        A(f'ds_read_b64_tr_b16 {ar(wf(j, i), 2)}, v{vRW} offset:{j*12288 + i*1024}'); lg.issue(('w', j, i))
        A(f'ds_read_b64_tr_b16 {ar(wf(j, i)+2, 2)}, v{vRW} offset:{j*12288 + i*1024 + 512}'); lg.issue(('w', j, i))
QD, KD, VD = vACC, vACC + 24, vACC + 48
def a_mm(n):
    j, r = divmod(n, 18); t, m = divmod(r, 3)
    acc = vr(vACC + 24*m + 4*t, 4)
    if m < 2: A(mf16(acc, ar(wf(j, m), 4), ar(xf(j, t), 4), acc))
    else: A(mf16(acc, ar(xf(j, t), 4), ar(wf(j, m), 4), acc))
NH = 12
def a_fill(main):
    fill = {}
    if not OPT['nodma']: spread((AX + AW) if main else tail_dma(), [2, 7, 13, 19, 24, 30], fill)
    if main and L2T: spread(L2T, [33], fill)
    spread([RDELTA[:2], RDELTA[2:]], [9, 10], fill)
    if main: spread([SOFFX, SOFFWN, KSINC, [f's_mov_b32 s{sOW}, s{sNW}']], [14, 15, 16, 31], fill)
    spread([ADV], [31], fill)
    spread([[f'v_add_u32 v{vRX}, s{sDELTA}, v{vRX}'], [f'v_add_u32 v{vRX+1}, s{sDELTA}, v{vRX+1}'], [f'v_add_u32 v{vRW}, s{sDELTA}, v{vRW}']], [11, 27, 28], fill)
    return fill
def a_head(fill, with_mfma, extra=None):
    itstamp()
    lg.drain()
    for m in range(NH):
        if with_mfma: a_mm(36 - NH + m)
        if m < 9: a_rd(0, m)
        if m == 1 and extra: extra()
        lines(fill.get(m, []))
def a_rest(fill, last_it, label):
    for n in range(36 - NH):
        j, r = divmod(n, 18); t, m = divmod(r, 3)
        if n == 35 - NH:
            A(f's_waitcnt vmcnt({6 + len(L2T) if last_it == 6 else 6}) lgkmcnt(0)'); lg.drain()
        c = lg.need({('w', j, m), ('x', j, t)})
        if c is not None: A(f's_waitcnt lgkmcnt({c})')
        a_mm(n)
        if 1 <= n <= 9: a_rd(1, n - 1)
        lines(fill.get(n + NH, []))
        if n == 34 - NH: A(f's_add_u32 s{sIT}, s{sIT}, 1\ns_cmp_lt_u32 s{sIT}, {last_it}')
    A(f's_cbranch_scc0 {label}\n{LB_}')
am, at = a_fill(True), a_fill(False)
a_head(am, False)
A('L_aloop:')
a_rest(am, 6, 'L_aexit')
a_head(am, True, lambda: hcheck('a'))
A(f's_branch L_aloop\nL_aexit:\n{LB_}')
def a_inter():
    get_tag('a')
    tail_setup()
    A(f'buffer_load_dword v{vTG}, v{vPL}, {srd(SRD_AUX)}, 0 offen sc1')
def a_inter2():
    check_flag0('a')
    for t in range(6): A(f'buffer_load_dword v{vST+t}, v{vAD+t}, {srd(SRD_AUX)}, 0 offen sc1')
a_head(at, True, a_inter)
A('L_atail:')
a_rest(at, 8, 'L_atexit')
a_head(at, True, a_inter2)
A(f's_branch L_atail\nL_atexit:\n{LB_}')
stamp(); itdump(); stamp(4)
vMR = 48
RR = [152, 154, 156, 158, 32, 34]
A(f'v_and_b32 v31, 48, v{vL}\nv_add_u32 v31, s{sP2}, v31')
for t in range(6):
    a_mm(24 + 2*t)
    A(f"""v_and_b32 v{RR[t]}, 0xffff0000, v{vST+t}
v_max_f32 v{RR[t]}, {f2u(1e-3)}, v{RR[t]}""")
    a_mm(25 + 2*t)
    A(f"""v_rcp_f32 v{RR[t]}, v{RR[t]}
v_lshlrev_b32 v{vMR+2*t}, 16, v{vST+t}
ds_write2_b32 v14, v{vMR+2*t}, v{RR[t]} offset0:{16*t} offset1:{96+16*t}""")
baddr_first(10)
ROW = [70, 16, 92]
def row_read(t):
    b = ROW[t % 3]
    A(f'ds_read_b128 {vr(b, 4)}, v31 offset:{64*t}\nds_read_b128 {vr(b+4, 4)}, v31 offset:{384 + 64*t}')
row_read(0); row_read(1)
stamp(4)
vm = Q(63)
for i in range(6): vm.issue('v9')
E = Inter()
vCQ, vCK, vCV = 60, 64, 68
A(f'v_mov_b32 v{vCV}, v{VD}\nv_mov_b32 v{vCV+1}, v{VD}')
for j in range(4): A(f'v_mov_b32_dpp v{vCK+j}, v{KD+j} row_newbcast:0 row_mask:0xf bank_mask:0xf')
A(f'v_permlane16_swap_b32 v{vCV}, v{vCV+1}')
for j in range(2): A(f'v_mov_b32_dpp v{vCQ+j}, v{QD+j} row_newbcast:0 row_mask:0xf bank_mask:0xf')
A(f'v_mov_b32 v{vCV+1}, v{vCV}')
for j in range(2, 4): A(f'v_mov_b32_dpp v{vCQ+j}, v{QD+j} row_newbcast:0 row_mask:0xf bank_mask:0xf')
A(f'v_permlane32_swap_b32 v{vCV}, v{vCV+1}')
QP, KP, VP = QD, KD, VD + 2
E.push(breg_groups(0), 4)
for t in range(6):
    for k in range(2): E(f'v_pk_fma_f32 {vr(QD+4*t+2*k, 2)}, {vr(vCQ+2*k, 2)}, {vr(vMR+2*t, 2)}, {vr(QD+4*t+2*k, 2)} op_sel_hi:[1,0,1]')
for t in range(6):
    for k in range(2): E(f'v_pk_fma_f32 {vr(KD+4*t+2*k, 2)}, {vr(vCK+2*k, 2)}, {vr(vMR+2*t, 2)}, {vr(KD+4*t+2*k, 2)} op_sel_hi:[1,0,1]')
for t in range(6):
    for k in range(2): E(f'v_cvt_pk_bf16_f32 v{QP+2*t+k}, v{QD+4*t+2*k}, v{QD+4*t+2*k+1}')
E.flush()
row_read(2)
for t in range(6):
    for k in range(2): A(f'v_pk_mul_f32 {vr(KD+4*t+2*k, 2)}, {vr(KD+4*t+2*k, 2)}, {vr(RR[t], 2)} op_sel_hi:[1,0]')
for t in range(6): A(f'v_mul_f32 v{vMR+2*t}, {f2u(0.25*LOG2E)}, v{RR[t]}')
for t in range(6):
    for k in range(2): A(f'v_cvt_pk_bf16_f32 v{KP+2*t+k}, v{KD+4*t+2*k}, v{KD+4*t+2*k+1}')
SB = [116, 60, 144, 92]
def s_mm(t):
    s = SB[t % 4]
    if t: A(mf16k(vr(s, 4), vr(KP+2*(t-1), 2), vr(QP+2*t, 2), vr(vMSK, 4)))
    A(mf16k(vr(s+4, 4), vr(KP+2*t, 2), vr(QP+2*t, 2), vr(vMSK + (4 if t else 8), 4)))
stamp(4)
A(f's_waitcnt vmcnt({vm.need({"v9"})}) lgkmcnt(0)\ns_barrier')
s_mm(0); s_mm(1)
E.push(static_groups(0, vm, 'a') + static_groups(1, vm, 'a'), 14)
for half in range(2):
    ts = range(3*half, 3*half + 3)
    if half: A('s_waitcnt lgkmcnt(0)')
    for t in ts:
        for k in range(2): E(f'v_pk_fma_f32 {vr(VD+4*t+2*k, 2)}, {vr(ROW[t%3]+2*k, 2)}, {vr(vCV, 2)}, {vr(VD+4*t+2*k, 2)} op_sel_hi:[1,0,1]')
    for t in ts:
        for k in range(2): E(f'v_pk_mul_f32 {vr(VD+4*t+2*k, 2)}, {vr(VD+4*t+2*k, 2)}, {vr(ROW[t%3]+4+2*k, 2)}')
    if half == 0:
        for t in range(3, 6): row_read(t)
    for t in ts:
        if t == 0: E(f'v_cvt_pk_bf16_f32 v{VD+2}, v{VD+2}, v{VD+3}\nv_cvt_pk_bf16_f32 v{VD+3}, v{VD}, v{VD+1}\nv_swap_b32 v{VD+2}, v{VD+3}')
        else:
            for k in range(2): E(f'v_cvt_pk_bf16_f32 v{VP+2*t+k}, v{VD+4*t+2*k}, v{VD+4*t+2*k+1}')
    if half == 0: rowmax = True
PB = [100, 124]
OB = [152, 16]; LB = [156, 20]
MXS = {0: (32, 33, 34), 2: (2, 3, 24), 4: (32, 33, 34)}
stamp(4)
def pmax(t):
    m0, m1, _ = MXS[t]
    ch = []
    for e, m in ((0, m0), (1, m1)):
        s = SB[(t + e) % 4]
        if t + e == 0: ch.append([f'v_max3_f32 v{m}, v{s+4}, v{s+5}, v{s+6}', f'v_max_f32 v{m}, v{m}, v{s+7}'])
        else: ch.append([f'v_max3_f32 v{m}, v{s}, v{s+1}, v{s+2}', f'v_max3_f32 v{m}, v{m}, v{s+3}, v{s+4}',
                         f'v_max3_f32 v{m}, v{m}, v{s+5}, v{s+6}', f'v_max_f32 v{m}, v{m}, v{s+7}'])
    return mix(ch[1], ch[0]), [f'v_permlane32_swap_b32 v{m0}, v{m1}', f'v_max_f32 v{m0}, v{m0}, v{m1}', f'v_mov_b32 v{m1}, v{m0}',
                               f'v_permlane16_swap_b32 v{m0}, v{m1}', f'v_max_f32 v{m0}, v{m0}, v{m1}', f'v_mov_b32 v{m1}, v{m0}',
                               f'v_permlane32_swap_b32 v{m0}, v{m1}']
def weave(chain, fill):
    fill = list(fill)
    for c in chain:
        E(c)
        for _ in range(2):
            if fill: E(fill.pop(0))
    for f in fill: E(f)
def pexp(t):
    m0, m1, n1 = MXS[t]
    E(f'v_mul_f32 v{n1}, -v{vMR+2*t+2}, v{m1}\nv_mul_f32 v{m0}, -v{vMR+2*t}, v{m0}')
    for e in range(2):
        s = SB[(t + e) % 4]; c = vMR + 2 * (t + e); k0 = 2 if t + e == 0 else 0
        for k in range(k0, 4): E(f'v_pk_fma_f32 {vr(s+2*k, 2)}, {vr(s+2*k, 2)}, {vr(c, 2)}, {vr(n1 if e else m0, 2)} op_sel_hi:[1,0,0]')
    for e in range(2):
        s = SB[(t + e) % 4]; k0 = 2 if t + e == 0 else 0
        for k in range(2*k0, 8): E(f'v_exp_f32 v{s+k}, v{s+k}')
        for k in range(k0, 4): E(f'v_cvt_pk_bf16_f32 v{PB[e]+k}, v{s+2*k}, v{s+2*k+1}')
        E(mf16(vr(LB[e], 4), 'v[72:75]', vr(PB[e], 4), '0'))
        E(mf16(vr(OB[e], 4), vr(VP + 2*(t + e - 1), 4), vr(PB[e], 4), '0'))
def pfin(t):
    x = 76
    out = [f'v_rcp_f32 v{LB[0]}, v{LB[0]}', f'v_rcp_f32 v{LB[1]}, v{LB[1]}']
    for e in range(2):
        for k in range(2): out.append(f'v_pk_mul_f32 {vr(OB[e]+2*k, 2)}, {vr(OB[e]+2*k, 2)}, {vr(LB[e], 2)} op_sel_hi:[1,0]')
    for e in range(2):
        for k in range(2): out.append(f'v_cvt_pk_bf16_f32 v{x+2*e+k}, v{OB[e]+2*k}, v{OB[e]+2*k+1}')
    return out
def pstore(t):
    x = 76
    E(f'v_permlane32_swap_b32 v{x}, v{x+2}\nv_permlane32_swap_b32 v{x+1}, v{x+3}')
    A(f'buffer_store_dwordx4 {vr(x, 4)}, v{OO[t//2]}, {srd(SRD_ACT)}, s{sP5} offen sc1'); vm.issue('st')
loc, crs = pmax(0)
for l in loc: E(l)
weave(crs, [f'v_mov_b32 v{72+i}, s{sONES}' for i in range(4)] + [f'v_mov_b32 v{PB[0]}, 0', f'v_mov_b32 v{PB[0]+1}, 0', f'v_mov_b32 v{VD}, 0', f'v_mov_b32 v{VD+1}, 0'])
for t in (0, 2, 4):
    if t < 4: s_mm(t + 2); s_mm(t + 3)
    pexp(t)
    if t < 4:
        loc, crs = pmax(t + 2)
        for l in loc: E(l)
        weave(crs, pfin(t))
    else:
        E.flush()
        for l in pfin(t): E(l)
    pstore(t)
    stamp(4)
assert nstamp[0] == nst_save or OPT['sg'] == 4, (nstamp[0], nst_save)

A.label('L_phase2')
stamp()
A(f'v_xor_b32 v{vB+1}, 64, v{vB}')
for g in breg_groups(1): lines(g)
vP = 128
vRING = 80; NRING = 12
vLB = 48
vXR = 36
vPO, vOO, vEX = 12, 13, 14
A(f'''v_and_b32 v1, 31, v{vL}
v_lshrrev_b32 v2, 5, v{vL}
s_lshl_b32 s{sT2}, s{sR}, 6
s_add_u32 s{sT2}, s{sT2}, s{sMH}
s_lshl_b32 s{sT2}, s{sT2}, 10
s_lshl_b32 s{sT3}, s{sCB}, 7
s_add_u32 s{sT2}, s{sT2}, s{sT3}
s_lshl_b32 s{sT3}, s{sKQ}, 5
s_add_u32 s{sT2}, s{sT2}, s{sT3}
v_lshlrev_b32 v{vOO}, 11, v1
v_lshl_add_u32 v{vOO}, v2, 4, v{vOO}
v_add_u32 v{vOO}, s{sT2}, v{vOO}
s_lshl_b32 s{sT2}, s{sR}, 1
s_add_u32 s{sT2}, s{sT2}, s{sMH}
s_mul_i32 s{sOX}, s{sT2}, {TG_STRIDE}
s_sub_u32 s{sT1}, s{sKQ}, 1
s_mul_i32 s{sT3}, s{sT1}, {29*1024}
s_cmp_eq_u32 s{sKQ}, 0
s_cselect_b32 s{sT3}, {86*1024}, s{sT3}
s_add_u32 s{sOX}, s{sOX}, s{sT3}
s_add_u32 s{sOW}, s{sOX}, {28*1024}
s_cmp_eq_u32 s{sKQ}, 0
s_cselect_b32 s{sNW}, s{sOW}, {OOB}
s_cmp_eq_u32 s{sKQ}, 3
s_cselect_b32 s{sOW}, {OOB}, s{sOW}
s_lshr_b32 s{sT2}, s{sR}, 1
s_lshl_b32 s{sT2}, s{sT2}, 7
v_min_u32 v3, 9, v{vL}
v_lshl_add_u32 v{vPO}, v3, 2, s{sT2}
s_lshl_b32 s{sT3}, s{sR}, 6
s_mul_i32 s{sT4}, s{sT3}, 745
s_lshr_b32 s{sT4}, s{sT4}, 17
s_add_u32 s{sT3}, s{sT3}, 63
s_mul_i32 s{sT3}, s{sT3}, 745
s_lshr_b32 s{sT3}, s{sT3}, 17
s_sub_u32 s{sT3}, s{sT3}, s{sT4}
s_lshl_b32 s{sT3}, s{sT3}, 7
s_lshl_b32 s{sT4}, s{sT4}, 7
s_add_u32 s{sT4}, s{sT4}, {FLAG_A}
v_mul_u32_u24 v2, s{sT3}, v2
v_and_b32 v1, 7, v{vL}
v_lshl_add_u32 v1, v1, 2, s{sT4}
v_add_u32 v1, v1, v2
s_cmp_eq_u32 s{sKQ}, 0
s_cselect_b64 vcc, -1, 0
v_cndmask_b32 v{vPO}, v{vPO}, v1, vcc
s_lshl_b32 s{sT0}, s{sMH}, 15
v_add_u32 v{vEX}, s{sT0}, v{vL16}
v_mov_b32 v2, s{sTAG}
s_waitcnt vmcnt(0) lgkmcnt(0)
s_barrier
s_cmp_lg_u32 s{sW}, 0
s_cbranch_scc1 L_noflag
s_mov_b64 exec, 1
buffer_store_dword v2, off, {srd(SRD_AUX)}, s{sFLAG} sc1
s_mov_b64 exec, -1
L_noflag:
v_add_u32 v{vB+4}, s{sQ1}, v10
v_xor_b32 v{vB+5}, 64, v{vB+4}
v_add_u32 v{vB}, {SLOT}, v{vB}
v_add_u32 v{vB+1}, {SLOT}, v{vB+1}''')
stamp(); stamp(3)
if OPT['exp'] == 8: A(f's_mov_b32 s{SRD_B+2}, 0')
for g in static_groups(2, Q(63), 'p'): lines(g)
stamp(3)
if not OPT['lateb']: A('s_waitcnt vmcnt(0)\ns_barrier')
A(f"""s_min_u32 s{sT1}, s{sKQ}, 1
s_lshl_b32 s{sT1}, s{sT1}, 2
s_add_u32 s{sT1}, s{sT1}, {LDS_BYTES - 8}
v_mov_b32 v1, s{sT1}
s_mov_b32 s{sT0}, 0
s_and_b32 s{sT2}, s{sW}, 5
s_cmp_lg_u32 s{sT2}, 0
s_cbranch_scc1 L_lpoll
L_poll:
buffer_load_dword v3, v{vPO}, {srd(SRD_AUX)}, 0 offen sc1
s_add_u32 s{sT0}, s{sT0}, 1
s_waitcnt vmcnt(0)
v_cmp_ne_u32 vcc, s{sTAG}, v3
s_cbranch_vccz L_ptell
s_sleep {OPT['sleep']}
s_cmp_lt_u32 s{sT0}, {SPIN}
s_cbranch_scc1 L_poll
L_ptell:
ds_write_b32 v1, v2
s_branch L_pollok
L_lpoll:
ds_read_b32 v3, v1
s_add_u32 s{sT0}, s{sT0}, 1
s_waitcnt lgkmcnt(0)
v_cmp_ne_u32 vcc, s{sTAG}, v3
s_cbranch_vccz L_pollok
s_sleep 1
s_cmp_lt_u32 s{sT0}, {SPIN*8}
s_cbranch_scc1 L_lpoll
L_pollok:""")
stamp(); stamp(3)
vm = Q(63); lg = Q(15)
def a_load(st):
    so = sOX if st < 28 else (sOW if st == 28 else sNW)
    if st and st % 4 == 0 and st < 28: A(f's_add_u32 s{sOX}, s{sOX}, 4096')
    off = f' offset:{(st % 4)*1024}' if st % 4 else ''
    A(f'buffer_load_dwordx4 {vr(vRING + 4*(st % NRING), 4)}, v{vL16}, {srd(SRD_ACT)}, s{so} offen{off} sc1')
    vm.issue(st)
def b_read(st, ct):
    t = st - NREG
    r = [i for i, (a, b) in enumerate(REG_T) if a <= t < b][0]
    off = (t - REG_T[r][0]) * 2048
    for hf in range(2):
        A(f'ds_read_b64_tr_b16 {vr(vLB + (st % 4)*8 + ct*4 + hf*2, 2)}, v{vB + 2*r + ct} offset:{off + hf*1024}')
        lg.issue(st)
NB = OPT['burst']
for st in range(NB): a_load(st)
for st in range(32):
    if st == 21 and OPT['lateb']: A('s_barrier')
    if st == 28: A(f's_cmp_eq_u32 s{sKQ}, 3\ns_cbranch_scc1 L_p2done')
    if st == 29: A(f's_cmp_lg_u32 s{sKQ}, 0\ns_cbranch_scc1 L_p2done')
    w = []
    c = vm.need({st})
    if c is not None: w.append(f'vmcnt({c})')
    c = lg.need({st})
    if c is not None: w.append(f'lgkmcnt({c})')
    if w: A('s_waitcnt ' + ' '.join(w))
    if st in (0, 12): stamp(3)
    for ct in range(2):
        b = ar(st*8 + ct*4, 4) if st < NREG else vr(vLB + (st % 4)*8 + ct*4, 4)
        acc = vr(vP + 16*ct, 16)
        A(mf32(acc, b, vr(vRING + 4*(st % NRING), 4), acc if st else '0'))
        if NREG <= st + 2 < 32: b_read(st + 2, ct)
        if ct == 0 and st + NB < 32: a_load(st + NB)
        if ct == 1 and st + NB == 31:
            A(f'buffer_load_dwordx4 v[44:47], v{vOO}, {srd(SRD_XR)}, 0 offen'); vm.issue('x')
A('L_p2done:')
stamp(); stamp(3)
vF, vS, vR1 = 48, 56, 64
A(f'''s_waitcnt lgkmcnt(0)
s_barrier
s_cmp_eq_u32 s{sKQ}, 1
s_cbranch_scc1 L_red1
s_cmp_eq_u32 s{sKQ}, 2
s_cbranch_scc1 L_red2
s_cmp_eq_u32 s{sKQ}, 3
s_cbranch_scc1 L_red3''')
for q in range(4):
    if q: A(f'L_red{q}:')
    for c in range(4):
        if c == q: continue
        for i in range(2): A(f'ds_write_b128 v{vEX}, {vr(vP + 8*c + 4*i, 4)} offset:{q*8192 + c*2048 + i*1024}')
    A('s_waitcnt lgkmcnt(0)\ns_barrier')
    srcs = [s for s in range(4) if s != q]
    dst = {}
    for n_, s in enumerate(srcs):
        dst[s] = vS if s == 0 else vR1 + 8 * n_
        for i in range(2): A(f'ds_read_b128 {vr(dst[s] + 4*i, 4)}, v{vEX} offset:{s*8192 + q*2048 + i*1024}')
    dst[q] = vP + 8 * q
    if q == 0:
        for i in range(4): A(f'v_pk_mul_f32 {vr(vS+2*i, 2)}, {vr(vP+2*i, 2)}, 1.0 op_sel_hi:[1,0]')
    fs = [q] + [s for s in srcs if s] if q else [1, 2, 3]
    A('s_waitcnt lgkmcnt(2)')
    for i in range(4): A(f'v_pk_add_f32 {vr(vF+2*i, 2)}, {vr(dst[fs[0]]+2*i, 2)}, {vr(dst[fs[1]]+2*i, 2)}')
    A('s_waitcnt lgkmcnt(0)')
    for i in range(4): A(f'v_pk_add_f32 {vr(vF+2*i, 2)}, {vr(vF+2*i, 2)}, {vr(dst[fs[2]]+2*i, 2)}')
    if q < 3: A('s_branch L_final')
A.label('L_final')
A('s_waitcnt vmcnt(0)\nv_permlane32_swap_b32 v44, v46\nv_permlane32_swap_b32 v45, v47')
for i in range(4):
    A(f'v_lshlrev_b32 v{vXR+2*i}, 16, v{44+i}\nv_and_b32 v{vXR+2*i+1}, 0xffff0000, v{44+i}')
t = 88
assert sT1 % 2 == 0
A(f's_mov_b32 s{sT1}, {f2u(-LOG2E)}\ns_mov_b32 s{sT1+1}, {f2u(-LOG2E)}')
for i in range(4): A(f'v_pk_mul_f32 {vr(t+2*i, 2)}, {vr(vF+2*i, 2)}, s[{sT1}:{sT1+1}]')
for i in range(8): A(f'v_exp_f32 v{t+i}, v{t+i}')
for i in range(4): A(f'v_pk_mul_f32 {vr(vS+2*i, 2)}, {vr(vS+2*i, 2)}, {vr(vF+2*i, 2)}')
for i in range(4): A(f'v_pk_add_f32 {vr(t+2*i, 2)}, {vr(t+2*i, 2)}, 1.0 op_sel_hi:[1,0]')
for i in range(8): A(f'v_rcp_f32 v{t+i}, v{t+i}')
for i in range(4): A(f'v_pk_fma_f32 {vr(t+2*i, 2)}, {vr(t+2*i, 2)}, {vr(vS+2*i, 2)}, {vr(vXR+2*i, 2)}')
for i in range(4): A(f'v_cvt_pk_bf16_f32 v{44+i}, v{t+2*i}, v{t+2*i+1}')
A(f'''v_permlane32_swap_b32 v44, v46
v_permlane32_swap_b32 v45, v47
buffer_store_dwordx4 v[44:47], v{vOO}, {srd(SRD_OUT)}, 0 offen{['', ' sc1', ' nt', ' sc0 sc1'][OPT['ost']]}''')
if OPT['stamps'] and OPT['sg'] != 2:
    stamp(); stamp(3)
    A('s_waitcnt vmcnt(0)')
    stamp()
    A(f'''s_lshl_b32 s{sT0}, s2, 9
s_lshl_b32 s{sT1}, s{sW}, 6
s_add_u32 s{sT0}, s{sT0}, s{sT1}
s_add_u32 s{sT0}, s{sT0}, {STAMP_OFF}
v_mov_b32 v1, s{sT0}''')
    for i in range(10): A(f'v_mov_b32 v{48+i}, s{sSTAMP+i}')
    A(f'''global_store_dwordx4 v1, v[48:51], s[{sWS}:{sWS+1}]
global_store_dwordx4 v1, v[52:55], s[{sWS}:{sWS+1}] offset:16
global_store_dwordx2 v1, v[56:57], s[{sWS}:{sWS+1}] offset:32''')
A.label('L_end')
A('s_endpgm')
handlers('a')

body = A.finish(verbose=False)
hdr = open('cdna_kernels/' + NAME + '.s.ref').read().split('; Override launch')[0]
out = hdr + f'''; @launch grid=(256,1,1) block=(512,1,1) lds={LDS_BYTES}
.amdgcn_target "amdgcn-amd-amdhsa--gfx950"
.text
.globl {NAME}_kernel
.p2align 8
.type {NAME}_kernel,@function
''' + body + f'''L_codeend:
.fill (33024 - (L_codeend - {NAME}_kernel)) / 4, 4, 0xbf810000
.section .rodata,"a"
.p2align 6
.amdhsa_kernel {NAME}_kernel
  .amdhsa_next_free_vgpr 256
  .amdhsa_next_free_sgpr 102
  .amdhsa_accum_offset 160
  .amdhsa_group_segment_fixed_size 0
  .amdhsa_kernarg_size 80
  .amdhsa_user_sgpr_count 2
  .amdhsa_user_sgpr_kernarg_segment_ptr 1
  .amdhsa_system_sgpr_workgroup_id_x 1
.end_amdhsa_kernel
'''
sys.stdout.write(out)
sys.stderr.write(f'nops inserted: {A.nops}\n')
```

```python
import sys, os, struct
sys.path.insert(0, os.path.dirname(os.path.abspath(__file__)))
from asmlib import Asm, Q

NAME = "recurrent_scan__sliding_local_dilated__swiglu_ffn__prompt"
OPT = dict(w2=1, tin=0, pt=0, sfl=0, ep=0, r2=0, ex=1, tit=4, rot=1, l2r=2, lateb=0, ost=0, l2t=0, exp=0, sleep=1, stamps=0, sg=0, nodma=0, btouch=1, map2=0, burst=8, prio=0)
for a in sys.argv[1:]:
    k, v = a.split('=')
    assert k in OPT, k
    OPT[k] = int(v)

SLOT = 53504
UPOFF = 18560
LDS_BYTES = 163840
SCR = 2 * SLOT + 49152
ACT_OFF = 1 << 20
TG_STRIDE = 118 * 1024
ACT_BYTES = 64 * TG_STRIDE
FLAG_F = 0
FLAG_A = 0x2000
FLAG_S = 0x2c00
FLAG_C = 0x3000
STAT_OFF = 0x4000
CS_OFF = 0x8000
AUX_BYTES = 0x8000 + 10 * 9216
STAMP_OFF = 1 << 19
NREG = 12
LOG2E = 1.4426950408889634
OOB = 0x80000000
SPIN = 0x40000
def f2u(x): return struct.unpack('<I', struct.pack('<f', x))[0]

sW = 3
SRD_X, SRD_W, SRD_ACT, SRD_B, SRD_XR, SRD_OUT = 4, 8, 12, 16, 20, 24
sDBG, sWS = 28, 30
sKA = 32
sIT, sKS, sBX, sBW, sKQ, sMW, sOX, sOW = 48, 49, 50, 51, 52, 53, 54, 55
sD = 56
sN0 = 59
sSLOT, sDELTA, sONES, sRS = 60, 61, 62, 63
sR, sCB, sA, sB, sTAG, sT0, sT1, sT2, sT3 = 64, 65, 66, 67, 68, 69, 70, 71, 72
sMH, sST, sFLAG, sSOFF, sNW, sT4, sT5 = 73, 74, 75, 76, 77, 78, 79
SRD_AUX = 80
SRD_T = 84
sEX = 88
sCLK = 90
sSTAMP = 92
sHM = 0
sP0, sP1, sP2, sP3, sP4, sP5 = 32, 33, 34, 35, 38, 39
sQ0, sQ1, sQ2, sSO, sQ3, sL2 = 40, 41, 42, 43, 1, 46
def srd(n): return f's[{n}:{n+3}]'

vL = 0
vDMA = 4
vRX, vRW = 11, 15
vST = 16
vPL, vFL, vTG = 22, 23, 24
vBP = 25
vL16 = 29
vTCH = 19
vAD = 30
vMSK = 36
vFR = 48
vACC = 80
def vr(b, n): return f'v[{b}:{b+n-1}]'
def ar(b, n): return f'a[{b}:{b+n-1}]'

A = Asm()
SFL = [' sc1', ' sc0 sc1'][OPT['sfl']]
STI = 's_memtime' if OPT['stamps'] == 2 else 's_memrealtime'
nstamp = [0]
def stamp(grp=0):
    if not OPT['stamps'] or grp != OPT['sg']: return
    i = nstamp[0]; nstamp[0] += 1
    assert i < 10
    A(f'{STI} s[{sCLK}:{sCLK+1}]\ns_waitcnt lgkmcnt(0)\ns_mov_b32 s{sSTAMP+i}, s{sCLK}')

def itstamp():
    if OPT['stamps'] and OPT['sg'] == 2:
        A(f'''{STI} s[{sCLK}:{sCLK+1}]
s_waitcnt lgkmcnt(0)
v_mov_b32 v77, s{sCLK}
v_cmp_eq_u32 vcc, s{sIT}, v{vL}
v_cndmask_b32 v78, v78, v77, vcc''')
def itdump():
    if OPT['stamps'] and OPT['sg'] == 2:
        itstamp()
        A(f'''s_lshl_b32 s{sT0}, s2, 9
s_lshl_b32 s{sT1}, s{sW}, 6
s_add_u32 s{sT0}, s{sT0}, s{sT1}
s_add_u32 s{sT0}, s{sT0}, {STAMP_OFF}
v_lshl_add_u32 v77, v{vL}, 2, s{sT0}
s_mov_b64 exec, 0x3ff
global_store_dword v77, v78, s[{sWS}:{sWS+1}]
s_mov_b64 exec, -1''')
def mf32(d, a, b, c): return f'v_mfma_f32_32x32x16_bf16 {d}, {a}, {b}, {c}'
def mf16(d, a, b, c): return f'v_mfma_f32_16x16x32_bf16 {d}, {a}, {b}, {c}'
def mf16k(d, a, b, c): return f'v_mfma_f32_16x16x16_bf16 {d}, {a}, {b}, {c}'

def spread(groups, slots, into=None):
    out = {} if into is None else into
    n = len(groups)
    for i, g in enumerate(groups):
        out.setdefault(slots[(i * len(slots)) // n], []).extend(g)
    return out
def lines(L):
    for l in L: (l() if callable(l) else A(l))
def mix(a, b):
    out = []; a = list(a); b = list(b)
    while a or b:
        if a: out.append(a.pop(0))
        if b: out.append(b.pop(0))
    return out

class Inter:
    def __init__(self): self.g = []; self.every = 1; self.c = 0
    def push(self, groups, every): self.g += list(groups); self.every = every; self.c = 0
    def __call__(self, text):
        for l in text.split('\n'):
            l = l.strip()
            if not l: continue
            A(l); self.c += 1
            if self.g and self.c >= self.every:
                lines(self.g.pop(0)); self.c = 0
    def flush(self):
        while self.g: lines(self.g.pop(0))

def build_srd(n, plo, size, E=None):
    (E or A)(f'''s_mov_b32 s{n}, s{plo}
s_mov_b32 s{n+1}, s{plo+1}
s_mov_b32 s{n+2}, {size}
s_mov_b32 s{n+3}, 0x20000''')

SOFFX = [f's_lshl_b32 s{sOX}, s{sKS}, 7', f's_add_u32 s{sOX}, s{sOX}, s{sBX}']
SOFFW = [f's_mul_i32 s{sOW}, s{sKS}, s{sMW}', f's_add_u32 s{sOW}, s{sOW}, s{sBW}']
SOFFWN = [f's_mul_i32 s{sNW}, s{sKS}, s{sMW}', f's_add_u32 s{sNW}, s{sNW}, s{sBW}']
KSINC = [f's_add_u32 s{sKS}, s{sKS}, 1', f's_and_b32 s{sKS}, s{sKS}, 7']
SOFF = SOFFX + SOFFW + KSINC
ADV = [f's_add_u32 s{sSLOT}, s{sSLOT}, {SLOT}', f's_cmp_eq_u32 s{sSLOT}, {3*SLOT}', f's_cselect_b32 s{sSLOT}, 0, s{sSLOT}']
RDELTA = [f's_add_u32 s{sRS}, s{sRS}, 1', f's_mov_b32 s{sDELTA}, {SLOT}', f's_cmp_eq_u32 s{sRS}, 3',
          f's_cmov_b32 s{sDELTA}, {(-2*SLOT) & 0xffffffff}', f's_cmov_b32 s{sRS}, 0']

sNEXT, sPOS, sNEG = sRS, sNW, 37
RDL = [f's_cmp_eq_u32 s{sSLOT}, s{sPOS}', f's_cselect_b32 s{sDELTA}, s{sNEG}, s{sPOS}']
ADVL = [f's_cmp_eq_u32 s{sSLOT}, {2*SLOT}', f's_cselect_b32 s{sT3}, s{sNEG}, s{sPOS}', f's_add_u32 s{sSLOT}, s{sSLOT}, s{sT3}']
def loop_prepare():
    A(f'''s_sub_u32 s{sT0}, 9, s{sKS}
s_and_b32 s{sT0}, s{sT0}, 7
s_mov_b32 s{sKS}, s{sT0}
s_bitset1_b32 s{sHM}, s{sT0}
s_and_b32 s{sHM}, s{sHM}, 62
s_or_b32 s{sHM}, s{sHM}, 64
s_ff1_i32_b32 s{sNEXT}, s{sHM}
s_mov_b32 s{sPOS}, {SLOT}
s_mov_b32 s{sNEG}, {(-2*SLOT) & 0xffffffff}''')
def dma(v, s_, o_, im, pre=None, flags=''):
    off = f' offset:{im}' if im else ''
    return (pre or []) + [f'buffer_load_dwordx4 v{v}, {srd(s_)}, s{o_} offen{off}{flags} lds']

vSR = 48
def stat_load():
    A(f'''s_lshl_b32 s{sT0}, s2, 13
s_lshl_b32 s{sT1}, s{sW}, 10
s_add_u32 s{sT0}, s{sT0}, s{sT1}
buffer_load_dwordx4 {vr(vSR, 4)}, v{vL16}, {srd(SRD_XR)}, s{sT0} offen''')

def stat_compute(E):
    sm, sq, t, t2 = 52, 53, 54, 55
    E(f'v_mov_b32 v{sm}, 0\nv_mov_b32 v{sq}, 0')
    for i in range(4):
        E(f'v_dot2c_f32_bf16 v{sm}, s{sONES}, v{vSR+i}\nv_dot2c_f32_bf16 v{sq}, v{vSR+i}, v{vSR+i}')
    for r in (1, 2, 4, 8):
        E(f'v_add_f32_dpp v{sm}, v{sm}, v{sm} row_ror:{r} row_mask:0xf bank_mask:0xf')
        E(f'v_add_f32_dpp v{sq}, v{sq}, v{sq} row_ror:{r} row_mask:0xf bank_mask:0xf')
    for sw in (16, 32):
        E(f'''v_mov_b32 v{t}, v{sm}
v_mov_b32 v{t2}, v{sq}
v_permlane{sw}_swap_b32 v{sm}, v{t}
v_permlane{sw}_swap_b32 v{sq}, v{t2}
v_add_f32 v{sm}, v{sm}, v{t}
v_add_f32 v{sq}, v{sq}, v{t2}''')
    E(f'''v_mul_f32 v{sm}, {f2u(1/512)}, v{sm}
v_mul_f32 v{sq}, {f2u(1/512)}, v{sq}
v_fma_f32 v{sq}, -v{sm}, v{sm}, v{sq}
v_max_f32 v{sq}, 0, v{sq}
v_cvt_pk_bf16_f32 v{sq}, v{sq}, v{sq}
v_lshlrev_b32 v{sq}, 16, v{sq}
v_add_f32 v{sq}, {f2u(1e-5)}, v{sq}
v_cvt_pk_bf16_f32 v{sq}, v{sq}, v{sq}
v_lshlrev_b32 v{sq}, 16, v{sq}
v_sqrt_f32 v{sq}, v{sq}
s_lshl_b32 s{sT0}, s2, 5
s_lshl_b32 s{sT1}, s{sW}, 2
s_add_u32 s{sT0}, s{sT0}, s{sT1}
s_add_u32 s{sT0}, s{sT0}, {STAT_OFF}
v_cvt_pk_bf16_f32 v{sq}, -v{sm}, v{sq}''')
    A(f'''s_mov_b64 exec, 1
buffer_store_dword v{sq}, off, {srd(SRD_AUX)}, s{sT0} sc1
s_mov_b64 exec, -1''')

uid = [0]
def publish_tag():
    uid[0] += 1; n = uid[0]
    A(f'''s_or_b32 s{sT0}, s2, s{sW}
s_cmp_lg_u32 s{sT0}, 0
s_cbranch_scc1 L_notag{n}
s_memrealtime s[{sT4}:{sT5}]
s_waitcnt lgkmcnt(0)
s_or_b32 s{sT4}, s{sT4}, 1
v_mov_b32 v1, 0
v_mov_b32 v2, s{sT4}
s_mov_b64 exec, 1
global_store_dword v1, v2, s[{sDBG}:{sDBG+1}] sc1
s_mov_b64 exec, -1
L_notag{n}:''')

def setup2():
    build_srd(SRD_AUX, sWS, AUX_BYTES)
    build_srd(SRD_OUT, sKA + 14, 2048 * 1024)
    A(f'''s_add_u32 s{SRD_ACT}, s{sWS}, {ACT_OFF}
s_addc_u32 s{SRD_ACT+1}, s{sWS+1}, 0
s_mov_b32 s{SRD_ACT+2}, {ACT_BYTES if OPT['exp'] != 2 else 0}
s_mov_b32 s{SRD_ACT+3}, 0x20000
s_lshr_b32 s{sKQ}, s{sW}, 1
s_lshr_b32 s{sT0}, s{sW}, 2
s_xor_b32 s{sKQ}, s{sKQ}, s{sT0}
s_and_b32 s{sMH}, s{sW}, 1
s_cmp_eq_u32 s{sKQ}, 0
s_cselect_b32 s{SRD_B}, s{sKA+4}, s{sKA+12}
s_cselect_b32 s{SRD_B+1}, s{sKA+5}, s{sKA+13}
s_mov_b32 s{SRD_B+2}, {1376*1024}
s_cmov_b32 s{SRD_B+2}, {512*1024}
s_mov_b32 s{SRD_B+3}, 0x20000
s_mov_b32 s{sIT}, 0
s_cmp_eq_u32 s{sW}, 0
s_cselect_b32 s{sHM}, {2 | ((1 << OPT['tit']) & ~1)}, {(1 << OPT['tit']) & ~1}''')
    if OPT['prio']:
        uid[0] += 1
        A(f's_cmp_{"ge" if OPT["prio"] == 1 else "lt"}_u32 s{sW}, 4\ns_cbranch_scc0 L_np{uid[0]}\ns_setprio 1\nL_np{uid[0]}:')
    A(f'''
v_lshrrev_b32 v1, 3, v{vL}
v_and_b32 v2, 7, v{vL}
v_bfe_u32 v3, v{vL}, 4, 1
v_lshlrev_b32 v3, 2, v3
v_xor_b32 v2, v2, v3
v_lshlrev_b32 v2, 4, v2
v_lshl_add_u32 v{vBP}, v1, 10, v2''')
    for i in range(1, 4): A(f'v_add_u32 v{vBP+i}, {7168*i}, v{vBP}')
    A(f'''s_sub_u32 s{sT0}, s{sKQ}, 1
s_max_i32 s{sT0}, s{sT0}, 0
s_mul_i32 s{sSOFF}, s{sT0}, {464*1024}
s_lshl_b32 s{sT0}, s{sCB}, 7
s_add_u32 s{sSOFF}, s{sSOFF}, s{sT0}''')

def touch_prepare():
    A(f'''s_lshl_b32 s{sT0}, s2, 3
s_add_u32 s{sT0}, s{sT0}, s{sW}
s_sub_u32 s{sT1}, s{sT0}, 1376
s_cmp_ge_u32 s{sT0}, 1376
s_cselect_b32 s{sT0}, s{sT1}, s{sT0}
s_cselect_b32 s{SRD_T}, s{sKA+4}, s{sKA+12}
s_cselect_b32 s{SRD_T+1}, s{sKA+5}, s{sKA+13}
s_mov_b32 s{SRD_T+2}, {1376*1024}
s_cmov_b32 s{SRD_T+2}, {512*1024}
s_mov_b32 s{SRD_T+3}, 0x20000
s_lshl_b32 s{sL2}, s{sT0}, 10
s_add_u32 s{sL2}, s{sL2}, {(-(OPT['tin'] - 1) * 0x20000000) & 0xffffffff if OPT['tin'] else 0}
v_and_b32 v18, 7, v{vL}
v_lshlrev_b32 v18, 7, v18
v_mov_b32 v17, 0''')
TOUCH = f'buffer_load_dword v{vTCH}, v18, {srd(SRD_T)}, s{sL2} offen'
def touches(vm):
    if not OPT['tit'] and not OPT['tin']: A(TOUCH); vm.issue('touch')
    A(f'global_load_dword v{vTG}, v17, s[{sDBG}:{sDBG+1}] sc1'); vm.issue('tag')

vTP = 18
L2T = [[TOUCH, f's_add_u32 s{sL2}, s{sL2}, 0x20000000']] if OPT['tin'] else []
def tail_prepare():
    A(f'''s_mul_i32 s{sT0}, s{sMH}, {48*1024}
s_add_u32 s{sP0}, s{sSOFF}, s{sT0}
s_mul_i32 s{sP1}, s{sKQ}, 12288
s_mul_i32 s{sT0}, s{sMH}, 6144
s_add_u32 s{sP1}, s{sP1}, s{sT0}''')
def tail_setup():
    A(f's_mov_b32 s{sOX}, s{sP0}\ns_mov_b32 s{sD}, s{sP1}')

def tail_dma():
    out = [dma(vBP, SRD_B, sOX, 0, [f's_add_u32 m0, s{sSLOT}, s{sD}'])]
    for i in range(1, 4): out.append(dma(vBP + i, SRD_B, sOX, 1024 * i))
    out.append(dma(vBP, SRD_B, sOX, 0, ['s_add_u32 m0, m0, 4096', f's_add_u32 s{sOX}, s{sOX}, 32768']))
    out.append(dma(vBP + 1, SRD_B, sOX, 1024) + [f's_add_u32 s{sOX}, s{sOX}, {96*1024 - 32768}'])
    return out

def get_tag(n):
    A(f'''v_readfirstlane_b32 s{sTAG}, v{vTG}
s_mov_b32 s{sT0}, 0
L_tag{n}:
s_cmp_lg_u32 s{sTAG}, 0
s_cbranch_scc1 L_tagok{n}
v_mov_b32 v1, 0
global_load_dword v{vTG}, v1, s[{sDBG}:{sDBG+1}] sc1
s_waitcnt vmcnt(0)
v_readfirstlane_b32 s{sTAG}, v{vTG}
s_add_u32 s{sT0}, s{sT0}, 1
s_cmp_lt_u32 s{sT0}, {SPIN}
s_cbranch_scc1 L_tag{n}
L_tagok{n}:''')
def handlers(n):
    A(f'''L_{n}h:
s_bitset0_b32 s{sHM}, s{sIT}
s_ff1_i32_b32 s{sNEXT}, s{sHM}
s_cmp_lg_u32 s{sIT}, s{sKS}
s_cbranch_scc1 L_{n}h0
s_sub_u32 s{sOX}, s{sOX}, 1024
s_lshl_b32 s{sT0}, s{sMW}, 3
s_sub_u32 s{sOW}, s{sOW}, s{sT0}
L_{n}h0:
s_cmp_lg_u32 s{sIT}, {OPT['tit']}
s_cbranch_scc1 L_{n}h1
{TOUCH}
L_{n}h1:
s_lshl_b32 s{sT0}, s{sW}, 3
s_add_u32 s{sT0}, s{sT0}, s{sIT}
s_cmp_lg_u32 s{sT0}, 1
s_cbranch_scc1 L_{n}back''')
    get_tag(n + 'h')
    A(f'''v_mov_b32 v1, s{sTAG}
s_mov_b64 exec, 3
buffer_store_dword v1, v{vFL}, {srd(SRD_AUX)}, 0 offen sc1
s_mov_b64 exec, -1
s_branch L_{n}back''')
LB_ = '' if OPT['exp'] in (6, 7) else 's_barrier'
def hcheck(n): A(f's_bitcmp1_b32 s{sHM}, s{sIT}\ns_cbranch_scc1 L_{n}h\nL_{n}back:')

def check_flag0(n):
    A(f'''s_mov_b32 s{sT0}, 0
L_f0{n}:
v_cmp_ne_u32 vcc, s{sTAG}, v{vTG}
s_cbranch_vccz L_f0ok{n}
buffer_load_dword v{vTG}, v{vPL}, {srd(SRD_AUX)}, 0 offen sc1
s_waitcnt vmcnt(0)
s_add_u32 s{sT0}, s{sT0}, 1
s_cmp_lt_u32 s{sT0}, {SPIN}
s_cbranch_scc1 L_f0{n}
L_f0ok{n}:''')

def split_hilo(r, t, E=None):
    (E or A)(f'''v_cvt_pk_bf16_f32 v{t}, v{r}, v{r}
v_lshlrev_b32 v{t}, 16, v{t}
v_sub_f32 v{t}, v{r}, v{t}
v_cvt_pk_bf16_f32 v{r}, v{r}, v{t}''')

vB = 4
REG_BASE = [SLOT, 2 * SLOT, 0]
REG_T = [(0, 6), (6, 12), (12, 20)]
def baddr_early(dst):
    A(f'''v_lshrrev_b32 v1, 5, v{vL}
v_bfe_u32 v2, v{vL}, 2, 2
v_lshl_add_u32 v1, v1, 2, v2
v_lshlrev_b32 v1, 7, v1
v_bfe_u32 v2, v{vL}, 3, 1
v_lshl_add_u32 v1, v2, 6, v1
v_bfe_u32 v2, v{vL}, 4, 1
v_lshl_add_u32 v1, v2, 5, v1
v_and_b32 v2, 3, v{vL}
v_lshl_add_u32 v{dst}, v2, 3, v1
s_mul_i32 s{sQ3}, s{sKQ}, 12288
s_lshl_b32 s{sT0}, s{sMH}, 10
s_add_u32 s{sQ0}, s{sQ3}, s{sT0}
s_min_u32 s{sT1}, s{sKQ}, 1
s_mul_i32 s{sT1}, s{sT1}, 6144
s_mul_i32 s{sQ1}, s{sKQ}, 10240
s_add_u32 s{sQ1}, s{sQ1}, s{sT1}
s_add_u32 s{sQ2}, s{sQ1}, s{sT0}
s_lshl_b32 s{sT0}, s{sMH}, 13
s_add_u32 s{sSO}, s{sSOFF}, s{sT0}
s_add_u32 s{sSO}, s{sSO}, {NREG*16384}''')
def baddr_first(src):
    if OPT['exp'] == 9: A(f's_mov_b32 s{SRD_B+2}, 0')
    A(f'''v_add_u32 v{vB}, s{sQ3}, v{src}
v_add_u32 v{vB+2}, {2*SLOT}, v{vB}
v_xor_b32 v{vB+3}, 64, v{vB+2}
v_add_u32 v11, {16384-2048}, v{vBP}''')
def breg_groups(half):
    out = []
    for st in range(6 * half, 6 * half + 6):
        for ct in range(2):
            base = vB + (2 if half == 0 else 0) + ct
            out.append([f'ds_read_b64_tr_b16 {ar(st*8 + ct*4 + hf*2, 2)}, v{base} offset:{(st % 6)*2048 + hf*1024}' for hf in range(2)])
    return out
def static_groups(r, vm, n):
    out = []
    a, b = REG_T[r]
    for t in range(a, b):
        g = []
        if t == 16: g += [f's_cmp_eq_u32 s{sKQ}, 3', f's_cbranch_scc1 L_sdone{n}']
        if t == 17: g += [f's_cmp_lg_u32 s{sKQ}, 0', f's_cbranch_scc1 L_sdone{n}']
        if t % 2 == 0:
            if t: g.append(f's_add_u32 s{sSO}, s{sSO}, 32768')
            g.append(f's_add_u32 m0, s{sQ0 if r < 2 else sQ2}, {REG_BASE[r] + (t - a)*2048}')
            g += dma(vBP, SRD_B, sSO, 0)
        else:
            g += dma(11, SRD_B, sSO, 2048)
        g.append(lambda: vm.issue('dma'))
        out.append(g)
    if r == 2:
        tail = sum(out[4:], []) + [f'L_sdone{n}:']
        out = out[:4] + [tail]
    return out

A(f'{NAME}_kernel:')
A(f'''s_load_dwordx16 s[{sKA}:{sKA+15}], s[0:1], 0
s_load_dwordx4 s[{sDBG}:{sDBG+3}], s[0:1], 64
s_cmp_ge_u32 s2, 256
s_cbranch_scc1 L_end
s_getpc_b64 s[{sT4}:{sT5}]
v_lshlrev_b32 v1, 6, v0
global_load_dword v{vTCH}, v1, s[{sT4}:{sT5}]
v_lshrrev_b32 v1, 6, v0
v_and_b32 v{vL}, 63, v0
v_readfirstlane_b32 s{sW}, v1
s_and_b32 s{sT0}, s2, 7
s_lshr_b32 s{sT1}, s2, 3
s_lshr_b32 s{sT2}, s{sT0}, 1
s_and_b32 s{sT3}, s{sT0}, 1''')
if OPT['stamps']:
    A(f'{STI} s[{sCLK}:{sCLK+1}]'); nstamp[0] = 1
if OPT['map2'] == 0:
    A(f'''s_lshl_b32 s{sR}, s{sT0}, 2
s_lshr_b32 s{sCB}, s{sT1}, 3
s_add_u32 s{sR}, s{sR}, s{sCB}
s_and_b32 s{sCB}, s{sT1}, 7''')
else:
    A(f'''s_lshl_b32 s{sR}, s{sT2}, 3
s_lshr_b32 s{sCB}, s{sT1}, 2
s_add_u32 s{sR}, s{sR}, s{sCB}
s_and_b32 s{sCB}, s{sT1}, 3
s_lshl_b32 s{sA}, s{sT3}, 2
s_add_u32 s{sCB}, s{sCB}, s{sA}''')
if OPT['exp'] == 3: A(f's_add_u32 s{sCB}, s{sCB}, 1\ns_and_b32 s{sCB}, s{sCB}, 7')
A(f'''s_mov_b32 s{sONES}, 0x3f803f80
v_lshrrev_b32 v30, 3, v{vL}
v_and_b32 v31, 7, v{vL}
v_lshrrev_b32 v32, 4, v{vL}
v_lshlrev_b32 v{vL16}, 4, v{vL}
v_xor_b32 v1, v31, v32
v_lshlrev_b32 v1, 4, v1
v_lshl_add_u32 v{vDMA}, v30, 11, v1
s_mov_b32 s{sSLOT}, 0
s_cmp_ge_u32 s{sT1}, 20
s_cbranch_scc1 L_attn''')

A(f'''s_mul_i32 s{sA}, s{sT1}, 52
s_lshr_b32 s{sA}, s{sA}, 8
s_mul_i32 s{sB}, s{sA}, 5
s_sub_u32 s{sB}, s{sT1}, s{sB}
s_mul_i32 s{sT3}, s{sT3}, 5
s_add_u32 s{sB}, s{sB}, s{sT3}
s_lshl_b32 s{sT2}, s{sT2}, 2
s_add_u32 s{sA}, s{sA}, s{sT2}
v_xor_b32 v{vDMA+1}, 64, v{vDMA}
v_add_u32 v{vDMA+1}, {16384-1024}, v{vDMA+1}
s_lshr_b32 s{sT0}, s{sW}, 2
s_and_b32 s{sT1}, s{sW}, 1
s_add_u32 s{sT2}, s{sT0}, 4
s_mul_i32 s{sT2}, s{sT2}, s{sT1}
s_lshl_b32 s{sT3}, s{sT0}, 3
s_add_u32 s{sT2}, s{sT2}, s{sT3}
s_lshl_b32 s{sT3}, s{sT2}, 6
v_add_u32 v1, s{sT3}, v{vL}
s_movk_i32 s{sT4}, 3641
s_movk_i32 s{sT5}, 2464''')
for i in range(5):
    A(f'''v_mul_u32_u24 v2, s{sT4}, v1
v_lshrrev_b32 v2, 16, v2
v_mul_u32_u24 v2, s{sT5}, v2
v_lshl_add_u32 v{vDMA+2+i}, v1, 4, v2''')
    if i % 4: A(f'v_subrev_u32 v{vDMA+2+i}, {(i % 4)*1024}, v{vDMA+2+i}')
    if i < 4: A('v_add_u32 v1, 64, v1')
A(f'''s_bfe_u32 s{sT3}, s{sW}, 0x10001
s_mul_i32 s{sD+1}, s{sT3}, {UPOFF}
s_lshl_b32 s{sT2}, s{sT2}, 10
s_add_u32 s{sD+1}, s{sD+1}, s{sT2}
s_add_u32 s{sD+1}, s{sD+1}, 16384
s_lshl_b32 s{sD}, s{sW}, 11
s_mul_i32 s{sST}, s{sB}, 9
s_sub_u32 s{sT2}, s{sB}, 6
s_max_i32 s{sT2}, s{sT2}, 0
s_sub_u32 s{sST}, s{sST}, s{sT2}
s_lshl_b32 s{sBW}, s{sST}, 5
s_lshl_b32 s{sBX}, s{sA}, 7
s_lshl_b32 s{sT2}, s{sT0}, 6
s_add_u32 s{sBX}, s{sBX}, s{sT2}
s_add_u32 s{sBX}, s{sBX}, s{sT3}
s_lshl_b32 s{sT2}, s{sT1}, 5
s_add_u32 s{sBX}, s{sBX}, s{sT2}
s_lshl_b32 s{sBX}, s{sBX}, 10
s_mov_b32 s{sMW}, {64*2752}
s_lshr_b32 s{sKS}, s{sA}, 1''')
if OPT['rot'] == 2: A(f's_add_u32 s{sKS}, s{sKS}, s{sB}\ns_and_b32 s{sKS}, s{sKS}, 7')
A(f'''s_cmp_lt_u32 s{sB}, 6
s_cselect_b32 s{sN0}, 5, 4''')
lines(SOFF)
A(f'''s_cmp_eq_u32 s{sT3}, 1
s_waitcnt lgkmcnt(0)
s_cselect_b32 s{SRD_W}, s{sKA+10}, s{sKA+8}
s_cselect_b32 s{SRD_W+1}, s{sKA+11}, s{sKA+9}
s_mov_b32 s{SRD_W+2}, {512*2752}
s_mov_b32 s{SRD_W+3}, 0x20000''')
if OPT['stamps']: A(f's_mov_b32 s{sSTAMP}, s{sCLK}')
build_srd(SRD_XR, sKA, 2048 * 1024)
stat_load()
build_srd(SRD_X, sKA, 2048 * 1024)
FX = [dma(vDMA, SRD_X, sOX, 0, [f's_add_u32 m0, s{sSLOT}, s{sD}']), dma(vDMA + 1, SRD_X, sOX, 1024)]
FW = [dma(vDMA + 2, SRD_W, sOW, 0, [f's_add_u32 m0, s{sSLOT}, s{sD+1}'])] + [dma(vDMA + 2 + i, SRD_W, sOW, 1024 * i) for i in range(1, 4)]
FW5 = dma(vDMA + 6, SRD_W, sOW, 0, ['s_add_u32 m0, m0, 4096'])
def fw5_guarded(tag):
    uid[0] += 1
    A(f's_cmp_lt_u32 s{sW}, 4\ns_cbranch_scc1 L_no5{uid[0]}'); lines(FW5); A(f'L_no5{uid[0]}:')
stamp(1)
vm = Q(63); vm.issue('code'); vm.issue('sr')
for g in FW: lines(g); vm.issue('w0')
fw5_guarded('w0')
for g in FX: lines(g); vm.issue('x0')
publish_tag()
stamp(1)
lines(ADV); lines(SOFF)
setup2()
A('v_mov_b32 v56, 0\nv_mov_b32 v57, 0\nv_mov_b32 v58, 0\nv_mov_b32 v59, 0')
for T in range(5): A(mf32(vr(vACC + 16*T, 16), 'v[56:59]', 'v[56:59]', '0'))
A(f'''v_and_b32 v1, 31, v{vL}
s_and_b32 s{sT0}, s{sW}, 3
s_lshl_b32 s{sT0}, s{sT0}, 5
v_add_u32 v1, s{sT0}, v1
v_bfe_u32 v2, v1, 1, 3
v_lshrrev_b32 v3, 5, v{vL}
v_xor_b32 v2, v2, v3
v_lshlrev_b32 v2, 4, v2
v_lshl_add_u32 v{vRX}, v1, 7, v2
v_xor_b32 v{vRX+1}, 32, v{vRX}
v_xor_b32 v{vRX+2}, 64, v{vRX}
v_xor_b32 v{vRX+3}, 96, v{vRX}
v_bfe_u32 v1, v{vL}, 2, 2
v_and_b32 v2, 3, v{vL}
v_lshlrev_b32 v2, 3, v2
s_movk_i32 s{sT0}, 288
v_mad_u32_u24 v35, v1, s{sT0}, v2
v_mul_u32_u24 v2, 2304, v3
v_bfe_u32 v1, v{vL}, 4, 1
v_mul_u32_u24 v{vRW}, {UPOFF}, v1
v_add3_u32 v{vRW}, v{vRW}, v2, v35
s_lshr_b32 s{sT0}, s{sW}, 2
s_mul_i32 s{sT0}, s{sT0}, s{sN0}
s_lshl_b32 s{sT0}, s{sT0}, 5
s_add_u32 s{sT0}, s{sT0}, 16384
v_add_u32 v{vRW}, s{sT0}, v{vRW}
s_and_b32 s{sT0}, s{sW}, 1
s_mul_i32 s{sT0}, s{sT0}, {UPOFF}
s_add_u32 s{sT0}, s{sT0}, 16384
v_add_u32 v35, s{sT0}, v35
v_mul_u32_u24 v34, 1152, v32
v_add_u32 v34, v34, v35
v_mul_u32_u24 v33, 1152, v3
v_lshl_add_u32 v33, v1, 7, v33
s_lshr_b32 s{sT1}, s{sW}, 1
s_lshl_b32 s{sT2}, s{sT1}, 5
v_add3_u32 v33, v33, v35, s{sT2}''')
A(f'''s_lshl_b32 s{sT0}, s2, 2
s_add_u32 s{sT0}, s{sT0}, {FLAG_S}
s_lshl_b32 s{sT3}, s{sB}, 5
s_add_u32 s{sT3}, s{sT3}, {FLAG_C}
s_lshl_b32 s{sT2}, s{sA}, 1
s_add_u32 s{sT4}, s{sT2}, s{sT3}
s_bitcmp0_b32 s{sA}, 0
s_cselect_b32 s{sT4}, s{sT4}, s{sT0}
v_mov_b32 v{vFL}, s{sT4}
v_writelane_b32 v{vFL}, s{sT0}, 0
s_lshl_b32 s{sT0}, s{sA}, 6
s_add_u32 s{sT0}, s{sT0}, {FLAG_S}
v_and_b32 v2, 15, v{vL}
v_lshl_add_u32 v3, v2, 2, s{sT0}
v_lshl_add_u32 v31, v31, 2, s{sT3}
v_cmp_gt_u32 vcc, 32, v{vL}
v_cndmask_b32 v{vPL}, v31, v3, vcc
s_mul_i32 s{sT0}, s{sB}, 9216
s_add_u32 s{sT0}, s{sT0}, s{sT2}
s_and_b32 s{sT3}, s{sW}, 1
s_lshl_b32 s{sT3}, s{sT3}, 9
s_add_u32 s{sT0}, s{sT0}, s{sT3}
s_add_u32 s{sT0}, s{sT0}, {CS_OFF}
v_lshl_add_u32 v2, v2, 5, s{sT0}
s_lshl_b32 s{sT3}, s{sT1}, 10
v_lshlrev_b32 v35, 12, v1
v_add3_u32 v35, v35, v2, s{sT3}
v_mov_b32 v3, {OOB}
v_cndmask_b32 v35, v3, v35, vcc
v_add_u32 v32, 8192, v2
s_cmp_eq_u32 s{sT1}, 0
s_cselect_b32 s{sT3}, 16, 0
v_cmp_gt_u32 vcc, s{sT3}, v{vL}
v_cndmask_b32 v32, v3, v32, vcc''')
A(f'''v_and_b32 v1, 31, v{vL}
s_lshl_b32 s{sT0}, s{sA}, 7
s_bfe_u32 s{sT1}, s{sW}, 0x10001
s_lshl_b32 s{sT1}, s{sT1}, 6
s_add_u32 s{sT0}, s{sT0}, s{sT1}
s_add_u32 s{sT0}, s{sT0}, s{sMH}
s_lshl_b32 s{sT0}, s{sT0}, 2
s_add_u32 s{sT0}, s{sT0}, {STAT_OFF}
v_lshl_add_u32 v20, v1, 3, s{sT0}
v_lshlrev_b32 v1, 5, v1
v_lshrrev_b32 v2, 5, v{vL}
v_lshl_add_u32 v21, v2, 4, v1
s_mul_i32 s{sT0}, s{sB}, 9216
s_add_u32 s{sT0}, s{sT0}, {CS_OFF}
s_lshr_b32 s{sT4}, s{sW}, 2
s_mul_i32 s{sT2}, s{sT4}, s{sN0}
s_sub_u32 s{sT1}, s{sN0}, 1
s_cmp_eq_u32 s{sT4}, 1
s_cselect_b32 s{sT1}, 3, s{sT1}
s_add_u32 s{sT1}, s{sT1}, s{sT2}
s_lshl_b32 s{sT1}, s{sT1}, 10
s_add_u32 s{sP2}, s{sT1}, s{sT0}
s_min_u32 s{sT1}, s{sW}, 6
s_lshl_b32 s{sT3}, s{sT1}, 10
s_add_u32 s{sP3}, s{sT3}, {SCR}
s_add_u32 s{sT1}, s{sT1}, 2
s_cmp_gt_u32 s{sT1}, s{sN0}
s_cselect_b32 s{sT1}, 1024, 0
s_add_u32 s{sT0}, s{sT0}, s{sT1}
s_add_u32 s{sP4}, s{sT0}, s{sT3}
s_sub_u32 s{sT1}, s{sT2}, 1
s_max_i32 s{sT1}, s{sT1}, 0
s_lshl_b32 s{sT1}, s{sT1}, 10
s_add_u32 s{sT1}, s{sT1}, {SCR}
v_add_u32 v{vAD}, s{sT1}, v21
s_lshl_b32 s{sT0}, s{sA}, 2
s_and_b32 s{sT1}, s{sW}, 3
s_add_u32 s{sT0}, s{sT0}, s{sT1}
s_mul_i32 s{sP5}, s{sT0}, {TG_STRIDE}
s_lshl_b32 s{sFLAG}, s{sA}, 7
s_add_u32 s{sT0}, s{sST}, s{sT2}
s_lshl_b32 s{sT0}, s{sT0}, 10
s_add_u32 s{sP5}, s{sP5}, s{sT0}
s_lshl_b32 s{sT0}, s{sB}, 2
s_add_u32 s{sFLAG}, s{sFLAG}, s{sT0}''')
tail_prepare(); baddr_early(31); touch_prepare()
stamp(1)
A(f's_waitcnt vmcnt({vm.need({"sr"})})')
stamp(1)
E = Inter()
E.push([g + [lambda: vm.issue('s1')] for g in FW], 10)
stat_compute(E); vm.issue('st')
E.flush()
fw5_guarded('s1')
for g in FX: lines(g); vm.issue('s1')
lines(ADV); lines(SOFF)
touches(vm)
loop_prepare()
A('v_mov_b32 v52, 0\nv_mov_b32 v53, 0\nv_mov_b32 v54, 0\nv_mov_b32 v55, 0')
A(f's_waitcnt vmcnt({vm.need({"w0"})})\ns_barrier')
stamp(1)
A(f's_bitcmp1_b32 s{sA}, 0\ns_cbranch_scc1 L_nocs')
for n in range(8): A(f'ds_read_b64_tr_b16 {vr(56+2*n, 2)}, v33 offset:{n*2304}')
for n in range(4): A(f'ds_read_b64_tr_b16 {vr(72+2*n, 2)}, v34 offset:{n*4608 + 256}')
for n in range(8):
    if n % 2 == 0: A(f's_waitcnt lgkmcnt({10 - n})')
    A(f'v_dot2c_f32_bf16 v52, s{sONES}, v{56+2*n}\nv_dot2c_f32_bf16 v54, s{sONES}, v{57+2*n}')
A('s_waitcnt lgkmcnt(0)')
for n in range(8): A(f'v_dot2c_f32_bf16 v{53 + 2*(n & 1)}, s{sONES}, v{72+n}')
A('''v_add_f32 v52, v52, v54
v_add_f32 v53, v53, v55
v_mov_b32 v54, v52
v_mov_b32 v55, v53
v_permlane32_swap_b32 v52, v54
v_permlane32_swap_b32 v53, v55
v_add_f32 v52, v52, v54
v_add_f32 v53, v53, v55
v_mov_b32 v55, v53
v_permlane16_swap_b32 v53, v55
v_add_f32 v53, v53, v55''')
split_hilo(52, 54); split_hilo(53, 55)
A(f'''buffer_store_dword v52, v35, {srd(SRD_AUX)}, 0 offen sc1
buffer_store_dword v53, v32, {srd(SRD_AUX)}, 0 offen sc1
L_nocs:''')
stamp(1)
A(f's_waitcnt vmcnt({vm.need({"x0"})})\ns_barrier')
stamp(); stamp(1)
if OPT['exp'] in (5, 7): A(f's_mov_b32 s{SRD_X+2}, 0\ns_mov_b32 s{SRD_W+2}, 0\ns_mov_b32 s{SRD_B+2}, 0')
A(f'''s_lshr_b32 s{sT0}, s{sW}, 2
s_add_u32 s{sT0}, s{sT0}, 4
s_cmp_lt_u32 s{sT0}, s{sN0}
s_cbranch_scc0 L_f4''')

lg = Q(15)
vC1, vIR = 18, 20
vBM = 36
vCL = 40
def ffn_role(nt, n):
    NM = 4 * nt
    NHD = nt - 2
    def rw(m):
        p, T = divmod(m, nt); s = vFR + 8 + (m % nt) * 4
        A(f'ds_read_b64_tr_b16 {vr(s, 2)}, v{vRW} offset:{p*4608 + T*32}'); lg.issue(('w', m))
        A(f'ds_read_b64_tr_b16 {vr(s+2, 2)}, v{vRW} offset:{p*4608 + T*32 + 1152}'); lg.issue(('w', m))
    def rx(p):
        A(f'ds_read_b128 {vr(vFR + (p & 1)*4, 4)}, v{vRX+p}'); lg.issue(('x', p))
    def mm(m):
        p, T = divmod(m, nt); s = vFR + 8 + (m % nt) * 4
        A(mf32(vr(vACC + 16*T, 16), vr(s, 4), vr(vFR + (p & 1)*4, 4), vr(vACC + 16*T, 16)))
    D = nt - 1
    def five():
        uid[0] += 1
        return [f's_cmp_lt_u32 s{sW}, 4', f's_cbranch_scc1 L_no5{uid[0]}'] + FW5 + [f'L_no5{uid[0]}:']
    def fill_for(main):
        fill = {}
        dl = (FX + FW + ([five()] if nt == 4 else [])) if main else tail_dma()
        last = NM - 3
        if main: dl = dl + L2T
        if not OPT['nodma']: spread(dl, list(range(0, last + 1)), fill)
        spread([RDL], [3], fill)
        if main: spread([[f's_add_u32 s{sOX}, s{sOX}, 128'], [f's_add_u32 s{sOW}, s{sOW}, s{sMW}']], [7, last], fill)
        spread([ADVL], [last], fill)
        spread([[f'v_add_u32 v{vRX+i}, s{sDELTA}, v{vRX+i}'] for i in range(4)], [4, 6, nt + 1 + NHD, 2*nt + 1 + NHD], fill)
        spread([[f'v_add_u32 v{vRW}, s{sDELTA}, v{vRW}']], [NM - nt + NHD], fill)
        return fill
    def head(fill, with_mfma, extra=None):
        itstamp()
        lg.drain()
        nxt = 0
        for m in range(NHD):
            if with_mfma: mm(NM - NHD + m)
            while nxt <= nt - NHD + m and nxt < D:
                rw(nxt)
                if nxt == 0: rx(0)
                nxt += 1
            if extra and extra[m]: extra[m]()
            lines(fill.get(m, []))
    def rest(fill, last_it, label):
        for m in range(NM - NHD):
            p, T = divmod(m, nt)
            if m == NM - NHD - 1:
                A(f's_waitcnt vmcnt({6 + len(L2T) if last_it == 6 else 6}) lgkmcnt(0)'); lg.drain()
            want = {('w', m), ('x', p)}
            if OPT['w2'] and m % 2 == 0: want |= {('w', m + 1), ('x', (m + 1) // nt)}
            c = lg.need(want)
            if c is not None: A(f's_waitcnt lgkmcnt({c})')
            mm(m)
            if m + D < NM: rw(m + D)
            if T == 1 and p < 3: rx(p + 1)
            lines(fill.get(m + NHD, []))
            if m == NM - NHD - 2: A(f's_add_u32 s{sIT}, s{sIT}, 1\ns_cmp_lt_u32 s{sIT}, {f"s{sNEXT}" if last_it == 6 else last_it}')
        A(f's_cbranch_scc0 {label}\n{LB_}')
    fm = fill_for(True)
    head(fm, False)
    A(f'L_{n}loop:')
    rest(fm, 6, f'L_{n}exit')
    A(f'L_{n}back:')
    head(fm, True)
    A(f's_branch L_{n}loop\nL_{n}exit:\n{LB_}\ns_cmp_lt_u32 s{sIT}, 6\ns_cbranch_scc1 L_{n}h')
    def inter():
        get_tag(n)
        tail_setup()
        A(f'buffer_load_dword v{vTG}, v{vPL}, {srd(SRD_AUX)}, 0 offen sc1')
    def inter2():
        check_flag0(n)
        A(f'''buffer_load_dword v{vST}, v20, {srd(SRD_AUX)}, 0 offen sc1
s_mov_b32 m0, s{sP3}
buffer_load_dwordx4 {vr(vCL, 4)}, v21, {srd(SRD_AUX)}, s{sP2} offen sc1
buffer_load_dwordx4 v{vL16}, {srd(SRD_AUX)}, s{sP4} offen sc1 lds''')
    ft = fill_for(False)
    head(ft, True, [inter, None, None])
    A(f'L_{n}tail:')
    rest(ft, 8, f'L_{n}texit')
    head(ft, True, [inter2, None, None])
    A(f's_branch L_{n}tail\nL_{n}texit:\n{LB_}')
    stamp(); itdump()
    vCF = 20
    CF = [44, vFR, 32, 12]
    for t in range(nt - 1): A(f'ds_read_b128 {vr(CF[t], 4)}, v{vAD} offset:{t*1024}')
    if NHD == 3: mm(NM - 3)
    A(f'''v_and_b32 v1, 0xffff, v{vST}
v_and_b32 v{vST}, 0xffff0000, v{vST}
v_lshl_or_b32 v{vBM}, v1, 16, v1
v_rcp_f32 v{vC1}, v{vST}''')
    mm(NM - 2)
    A(f'''v_mov_b32 v{vBM+1}, v{vBM}
v_mov_b32 v{vBM+2}, v{vBM}
v_mov_b32 v{vBM+3}, v{vBM}''')
    mm(NM - 1)
    A(f'''v_mul_f32 v{vIR}, v{vST}, v{vST}
v_mul_f32 v{vIR+2}, v{vST}, v{vST}
v_mul_f32 v{vC1}, {f2u(-LOG2E)}, v{vC1}
s_waitcnt lgkmcnt(0)''')
    for t in range(nt):
        A(mf32(vr(vACC + 16*t, 16), vr(CF[t] if t < nt - 1 else vCL, 4), vr(vBM, 4), vr(vACC + 16*t, 16)))
        if t == 0: A('v_mov_b32 v10, v31'); baddr_first(31)
    vm = Q(63)
    for i in range(6): vm.issue('v9')
    E = Inter()
    def tile(T):
        a = vACC + 16*T
        t = 52 if T & 1 else 32
        t = 52
        o = 68 + 4 * (T & 1)
        for k in range(4):
            E(f'v_pk_mul_f32 {vr(t+2*k, 2)}, {vr(a+2*k, 2)}, {vr(vC1, 2)} op_sel_hi:[1,0]')
        for k in range(8): E(f'v_exp_f32 v{t+k}, v{t+k}')
        for k in range(4):
            E(f'v_pk_mul_f32 {vr(t+8+2*k, 2)}, {vr(a+2*k, 2)}, {vr(a+8+2*k, 2)}')
        for k in range(4):
            E(f'v_pk_fma_f32 {vr(t+2*k, 2)}, {vr(t+2*k, 2)}, {vr(vIR, 2)}, {vr(vIR+2, 2)} op_sel_hi:[1,0,0]')
        for k in range(8): E(f'v_rcp_f32 v{t+k}, v{t+k}')
        for k in range(4):
            E(f'v_pk_mul_f32 {vr(t+2*k, 2)}, {vr(t+2*k, 2)}, {vr(t+8+2*k, 2)}')
        for k in range(4):
            E(f'v_cvt_pk_bf16_f32 v{o+k}, v{t+2*k}, v{t+2*k+1}')
        if T == 4: A(f's_add_u32 s{sP5}, s{sP5}, 4096')
        off = f' offset:{(T % 4)*1024}' if T % 4 else ''
        A(f'buffer_store_dwordx4 {vr(o, 4)}, v{vL16}, {srd(SRD_ACT)}, s{sP5} offen{off}{SFL}'); vm.issue('st')
    E.push(breg_groups(0), 2)
    tile(0); E.flush()
    A(f's_waitcnt vmcnt({vm.need({"v9"})}) lgkmcnt(0)\ns_barrier')
    E.push(static_groups(0, vm, n) + static_groups(1, vm, n), 7)
    for T in range(1, nt): tile(T)
    E.flush()
    A('s_branch L_phase2')
    handlers(n)
ns0 = nstamp[0]
ffn_role(5, 'f5')
nst_save = nstamp[0]; nstamp[0] = ns0
A('L_f4:')
ffn_role(4, 'f4')

nstamp[0] = 1 if OPT['stamps'] else 0
A.label('L_attn')
A(f'''s_sub_u32 s{sT1}, s{sT1}, 20
s_lshr_b32 s{sA}, s{sT1}, 2
s_lshr_b32 s{sKS}, s{sA}, 1
s_lshl_b32 s{sT4}, s{sT2}, 1
s_add_u32 s{sKS}, s{sKS}, s{sT4}
s_mul_i32 s{sT2}, s{sT2}, 3
s_add_u32 s{sA}, s{sA}, s{sT2}
s_and_b32 s{sB}, s{sT1}, 3
s_lshl_b32 s{sT3}, s{sT3}, 2
s_add_u32 s{sB}, s{sB}, s{sT3}''')
if OPT['rot'] == 2: A(f's_add_u32 s{sKS}, s{sKS}, s{sB}\ns_and_b32 s{sKS}, s{sKS}, 7')
A(f'''s_and_b32 s{sT0}, s{sW}, 1
s_lshl_b32 s{sT1}, s{sT0}, 6
v_xor_b32 v{vDMA}, s{sT1}, v{vDMA}
v_xor_b32 v{vDMA+1}, 64, v{vDMA}
v_add_u32 v{vDMA+1}, {16384-1024}, v{vDMA+1}
v_add_u32 v{vDMA+2}, {2*(16384-1024)}, v{vDMA}
v_and_b32 v1, 1, v32
s_lshl_b32 s{sT1}, s{sT0}, 1
v_add_u32 v1, s{sT1}, v1
v_lshlrev_b32 v1, 1, v1
v_xor_b32 v1, v31, v1
v_lshlrev_b32 v1, 4, v1
v_mul_u32_u24 v2, 3072, v30
s_mul_i32 s{sT1}, s{sW}, 24576
v_add3_u32 v{vDMA+3}, v1, v2, s{sT1}
s_mul_i32 s{sST}, s{sA}, 176
s_and_b32 s{sT1}, s{sW}, 3
s_mul_i32 s{sT2}, s{sT1}, 48
s_lshr_b32 s{sT3}, s{sW}, 2
s_add_u32 s{sBX}, s{sST}, s{sT2}
s_add_u32 s{sBX}, s{sBX}, s{sT3}
s_lshl_b32 s{sBX}, s{sBX}, 10
s_lshl_b32 s{sBW}, s{sB}, 7
s_mov_b32 s{sMW}, {64*3072}
s_mul_i32 s{sD}, s{sW}, 3072
s_add_u32 s{sD+1}, s{sD}, 24576
s_mov_b64 s[{sEX}:{sEX+1}], -1
s_cmp_eq_u32 s{sT1}, 0
s_cmov_b32 s{sEX}, 0xffffff00
s_or_b32 s{sT1}, s{sT1}, s{sA}
s_cmp_eq_u32 s{sT1}, 0
s_cselect_b32 s{sT1}, {OOB}, 0
v_add_u32 v{vDMA}, s{sT1}, v{vDMA}''')
lines(SOFF)
A('s_waitcnt lgkmcnt(0)')
if OPT['stamps']: A(f's_mov_b32 s{sSTAMP}, s{sCLK}')
build_srd(SRD_XR, sKA, 2048 * 1024)
stat_load()
build_srd(SRD_W, sKA + 2, 512 * 3072)
A(f'''s_sub_u32 s{SRD_X}, s{sKA}, 16384
s_subb_u32 s{SRD_X+1}, s{sKA+1}, 0
s_mov_b32 s{SRD_X+2}, {2048*1024 + 16384}
s_mov_b32 s{SRD_X+3}, 0x20000''')
AX = [[f's_add_u32 m0, s{sSLOT}, s{sD}', f's_mov_b64 exec, s[{sEX}:{sEX+1}]'] + dma(vDMA, SRD_X, sOX, 0) + ['s_mov_b64 exec, -1'],
      dma(vDMA + 1, SRD_X, sOX, 1024), dma(vDMA + 2, SRD_X, sOX, 2048)]
AW = [dma(vDMA + 3, SRD_W, sOW, 0, [f's_add_u32 m0, s{sSLOT}, s{sD+1}']), dma(vDMA + 3, SRD_W, sOW, 1024), dma(vDMA + 3, SRD_W, sOW, 2048)]
stamp(1)
vm = Q(63); vm.issue('code'); vm.issue('sr')
for g in AX + AW: lines(g); vm.issue('s0')
publish_tag()
stamp(1)
lines(ADV); lines(SOFF)
setup2()
A('v_mov_b32 v56, 0\nv_mov_b32 v57, 0\nv_mov_b32 v58, 0\nv_mov_b32 v59, 0')
for T in range(5): A(mf32(vr(vACC + 16*T, 16), 'v[56:59]', 'v[56:59]', '0'))
A(f'''v_min_u32 v1, 5, v30
v_lshrrev_b32 v2, 1, v1
v_mul_u32_u24 v2, {SLOT}, v2
v_and_b32 v1, 1, v1
v_mul_u32_u24 v1, 12288, v1
v_add_u32 v1, v1, v2
v_lshl_add_u32 v1, v31, 4, v1
v_mov_b32 v60, s{sONES}
v_mov_b32 v61, s{sONES}
v_mov_b32 v62, s{sONES}
v_mov_b32 v63, s{sONES}
ds_write_b128 v1, v[60:63]
v_and_b32 v33, 15, v{vL}
s_mul_i32 s{sT0}, s{sMH}, 96
v_add_u32 v1, s{sT0}, v33
v_bfe_u32 v2, v1, 1, 3
v_xor_b32 v2, v2, v32
v_lshlrev_b32 v2, 4, v2
v_lshl_add_u32 v{vRX}, v1, 7, v2
v_xor_b32 v{vRX+1}, 64, v{vRX}
v_mul_u32_u24 v1, 3072, v32
v_bfe_u32 v2, v{vL}, 2, 2
v_lshl_add_u32 v1, v2, 7, v1
v_bfe_u32 v2, v{vL}, 3, 2
s_lshr_b32 s{sT0}, s{sW}, 1
v_xor_b32 v2, s{sT0}, v2
v_lshl_add_u32 v1, v2, 5, v1
v_and_b32 v2, 3, v{vL}
v_lshl_add_u32 v1, v2, 3, v1
v_add_u32 v{vRW}, 24576, v1
s_lshl_b32 s{sT0}, s2, 2
s_add_u32 s{sT0}, s{sT0}, {FLAG_S}
v_mov_b32 v{vFL}, s{sT0}
s_lshr_b32 s{sT0}, s{sST}, 3
s_sub_u32 s{sT0}, s{sT0}, 2
v_min_u32 v1, 23, v{vL}
v_add_u32 v1, s{sT0}, v1
v_max_i32 v1, 0, v1
v_min_u32 v1, 255, v1
v_lshlrev_b32 v1, 2, v1
v_add_u32 v{vPL}, {FLAG_S}, v1
v_lshlrev_b32 v2, 2, v32
v_sub_u32 v2, v33, v2
v_mov_b32 v3, 0xff800000''')
for j in range(4):
    A(f'''v_add_u32 v{vMSK+j}, {16-j}, v2
v_subrev_u32 v{vMSK+4+j}, {j}, v2
v_cmp_gt_u32 vcc, 8, v{vMSK+j}
v_cmp_gt_u32 s[{sT4}:{sT5}], 8, v{vMSK+4+j}
v_cndmask_b32 v{vMSK+j}, v3, 0, vcc
v_cndmask_b32 v{vMSK+4+j}, v3, 0, s[{sT4}:{sT5}]''')
A(f'''s_cmp_eq_u32 s{sA}, 0
s_cselect_b32 s{sT0}, 32, 0
v_cmp_gt_u32 vcc, s{sT0}, v{vL}''')
for j in range(4): A(f'v_cndmask_b32 v{vMSK+8+j}, v{vMSK+4+j}, v3, vcc')
A(f'''v_lshlrev_b32 v1, 1, v33
s_add_u32 s{sT0}, s{sMH}, s{sST}
s_sub_u32 s{sT0}, s{sT0}, 16
v_add_u32 v1, s{sT0}, v1
v_mov_b32 v3, {OOB}''')
for t in range(6):
    A(f'''v_cmp_gt_u32 vcc, 2048, v1
v_lshlrev_b32 v2, 2, v1
v_add_u32 v2, {STAT_OFF}, v2
v_cndmask_b32 v{vAD+t}, v3, v2, vcc''')
    if t < 5: A('v_add_u32 v1, 32, v1')
tail_prepare(); baddr_early(10); touch_prepare()
OO = [8, 9, 13]
A(f'''v_and_b32 v1, 15, v{vL}
s_mul_i32 s{sP2}, s{sW}, 768
s_add_u32 s{sP2}, s{sP2}, {SCR}
v_lshl_add_u32 v14, v1, 2, s{sP2}
v_lshrrev_b32 v2, 5, v{vL}
v_lshl_add_u32 v1, v2, 4, v1
s_lshr_b32 s{sT0}, s{sST}, 1
s_sub_u32 s{sT0}, s{sT0}, 8
v_add_u32 v2, s{sT0}, v1
s_mov_b32 s{sT2}, {2*TG_STRIDE}
v_bfe_u32 v3, v{vL}, 4, 1
v_lshlrev_b32 v3, 9, v3
v_cmp_le_u32 vcc, 8, v1''')
for i in range(3):
    A(f'''v_lshrrev_b32 v{OO[i]}, 5, v2
v_mul_lo_u32 v{OO[i]}, v{OO[i]}, s{sT2}
v_and_b32 v1, 31, v2
v_lshl_add_u32 v1, v1, 4, v3
v_add_u32 v{OO[i]}, v{OO[i]}, v1''')
    if i < 2: A('v_add_u32 v2, 32, v2')
A(f'v_mov_b32 v1, {OOB}\nv_cndmask_b32 v{OO[0]}, v1, v{OO[0]}, vcc')
A(f'''s_lshl_b32 s{sFLAG}, s{sA}, 7
s_lshl_b32 s{sT3}, s{sB}, 2
s_add_u32 s{sFLAG}, s{sFLAG}, s{sT3}
s_lshr_b32 s{sT4}, s{sW}, 1
s_add_u32 s{sT3}, s{sT3}, s{sT4}
s_add_u32 s{sFLAG}, s{sFLAG}, {FLAG_A}
s_mul_i32 s{sT2}, s{sMH}, {TG_STRIDE}
s_add_u32 s{sT3}, s{sT3}, 86
s_lshl_b32 s{sT3}, s{sT3}, 10
s_add_u32 s{sP5}, s{sT2}, s{sT3}''')
stamp(1)
A(f's_waitcnt vmcnt({vm.need({"sr"})})')
stamp(1)
E = Inter()
E.push([g + [lambda: vm.issue('s1')] for g in AX + AW], 8)
stat_compute(E); vm.issue('st')
E.flush()
stamp(1)
lines(ADV); lines(SOFF)
touches(vm)
loop_prepare()
stamp(1)
A(f's_waitcnt vmcnt({vm.need({"s0"})}) lgkmcnt(0)\ns_barrier')
stamp(); stamp(1)
if OPT['exp'] in (5, 7): A(f's_mov_b32 s{SRD_X+2}, 0\ns_mov_b32 s{SRD_W+2}, 0\ns_mov_b32 s{SRD_B+2}, 0')
def xf(j, t): return 36 * j + 4 * t
def wf(j, m): return 36 * j + 24 + 4 * m
RORD = [('w', 0), ('x', 0), ('w', 1), ('w', 2), ('x', 1), ('x', 2), ('x', 3), ('x', 4), ('x', 5)]
def a_rd(j, k):
    kind, i = RORD[k]
    if kind == 'x':
        A(f'ds_read_b128 {ar(xf(j, i), 4)}, v{vRX+j} offset:{i*2048}'); lg.issue(('x', j, i))
    else:
        A(f'ds_read_b64_tr_b16 {ar(wf(j, i), 2)}, v{vRW} offset:{j*12288 + i*1024}'); lg.issue(('w', j, i))
        A(f'ds_read_b64_tr_b16 {ar(wf(j, i)+2, 2)}, v{vRW} offset:{j*12288 + i*1024 + 512}'); lg.issue(('w', j, i))
QD, KD, VD = vACC, vACC + 24, vACC + 48
def a_mm(n):
    j, r = divmod(n, 18); t, m = divmod(r, 3)
    acc = vr(vACC + 24*m + 4*t, 4)
    if m < 2: A(mf16(acc, ar(wf(j, m), 4), ar(xf(j, t), 4), acc))
    else: A(mf16(acc, ar(xf(j, t), 4), ar(wf(j, m), 4), acc))
NH = 12
def a_fill(main):
    fill = {}
    if not OPT['nodma']: spread((AX + AW) if main else tail_dma(), [2, 7, 13, 19, 24, 30], fill)
    if main and L2T: spread(L2T, [33], fill)
    spread([RDL], [10], fill)
    if main: spread([[f's_add_u32 s{sOX}, s{sOX}, 128'], [f's_add_u32 s{sOW}, s{sOW}, s{sMW}']], [15, 31], fill)
    spread([ADVL], [31], fill)
    spread([[f'v_add_u32 v{vRX}, s{sDELTA}, v{vRX}'], [f'v_add_u32 v{vRX+1}, s{sDELTA}, v{vRX+1}'], [f'v_add_u32 v{vRW}, s{sDELTA}, v{vRW}']], [11, 27, 28], fill)
    return fill
def a_head(fill, with_mfma, extra=None):
    itstamp()
    lg.drain()
    for m in range(NH):
        if with_mfma: a_mm(36 - NH + m)
        if m < 9: a_rd(0, m)
        if m == 1 and extra: extra()
        lines(fill.get(m, []))
def a_rest(fill, last_it, label):
    for n in range(36 - NH):
        j, r = divmod(n, 18); t, m = divmod(r, 3)
        if n == 35 - NH:
            A(f's_waitcnt vmcnt({6 + len(L2T) if last_it == 6 else 6}) lgkmcnt(0)'); lg.drain()
        want = {('w', j, m), ('x', j, t)}
        if OPT['w2']:
            if r == 0: want |= {('w', j, 1), ('w', j, 2), ('x', j, 1)}
            elif m == 0 and t % 2 == 0: want |= {('x', j, t + 1)}
        c = lg.need(want)
        if c is not None: A(f's_waitcnt lgkmcnt({c})')
        a_mm(n)
        if 1 <= n <= 9: a_rd(1, n - 1)
        lines(fill.get(n + NH, []))
        if n == 34 - NH: A(f's_add_u32 s{sIT}, s{sIT}, 1\ns_cmp_lt_u32 s{sIT}, {f"s{sNEXT}" if last_it == 6 else last_it}')
    A(f's_cbranch_scc0 {label}\n{LB_}')
am, at = a_fill(True), a_fill(False)
a_head(am, False)
A('L_aloop:')
a_rest(am, 6, 'L_aexit')
A('L_aback:')
a_head(am, True)
A(f's_branch L_aloop\nL_aexit:\n{LB_}\ns_cmp_lt_u32 s{sIT}, 6\ns_cbranch_scc1 L_ah')
def a_inter():
    get_tag('a')
    tail_setup()
    A(f'buffer_load_dword v{vTG}, v{vPL}, {srd(SRD_AUX)}, 0 offen sc1')
def a_inter2():
    check_flag0('a')
    for t in range(6): A(f'buffer_load_dword v{vST+t}, v{vAD+t}, {srd(SRD_AUX)}, 0 offen sc1')
a_head(at, True, a_inter)
A('L_atail:')
a_rest(at, 8, 'L_atexit')
a_head(at, True, a_inter2)
A(f's_branch L_atail\nL_atexit:\n{LB_}')
stamp(); itdump(); stamp(4)
vMR = 48
RR = [152, 154, 156, 158, 32, 34]
A(f'v_and_b32 v31, 48, v{vL}\nv_add_u32 v31, s{sP2}, v31')
for t in range(6):
    a_mm(24 + 2*t)
    A(f"""v_and_b32 v{RR[t]}, 0xffff0000, v{vST+t}
v_max_f32 v{RR[t]}, {f2u(1e-3)}, v{RR[t]}""")
    a_mm(25 + 2*t)
    A(f"""v_rcp_f32 v{RR[t]}, v{RR[t]}
v_lshlrev_b32 v{vMR+2*t}, 16, v{vST+t}
ds_write2_b32 v14, v{vMR+2*t}, v{RR[t]} offset0:{16*t} offset1:{96+16*t}""")
baddr_first(10)
ROW = [70, 16, 92]
def row_read(t):
    b = ROW[t % 3]
    A(f'ds_read_b128 {vr(b, 4)}, v31 offset:{64*t}\nds_read_b128 {vr(b+4, 4)}, v31 offset:{384 + 64*t}')
row_read(0); row_read(1)
stamp(4)
vm = Q(63)
for i in range(6): vm.issue('v9')
E = Inter()
vCQ, vCK, vCV = 60, 64, 68
A(f'v_mov_b32 v{vCV}, v{VD}\nv_mov_b32 v{vCV+1}, v{VD}')
for j in range(4): A(f'v_mov_b32_dpp v{vCK+j}, v{KD+j} row_newbcast:0 row_mask:0xf bank_mask:0xf')
A(f'v_permlane16_swap_b32 v{vCV}, v{vCV+1}')
for j in range(2): A(f'v_mov_b32_dpp v{vCQ+j}, v{QD+j} row_newbcast:0 row_mask:0xf bank_mask:0xf')
A(f'v_mov_b32 v{vCV+1}, v{vCV}')
for j in range(2, 4): A(f'v_mov_b32_dpp v{vCQ+j}, v{QD+j} row_newbcast:0 row_mask:0xf bank_mask:0xf')
A(f'v_permlane32_swap_b32 v{vCV}, v{vCV+1}')
QP, KP, VP = QD, KD, VD + 2
E.push(breg_groups(0), 4)
for t in range(6):
    for k in range(2): E(f'v_pk_fma_f32 {vr(QD+4*t+2*k, 2)}, {vr(vCQ+2*k, 2)}, {vr(vMR+2*t, 2)}, {vr(QD+4*t+2*k, 2)} op_sel_hi:[1,0,1]')
for t in range(6):
    for k in range(2): E(f'v_pk_fma_f32 {vr(KD+4*t+2*k, 2)}, {vr(vCK+2*k, 2)}, {vr(vMR+2*t, 2)}, {vr(KD+4*t+2*k, 2)} op_sel_hi:[1,0,1]')
for t in range(6):
    for k in range(2): E(f'v_cvt_pk_bf16_f32 v{QP+2*t+k}, v{QD+4*t+2*k}, v{QD+4*t+2*k+1}')
E.flush()
row_read(2)
for t in range(6):
    for k in range(2): A(f'v_pk_mul_f32 {vr(KD+4*t+2*k, 2)}, {vr(KD+4*t+2*k, 2)}, {vr(RR[t], 2)} op_sel_hi:[1,0]')
for t in range(6): A(f'v_mul_f32 v{vMR+2*t}, {f2u(0.25*LOG2E)}, v{RR[t]}')
for t in range(6):
    for k in range(2): A(f'v_cvt_pk_bf16_f32 v{KP+2*t+k}, v{KD+4*t+2*k}, v{KD+4*t+2*k+1}')
SB = [116, 60, 144, 92]
def s_mm(t):
    s = SB[t % 4]
    if t: A(mf16k(vr(s, 4), vr(KP+2*(t-1), 2), vr(QP+2*t, 2), vr(vMSK, 4)))
    A(mf16k(vr(s+4, 4), vr(KP+2*t, 2), vr(QP+2*t, 2), vr(vMSK + (4 if t else 8), 4)))
stamp(4)
A(f's_waitcnt vmcnt({vm.need({"v9"})}) lgkmcnt(0)\ns_barrier')
s_mm(0); s_mm(1)
E.push(static_groups(0, vm, 'a') + static_groups(1, vm, 'a'), 14)
for half in range(2):
    ts = range(3*half, 3*half + 3)
    if half: A('s_waitcnt lgkmcnt(0)')
    for t in ts:
        for k in range(2): E(f'v_pk_fma_f32 {vr(VD+4*t+2*k, 2)}, {vr(ROW[t%3]+2*k, 2)}, {vr(vCV, 2)}, {vr(VD+4*t+2*k, 2)} op_sel_hi:[1,0,1]')
    for t in ts:
        for k in range(2): E(f'v_pk_mul_f32 {vr(VD+4*t+2*k, 2)}, {vr(VD+4*t+2*k, 2)}, {vr(ROW[t%3]+4+2*k, 2)}')
    if half == 0:
        for t in range(3, 6): row_read(t)
    for t in ts:
        if t == 0: E(f'v_cvt_pk_bf16_f32 v{VD+2}, v{VD+2}, v{VD+3}\nv_cvt_pk_bf16_f32 v{VD+3}, v{VD}, v{VD+1}\nv_swap_b32 v{VD+2}, v{VD+3}')
        else:
            for k in range(2): E(f'v_cvt_pk_bf16_f32 v{VP+2*t+k}, v{VD+4*t+2*k}, v{VD+4*t+2*k+1}')
    if half == 0: rowmax = True
PB = [100, 124]
OB = [152, 16]; LB = [156, 20]
MXS = {0: (32, 33, 34), 2: (2, 3, 24), 4: (32, 33, 34)}
stamp(4)
def pmax(t):
    m0, m1, _ = MXS[t]
    ch = []
    for e, m in ((0, m0), (1, m1)):
        s = SB[(t + e) % 4]
        if t + e == 0: ch.append([f'v_max3_f32 v{m}, v{s+4}, v{s+5}, v{s+6}', f'v_max_f32 v{m}, v{m}, v{s+7}'])
        else: ch.append([f'v_max3_f32 v{m}, v{s}, v{s+1}, v{s+2}', f'v_max3_f32 v{m}, v{m}, v{s+3}, v{s+4}',
                         f'v_max3_f32 v{m}, v{m}, v{s+5}, v{s+6}', f'v_max_f32 v{m}, v{m}, v{s+7}'])
    return mix(ch[1], ch[0]), [f'v_permlane32_swap_b32 v{m0}, v{m1}', f'v_max_f32 v{m0}, v{m0}, v{m1}', f'v_mov_b32 v{m1}, v{m0}',
                               f'v_permlane16_swap_b32 v{m0}, v{m1}', f'v_max_f32 v{m0}, v{m0}, v{m1}', f'v_mov_b32 v{m1}, v{m0}',
                               f'v_permlane32_swap_b32 v{m0}, v{m1}']
def weave(chain, fill):
    fill = list(fill)
    for c in chain:
        E(c)
        for _ in range(2):
            if fill: E(fill.pop(0))
    for f in fill: E(f)
def pexp(t):
    m0, m1, n1 = MXS[t]
    E(f'v_mul_f32 v{n1}, -v{vMR+2*t+2}, v{m1}\nv_mul_f32 v{m0}, -v{vMR+2*t}, v{m0}')
    for e in range(2):
        s = SB[(t + e) % 4]; c = vMR + 2 * (t + e); k0 = 2 if t + e == 0 else 0
        for k in range(k0, 4): E(f'v_pk_fma_f32 {vr(s+2*k, 2)}, {vr(s+2*k, 2)}, {vr(c, 2)}, {vr(n1 if e else m0, 2)} op_sel_hi:[1,0,0]')
    for e in range(2):
        s = SB[(t + e) % 4]; k0 = 2 if t + e == 0 else 0
        for k in range(2*k0, 8): E(f'v_exp_f32 v{s+k}, v{s+k}')
        for k in range(k0, 4): E(f'v_cvt_pk_bf16_f32 v{PB[e]+k}, v{s+2*k}, v{s+2*k+1}')
        E(mf16(vr(LB[e], 4), 'v[72:75]', vr(PB[e], 4), '0'))
        E(mf16(vr(OB[e], 4), vr(VP + 2*(t + e - 1), 4), vr(PB[e], 4), '0'))
def pfin(t):
    x = 76
    out = [f'v_rcp_f32 v{LB[0]}, v{LB[0]}', f'v_rcp_f32 v{LB[1]}, v{LB[1]}']
    for e in range(2):
        for k in range(2): out.append(f'v_pk_mul_f32 {vr(OB[e]+2*k, 2)}, {vr(OB[e]+2*k, 2)}, {vr(LB[e], 2)} op_sel_hi:[1,0]')
    for e in range(2):
        for k in range(2): out.append(f'v_cvt_pk_bf16_f32 v{x+2*e+k}, v{OB[e]+2*k}, v{OB[e]+2*k+1}')
    return out
def pstore(t):
    x = 76
    E(f'v_permlane32_swap_b32 v{x}, v{x+2}\nv_permlane32_swap_b32 v{x+1}, v{x+3}')
    A(f'buffer_store_dwordx4 {vr(x, 4)}, v{OO[t//2]}, {srd(SRD_ACT)}, s{sP5} offen{SFL}'); vm.issue('st')
loc, crs = pmax(0)
for l in loc: E(l)
weave(crs, [f'v_mov_b32 v{72+i}, s{sONES}' for i in range(4)] + [f'v_mov_b32 v{PB[0]}, 0', f'v_mov_b32 v{PB[0]+1}, 0', f'v_mov_b32 v{VD}, 0', f'v_mov_b32 v{VD+1}, 0'])
for t in (0, 2, 4):
    if t < 4: s_mm(t + 2); s_mm(t + 3)
    pexp(t)
    if t < 4:
        loc, crs = pmax(t + 2)
        for l in loc: E(l)
        weave(crs, pfin(t))
    else:
        E.flush()
        for l in pfin(t): E(l)
    pstore(t)
    stamp(4)
assert nstamp[0] == nst_save or OPT['sg'] == 4, (nstamp[0], nst_save)

A.label('L_phase2')
stamp()
A(f'v_xor_b32 v{vB+1}, 64, v{vB}')
for g in breg_groups(1): lines(g)
vP = 128
vRING = 80; NRING = 12
vLB = 48
vXR = 36
vPO, vOO, vEX = 12, 13, 14
A(f'''v_and_b32 v1, 31, v{vL}
v_lshrrev_b32 v2, 5, v{vL}
s_lshl_b32 s{sT2}, s{sR}, 6
s_add_u32 s{sT2}, s{sT2}, s{sMH}
s_lshl_b32 s{sT2}, s{sT2}, 10
s_lshl_b32 s{sT3}, s{sCB}, 7
s_add_u32 s{sT2}, s{sT2}, s{sT3}
s_lshl_b32 s{sT3}, s{sKQ}, 5
s_add_u32 s{sT2}, s{sT2}, s{sT3}
v_lshlrev_b32 v{vOO}, 11, v1
v_lshl_add_u32 v{vOO}, v2, 4, v{vOO}
v_add_u32 v{vOO}, s{sT2}, v{vOO}
s_lshl_b32 s{sT2}, s{sR}, 1
s_add_u32 s{sT2}, s{sT2}, s{sMH}
s_mul_i32 s{sOX}, s{sT2}, {TG_STRIDE}
s_sub_u32 s{sT1}, s{sKQ}, 1
s_mul_i32 s{sT3}, s{sT1}, {29*1024}
s_cmp_eq_u32 s{sKQ}, 0
s_cselect_b32 s{sT3}, {86*1024}, s{sT3}
s_add_u32 s{sOX}, s{sOX}, s{sT3}
s_add_u32 s{sOW}, s{sOX}, {28*1024}
s_cmp_eq_u32 s{sKQ}, 0
s_cselect_b32 s{sNW}, s{sOW}, {OOB}
s_cmp_eq_u32 s{sKQ}, 3
s_cselect_b32 s{sOW}, {OOB}, s{sOW}
s_lshr_b32 s{sT2}, s{sR}, 1
s_lshl_b32 s{sT2}, s{sT2}, 7
v_min_u32 v3, 9, v{vL}
v_lshl_add_u32 v{vPO}, v3, 2, s{sT2}
s_lshl_b32 s{sT3}, s{sR}, 6
s_mul_i32 s{sT4}, s{sT3}, 745
s_lshr_b32 s{sT4}, s{sT4}, 17
s_add_u32 s{sT3}, s{sT3}, 63
s_mul_i32 s{sT3}, s{sT3}, 745
s_lshr_b32 s{sT3}, s{sT3}, 17
s_sub_u32 s{sT3}, s{sT3}, s{sT4}
s_lshl_b32 s{sT3}, s{sT3}, 7
s_lshl_b32 s{sT4}, s{sT4}, 7
s_add_u32 s{sT4}, s{sT4}, {FLAG_A}
v_mul_u32_u24 v2, s{sT3}, v2
v_and_b32 v1, 7, v{vL}
v_lshl_add_u32 v1, v1, 2, s{sT4}
v_add_u32 v1, v1, v2
s_cmp_eq_u32 s{sKQ}, 0
s_cselect_b64 vcc, -1, 0
v_cndmask_b32 v{vPO}, v{vPO}, v1, vcc
s_mul_i32 s{sT0}, s{sMH}, {6144 if OPT['ex'] else 32768}
s_add_u32 s{sT0}, s{sT0}, {SLOT if OPT['ex'] else 0}
v_add_u32 v{vEX}, s{sT0}, v{vL16}
s_lshl_b32 s{sT0}, s{sW}, 2
s_add_u32 s{sT0}, s{sT0}, {LDS_BYTES - 48}
v_mov_b32 v15, s{sT0}
v_xor_b32 v16, 4, v15
v_mov_b32 v2, s{sTAG}''')
if OPT['r2']:
    A('s_waitcnt lgkmcnt(0)\ns_barrier')
    for g in static_groups(2, Q(63), 'p'): lines(g)
    A(f's_waitcnt vmcnt({4 if OPT["r2"] == 1 else 0})')
else: A('s_waitcnt vmcnt(0) lgkmcnt(0)')
A(f'''s_barrier
s_cmp_lg_u32 s{sW}, 0
s_cbranch_scc1 L_noflag
s_mov_b64 exec, 1
buffer_store_dword v2, off, {srd(SRD_AUX)}, s{sFLAG} sc1
s_mov_b64 exec, -1
L_noflag:
v_add_u32 v{vB+4}, s{sQ1}, v10
v_xor_b32 v{vB+5}, 64, v{vB+4}
v_add_u32 v{vB}, {SLOT}, v{vB}
v_add_u32 v{vB+1}, {SLOT}, v{vB+1}''')
stamp(); stamp(3)
if OPT['exp'] == 8: A(f's_mov_b32 s{SRD_B+2}, 0')
if not OPT['r2']:
    for g in static_groups(2, Q(63), 'p'): lines(g)
stamp(3)
A(f"""s_min_u32 s{sT1}, s{sKQ}, 1
s_lshl_b32 s{sT1}, s{sT1}, 2
s_add_u32 s{sT1}, s{sT1}, {LDS_BYTES - 8}
v_mov_b32 v1, s{sT1}
s_mov_b32 s{sT0}, 0
s_and_b32 s{sT2}, s{sW}, 5
s_cmp_lg_u32 s{sT2}, 0
s_cbranch_scc0 L_poller
s_waitcnt vmcnt(0)
s_barrier
s_branch L_lpoll
L_poller:""")
if OPT['ep']: A(f'buffer_load_dword v3, v{vPO}, {srd(SRD_AUX)}, 0 offen sc1\ns_waitcnt vmcnt(1)\ns_barrier\ns_branch L_pchk')
else: A('s_waitcnt vmcnt(0)\ns_barrier')
A(f"""L_poll:
buffer_load_dword v3, v{vPO}, {srd(SRD_AUX)}, 0 offen sc1
L_pchk:
s_add_u32 s{sT0}, s{sT0}, 1
s_waitcnt vmcnt(0)
v_cmp_ne_u32 vcc, s{sTAG}, v3
s_cbranch_vccz L_ptell
s_sleep {OPT['sleep']}
s_cmp_lt_u32 s{sT0}, {SPIN}
s_cbranch_scc1 L_poll
L_ptell:
ds_write_b32 v1, v2
s_branch L_pollok
L_lpoll:
ds_read_b32 v3, v1
s_add_u32 s{sT0}, s{sT0}, 1
s_waitcnt lgkmcnt(0)
v_cmp_ne_u32 vcc, s{sTAG}, v3
s_cbranch_vccz L_pollok
s_sleep 1
s_cmp_lt_u32 s{sT0}, {SPIN*8}
s_cbranch_scc1 L_lpoll
L_pollok:""")
stamp(); stamp(3)
vm = Q(63); lg = Q(15)
def a_load(st):
    so = sOX if st < 28 else (sOW if st == 28 else sNW)
    if st and st % 4 == 0 and st < 28: A(f's_add_u32 s{sOX}, s{sOX}, 4096')
    off = f' offset:{(st % 4)*1024}' if st % 4 else ''
    A(f'buffer_load_dwordx4 {vr(vRING + 4*(st % NRING), 4)}, v{vL16}, {srd(SRD_ACT)}, s{so} offen{off} sc1')
    vm.issue(st)
def b_read(st, ct):
    t = st - NREG
    r = [i for i, (a, b) in enumerate(REG_T) if a <= t < b][0]
    off = (t - REG_T[r][0]) * 2048
    for hf in range(2):
        A(f'ds_read_b64_tr_b16 {vr(vLB + (st % 4)*8 + ct*4 + hf*2, 2)}, v{vB + 2*r + ct} offset:{off + hf*1024}')
        lg.issue(st)
NB = OPT['burst']
for st in range(NB): a_load(st)
for st in range(32):
    if st == 28: A(f's_cmp_eq_u32 s{sKQ}, 3\ns_cbranch_scc1 L_p2done')
    if st == 29: A(f's_cmp_lg_u32 s{sKQ}, 0\ns_cbranch_scc1 L_p2done')
    w = []
    c = vm.need({st})
    if c is not None: w.append(f'vmcnt({c})')
    c = lg.need({st})
    if c is not None: w.append(f'lgkmcnt({c})')
    if w: A('s_waitcnt ' + ' '.join(w))
    if st in (0, 12): stamp(3)
    if st == 18 and OPT['ex']: A('ds_write_b32 v15, v2'); lg.issue('done17')
    for ct in range(2):
        b = ar(st*8 + ct*4, 4) if st < NREG else vr(vLB + (st % 4)*8 + ct*4, 4)
        acc = vr(vP + 16*ct, 16)
        A(mf32(acc, b, vr(vRING + 4*(st % NRING), 4), acc if st else '0'))
        if NREG <= st + 2 < 32: b_read(st + 2, ct)
        if ct == 0 and st + NB < 32: a_load(st + NB)
        if ct == 1 and st + NB == 31:
            A(f'buffer_load_dwordx4 v[44:47], v{vOO}, {srd(SRD_XR)}, 0 offen'); vm.issue('x')
A('L_p2done:')
stamp(); stamp(3)
vF, vS, vR1 = 48, 56, 64
if OPT['ex']:
    A(f"""s_mov_b32 s{sT0}, 0
L_pw:
ds_read_b32 v3, v16
s_add_u32 s{sT0}, s{sT0}, 1
s_waitcnt lgkmcnt(0)
v_cmp_ne_u32 vcc, s{sTAG}, v3
s_cbranch_vccz L_pwok
s_cmp_lt_u32 s{sT0}, {SPIN*8}
s_cbranch_scc1 L_pw
L_pwok:""")
else: A('s_waitcnt lgkmcnt(0)\ns_barrier')
A(f"""s_cmp_eq_u32 s{sKQ}, 1
s_cbranch_scc1 L_red1
s_cmp_eq_u32 s{sKQ}, 2
s_cbranch_scc1 L_red2
s_cmp_eq_u32 s{sKQ}, 3
s_cbranch_scc1 L_red3""")
def exo(src, chunk):
    if not OPT['ex']: return src*8192 + chunk*2048
    return src*12288 + (chunk - (chunk > src))*2048
def xunpack():
    A('s_waitcnt vmcnt(0)\nv_permlane32_swap_b32 v44, v46\nv_permlane32_swap_b32 v45, v47')
    for i in range(4):
        A(f'v_lshlrev_b32 v{vXR+2*i}, 16, v{44+i}\nv_and_b32 v{vXR+2*i+1}, 0xffff0000, v{44+i}')
for q in range(4):
    if q: A(f'L_red{q}:')
    for c in range(4):
        if c == q: continue
        for i in range(2): A(f'ds_write_b128 v{vEX}, {vr(vP + 8*c + 4*i, 4)} offset:{exo(q, c) + i*1024}')
    xunpack()
    A('s_waitcnt lgkmcnt(0)\ns_barrier')
    srcs = [s for s in range(4) if s != q]
    dst = {}
    for n_, s in enumerate(srcs):
        dst[s] = vS if s == 0 else vR1 + 8 * n_
        for i in range(2): A(f'ds_read_b128 {vr(dst[s] + 4*i, 4)}, v{vEX} offset:{exo(s, q) + i*1024}')
    dst[q] = vP + 8 * q
    if q == 0:
        for i in range(4): A(f'v_pk_mul_f32 {vr(vS+2*i, 2)}, {vr(vP+2*i, 2)}, 1.0 op_sel_hi:[1,0]')
    fs = [q] + [s for s in srcs if s] if q else [1, 2, 3]
    A('s_waitcnt lgkmcnt(2)')
    for i in range(4): A(f'v_pk_add_f32 {vr(vF+2*i, 2)}, {vr(dst[fs[0]]+2*i, 2)}, {vr(dst[fs[1]]+2*i, 2)}')
    A('s_waitcnt lgkmcnt(0)')
    for i in range(4): A(f'v_pk_add_f32 {vr(vF+2*i, 2)}, {vr(vF+2*i, 2)}, {vr(dst[fs[2]]+2*i, 2)}')
    if q < 3: A('s_branch L_final')
A.label('L_final')
t = 88
assert sT1 % 2 == 0
A(f's_mov_b32 s{sT1}, {f2u(-LOG2E)}\ns_mov_b32 s{sT1+1}, {f2u(-LOG2E)}')
for i in range(4): A(f'v_pk_mul_f32 {vr(t+2*i, 2)}, {vr(vF+2*i, 2)}, s[{sT1}:{sT1+1}]')
for i in range(8): A(f'v_exp_f32 v{t+i}, v{t+i}')
for i in range(4): A(f'v_pk_mul_f32 {vr(vS+2*i, 2)}, {vr(vS+2*i, 2)}, {vr(vF+2*i, 2)}')
for i in range(4): A(f'v_pk_add_f32 {vr(t+2*i, 2)}, {vr(t+2*i, 2)}, 1.0 op_sel_hi:[1,0]')
for i in range(8): A(f'v_rcp_f32 v{t+i}, v{t+i}')
for i in range(4): A(f'v_pk_fma_f32 {vr(t+2*i, 2)}, {vr(t+2*i, 2)}, {vr(vS+2*i, 2)}, {vr(vXR+2*i, 2)}')
for i in range(4): A(f'v_cvt_pk_bf16_f32 v{44+i}, v{t+2*i}, v{t+2*i+1}')
A(f'''v_permlane32_swap_b32 v44, v46
v_permlane32_swap_b32 v45, v47
buffer_store_dwordx4 v[44:47], v{vOO}, {srd(SRD_OUT)}, 0 offen{['', ' sc1', ' nt', ' sc0 sc1'][OPT['ost']]}''')
if OPT['stamps'] and OPT['sg'] != 2:
    stamp(); stamp(3)
    A('s_waitcnt vmcnt(0)')
    stamp()
    A(f'''s_lshl_b32 s{sT0}, s2, 9
s_lshl_b32 s{sT1}, s{sW}, 6
s_add_u32 s{sT0}, s{sT0}, s{sT1}
s_add_u32 s{sT0}, s{sT0}, {STAMP_OFF}
v_mov_b32 v1, s{sT0}''')
    for i in range(10): A(f'v_mov_b32 v{48+i}, s{sSTAMP+i}')
    A(f'''global_store_dwordx4 v1, v[48:51], s[{sWS}:{sWS+1}]
global_store_dwordx4 v1, v[52:55], s[{sWS}:{sWS+1}] offset:16
global_store_dwordx2 v1, v[56:57], s[{sWS}:{sWS+1}] offset:32''')
A.label('L_end')
A('s_endpgm')
handlers('a')

body = A.finish(verbose=False)
hdr = open('cdna_kernels/' + NAME + '.s.ref').read().split('; Override launch')[0]
out = hdr + f'''; @launch grid=(256,1,1) block=(512,1,1) lds={LDS_BYTES}
.amdgcn_target "amdgcn-amd-amdhsa--gfx950"
.text
.globl {NAME}_kernel
.p2align 8
.type {NAME}_kernel,@function
''' + body + f'''L_codeend:
.fill (33024 - (L_codeend - {NAME}_kernel)) / 4, 4, 0xbf810000
.section .rodata,"a"
.p2align 6
.amdhsa_kernel {NAME}_kernel
  .amdhsa_next_free_vgpr 256
  .amdhsa_next_free_sgpr 102
  .amdhsa_accum_offset 160
  .amdhsa_group_segment_fixed_size 0
  .amdhsa_kernarg_size 80
  .amdhsa_user_sgpr_count 2
  .amdhsa_user_sgpr_kernarg_segment_ptr 1
  .amdhsa_system_sgpr_workgroup_id_x 1
.end_amdhsa_kernel
'''
sys.stdout.write(out)
sys.stderr.write(f'nops inserted: {A.nops}\n')
```

```python
import sys, os, struct
sys.path.insert(0, os.path.dirname(os.path.abspath(__file__)))
from asmlib import Asm, Q

NAME = "recurrent_scan__sliding_local_dilated__swiglu_ffn__prompt"
OPT = dict(perm=1, c3=0, fbg=1, abg=2, flate=1, adel=0, np=2, arot=0, gap=2, anh=17, w2=1, tin=0, pt=0, sfl=0, ep=0, r2=0, ex=1, tit=4, rot=1, l2r=2, lateb=0, ost=0, l2t=0, exp=0, sleep=1, stamps=0, sg=0, nodma=0, btouch=1, map2=0, burst=8, prio=0)
for a in sys.argv[1:]:
    k, v = a.split('=')
    assert k in OPT, k
    OPT[k] = int(v)

SLOT = 53504
UPOFF = 18560
LDS_BYTES = 163840
SCR = 2 * SLOT + 49152
ACT_OFF = 1 << 20
TG_STRIDE = 118 * 1024
ACT_BYTES = 64 * TG_STRIDE
FLAG_F = 0
FLAG_A = 0x2000
FLAG_S = 0x2c00
FLAG_C = 0x3000
STAT_OFF = 0x4000
CS_OFF = 0x8000
AUX_BYTES = 0x8000 + 10 * 9216
STAMP_OFF = 1 << 19
NREG = 12
LOG2E = 1.4426950408889634
OOB = 0x80000000
SPIN = 0x40000
def f2u(x): return struct.unpack('<I', struct.pack('<f', x))[0]

sW = 3
SRD_X, SRD_W, SRD_ACT, SRD_B, SRD_XR, SRD_OUT = 4, 8, 12, 16, 20, 24
sDBG, sWS = 28, 30
sKA = 32
sIT, sKS, sBX, sBW, sKQ, sMW, sOX, sOW = 48, 49, 50, 51, 52, 53, 54, 55
sD = 56
sN0 = 59
sSLOT, sDELTA, sONES, sRS = 60, 61, 62, 63
sR, sCB, sA, sB, sTAG, sT0, sT1, sT2, sT3 = 64, 65, 66, 67, 68, 69, 70, 71, 72
sMH, sST, sFLAG, sSOFF, sNW, sT4, sT5 = 73, 74, 75, 76, 77, 78, 79
SRD_AUX = 80
SRD_T = 84
sEX = 88
sCLK = 90
sSTAMP = 92
sHM = 0
sP0, sP1, sP2, sP3, sP4, sP5 = 32, 33, 34, 35, 38, 39
sQ0, sQ1, sQ2, sSO, sQ3, sL2 = 40, 41, 42, 43, 1, 46
def srd(n): return f's[{n}:{n+3}]'

vL = 0
vDMA = 4
vRX, vRW = 11, 15
vST = 16
vPL, vFL, vTG = 22, 23, 24
vBP = 25
vL16 = 29
vTCH = 19
vAD = 30
vMSK = 36
vFR = 48
vACC = 80
def vr(b, n): return f'v[{b}:{b+n-1}]'
def ar(b, n): return f'a[{b}:{b+n-1}]'

A = Asm()
SFL = [' sc1', ' sc0 sc1'][OPT['sfl']]
STI = 's_memtime' if OPT['stamps'] == 2 else 's_memrealtime'
nstamp = [0]
def stamp(grp=0):
    if not OPT['stamps'] or grp != OPT['sg']: return
    i = nstamp[0]; nstamp[0] += 1
    assert i < 10
    A(f'{STI} s[{sCLK}:{sCLK+1}]\ns_waitcnt lgkmcnt(0)\ns_mov_b32 s{sSTAMP+i}, s{sCLK}')

def itstamp():
    if OPT['stamps'] and OPT['sg'] == 2:
        A(f'''{STI} s[{sCLK}:{sCLK+1}]
s_waitcnt lgkmcnt(0)
v_mov_b32 v77, s{sCLK}
v_cmp_eq_u32 vcc, s{sIT}, v{vL}
v_cndmask_b32 v78, v78, v77, vcc''')
def itdump():
    if OPT['stamps'] and OPT['sg'] == 2:
        itstamp()
        A(f'''s_lshl_b32 s{sT0}, s2, 9
s_lshl_b32 s{sT1}, s{sW}, 6
s_add_u32 s{sT0}, s{sT0}, s{sT1}
s_add_u32 s{sT0}, s{sT0}, {STAMP_OFF}
v_lshl_add_u32 v77, v{vL}, 2, s{sT0}
s_mov_b64 exec, 0x3ff
global_store_dword v77, v78, s[{sWS}:{sWS+1}]
s_mov_b64 exec, -1''')
def mf32(d, a, b, c): return f'v_mfma_f32_32x32x16_bf16 {d}, {a}, {b}, {c}'
def mf16(d, a, b, c): return f'v_mfma_f32_16x16x32_bf16 {d}, {a}, {b}, {c}'
def mf16k(d, a, b, c): return f'v_mfma_f32_16x16x16_bf16 {d}, {a}, {b}, {c}'

def spread(groups, slots, into=None):
    out = {} if into is None else into
    n = len(groups)
    for i, g in enumerate(groups):
        out.setdefault(slots[(i * len(slots)) // n], []).extend(g)
    return out
def lines(L):
    for l in L: (l() if callable(l) else A(l))
def mix(a, b):
    out = []; a = list(a); b = list(b)
    while a or b:
        if a: out.append(a.pop(0))
        if b: out.append(b.pop(0))
    return out

class Inter:
    def __init__(self): self.g = []; self.every = 1; self.c = 0
    def push(self, groups, every): self.g += list(groups); self.every = every; self.c = 0
    def __call__(self, text):
        for l in text.split('\n'):
            l = l.strip()
            if not l: continue
            A(l); self.c += 1
            if self.g and self.c >= self.every:
                lines(self.g.pop(0)); self.c = 0
    def flush(self):
        while self.g: lines(self.g.pop(0))

def build_srd(n, plo, size, E=None):
    (E or A)(f'''s_mov_b32 s{n}, s{plo}
s_mov_b32 s{n+1}, s{plo+1}
s_mov_b32 s{n+2}, {size}
s_mov_b32 s{n+3}, 0x20000''')

SOFFX = [f's_lshl_b32 s{sOX}, s{sKS}, 7', f's_add_u32 s{sOX}, s{sOX}, s{sBX}']
SOFFW = [f's_mul_i32 s{sOW}, s{sKS}, s{sMW}', f's_add_u32 s{sOW}, s{sOW}, s{sBW}']
SOFFWN = [f's_mul_i32 s{sNW}, s{sKS}, s{sMW}', f's_add_u32 s{sNW}, s{sNW}, s{sBW}']
KSINC = [f's_add_u32 s{sKS}, s{sKS}, 1', f's_and_b32 s{sKS}, s{sKS}, 7']
SOFF = SOFFX + SOFFW + KSINC
ADV = [f's_add_u32 s{sSLOT}, s{sSLOT}, {SLOT}', f's_cmp_eq_u32 s{sSLOT}, {3*SLOT}', f's_cselect_b32 s{sSLOT}, 0, s{sSLOT}']
RDELTA = [f's_add_u32 s{sRS}, s{sRS}, 1', f's_mov_b32 s{sDELTA}, {SLOT}', f's_cmp_eq_u32 s{sRS}, 3',
          f's_cmov_b32 s{sDELTA}, {(-2*SLOT) & 0xffffffff}', f's_cmov_b32 s{sRS}, 0']

sNEXT, sPOS, sNEG = sRS, sNW, 37
RDL = [f's_cmp_eq_u32 s{sSLOT}, s{sPOS}', f's_cselect_b32 s{sDELTA}, s{sNEG}, s{sPOS}']
ADVL = [f's_cmp_eq_u32 s{sSLOT}, {2*SLOT}', f's_cselect_b32 s{sT3}, s{sNEG}, s{sPOS}', f's_add_u32 s{sSLOT}, s{sSLOT}, s{sT3}']
def loop_prepare():
    A(f'''s_sub_u32 s{sT0}, 9, s{sKS}
s_and_b32 s{sT0}, s{sT0}, 7
s_mov_b32 s{sKS}, s{sT0}
s_bitset1_b32 s{sHM}, s{sT0}
s_and_b32 s{sHM}, s{sHM}, 62
s_or_b32 s{sHM}, s{sHM}, 64
s_ff1_i32_b32 s{sNEXT}, s{sHM}
s_mov_b32 s{sPOS}, {SLOT}
s_mov_b32 s{sNEG}, {(-2*SLOT) & 0xffffffff}''')
def dma(v, s_, o_, im, pre=None, flags=''):
    off = f' offset:{im}' if im else ''
    return (pre or []) + [f'buffer_load_dwordx4 v{v}, {srd(s_)}, s{o_} offen{off}{flags} lds']

vSR = 48
def stat_load():
    A(f'''s_lshl_b32 s{sT0}, s2, 13
s_lshl_b32 s{sT1}, s{sW}, 10
s_add_u32 s{sT0}, s{sT0}, s{sT1}
buffer_load_dwordx4 {vr(vSR, 4)}, v{vL16}, {srd(SRD_XR)}, s{sT0} offen''')

def stat_compute(E):
    sm, sq, t, t2 = 52, 53, 54, 55
    E(f'v_mov_b32 v{sm}, 0\nv_mov_b32 v{sq}, 0')
    for i in range(4):
        E(f'v_dot2c_f32_bf16 v{sm}, s{sONES}, v{vSR+i}\nv_dot2c_f32_bf16 v{sq}, v{vSR+i}, v{vSR+i}')
    for r in (1, 2, 4, 8):
        E(f'v_add_f32_dpp v{sm}, v{sm}, v{sm} row_ror:{r} row_mask:0xf bank_mask:0xf')
        E(f'v_add_f32_dpp v{sq}, v{sq}, v{sq} row_ror:{r} row_mask:0xf bank_mask:0xf')
    for sw in (16, 32):
        E(f'''v_mov_b32 v{t}, v{sm}
v_mov_b32 v{t2}, v{sq}
v_permlane{sw}_swap_b32 v{sm}, v{t}
v_permlane{sw}_swap_b32 v{sq}, v{t2}
v_add_f32 v{sm}, v{sm}, v{t}
v_add_f32 v{sq}, v{sq}, v{t2}''')
    E(f'''v_mul_f32 v{sm}, {f2u(1/512)}, v{sm}
v_mul_f32 v{sq}, {f2u(1/512)}, v{sq}
v_fma_f32 v{sq}, -v{sm}, v{sm}, v{sq}
v_max_f32 v{sq}, 0, v{sq}
v_cvt_pk_bf16_f32 v{sq}, v{sq}, v{sq}
v_lshlrev_b32 v{sq}, 16, v{sq}
v_add_f32 v{sq}, {f2u(1e-5)}, v{sq}
v_cvt_pk_bf16_f32 v{sq}, v{sq}, v{sq}
v_lshlrev_b32 v{sq}, 16, v{sq}
v_sqrt_f32 v{sq}, v{sq}
s_lshl_b32 s{sT0}, s2, 5
s_lshl_b32 s{sT1}, s{sW}, 2
s_add_u32 s{sT0}, s{sT0}, s{sT1}
s_add_u32 s{sT0}, s{sT0}, {STAT_OFF}
v_cvt_pk_bf16_f32 v{sq}, -v{sm}, v{sq}''')
    A(f'''s_mov_b64 exec, 1
buffer_store_dword v{sq}, off, {srd(SRD_AUX)}, s{sT0} sc1
s_mov_b64 exec, -1''')

uid = [0]
def publish_tag():
    uid[0] += 1; n = uid[0]
    A(f'''s_or_b32 s{sT0}, s2, s{sW}
s_cmp_lg_u32 s{sT0}, 0
s_cbranch_scc1 L_notag{n}
s_memrealtime s[{sT4}:{sT5}]
s_waitcnt lgkmcnt(0)
s_or_b32 s{sT4}, s{sT4}, 1
v_mov_b32 v1, 0
v_mov_b32 v2, s{sT4}
s_mov_b64 exec, 1
global_store_dword v1, v2, s[{sDBG}:{sDBG+1}] sc1
s_mov_b64 exec, -1
L_notag{n}:''')

def tile_map():
    light = [s_ for s_ in range(20) if s_ % 5 >= 3]
    slow = [8*r + c for c in (3, 7) for r in range(4)]
    rest = [t for t in range(32) if t not in slow]
    TILE = [slow.pop(0) if s_ in light else rest.pop(0) for s_ in range(32)]
    W = [sum(TILE[s_] << (5 * (s_ - b)) for s_ in range(b, min(b + 12, 32))) for b in (0, 12, 24)]
    A(f'''s_lshr_b32 s{sT1}, s2, 3
s_mov_b32 s{sT4}, {W[0] & 0xffffffff}
s_mov_b32 s{sT5}, {W[0] >> 32}
s_cmp_ge_u32 s{sT1}, 12
s_cmov_b32 s{sT4}, {W[1] & 0xffffffff}
s_cmov_b32 s{sT5}, {W[1] >> 32}
s_cselect_b32 s{sT2}, 12, 0
s_cmp_ge_u32 s{sT1}, 24
s_cmov_b32 s{sT4}, {W[2] & 0xffffffff}
s_cmov_b32 s{sT5}, {W[2] >> 32}
s_cmov_b32 s{sT2}, 24
s_sub_u32 s{sT1}, s{sT1}, s{sT2}
s_mul_i32 s{sT1}, s{sT1}, 5
s_lshr_b64 s[{sT4}:{sT5}], s[{sT4}:{sT5}], s{sT1}
s_and_b32 s{sCB}, s{sT4}, 7
s_bfe_u32 s{sR}, s{sT4}, 0x20003
s_and_b32 s{sT1}, s2, 7
s_lshl_b32 s{sT1}, s{sT1}, 2
s_add_u32 s{sR}, s{sR}, s{sT1}''')

def setup2():
    if OPT['perm']: tile_map()
    build_srd(SRD_AUX, sWS, AUX_BYTES)
    build_srd(SRD_OUT, sKA + 14, 2048 * 1024)
    A(f'''s_add_u32 s{SRD_ACT}, s{sWS}, {ACT_OFF}
s_addc_u32 s{SRD_ACT+1}, s{sWS+1}, 0
s_mov_b32 s{SRD_ACT+2}, {ACT_BYTES if OPT['exp'] != 2 else 0}
s_mov_b32 s{SRD_ACT+3}, 0x20000
s_lshr_b32 s{sKQ}, s{sW}, 1
s_lshr_b32 s{sT0}, s{sW}, 2
s_xor_b32 s{sKQ}, s{sKQ}, s{sT0}
s_and_b32 s{sMH}, s{sW}, 1
s_cmp_eq_u32 s{sKQ}, 0
s_cselect_b32 s{SRD_B}, s{sKA+4}, s{sKA+12}
s_cselect_b32 s{SRD_B+1}, s{sKA+5}, s{sKA+13}
s_mov_b32 s{SRD_B+2}, {1376*1024}
s_cmov_b32 s{SRD_B+2}, {512*1024}
s_mov_b32 s{SRD_B+3}, 0x20000
s_mov_b32 s{sIT}, 0
s_cmp_eq_u32 s{sW}, 0
s_cselect_b32 s{sHM}, {2 | ((1 << OPT['tit']) & ~1)}, {(1 << OPT['tit']) & ~1}''')
    if OPT['prio']:
        uid[0] += 1
        A(f's_cmp_{"ge" if OPT["prio"] == 1 else "lt"}_u32 s{sW}, 4\ns_cbranch_scc0 L_np{uid[0]}\ns_setprio 1\nL_np{uid[0]}:')
    A(f'''
v_lshrrev_b32 v1, 3, v{vL}
v_and_b32 v2, 7, v{vL}
v_bfe_u32 v3, v{vL}, 4, 1
v_lshlrev_b32 v3, 2, v3
v_xor_b32 v2, v2, v3
v_lshlrev_b32 v2, 4, v2
v_lshl_add_u32 v{vBP}, v1, 10, v2''')
    for i in range(1, 4): A(f'v_add_u32 v{vBP+i}, {7168*i}, v{vBP}')
    A(f'''s_sub_u32 s{sT0}, s{sKQ}, 1
s_max_i32 s{sT0}, s{sT0}, 0
s_mul_i32 s{sSOFF}, s{sT0}, {464*1024}
s_lshl_b32 s{sT0}, s{sCB}, 7
s_add_u32 s{sSOFF}, s{sSOFF}, s{sT0}''')

def touch_prepare():
    A(f'''s_lshl_b32 s{sT0}, s2, 3
s_add_u32 s{sT0}, s{sT0}, s{sW}
s_sub_u32 s{sT1}, s{sT0}, 1376
s_cmp_ge_u32 s{sT0}, 1376
s_cselect_b32 s{sT0}, s{sT1}, s{sT0}
s_cselect_b32 s{SRD_T}, s{sKA+4}, s{sKA+12}
s_cselect_b32 s{SRD_T+1}, s{sKA+5}, s{sKA+13}
s_mov_b32 s{SRD_T+2}, {1376*1024}
s_cmov_b32 s{SRD_T+2}, {512*1024}
s_mov_b32 s{SRD_T+3}, 0x20000
s_lshl_b32 s{sL2}, s{sT0}, 10
s_add_u32 s{sL2}, s{sL2}, {(-(OPT['tin'] - 1) * 0x20000000) & 0xffffffff if OPT['tin'] else 0}
v_and_b32 v18, 7, v{vL}
v_lshlrev_b32 v18, 7, v18
v_mov_b32 v17, 0''')
TOUCH = f'buffer_load_dword v{vTCH}, v18, {srd(SRD_T)}, s{sL2} offen'
def touches(vm):
    if not OPT['tit'] and not OPT['tin']: A(TOUCH); vm.issue('touch')
    A(f'global_load_dword v{vTG}, v17, s[{sDBG}:{sDBG+1}] sc1'); vm.issue('tag')

vTP = 18
L2T = [[TOUCH, f's_add_u32 s{sL2}, s{sL2}, 0x20000000']] if OPT['tin'] else []
def tail_prepare():
    A(f'''s_mul_i32 s{sT0}, s{sMH}, {48*1024}
s_add_u32 s{sP0}, s{sSOFF}, s{sT0}
s_mul_i32 s{sP1}, s{sKQ}, 12288
s_mul_i32 s{sT0}, s{sMH}, 6144
s_add_u32 s{sP1}, s{sP1}, s{sT0}''')
def tail_setup():
    A(f's_mov_b32 s{sOX}, s{sP0}\ns_mov_b32 s{sD}, s{sP1}')

def tail_dma():
    out = [dma(vBP, SRD_B, sOX, 0, [f's_add_u32 m0, s{sSLOT}, s{sD}'])]
    for i in range(1, 4): out.append(dma(vBP + i, SRD_B, sOX, 1024 * i))
    out.append(dma(vBP, SRD_B, sOX, 0, ['s_add_u32 m0, m0, 4096', f's_add_u32 s{sOX}, s{sOX}, 32768']))
    out.append(dma(vBP + 1, SRD_B, sOX, 1024) + [f's_add_u32 s{sOX}, s{sOX}, {96*1024 - 32768}'])
    return out

def get_tag(n):
    A(f'''v_readfirstlane_b32 s{sTAG}, v{vTG}
s_mov_b32 s{sT0}, 0
L_tag{n}:
s_cmp_lg_u32 s{sTAG}, 0
s_cbranch_scc1 L_tagok{n}
v_mov_b32 v1, 0
global_load_dword v{vTG}, v1, s[{sDBG}:{sDBG+1}] sc1
s_waitcnt vmcnt(0)
v_readfirstlane_b32 s{sTAG}, v{vTG}
s_add_u32 s{sT0}, s{sT0}, 1
s_cmp_lt_u32 s{sT0}, {SPIN}
s_cbranch_scc1 L_tag{n}
L_tagok{n}:''')
def handlers(n):
    A(f'''L_{n}h:
s_bitset0_b32 s{sHM}, s{sIT}
s_ff1_i32_b32 s{sNEXT}, s{sHM}
s_cmp_lg_u32 s{sIT}, s{sKS}
s_cbranch_scc1 L_{n}h0
s_sub_u32 s{sOX}, s{sOX}, 1024
s_lshl_b32 s{sT0}, s{sMW}, 3
s_sub_u32 s{sOW}, s{sOW}, s{sT0}
L_{n}h0:
s_cmp_lg_u32 s{sIT}, {OPT['tit']}
s_cbranch_scc1 L_{n}h1
{TOUCH}
L_{n}h1:
s_lshl_b32 s{sT0}, s{sW}, 3
s_add_u32 s{sT0}, s{sT0}, s{sIT}
s_cmp_lg_u32 s{sT0}, 1
s_cbranch_scc1 L_{n}back''')
    get_tag(n + 'h')
    A(f'''v_mov_b32 v1, s{sTAG}
s_mov_b64 exec, 3
buffer_store_dword v1, v{vFL}, {srd(SRD_AUX)}, 0 offen sc1
s_mov_b64 exec, -1
s_branch L_{n}back''')
LB_ = '' if OPT['exp'] in (6, 7) else 's_barrier'
def hcheck(n): A(f's_bitcmp1_b32 s{sHM}, s{sIT}\ns_cbranch_scc1 L_{n}h\nL_{n}back:')

def check_flag0(n):
    A(f'''s_mov_b32 s{sT0}, 0
L_f0{n}:
v_cmp_ne_u32 vcc, s{sTAG}, v{vTG}
s_cbranch_vccz L_f0ok{n}
buffer_load_dword v{vTG}, v{vPL}, {srd(SRD_AUX)}, 0 offen sc1
s_waitcnt vmcnt(0)
s_add_u32 s{sT0}, s{sT0}, 1
s_cmp_lt_u32 s{sT0}, {SPIN}
s_cbranch_scc1 L_f0{n}
L_f0ok{n}:''')

def split_hilo(r, t, E=None):
    (E or A)(f'''v_cvt_pk_bf16_f32 v{t}, v{r}, v{r}
v_lshlrev_b32 v{t}, 16, v{t}
v_sub_f32 v{t}, v{r}, v{t}
v_cvt_pk_bf16_f32 v{r}, v{r}, v{t}''')

vB = 4
REG_BASE = [SLOT, 2 * SLOT, 0]
REG_T = [(0, 6), (6, 12), (12, 20)]
def baddr_early(dst):
    A(f'''v_lshrrev_b32 v1, 5, v{vL}
v_bfe_u32 v2, v{vL}, 2, 2
v_lshl_add_u32 v1, v1, 2, v2
v_lshlrev_b32 v1, 7, v1
v_bfe_u32 v2, v{vL}, 3, 1
v_lshl_add_u32 v1, v2, 6, v1
v_bfe_u32 v2, v{vL}, 4, 1
v_lshl_add_u32 v1, v2, 5, v1
v_and_b32 v2, 3, v{vL}
v_lshl_add_u32 v{dst}, v2, 3, v1
s_mul_i32 s{sQ3}, s{sKQ}, 12288
s_lshl_b32 s{sT0}, s{sMH}, 10
s_add_u32 s{sQ0}, s{sQ3}, s{sT0}
s_min_u32 s{sT1}, s{sKQ}, 1
s_mul_i32 s{sT1}, s{sT1}, 6144
s_mul_i32 s{sQ1}, s{sKQ}, 10240
s_add_u32 s{sQ1}, s{sQ1}, s{sT1}
s_add_u32 s{sQ2}, s{sQ1}, s{sT0}
s_lshl_b32 s{sT0}, s{sMH}, 13
s_add_u32 s{sSO}, s{sSOFF}, s{sT0}
s_add_u32 s{sSO}, s{sSO}, {NREG*16384}''')
def baddr_first(src):
    if OPT['exp'] == 9: A(f's_mov_b32 s{SRD_B+2}, 0')
    A(f'''v_add_u32 v{vB}, s{sQ3}, v{src}
v_add_u32 v{vB+2}, {2*SLOT}, v{vB}
v_xor_b32 v{vB+3}, 64, v{vB+2}
v_add_u32 v11, {16384-2048}, v{vBP}''')
def defer_slow(nbg):
    if not OPT['c3']: A(f's_mov_b32 s{sST}, {nbg}'); return
    A(f'''s_mov_b32 s{sBW}, s{SRD_B+2}
s_mov_b32 s{sMW}, s{sSO}
s_cmp_eq_u32 s{sCB}, 3
s_cselect_b32 s{sST}, 0, {nbg}
s_cmov_b32 s{SRD_B+2}, 0''')
def breg_groups(half):
    out = []
    for st in range(6 * half, 6 * half + 6):
        for ct in range(2):
            base = vB + (2 if half == 0 else 0) + ct
            out.append([f'ds_read_b64_tr_b16 {ar(st*8 + ct*4 + hf*2, 2)}, v{base} offset:{(st % 6)*2048 + hf*1024}' for hf in range(2)])
    return out
def static_groups(r, vm, n):
    out = []
    a, b = REG_T[r]
    for t in range(a, b):
        g = []
        if t == 16: g += [f's_cmp_eq_u32 s{sKQ}, 3', f's_cbranch_scc1 L_sdone{n}']
        if t == 17: g += [f's_cmp_lg_u32 s{sKQ}, 0', f's_cbranch_scc1 L_sdone{n}']
        if t % 2 == 0:
            if t: g.append(f's_add_u32 s{sSO}, s{sSO}, 32768')
            g.append(f's_add_u32 m0, s{sQ0 if r < 2 else sQ2}, {REG_BASE[r] + (t - a)*2048}')
            g += dma(vBP, SRD_B, sSO, 0)
        else:
            g += dma(11, SRD_B, sSO, 2048)
        g.append(lambda: vm.issue('dma'))
        out.append(g)
    if r == 2:
        tail = sum(out[4:], []) + [f'L_sdone{n}:']
        out = out[:4] + [tail]
    return out

A(f'{NAME}_kernel:')
A(f'''s_load_dwordx16 s[{sKA}:{sKA+15}], s[0:1], 0
s_load_dwordx4 s[{sDBG}:{sDBG+3}], s[0:1], 64
s_cmp_ge_u32 s2, 256
s_cbranch_scc1 L_end
s_getpc_b64 s[{sT4}:{sT5}]
v_lshlrev_b32 v1, 6, v0
global_load_dword v{vTCH}, v1, s[{sT4}:{sT5}]
v_lshrrev_b32 v1, 6, v0
v_and_b32 v{vL}, 63, v0
v_readfirstlane_b32 s{sW}, v1
s_and_b32 s{sT0}, s2, 7
s_lshr_b32 s{sT1}, s2, 3
s_lshr_b32 s{sT2}, s{sT0}, 1
s_and_b32 s{sT3}, s{sT0}, 1''')
if OPT['stamps']:
    A(f'{STI} s[{sCLK}:{sCLK+1}]'); nstamp[0] = 1
if OPT['perm']: pass
elif OPT['map2'] == 0:
    A(f'''s_lshl_b32 s{sR}, s{sT0}, 2
s_lshr_b32 s{sCB}, s{sT1}, 3
s_add_u32 s{sR}, s{sR}, s{sCB}
s_and_b32 s{sCB}, s{sT1}, 7''')
else:
    A(f'''s_lshl_b32 s{sR}, s{sT2}, 3
s_lshr_b32 s{sCB}, s{sT1}, 2
s_add_u32 s{sR}, s{sR}, s{sCB}
s_and_b32 s{sCB}, s{sT1}, 3
s_lshl_b32 s{sA}, s{sT3}, 2
s_add_u32 s{sCB}, s{sCB}, s{sA}''')
if OPT['exp'] == 3: A(f's_add_u32 s{sCB}, s{sCB}, 1\ns_and_b32 s{sCB}, s{sCB}, 7')
A(f'''s_mov_b32 s{sONES}, 0x3f803f80
v_lshrrev_b32 v30, 3, v{vL}
v_and_b32 v31, 7, v{vL}
v_lshrrev_b32 v32, 4, v{vL}
v_lshlrev_b32 v{vL16}, 4, v{vL}
v_xor_b32 v1, v31, v32
v_lshlrev_b32 v1, 4, v1
v_lshl_add_u32 v{vDMA}, v30, 11, v1
s_mov_b32 s{sSLOT}, 0
s_cmp_ge_u32 s{sT1}, 20
s_cbranch_scc1 L_attn''')

A(f'''s_mul_i32 s{sA}, s{sT1}, 52
s_lshr_b32 s{sA}, s{sA}, 8
s_mul_i32 s{sB}, s{sA}, 5
s_sub_u32 s{sB}, s{sT1}, s{sB}
''')
if OPT['perm']:
    A(f'''s_cmp_lt_u32 s{sB}, 3
s_cselect_b32 s{sT4}, 3, 2
s_cselect_b32 s{sT5}, 0, 3
s_mul_i32 s{sT3}, s{sT3}, s{sT4}
s_add_u32 s{sB}, s{sB}, s{sT3}
s_add_u32 s{sB}, s{sB}, s{sT5}''')
else: A(f's_mul_i32 s{sT3}, s{sT3}, 5\ns_add_u32 s{sB}, s{sB}, s{sT3}')
A(f'''s_lshl_b32 s{sT2}, s{sT2}, 2
s_add_u32 s{sA}, s{sA}, s{sT2}
v_xor_b32 v{vDMA+1}, 64, v{vDMA}
v_add_u32 v{vDMA+1}, {16384-1024}, v{vDMA+1}
s_lshr_b32 s{sT0}, s{sW}, 2
s_and_b32 s{sT1}, s{sW}, 1
s_add_u32 s{sT2}, s{sT0}, 4
s_mul_i32 s{sT2}, s{sT2}, s{sT1}
s_lshl_b32 s{sT3}, s{sT0}, 3
s_add_u32 s{sT2}, s{sT2}, s{sT3}
s_lshl_b32 s{sT3}, s{sT2}, 6
v_add_u32 v1, s{sT3}, v{vL}
s_movk_i32 s{sT4}, 3641
s_movk_i32 s{sT5}, 2464''')
for i in range(5):
    A(f'''v_mul_u32_u24 v2, s{sT4}, v1
v_lshrrev_b32 v2, 16, v2
v_mul_u32_u24 v2, s{sT5}, v2
v_lshl_add_u32 v{vDMA+2+i}, v1, 4, v2''')
    if i % 4: A(f'v_subrev_u32 v{vDMA+2+i}, {(i % 4)*1024}, v{vDMA+2+i}')
    if i < 4: A('v_add_u32 v1, 64, v1')
A(f'''s_bfe_u32 s{sT3}, s{sW}, 0x10001
s_mul_i32 s{sD+1}, s{sT3}, {UPOFF}
s_lshl_b32 s{sT2}, s{sT2}, 10
s_add_u32 s{sD+1}, s{sD+1}, s{sT2}
s_add_u32 s{sD+1}, s{sD+1}, 16384
s_lshl_b32 s{sD}, s{sW}, 11
s_mul_i32 s{sST}, s{sB}, 9
s_sub_u32 s{sT2}, s{sB}, 6
s_max_i32 s{sT2}, s{sT2}, 0
s_sub_u32 s{sST}, s{sST}, s{sT2}
s_lshl_b32 s{sBW}, s{sST}, 5
s_lshl_b32 s{sBX}, s{sA}, 7
s_lshl_b32 s{sT2}, s{sT0}, 6
s_add_u32 s{sBX}, s{sBX}, s{sT2}
s_add_u32 s{sBX}, s{sBX}, s{sT3}
s_lshl_b32 s{sT2}, s{sT1}, 5
s_add_u32 s{sBX}, s{sBX}, s{sT2}
s_lshl_b32 s{sBX}, s{sBX}, 10
s_mov_b32 s{sMW}, {64*2752}
s_lshr_b32 s{sKS}, s{sA}, 1''')
if OPT['rot'] == 2: A(f's_add_u32 s{sKS}, s{sKS}, s{sB}\ns_and_b32 s{sKS}, s{sKS}, 7')
A(f'''s_cmp_lt_u32 s{sB}, 6
s_cselect_b32 s{sN0}, 5, 4''')
lines(SOFF)
A(f'''s_cmp_eq_u32 s{sT3}, 1
s_waitcnt lgkmcnt(0)
s_cselect_b32 s{SRD_W}, s{sKA+10}, s{sKA+8}
s_cselect_b32 s{SRD_W+1}, s{sKA+11}, s{sKA+9}
s_mov_b32 s{SRD_W+2}, {512*2752}
s_mov_b32 s{SRD_W+3}, 0x20000''')
if OPT['stamps']: A(f's_mov_b32 s{sSTAMP}, s{sCLK}')
build_srd(SRD_XR, sKA, 2048 * 1024)
stat_load()
build_srd(SRD_X, sKA, 2048 * 1024)
FX = [dma(vDMA, SRD_X, sOX, 0, [f's_add_u32 m0, s{sSLOT}, s{sD}']), dma(vDMA + 1, SRD_X, sOX, 1024)]
FW = [dma(vDMA + 2, SRD_W, sOW, 0, [f's_add_u32 m0, s{sSLOT}, s{sD+1}'])] + [dma(vDMA + 2 + i, SRD_W, sOW, 1024 * i) for i in range(1, 4)]
FW5 = dma(vDMA + 6, SRD_W, sOW, 0, ['s_add_u32 m0, m0, 4096'])
def fw5_guarded(tag):
    uid[0] += 1
    A(f's_cmp_lt_u32 s{sW}, 4\ns_cbranch_scc1 L_no5{uid[0]}'); lines(FW5); A(f'L_no5{uid[0]}:')
stamp(1)
vm = Q(63); vm.issue('code'); vm.issue('sr')
for g in FW: lines(g); vm.issue('w0')
fw5_guarded('w0')
for g in FX: lines(g); vm.issue('x0')
publish_tag()
stamp(1)
lines(ADV); lines(SOFF)
setup2()
A('v_mov_b32 v56, 0\nv_mov_b32 v57, 0\nv_mov_b32 v58, 0\nv_mov_b32 v59, 0')
for T in range(5): A(mf32(vr(vACC + 16*T, 16), 'v[56:59]', 'v[56:59]', '0'))
A(f'''v_and_b32 v1, 31, v{vL}
s_and_b32 s{sT0}, s{sW}, 3
s_lshl_b32 s{sT0}, s{sT0}, 5
v_add_u32 v1, s{sT0}, v1
v_bfe_u32 v2, v1, 1, 3
v_lshrrev_b32 v3, 5, v{vL}
v_xor_b32 v2, v2, v3
v_lshlrev_b32 v2, 4, v2
v_lshl_add_u32 v{vRX}, v1, 7, v2
v_xor_b32 v{vRX+1}, 32, v{vRX}
v_xor_b32 v{vRX+2}, 64, v{vRX}
v_xor_b32 v{vRX+3}, 96, v{vRX}
v_bfe_u32 v1, v{vL}, 2, 2
v_and_b32 v2, 3, v{vL}
v_lshlrev_b32 v2, 3, v2
s_movk_i32 s{sT0}, 288
v_mad_u32_u24 v35, v1, s{sT0}, v2
v_mul_u32_u24 v2, 2304, v3
v_bfe_u32 v1, v{vL}, 4, 1
v_mul_u32_u24 v{vRW}, {UPOFF}, v1
v_add3_u32 v{vRW}, v{vRW}, v2, v35
s_lshr_b32 s{sT0}, s{sW}, 2
s_mul_i32 s{sT0}, s{sT0}, s{sN0}
s_lshl_b32 s{sT0}, s{sT0}, 5
s_add_u32 s{sT0}, s{sT0}, 16384
v_add_u32 v{vRW}, s{sT0}, v{vRW}
s_and_b32 s{sT0}, s{sW}, 1
s_mul_i32 s{sT0}, s{sT0}, {UPOFF}
s_add_u32 s{sT0}, s{sT0}, 16384
v_add_u32 v35, s{sT0}, v35
v_mul_u32_u24 v34, 1152, v32
v_add_u32 v34, v34, v35
v_mul_u32_u24 v33, 1152, v3
v_lshl_add_u32 v33, v1, 7, v33
s_lshr_b32 s{sT1}, s{sW}, 1
s_lshl_b32 s{sT2}, s{sT1}, 5
v_add3_u32 v33, v33, v35, s{sT2}''')
A(f'''s_lshl_b32 s{sT0}, s2, 2
s_add_u32 s{sT0}, s{sT0}, {FLAG_S}
s_lshl_b32 s{sT3}, s{sB}, 5
s_add_u32 s{sT3}, s{sT3}, {FLAG_C}
s_lshl_b32 s{sT2}, s{sA}, 1
s_add_u32 s{sT4}, s{sT2}, s{sT3}
s_bitcmp0_b32 s{sA}, 0
s_cselect_b32 s{sT4}, s{sT4}, s{sT0}
v_mov_b32 v{vFL}, s{sT4}
v_writelane_b32 v{vFL}, s{sT0}, 0
s_lshl_b32 s{sT0}, s{sA}, 6
s_add_u32 s{sT0}, s{sT0}, {FLAG_S}
v_and_b32 v2, 15, v{vL}
v_lshl_add_u32 v3, v2, 2, s{sT0}
v_lshl_add_u32 v31, v31, 2, s{sT3}
v_cmp_gt_u32 vcc, 32, v{vL}
v_cndmask_b32 v{vPL}, v31, v3, vcc
s_mul_i32 s{sT0}, s{sB}, 9216
s_add_u32 s{sT0}, s{sT0}, s{sT2}
s_and_b32 s{sT3}, s{sW}, 1
s_lshl_b32 s{sT3}, s{sT3}, 9
s_add_u32 s{sT0}, s{sT0}, s{sT3}
s_add_u32 s{sT0}, s{sT0}, {CS_OFF}
v_lshl_add_u32 v2, v2, 5, s{sT0}
s_lshl_b32 s{sT3}, s{sT1}, 10
v_lshlrev_b32 v35, 12, v1
v_add3_u32 v35, v35, v2, s{sT3}
v_mov_b32 v3, {OOB}
v_cndmask_b32 v35, v3, v35, vcc
v_add_u32 v32, 8192, v2
s_cmp_eq_u32 s{sT1}, 0
s_cselect_b32 s{sT3}, 16, 0
v_cmp_gt_u32 vcc, s{sT3}, v{vL}
v_cndmask_b32 v32, v3, v32, vcc''')
A(f'''v_and_b32 v1, 31, v{vL}
s_lshl_b32 s{sT0}, s{sA}, 7
s_bfe_u32 s{sT1}, s{sW}, 0x10001
s_lshl_b32 s{sT1}, s{sT1}, 6
s_add_u32 s{sT0}, s{sT0}, s{sT1}
s_add_u32 s{sT0}, s{sT0}, s{sMH}
s_lshl_b32 s{sT0}, s{sT0}, 2
s_add_u32 s{sT0}, s{sT0}, {STAT_OFF}
v_lshl_add_u32 v20, v1, 3, s{sT0}
v_lshlrev_b32 v1, 5, v1
v_lshrrev_b32 v2, 5, v{vL}
v_lshl_add_u32 v21, v2, 4, v1
s_mul_i32 s{sT0}, s{sB}, 9216
s_add_u32 s{sT0}, s{sT0}, {CS_OFF}
s_lshr_b32 s{sT4}, s{sW}, 2
s_mul_i32 s{sT2}, s{sT4}, s{sN0}
s_sub_u32 s{sT1}, s{sN0}, 1
s_cmp_eq_u32 s{sT4}, 1
s_cselect_b32 s{sT1}, 3, s{sT1}
s_add_u32 s{sT1}, s{sT1}, s{sT2}
s_lshl_b32 s{sT1}, s{sT1}, 10
s_add_u32 s{sP2}, s{sT1}, s{sT0}
s_min_u32 s{sT1}, s{sW}, 6
s_lshl_b32 s{sT3}, s{sT1}, 10
s_add_u32 s{sP3}, s{sT3}, {SCR}
s_add_u32 s{sT1}, s{sT1}, 2
s_cmp_gt_u32 s{sT1}, s{sN0}
s_cselect_b32 s{sT1}, 1024, 0
s_add_u32 s{sT0}, s{sT0}, s{sT1}
s_add_u32 s{sP4}, s{sT0}, s{sT3}
s_sub_u32 s{sT1}, s{sT2}, 1
s_max_i32 s{sT1}, s{sT1}, 0
s_lshl_b32 s{sT1}, s{sT1}, 10
s_add_u32 s{sT1}, s{sT1}, {SCR}
v_add_u32 v{vAD}, s{sT1}, v21
s_lshl_b32 s{sT0}, s{sA}, 2
s_and_b32 s{sT1}, s{sW}, 3
s_add_u32 s{sT0}, s{sT0}, s{sT1}
s_mul_i32 s{sP5}, s{sT0}, {TG_STRIDE}
s_lshl_b32 s{sFLAG}, s{sA}, 7
s_add_u32 s{sT0}, s{sST}, s{sT2}
s_lshl_b32 s{sT0}, s{sT0}, 10
s_add_u32 s{sP5}, s{sP5}, s{sT0}
s_lshl_b32 s{sT0}, s{sB}, 2
s_add_u32 s{sFLAG}, s{sFLAG}, s{sT0}''')
tail_prepare(); baddr_early(31); touch_prepare()
stamp(1)
A(f's_waitcnt vmcnt({vm.need({"sr"})})')
stamp(1)
E = Inter()
E.push([g + [lambda: vm.issue('s1')] for g in FW], 10)
stat_compute(E); vm.issue('st')
E.flush()
fw5_guarded('s1')
for g in FX: lines(g); vm.issue('s1')
lines(ADV); lines(SOFF)
touches(vm)
loop_prepare()
A('v_mov_b32 v52, 0\nv_mov_b32 v53, 0\nv_mov_b32 v54, 0\nv_mov_b32 v55, 0')
A(f's_waitcnt vmcnt({vm.need({"w0"})})\ns_barrier')
stamp(1)
A(f's_bitcmp1_b32 s{sA}, 0\ns_cbranch_scc1 L_nocs')
for n in range(8): A(f'ds_read_b64_tr_b16 {vr(56+2*n, 2)}, v33 offset:{n*2304}')
for n in range(4): A(f'ds_read_b64_tr_b16 {vr(72+2*n, 2)}, v34 offset:{n*4608 + 256}')
for n in range(8):
    if n % 2 == 0: A(f's_waitcnt lgkmcnt({10 - n})')
    A(f'v_dot2c_f32_bf16 v52, s{sONES}, v{56+2*n}\nv_dot2c_f32_bf16 v54, s{sONES}, v{57+2*n}')
A('s_waitcnt lgkmcnt(0)')
for n in range(8): A(f'v_dot2c_f32_bf16 v{53 + 2*(n & 1)}, s{sONES}, v{72+n}')
A('''v_add_f32 v52, v52, v54
v_add_f32 v53, v53, v55
v_mov_b32 v54, v52
v_mov_b32 v55, v53
v_permlane32_swap_b32 v52, v54
v_permlane32_swap_b32 v53, v55
v_add_f32 v52, v52, v54
v_add_f32 v53, v53, v55
v_mov_b32 v55, v53
v_permlane16_swap_b32 v53, v55
v_add_f32 v53, v53, v55''')
split_hilo(52, 54); split_hilo(53, 55)
A(f'''buffer_store_dword v52, v35, {srd(SRD_AUX)}, 0 offen sc1
buffer_store_dword v53, v32, {srd(SRD_AUX)}, 0 offen sc1
L_nocs:''')
stamp(1)
A(f's_waitcnt vmcnt({vm.need({"x0"})})\ns_barrier')
stamp(); stamp(1)
if OPT['exp'] in (5, 7): A(f's_mov_b32 s{SRD_X+2}, 0\ns_mov_b32 s{SRD_W+2}, 0\ns_mov_b32 s{SRD_B+2}, 0')
A(f'''s_lshr_b32 s{sT0}, s{sW}, 2
s_add_u32 s{sT0}, s{sT0}, 4
s_cmp_lt_u32 s{sT0}, s{sN0}
s_cbranch_scc0 L_f4''')

lg = Q(15)
vC1, vIR = 18, 20
vBM = 36
vCL = 40
def ffn_role(nt, n):
    NM = 4 * nt
    R = 2 * nt
    D = R - 1
    NHD = D - OPT['gap']
    def rw(m):
        p, T = divmod(m, nt); s = (m % R) * 4
        A(f'ds_read_b64_tr_b16 {ar(s, 2)}, v{vRW} offset:{p*4608 + T*32}'); lg.issue(('w', m))
        A(f'ds_read_b64_tr_b16 {ar(s+2, 2)}, v{vRW} offset:{p*4608 + T*32 + 1152}'); lg.issue(('w', m))
    def rx(p):
        A(f'ds_read_b128 {ar(40 + p*4, 4)}, v{vRX+p}'); lg.issue(('x', p))
    def mm(m):
        p, T = divmod(m, nt)
        A(mf32(vr(vACC + 16*T, 16), ar((m % R) * 4, 4), ar(40 + p*4, 4), vr(vACC + 16*T, 16)))
    def five():
        uid[0] += 1
        return [f's_cmp_lt_u32 s{sW}, 4', f's_cbranch_scc1 L_no5{uid[0]}'] + FW5 + [f'L_no5{uid[0]}:']
    def fill_for(main):
        fill = {}
        dl = (FX + FW + ([five()] if nt == 4 else [])) if main else tail_dma()
        last = NM - 3
        if main: dl = dl + L2T
        if not OPT['nodma']: spread(dl, list(range(0, last + 1)), fill)
        spread([RDL], [NHD], fill)
        if main: spread([[f's_add_u32 s{sOX}, s{sOX}, 128'], [f's_add_u32 s{sOW}, s{sOW}, s{sMW}']], [7, last], fill)
        spread([ADVL], [last], fill)
        spread([[f'v_add_u32 v{vRX+i}, s{sDELTA}, v{vRX+i}'] for i in range(4)], [NHD + 1, NHD + 2, NHD + 4, NM - 3], fill)
        spread([[f'v_add_u32 v{vRW}, s{sDELTA}, v{vRW}']], [NM - 1 - D + NHD], fill)
        return fill
    def head(fill, with_mfma, extra=None):
        itstamp()
        lg.drain()
        nxt = 0
        for m in range(NHD):
            if with_mfma: mm(NM - NHD + m)
            k = 0
            while nxt < D and D - nxt > NHD - 1 - m and k < 2:
                assert nxt <= R - NHD + m
                rw(nxt); nxt += 1; k += 1
            if m == 0: rx(0)
            if m == NHD - 2: rx(1)
            if extra and m == 0 and extra[0]: extra[0]()
            lines(fill.get(m, []))
        assert nxt == D
    def rest(fill, last_it, label):
        for m in range(NM - NHD):
            p, T = divmod(m, nt)
            if m == NM - NHD - 1:
                A(f's_waitcnt vmcnt({6 + len(L2T) if last_it == 6 else 6}) lgkmcnt(0)'); lg.drain()
            want = {('w', m), ('x', p)}
            if OPT['w2'] and m % 2 == 0: want |= {('w', m + 1), ('x', (m + 1) // nt)}
            c = lg.need(want)
            if c is not None: A(f's_waitcnt lgkmcnt({c})')
            mm(m)
            if m + D < NM: rw(m + D)
            if m == 2: rx(2)
            if m == nt + 1: rx(3)
            lines(fill.get(m + NHD, []))
            if m == NM - NHD - 2: A(f's_add_u32 s{sIT}, s{sIT}, 1\ns_cmp_lt_u32 s{sIT}, {f"s{sNEXT}" if last_it == 6 else last_it}')
        A(f's_cbranch_scc0 {label}\n{LB_}')
    fm = fill_for(True)
    head(fm, False)
    A(f'L_{n}loop:')
    rest(fm, 6, f'L_{n}exit')
    A(f'L_{n}back:')
    head(fm, True)
    A(f's_branch L_{n}loop\nL_{n}exit:\n{LB_}\ns_cmp_lt_u32 s{sIT}, 6\ns_cbranch_scc1 L_{n}h')
    def inter():
        get_tag(n)
        tail_setup()
        A(f'buffer_load_dword v{vTG}, v{vPL}, {srd(SRD_AUX)}, 0 offen sc1')
    def inter2():
        check_flag0(n)
        A(f'''buffer_load_dword v{vST}, v20, {srd(SRD_AUX)}, 0 offen sc1
s_mov_b32 m0, s{sP3}
buffer_load_dwordx4 {vr(vCL, 4)}, v21, {srd(SRD_AUX)}, s{sP2} offen sc1
buffer_load_dwordx4 v{vL16}, {srd(SRD_AUX)}, s{sP4} offen sc1 lds''')
    ft = fill_for(False)
    head(ft, True, [inter, None, None])
    A(f'L_{n}tail:')
    rest(ft, 8, f'L_{n}texit')
    head(ft, True, [inter2, None, None])
    A(f's_branch L_{n}tail\nL_{n}texit:\n{LB_}')
    stamp(); itdump()
    vCF = 20
    CF = [44, vFR, 32, 12]
    for t in range(nt - 1): A(f'ds_read_b128 {vr(CF[t], 4)}, v{vAD} offset:{t*1024}')
    for m in range(NM - NHD, NM - 2): mm(m)
    A(f'''v_and_b32 v1, 0xffff, v{vST}
v_and_b32 v{vST}, 0xffff0000, v{vST}
v_lshl_or_b32 v{vBM}, v1, 16, v1
v_rcp_f32 v{vC1}, v{vST}''')
    mm(NM - 2)
    A(f'''v_mov_b32 v{vBM+1}, v{vBM}
v_mov_b32 v{vBM+2}, v{vBM}
v_mov_b32 v{vBM+3}, v{vBM}''')
    mm(NM - 1)
    A(f'''v_mul_f32 v{vIR}, v{vST}, v{vST}
v_mul_f32 v{vIR+2}, v{vST}, v{vST}
v_mul_f32 v{vC1}, {f2u(-LOG2E)}, v{vC1}
s_waitcnt lgkmcnt(0)''')
    for t in range(nt):
        A(mf32(vr(vACC + 16*t, 16), vr(CF[t] if t < nt - 1 else vCL, 4), vr(vBM, 4), vr(vACC + 16*t, 16)))
        if t == 0: A('v_mov_b32 v10, v31'); baddr_first(31)
    vm = Q(63)
    for i in range(6): vm.issue('v9')
    E = Inter()
    def tile(T):
        a = vACC + 16*T
        t = 52 if T & 1 else 32
        t = 52
        o = 68 + 4 * (T & 1)
        for k in range(4):
            E(f'v_pk_mul_f32 {vr(t+2*k, 2)}, {vr(a+2*k, 2)}, {vr(vC1, 2)} op_sel_hi:[1,0]')
        for k in range(8): E(f'v_exp_f32 v{t+k}, v{t+k}')
        for k in range(4):
            E(f'v_pk_mul_f32 {vr(t+8+2*k, 2)}, {vr(a+2*k, 2)}, {vr(a+8+2*k, 2)}')
        for k in range(4):
            E(f'v_pk_fma_f32 {vr(t+2*k, 2)}, {vr(t+2*k, 2)}, {vr(vIR, 2)}, {vr(vIR+2, 2)} op_sel_hi:[1,0,0]')
        for k in range(8): E(f'v_rcp_f32 v{t+k}, v{t+k}')
        for k in range(4):
            E(f'v_pk_mul_f32 {vr(t+2*k, 2)}, {vr(t+2*k, 2)}, {vr(t+8+2*k, 2)}')
        for k in range(4):
            E(f'v_cvt_pk_bf16_f32 v{o+k}, v{t+2*k}, v{t+2*k+1}')
        if T == 4: A(f's_add_u32 s{sP5}, s{sP5}, 4096')
        off = f' offset:{(T % 4)*1024}' if T % 4 else ''
        A(f'buffer_store_dwordx4 {vr(o, 4)}, v{vL16}, {srd(SRD_ACT)}, s{sP5} offen{off}{SFL}'); vm.issue('st')
    defer_slow(OPT['fbg'])
    if OPT['flate'] and OPT['fbg'] < 2:
        E.push(sum((static_groups(r, vm, n) for r in range(OPT['fbg'])), []), 16)
        for T in range(nt): tile(T)
        E.flush()
        for g in breg_groups(0): lines(g)
        A(f's_waitcnt vmcnt({vm.need({"v9"})}) lgkmcnt(0)\ns_barrier')
    else:
        E.push(breg_groups(0), 2)
        tile(0); E.flush()
        A(f's_waitcnt vmcnt({vm.need({"v9"})}) lgkmcnt(0)\ns_barrier')
        E.push(sum((static_groups(r, vm, n) for r in range(OPT['fbg'])), []), 7 if OPT['fbg'] == 2 else 14)
        for T in range(1, nt): tile(T)
        E.flush()
    A('s_branch L_phase2')
    handlers(n)
ns0 = nstamp[0]
ffn_role(5, 'f5')
nst_save = nstamp[0]; nstamp[0] = ns0
A('L_f4:')
ffn_role(4, 'f4')

nstamp[0] = 1 if OPT['stamps'] else 0
A.label('L_attn')
A(f'''s_sub_u32 s{sT1}, s{sT1}, 20
s_lshr_b32 s{sA}, s{sT1}, 2
s_lshr_b32 s{sKS}, s{sA}, 1
s_lshl_b32 s{sT4}, s{sT2}, 1
s_add_u32 s{sKS}, s{sKS}, s{sT4}
s_and_b32 s{sKS}, s{sKS}, {[7, 0, 4, 6][OPT['arot']]}
s_mul_i32 s{sT2}, s{sT2}, 3
s_add_u32 s{sA}, s{sA}, s{sT2}
s_and_b32 s{sB}, s{sT1}, 3
s_lshl_b32 s{sT3}, s{sT3}, 2
s_add_u32 s{sB}, s{sB}, s{sT3}''')
if OPT['rot'] == 2: A(f's_add_u32 s{sKS}, s{sKS}, s{sB}\ns_and_b32 s{sKS}, s{sKS}, 7')
A(f'''s_and_b32 s{sT0}, s{sW}, 1
s_lshl_b32 s{sT1}, s{sT0}, 6
v_xor_b32 v{vDMA}, s{sT1}, v{vDMA}
v_xor_b32 v{vDMA+1}, 64, v{vDMA}
v_add_u32 v{vDMA+1}, {16384-1024}, v{vDMA+1}
v_add_u32 v{vDMA+2}, {2*(16384-1024)}, v{vDMA}
v_and_b32 v1, 1, v32
s_lshl_b32 s{sT1}, s{sT0}, 1
v_add_u32 v1, s{sT1}, v1
v_lshlrev_b32 v1, 1, v1
v_xor_b32 v1, v31, v1
v_lshlrev_b32 v1, 4, v1
v_mul_u32_u24 v2, 3072, v30
s_mul_i32 s{sT1}, s{sW}, 24576
v_add3_u32 v{vDMA+3}, v1, v2, s{sT1}
s_mul_i32 s{sST}, s{sA}, 176
s_and_b32 s{sT1}, s{sW}, 3
s_mul_i32 s{sT2}, s{sT1}, 48
s_lshr_b32 s{sT3}, s{sW}, 2
s_add_u32 s{sBX}, s{sST}, s{sT2}
s_add_u32 s{sBX}, s{sBX}, s{sT3}
s_lshl_b32 s{sBX}, s{sBX}, 10
s_lshl_b32 s{sBW}, s{sB}, 7
s_mov_b32 s{sMW}, {64*3072}
s_mul_i32 s{sD}, s{sW}, 3072
s_add_u32 s{sD+1}, s{sD}, 24576
s_mov_b64 s[{sEX}:{sEX+1}], -1
s_cmp_eq_u32 s{sT1}, 0
s_cmov_b32 s{sEX}, 0xffffff00
s_or_b32 s{sT1}, s{sT1}, s{sA}
s_cmp_eq_u32 s{sT1}, 0
s_cselect_b32 s{sT1}, {OOB}, 0
v_add_u32 v{vDMA}, s{sT1}, v{vDMA}''')
lines(SOFF)
A('s_waitcnt lgkmcnt(0)')
if OPT['stamps']: A(f's_mov_b32 s{sSTAMP}, s{sCLK}')
build_srd(SRD_XR, sKA, 2048 * 1024)
if OPT['adel'] != 1: stat_load()
build_srd(SRD_W, sKA + 2, 512 * 3072)
A(f'''s_sub_u32 s{SRD_X}, s{sKA}, 16384
s_subb_u32 s{SRD_X+1}, s{sKA+1}, 0
s_mov_b32 s{SRD_X+2}, {2048*1024 + 16384}
s_mov_b32 s{SRD_X+3}, 0x20000''')
AX = [[f's_add_u32 m0, s{sSLOT}, s{sD}', f's_mov_b64 exec, s[{sEX}:{sEX+1}]'] + dma(vDMA, SRD_X, sOX, 0) + ['s_mov_b64 exec, -1'],
      dma(vDMA + 1, SRD_X, sOX, 1024), dma(vDMA + 2, SRD_X, sOX, 2048)]
AW = [dma(vDMA + 3, SRD_W, sOW, 0, [f's_add_u32 m0, s{sSLOT}, s{sD+1}']), dma(vDMA + 3, SRD_W, sOW, 1024), dma(vDMA + 3, SRD_W, sOW, 2048)]
stamp(1)
vm = Q(63); vm.issue('code'); vm.issue('sr')
if not OPT['adel']:
    for g in AX + AW: lines(g); vm.issue('s0')

stamp(1)
if not OPT['adel']: lines(ADV); lines(SOFF)
setup2()
A('v_mov_b32 v56, 0\nv_mov_b32 v57, 0\nv_mov_b32 v58, 0\nv_mov_b32 v59, 0')
for T in range(5): A(mf32(vr(vACC + 16*T, 16), 'v[56:59]', 'v[56:59]', '0'))
A(f'''v_min_u32 v1, 5, v30
v_lshrrev_b32 v2, 1, v1
v_mul_u32_u24 v2, {SLOT}, v2
v_and_b32 v1, 1, v1
v_mul_u32_u24 v1, 12288, v1
v_add_u32 v1, v1, v2
v_lshl_add_u32 v1, v31, 4, v1
v_mov_b32 v60, s{sONES}
v_mov_b32 v61, s{sONES}
v_mov_b32 v62, s{sONES}
v_mov_b32 v63, s{sONES}
ds_write_b128 v1, v[60:63]
v_and_b32 v33, 15, v{vL}
s_mul_i32 s{sT0}, s{sMH}, 96
v_add_u32 v1, s{sT0}, v33
v_bfe_u32 v2, v1, 1, 3
v_xor_b32 v2, v2, v32
v_lshlrev_b32 v2, 4, v2
v_lshl_add_u32 v{vRX}, v1, 7, v2
v_xor_b32 v{vRX+1}, 64, v{vRX}
v_mul_u32_u24 v1, 3072, v32
v_bfe_u32 v2, v{vL}, 2, 2
v_lshl_add_u32 v1, v2, 7, v1
v_bfe_u32 v2, v{vL}, 3, 2
s_lshr_b32 s{sT0}, s{sW}, 1
v_xor_b32 v2, s{sT0}, v2
v_lshl_add_u32 v1, v2, 5, v1
v_and_b32 v2, 3, v{vL}
v_lshl_add_u32 v1, v2, 3, v1
v_add_u32 v{vRW}, 24576, v1
s_lshl_b32 s{sT0}, s2, 2
s_add_u32 s{sT0}, s{sT0}, {FLAG_S}
v_mov_b32 v{vFL}, s{sT0}
s_lshr_b32 s{sT0}, s{sST}, 3
s_sub_u32 s{sT0}, s{sT0}, 2
v_min_u32 v1, 23, v{vL}
v_add_u32 v1, s{sT0}, v1
v_max_i32 v1, 0, v1
v_min_u32 v1, 255, v1
v_lshlrev_b32 v1, 2, v1
v_add_u32 v{vPL}, {FLAG_S}, v1
v_lshlrev_b32 v2, 2, v32
v_sub_u32 v2, v33, v2
v_mov_b32 v3, 0xff800000''')
for j in range(4):
    A(f'''v_add_u32 v{vMSK+j}, {16-j}, v2
v_subrev_u32 v{vMSK+4+j}, {j}, v2
v_cmp_gt_u32 vcc, 8, v{vMSK+j}
v_cmp_gt_u32 s[{sT4}:{sT5}], 8, v{vMSK+4+j}
v_cndmask_b32 v{vMSK+j}, v3, 0, vcc
v_cndmask_b32 v{vMSK+4+j}, v3, 0, s[{sT4}:{sT5}]''')
A(f'''s_cmp_eq_u32 s{sA}, 0
s_cselect_b32 s{sT0}, 32, 0
v_cmp_gt_u32 vcc, s{sT0}, v{vL}''')
for j in range(4): A(f'v_cndmask_b32 v{vMSK+8+j}, v{vMSK+4+j}, v3, vcc')
A(f'''v_lshlrev_b32 v1, 1, v33
s_add_u32 s{sT0}, s{sMH}, s{sST}
s_sub_u32 s{sT0}, s{sT0}, 16
v_add_u32 v1, s{sT0}, v1
v_mov_b32 v3, {OOB}''')
for t in range(6):
    A(f'''v_cmp_gt_u32 vcc, 2048, v1
v_lshlrev_b32 v2, 2, v1
v_add_u32 v2, {STAT_OFF}, v2
v_cndmask_b32 v{vAD+t}, v3, v2, vcc''')
    if t < 5: A('v_add_u32 v1, 32, v1')
tail_prepare(); baddr_early(10); touch_prepare()
OO = [8, 9, 13]
A(f'''v_and_b32 v1, 15, v{vL}
s_mul_i32 s{sP2}, s{sW}, 768
s_add_u32 s{sP2}, s{sP2}, {SCR}
v_lshl_add_u32 v14, v1, 2, s{sP2}
v_lshrrev_b32 v2, 5, v{vL}
v_lshl_add_u32 v1, v2, 4, v1
s_lshr_b32 s{sT0}, s{sST}, 1
s_sub_u32 s{sT0}, s{sT0}, 8
v_add_u32 v2, s{sT0}, v1
s_mov_b32 s{sT2}, {2*TG_STRIDE}
v_bfe_u32 v3, v{vL}, 4, 1
v_lshlrev_b32 v3, 9, v3
v_cmp_le_u32 vcc, 8, v1''')
for i in range(3):
    A(f'''v_lshrrev_b32 v{OO[i]}, 5, v2
v_mul_lo_u32 v{OO[i]}, v{OO[i]}, s{sT2}
v_and_b32 v1, 31, v2
v_lshl_add_u32 v1, v1, 4, v3
v_add_u32 v{OO[i]}, v{OO[i]}, v1''')
    if i < 2: A('v_add_u32 v2, 32, v2')
A(f'v_mov_b32 v1, {OOB}\nv_cndmask_b32 v{OO[0]}, v1, v{OO[0]}, vcc')
A(f'''s_lshl_b32 s{sFLAG}, s{sA}, 7
s_lshl_b32 s{sT3}, s{sB}, 2
s_add_u32 s{sFLAG}, s{sFLAG}, s{sT3}
s_lshr_b32 s{sT4}, s{sW}, 1
s_add_u32 s{sT3}, s{sT3}, s{sT4}
s_add_u32 s{sFLAG}, s{sFLAG}, {FLAG_A}
s_mul_i32 s{sT2}, s{sMH}, {TG_STRIDE}
s_add_u32 s{sT3}, s{sT3}, 86
s_lshl_b32 s{sT3}, s{sT3}, 10
s_add_u32 s{sP5}, s{sT2}, s{sT3}''')
if OPT['adel']:
    if OPT['adel'] == 1: stat_load()
    for g in AX + AW: lines(g); vm.issue('s0')
    lines(ADV); lines(SOFF)
stamp(1)
A(f's_waitcnt vmcnt({vm.need({"sr"})})')
stamp(1)
E = Inter()
E.push([g + [lambda: vm.issue('s1')] for g in AX + AW], 8)
stat_compute(E); vm.issue('st')
E.flush()
stamp(1)
lines(ADV); lines(SOFF)
touches(vm)
loop_prepare()
stamp(1)
A(f's_waitcnt vmcnt({vm.need({"s0"})}) lgkmcnt(0)\ns_barrier')
stamp(); stamp(1)
if OPT['exp'] in (5, 7): A(f's_mov_b32 s{SRD_X+2}, 0\ns_mov_b32 s{SRD_W+2}, 0\ns_mov_b32 s{SRD_B+2}, 0')
def xf(j, t): return 36 * j + 4 * t
def wf(j, m): return 36 * j + 24 + 4 * m
RORD = [('w', 0), ('x', 0), ('w', 1), ('w', 2), ('x', 1), ('x', 2), ('x', 3), ('x', 4), ('x', 5)]
def a_rd(j, k):
    kind, i = RORD[k]
    if kind == 'x':
        A(f'ds_read_b128 {ar(xf(j, i), 4)}, v{vRX+j} offset:{i*2048}'); lg.issue(('x', j, i))
    else:
        A(f'ds_read_b64_tr_b16 {ar(wf(j, i), 2)}, v{vRW} offset:{j*12288 + i*1024}'); lg.issue(('w', j, i))
        A(f'ds_read_b64_tr_b16 {ar(wf(j, i)+2, 2)}, v{vRW} offset:{j*12288 + i*1024 + 512}'); lg.issue(('w', j, i))
QD, KD, VD = vACC, vACC + 24, vACC + 48
def a_mm(n):
    j, r = divmod(n, 18); t, m = divmod(r, 3)
    acc = vr(vACC + 24*m + 4*t, 4)
    if m < 2: A(mf16(acc, ar(wf(j, m), 4), ar(xf(j, t), 4), acc))
    else: A(mf16(acc, ar(xf(j, t), 4), ar(wf(j, m), 4), acc))
NH = OPT['anh']
HS = [(i * (NH - 1)) // 9 for i in range(9)]
RS_ = [(i * (36 - NH - 4)) // 9 for i in range(9)]
def a_fill(main):
    fill = {}
    if not OPT['nodma']: spread((AX + AW) if main else tail_dma(), [2, 7, 13, 19, 24, 30], fill)
    if main and L2T: spread(L2T, [33], fill)
    spread([RDL], [NH - 1], fill)
    if main: spread([[f's_add_u32 s{sOX}, s{sOX}, 128'], [f's_add_u32 s{sOW}, s{sOW}, s{sMW}']], [15, 31], fill)
    spread([ADVL], [31], fill)
    spread([[f'v_add_u32 v{vRX}, s{sDELTA}, v{vRX}'], [f'v_add_u32 v{vRX+1}, s{sDELTA}, v{vRX+1}'], [f'v_add_u32 v{vRW}, s{sDELTA}, v{vRW}']], [NH, 32, 33], fill)
    return fill
def a_head(fill, with_mfma, extra=None):
    itstamp()
    lg.drain()
    for m in range(NH):
        if with_mfma: a_mm(36 - NH + m)
        for k in range(9):
            if HS[k] == m: a_rd(0, k)
        if m == 1 and extra: extra()
        lines(fill.get(m, []))
def a_rest(fill, last_it, label):
    for n in range(36 - NH):
        j, r = divmod(n, 18); t, m = divmod(r, 3)
        if n == 35 - NH:
            A(f's_waitcnt vmcnt({6 + len(L2T) if last_it == 6 else 6}) lgkmcnt(0)'); lg.drain()
        want = {('w', j, m), ('x', j, t)}
        if OPT['w2']:
            if r == 0: want |= {('w', j, 1), ('w', j, 2), ('x', j, 1)}
            elif m == 0 and t % 2 == 0: want |= {('x', j, t + 1)}
        c = lg.need(want)
        if c is not None: A(f's_waitcnt lgkmcnt({c})')
        a_mm(n)
        for k in range(9):
            if RS_[k] == n: a_rd(1, k)
        lines(fill.get(n + NH, []))
        if n == 34 - NH: A(f's_add_u32 s{sIT}, s{sIT}, 1\ns_cmp_lt_u32 s{sIT}, {f"s{sNEXT}" if last_it == 6 else last_it}')
    A(f's_cbranch_scc0 {label}\n{LB_}')
am, at = a_fill(True), a_fill(False)
a_head(am, False)
A('L_aloop:')
a_rest(am, 6, 'L_aexit')
A('L_aback:')
a_head(am, True)
A(f's_branch L_aloop\nL_aexit:\n{LB_}\ns_cmp_lt_u32 s{sIT}, 6\ns_cbranch_scc1 L_ah')
def a_inter():
    get_tag('a')
    tail_setup()
    A(f'buffer_load_dword v{vTG}, v{vPL}, {srd(SRD_AUX)}, 0 offen sc1')
def a_inter2():
    check_flag0('a')
    for t in range(6): A(f'buffer_load_dword v{vST+t}, v{vAD+t}, {srd(SRD_AUX)}, 0 offen sc1')
a_head(at, True, a_inter)
A('L_atail:')
a_rest(at, 8, 'L_atexit')
a_head(at, True, a_inter2)
A(f's_branch L_atail\nL_atexit:\n{LB_}')
stamp(); itdump(); stamp(4)
vMR = 48
RR = [152, 154, 156, 158, 32, 34]
A(f'v_and_b32 v31, 48, v{vL}\nv_add_u32 v31, s{sP2}, v31')
tr = list(range(36 - NH, 36))
for t in range(6):
    if tr: a_mm(tr.pop(0))
    A(f"""v_and_b32 v{RR[t]}, 0xffff0000, v{vST+t}
v_max_f32 v{RR[t]}, {f2u(1e-3)}, v{RR[t]}""")
    if tr: a_mm(tr.pop(0))
    A(f'v_rcp_f32 v{RR[t]}, v{RR[t]}\nv_lshlrev_b32 v{vMR+2*t}, 16, v{vST+t}')
    if len(tr) > 2*(5 - t): a_mm(tr.pop(0))
    A(f'ds_write2_b32 v14, v{vMR+2*t}, v{RR[t]} offset0:{16*t} offset1:{96+16*t}')
while tr: a_mm(tr.pop(0))
baddr_first(10)
ROW = [70, 16, 92]
def row_read(t):
    b = ROW[t % 3]
    A(f'ds_read_b128 {vr(b, 4)}, v31 offset:{64*t}\nds_read_b128 {vr(b+4, 4)}, v31 offset:{384 + 64*t}')
row_read(0); row_read(1)
stamp(4)
vm = Q(63)
for i in range(6): vm.issue('v9')
E = Inter()
vCQ, vCK, vCV = 60, 64, 68
A(f'v_mov_b32 v{vCV}, v{VD}\nv_mov_b32 v{vCV+1}, v{VD}')
for j in range(4): A(f'v_mov_b32_dpp v{vCK+j}, v{KD+j} row_newbcast:0 row_mask:0xf bank_mask:0xf')
A(f'v_permlane16_swap_b32 v{vCV}, v{vCV+1}')
for j in range(2): A(f'v_mov_b32_dpp v{vCQ+j}, v{QD+j} row_newbcast:0 row_mask:0xf bank_mask:0xf')
A(f'v_mov_b32 v{vCV+1}, v{vCV}')
for j in range(2, 4): A(f'v_mov_b32_dpp v{vCQ+j}, v{QD+j} row_newbcast:0 row_mask:0xf bank_mask:0xf')
A(f'v_permlane32_swap_b32 v{vCV}, v{vCV+1}')
QP, KP, VP = QD, KD, VD + 2
E.push(breg_groups(0), 4)
for t in range(6):
    for k in range(2): E(f'v_pk_fma_f32 {vr(QD+4*t+2*k, 2)}, {vr(vCQ+2*k, 2)}, {vr(vMR+2*t, 2)}, {vr(QD+4*t+2*k, 2)} op_sel_hi:[1,0,1]')
for t in range(6):
    for k in range(2): E(f'v_pk_fma_f32 {vr(KD+4*t+2*k, 2)}, {vr(vCK+2*k, 2)}, {vr(vMR+2*t, 2)}, {vr(KD+4*t+2*k, 2)} op_sel_hi:[1,0,1]')
for t in range(6):
    for k in range(2): E(f'v_cvt_pk_bf16_f32 v{QP+2*t+k}, v{QD+4*t+2*k}, v{QD+4*t+2*k+1}')
E.flush()
row_read(2)
for t in range(6):
    for k in range(2): A(f'v_pk_mul_f32 {vr(KD+4*t+2*k, 2)}, {vr(KD+4*t+2*k, 2)}, {vr(RR[t], 2)} op_sel_hi:[1,0]')
for t in range(6): A(f'v_mul_f32 v{vMR+2*t}, {f2u(0.25*LOG2E)}, v{RR[t]}')
for t in range(6):
    for k in range(2): A(f'v_cvt_pk_bf16_f32 v{KP+2*t+k}, v{KD+4*t+2*k}, v{KD+4*t+2*k+1}')
SB = [116, 60, 144, 92]
def s_mm(t):
    s = SB[t % 4]
    if t: A(mf16k(vr(s, 4), vr(KP+2*(t-1), 2), vr(QP+2*t, 2), vr(vMSK, 4)))
    A(mf16k(vr(s+4, 4), vr(KP+2*t, 2), vr(QP+2*t, 2), vr(vMSK + (4 if t else 8), 4)))
stamp(4)
A(f's_waitcnt vmcnt({vm.need({"v9"})}) lgkmcnt(0)\ns_barrier')
s_mm(0); s_mm(1)
defer_slow(OPT['abg'])
E.push(sum((static_groups(r, vm, 'a') for r in range(OPT['abg'])), []), 14 if OPT['abg'] == 2 else 28)
for half in range(2):
    ts = range(3*half, 3*half + 3)
    if half: A('s_waitcnt lgkmcnt(0)')
    for t in ts:
        for k in range(2): E(f'v_pk_fma_f32 {vr(VD+4*t+2*k, 2)}, {vr(ROW[t%3]+2*k, 2)}, {vr(vCV, 2)}, {vr(VD+4*t+2*k, 2)} op_sel_hi:[1,0,1]')
    for t in ts:
        for k in range(2): E(f'v_pk_mul_f32 {vr(VD+4*t+2*k, 2)}, {vr(VD+4*t+2*k, 2)}, {vr(ROW[t%3]+4+2*k, 2)}')
    if half == 0:
        for t in range(3, 6): row_read(t)
    for t in ts:
        if t == 0: E(f'v_cvt_pk_bf16_f32 v{VD+2}, v{VD+2}, v{VD+3}\nv_cvt_pk_bf16_f32 v{VD+3}, v{VD}, v{VD+1}\nv_swap_b32 v{VD+2}, v{VD+3}')
        else:
            for k in range(2): E(f'v_cvt_pk_bf16_f32 v{VP+2*t+k}, v{VD+4*t+2*k}, v{VD+4*t+2*k+1}')
    if half == 0: rowmax = True
PB = [100, 124]
OB = [152, 16]; LB = [156, 20]
MXS = {0: (32, 33, 34), 2: (2, 3, 24), 4: (32, 33, 34)}
stamp(4)
def pmax(t):
    m0, m1, _ = MXS[t]
    ch = []
    for e, m in ((0, m0), (1, m1)):
        s = SB[(t + e) % 4]
        if t + e == 0: ch.append([f'v_max3_f32 v{m}, v{s+4}, v{s+5}, v{s+6}', f'v_max_f32 v{m}, v{m}, v{s+7}'])
        else: ch.append([f'v_max3_f32 v{m}, v{s}, v{s+1}, v{s+2}', f'v_max3_f32 v{m}, v{m}, v{s+3}, v{s+4}',
                         f'v_max3_f32 v{m}, v{m}, v{s+5}, v{s+6}', f'v_max_f32 v{m}, v{m}, v{s+7}'])
    return mix(ch[1], ch[0]), [f'v_permlane32_swap_b32 v{m0}, v{m1}', f'v_max_f32 v{m0}, v{m0}, v{m1}', f'v_mov_b32 v{m1}, v{m0}',
                               f'v_permlane16_swap_b32 v{m0}, v{m1}', f'v_max_f32 v{m0}, v{m0}, v{m1}', f'v_mov_b32 v{m1}, v{m0}',
                               f'v_permlane32_swap_b32 v{m0}, v{m1}']
def weave(chain, fill):
    fill = list(fill)
    for c in chain:
        E(c)
        for _ in range(2):
            if fill: E(fill.pop(0))
    for f in fill: E(f)
def pexp(t):
    m0, m1, n1 = MXS[t]
    E(f'v_mul_f32 v{n1}, -v{vMR+2*t+2}, v{m1}\nv_mul_f32 v{m0}, -v{vMR+2*t}, v{m0}')
    for e in range(2):
        s = SB[(t + e) % 4]; c = vMR + 2 * (t + e); k0 = 2 if t + e == 0 else 0
        for k in range(k0, 4): E(f'v_pk_fma_f32 {vr(s+2*k, 2)}, {vr(s+2*k, 2)}, {vr(c, 2)}, {vr(n1 if e else m0, 2)} op_sel_hi:[1,0,0]')
    for e in range(2):
        s = SB[(t + e) % 4]; k0 = 2 if t + e == 0 else 0
        for k in range(2*k0, 8): E(f'v_exp_f32 v{s+k}, v{s+k}')
        for k in range(k0, 4): E(f'v_cvt_pk_bf16_f32 v{PB[e]+k}, v{s+2*k}, v{s+2*k+1}')
        E(mf16(vr(LB[e], 4), 'v[72:75]', vr(PB[e], 4), '0'))
        E(mf16(vr(OB[e], 4), vr(VP + 2*(t + e - 1), 4), vr(PB[e], 4), '0'))
def pfin(t):
    x = 76
    out = [f'v_rcp_f32 v{LB[0]}, v{LB[0]}', f'v_rcp_f32 v{LB[1]}, v{LB[1]}']
    for e in range(2):
        for k in range(2): out.append(f'v_pk_mul_f32 {vr(OB[e]+2*k, 2)}, {vr(OB[e]+2*k, 2)}, {vr(LB[e], 2)} op_sel_hi:[1,0]')
    for e in range(2):
        for k in range(2): out.append(f'v_cvt_pk_bf16_f32 v{x+2*e+k}, v{OB[e]+2*k}, v{OB[e]+2*k+1}')
    return out
def pstore(t):
    x = 76
    E(f'v_permlane32_swap_b32 v{x}, v{x+2}\nv_permlane32_swap_b32 v{x+1}, v{x+3}')
    A(f'buffer_store_dwordx4 {vr(x, 4)}, v{OO[t//2]}, {srd(SRD_ACT)}, s{sP5} offen{SFL}'); vm.issue('st')
loc, crs = pmax(0)
for l in loc: E(l)
weave(crs, [f'v_mov_b32 v{72+i}, s{sONES}' for i in range(4)] + [f'v_mov_b32 v{PB[0]}, 0', f'v_mov_b32 v{PB[0]+1}, 0', f'v_mov_b32 v{VD}, 0', f'v_mov_b32 v{VD+1}, 0'])
for t in (0, 2, 4):
    if t < 4: s_mm(t + 2); s_mm(t + 3)
    pexp(t)
    if t < 4:
        loc, crs = pmax(t + 2)
        for l in loc: E(l)
        weave(crs, pfin(t))
    else:
        E.flush()
        for l in pfin(t): E(l)
    pstore(t)
    stamp(4)
assert nstamp[0] == nst_save or OPT['sg'] == 4, (nstamp[0], nst_save)

A.label('L_phase2')
stamp()
A(f'v_xor_b32 v{vB+1}, 64, v{vB}')
for g in breg_groups(1): lines(g)
vP = 128
vRING = 80; NRING = 12
vLB = 48
vXR = 36
vPO, vOO, vEX = 12, 13, 14
A(f'''v_and_b32 v1, 31, v{vL}
v_lshrrev_b32 v2, 5, v{vL}
s_lshl_b32 s{sT2}, s{sR}, 6
s_add_u32 s{sT2}, s{sT2}, s{sMH}
s_lshl_b32 s{sT2}, s{sT2}, 10
s_lshl_b32 s{sT3}, s{sCB}, 7
s_add_u32 s{sT2}, s{sT2}, s{sT3}
s_lshl_b32 s{sT3}, s{sKQ}, 5
s_add_u32 s{sT2}, s{sT2}, s{sT3}
v_lshlrev_b32 v{vOO}, 11, v1
v_lshl_add_u32 v{vOO}, v2, 4, v{vOO}
v_add_u32 v{vOO}, s{sT2}, v{vOO}
s_lshl_b32 s{sT2}, s{sR}, 1
s_add_u32 s{sT2}, s{sT2}, s{sMH}
s_mul_i32 s{sOX}, s{sT2}, {TG_STRIDE}
s_sub_u32 s{sT1}, s{sKQ}, 1
s_mul_i32 s{sT3}, s{sT1}, {29*1024}
s_cmp_eq_u32 s{sKQ}, 0
s_cselect_b32 s{sT3}, {86*1024}, s{sT3}
s_add_u32 s{sOX}, s{sOX}, s{sT3}
s_add_u32 s{sOW}, s{sOX}, {28*1024}
s_cmp_eq_u32 s{sKQ}, 0
s_cselect_b32 s{sNW}, s{sOW}, {OOB}
s_cmp_eq_u32 s{sKQ}, 3
s_cselect_b32 s{sOW}, {OOB}, s{sOW}
s_lshr_b32 s{sT2}, s{sR}, 1
s_lshl_b32 s{sT2}, s{sT2}, 7
''')
if OPT['np'] == 2: A(f'v_min_u32 v3, 9, v{vL}')
else: A(f's_mul_i32 s{sT3}, s{sT1}, 12\ns_add_u32 s{sT2}, s{sT2}, s{sT3}\nv_and_b32 v3, 3, v{vL}')
A(f'''v_lshl_add_u32 v{vPO}, v3, 2, s{sT2}
s_lshl_b32 s{sT3}, s{sR}, 6
s_mul_i32 s{sT4}, s{sT3}, 745
s_lshr_b32 s{sT4}, s{sT4}, 17
s_add_u32 s{sT3}, s{sT3}, 63
s_mul_i32 s{sT3}, s{sT3}, 745
s_lshr_b32 s{sT3}, s{sT3}, 17
s_sub_u32 s{sT3}, s{sT3}, s{sT4}
s_lshl_b32 s{sT3}, s{sT3}, 7
s_lshl_b32 s{sT4}, s{sT4}, 7
s_add_u32 s{sT4}, s{sT4}, {FLAG_A}
v_mul_u32_u24 v2, s{sT3}, v2
v_and_b32 v1, 7, v{vL}
v_lshl_add_u32 v1, v1, 2, s{sT4}
v_add_u32 v1, v1, v2
s_cmp_eq_u32 s{sKQ}, 0
s_cselect_b64 vcc, -1, 0
v_cndmask_b32 v{vPO}, v{vPO}, v1, vcc
s_mul_i32 s{sT0}, s{sMH}, {6144 if OPT['ex'] else 32768}
s_add_u32 s{sT0}, s{sT0}, {SLOT if OPT['ex'] else 0}
v_add_u32 v{vEX}, s{sT0}, v{vL16}
s_lshl_b32 s{sT0}, s{sW}, 2
s_add_u32 s{sT0}, s{sT0}, {LDS_BYTES - 48}
v_mov_b32 v15, s{sT0}
v_xor_b32 v16, 4, v15
v_mov_b32 v2, s{sTAG}''')
if OPT['r2']:
    A('s_waitcnt lgkmcnt(0)\ns_barrier')
    for g in static_groups(2, Q(63), 'p'): lines(g)
    A(f's_waitcnt vmcnt({4 if OPT["r2"] == 1 else 0})')
else: A('s_waitcnt vmcnt(0) lgkmcnt(0)')
A(f'''s_barrier
s_cmp_lg_u32 s{sW}, 0
s_cbranch_scc1 L_noflag
s_mov_b64 exec, 1
buffer_store_dword v2, off, {srd(SRD_AUX)}, s{sFLAG} sc1
s_mov_b64 exec, -1
L_noflag:
v_add_u32 v{vB+4}, s{sQ1}, v10
v_xor_b32 v{vB+5}, 64, v{vB+4}
v_add_u32 v{vB}, {SLOT}, v{vB}
v_add_u32 v{vB+1}, {SLOT}, v{vB+1}''')
stamp(); stamp(3)
if OPT['exp'] == 8: A(f's_mov_b32 s{SRD_B+2}, 0')
if not OPT['r2']:
    if OPT['c3']: A(f's_mov_b32 s{SRD_B+2}, s{sBW}\ns_cmp_eq_u32 s{sST}, 0\ns_cmov_b32 s{sSO}, s{sMW}')
    for r in range(0 if OPT['c3'] else min(OPT['fbg'], OPT['abg']), 2):
        A(f's_cmp_gt_u32 s{sST}, {r}\ns_cbranch_scc1 L_had{r}')
        for g in static_groups(r, Q(63), 'p'): lines(g)
        A(f'L_had{r}:')
    for g in static_groups(2, Q(63), 'p'): lines(g)
stamp(3)
A(f"""s_min_u32 s{sT1}, s{sKQ}, {1 if OPT['np'] == 2 else 3}
s_lshl_b32 s{sT1}, s{sT1}, 2
s_add_u32 s{sT1}, s{sT1}, {LDS_BYTES - 16}
v_mov_b32 v1, s{sT1}
s_mov_b32 s{sT0}, 0
s_and_b32 s{sT2}, s{sW}, {5 if OPT['np'] == 2 else 1}
s_cmp_lg_u32 s{sT2}, 0
s_cbranch_scc0 L_poller
s_waitcnt vmcnt(0)
s_barrier
s_branch L_lpoll
L_poller:""")
if OPT['ep']: A(f'buffer_load_dword v3, v{vPO}, {srd(SRD_AUX)}, 0 offen sc1\ns_waitcnt vmcnt(1)\ns_barrier\ns_branch L_pchk')
else: A('s_waitcnt vmcnt(0)\ns_barrier')
A(f"""L_poll:
buffer_load_dword v3, v{vPO}, {srd(SRD_AUX)}, 0 offen sc1
L_pchk:
s_add_u32 s{sT0}, s{sT0}, 1
s_waitcnt vmcnt(0)
v_cmp_ne_u32 vcc, s{sTAG}, v3
s_cbranch_vccz L_ptell
s_sleep {OPT['sleep']}
s_cmp_lt_u32 s{sT0}, {SPIN}
s_cbranch_scc1 L_poll
L_ptell:
ds_write_b32 v1, v2
s_branch L_pollok
L_lpoll:
ds_read_b32 v3, v1
s_add_u32 s{sT0}, s{sT0}, 1
s_waitcnt lgkmcnt(0)
v_cmp_ne_u32 vcc, s{sTAG}, v3
s_cbranch_vccz L_pollok
s_sleep 1
s_cmp_lt_u32 s{sT0}, {SPIN*8}
s_cbranch_scc1 L_lpoll
L_pollok:""")
stamp(); stamp(3)
vm = Q(63); lg = Q(15)
def a_load(st):
    so = sOX if st < 28 else (sOW if st == 28 else sNW)
    if st and st % 4 == 0 and st < 28: A(f's_add_u32 s{sOX}, s{sOX}, 4096')
    off = f' offset:{(st % 4)*1024}' if st % 4 else ''
    A(f'buffer_load_dwordx4 {vr(vRING + 4*(st % NRING), 4)}, v{vL16}, {srd(SRD_ACT)}, s{so} offen{off} sc1')
    vm.issue(st)
def b_read(st, ct):
    t = st - NREG
    r = [i for i, (a, b) in enumerate(REG_T) if a <= t < b][0]
    off = (t - REG_T[r][0]) * 2048
    for hf in range(2):
        A(f'ds_read_b64_tr_b16 {vr(vLB + (st % 4)*8 + ct*4 + hf*2, 2)}, v{vB + 2*r + ct} offset:{off + hf*1024}')
        lg.issue(st)
NB = OPT['burst']
for st in range(NB): a_load(st)
for st in range(32):
    if st == 28: A(f's_cmp_eq_u32 s{sKQ}, 3\ns_cbranch_scc1 L_p2done')
    if st == 29: A(f's_cmp_lg_u32 s{sKQ}, 0\ns_cbranch_scc1 L_p2done')
    w = []
    c = vm.need({st})
    if c is not None: w.append(f'vmcnt({c})')
    c = lg.need({st})
    if c is not None: w.append(f'lgkmcnt({c})')
    if w: A('s_waitcnt ' + ' '.join(w))
    if st in (0, 12): stamp(3)
    if st == 18 and OPT['ex']: A('ds_write_b32 v15, v2'); lg.issue('done17')
    for ct in range(2):
        b = ar(st*8 + ct*4, 4) if st < NREG else vr(vLB + (st % 4)*8 + ct*4, 4)
        acc = vr(vP + 16*ct, 16)
        A(mf32(acc, b, vr(vRING + 4*(st % NRING), 4), acc if st else '0'))
        if NREG <= st + 2 < 32: b_read(st + 2, ct)
        if ct == 0 and st + NB < 32: a_load(st + NB)
        if ct == 1 and st + NB == 31:
            A(f'buffer_load_dwordx4 v[44:47], v{vOO}, {srd(SRD_XR)}, 0 offen'); vm.issue('x')
A('L_p2done:')
stamp(); stamp(3)
vF, vS, vR1 = 48, 56, 64
if OPT['ex']:
    A(f"""s_mov_b32 s{sT0}, 0
L_pw:
ds_read_b32 v3, v16
s_add_u32 s{sT0}, s{sT0}, 1
s_waitcnt lgkmcnt(0)
v_cmp_ne_u32 vcc, s{sTAG}, v3
s_cbranch_vccz L_pwok
s_cmp_lt_u32 s{sT0}, {SPIN*8}
s_cbranch_scc1 L_pw
L_pwok:""")
else: A('s_waitcnt lgkmcnt(0)\ns_barrier')
A(f"""s_cmp_eq_u32 s{sKQ}, 1
s_cbranch_scc1 L_red1
s_cmp_eq_u32 s{sKQ}, 2
s_cbranch_scc1 L_red2
s_cmp_eq_u32 s{sKQ}, 3
s_cbranch_scc1 L_red3""")
def exo(src, chunk):
    if not OPT['ex']: return src*8192 + chunk*2048
    return src*12288 + (chunk - (chunk > src))*2048
def xunpack():
    A('s_waitcnt vmcnt(0)\nv_permlane32_swap_b32 v44, v46\nv_permlane32_swap_b32 v45, v47')
    for i in range(4):
        A(f'v_lshlrev_b32 v{vXR+2*i}, 16, v{44+i}\nv_and_b32 v{vXR+2*i+1}, 0xffff0000, v{44+i}')
for q in range(4):
    if q: A(f'L_red{q}:')
    for c in range(4):
        if c == q: continue
        for i in range(2): A(f'ds_write_b128 v{vEX}, {vr(vP + 8*c + 4*i, 4)} offset:{exo(q, c) + i*1024}')
    xunpack()
    A('s_waitcnt lgkmcnt(0)\ns_barrier')
    srcs = [s for s in range(4) if s != q]
    dst = {}
    for n_, s in enumerate(srcs):
        dst[s] = vS if s == 0 else vR1 + 8 * n_
        for i in range(2): A(f'ds_read_b128 {vr(dst[s] + 4*i, 4)}, v{vEX} offset:{exo(s, q) + i*1024}')
    dst[q] = vP + 8 * q
    if q == 0:
        for i in range(4): A(f'v_pk_mul_f32 {vr(vS+2*i, 2)}, {vr(vP+2*i, 2)}, 1.0 op_sel_hi:[1,0]')
    fs = [q] + [s for s in srcs if s] if q else [1, 2, 3]
    A('s_waitcnt lgkmcnt(2)')
    for i in range(4): A(f'v_pk_add_f32 {vr(vF+2*i, 2)}, {vr(dst[fs[0]]+2*i, 2)}, {vr(dst[fs[1]]+2*i, 2)}')
    A('s_waitcnt lgkmcnt(0)')
    for i in range(4): A(f'v_pk_add_f32 {vr(vF+2*i, 2)}, {vr(vF+2*i, 2)}, {vr(dst[fs[2]]+2*i, 2)}')
    if q < 3: A('s_branch L_final')
A.label('L_final')
t = 88
assert sT1 % 2 == 0
A(f's_mov_b32 s{sT1}, {f2u(-LOG2E)}\ns_mov_b32 s{sT1+1}, {f2u(-LOG2E)}')
for i in range(4): A(f'v_pk_mul_f32 {vr(t+2*i, 2)}, {vr(vF+2*i, 2)}, s[{sT1}:{sT1+1}]')
for i in range(8): A(f'v_exp_f32 v{t+i}, v{t+i}')
for i in range(4): A(f'v_pk_mul_f32 {vr(vS+2*i, 2)}, {vr(vS+2*i, 2)}, {vr(vF+2*i, 2)}')
for i in range(4): A(f'v_pk_add_f32 {vr(t+2*i, 2)}, {vr(t+2*i, 2)}, 1.0 op_sel_hi:[1,0]')
for i in range(8): A(f'v_rcp_f32 v{t+i}, v{t+i}')
for i in range(4): A(f'v_pk_fma_f32 {vr(t+2*i, 2)}, {vr(t+2*i, 2)}, {vr(vS+2*i, 2)}, {vr(vXR+2*i, 2)}')
for i in range(4): A(f'v_cvt_pk_bf16_f32 v{44+i}, v{t+2*i}, v{t+2*i+1}')
A(f'''v_permlane32_swap_b32 v44, v46
v_permlane32_swap_b32 v45, v47
buffer_store_dwordx4 v[44:47], v{vOO}, {srd(SRD_OUT)}, 0 offen{['', ' sc1', ' nt', ' sc0 sc1'][OPT['ost']]}''')
if OPT['stamps'] and OPT['sg'] != 2:
    stamp(); stamp(3)
    A('s_waitcnt vmcnt(0)')
    stamp()
    A(f'''s_lshl_b32 s{sT0}, s2, 9
s_lshl_b32 s{sT1}, s{sW}, 6
s_add_u32 s{sT0}, s{sT0}, s{sT1}
s_add_u32 s{sT0}, s{sT0}, {STAMP_OFF}
v_mov_b32 v1, s{sT0}''')
    for i in range(10): A(f'v_mov_b32 v{48+i}, s{sSTAMP+i}')
    A(f'''global_store_dwordx4 v1, v[48:51], s[{sWS}:{sWS+1}]
global_store_dwordx4 v1, v[52:55], s[{sWS}:{sWS+1}] offset:16
global_store_dwordx2 v1, v[56:57], s[{sWS}:{sWS+1}] offset:32''')
A.label('L_end')
A('s_endpgm')
handlers('a')

body = A.finish(verbose=False)
hdr = open('cdna_kernels/' + NAME + '.s.ref').read().split('; Override launch')[0]
out = hdr + f'''; @launch grid=(256,1,1) block=(512,1,1) lds={LDS_BYTES}
.amdgcn_target "amdgcn-amd-amdhsa--gfx950"
.text
.globl {NAME}_kernel
.p2align 8
.type {NAME}_kernel,@function
''' + body + f'''L_codeend:
.fill (33024 - (L_codeend - {NAME}_kernel)) / 4, 4, 0xbf810000
.section .rodata,"a"
.p2align 6
.amdhsa_kernel {NAME}_kernel
  .amdhsa_next_free_vgpr 256
  .amdhsa_next_free_sgpr 102
  .amdhsa_accum_offset 160
  .amdhsa_group_segment_fixed_size 0
  .amdhsa_kernarg_size 80
  .amdhsa_user_sgpr_count 2
  .amdhsa_user_sgpr_kernarg_segment_ptr 1
  .amdhsa_system_sgpr_workgroup_id_x 1
.end_amdhsa_kernel
'''
sys.stdout.write(out)
sys.stderr.write(f'nops inserted: {A.nops}\n')
```

```python
import sys, os, struct
sys.path.insert(0, os.path.dirname(os.path.abspath(__file__)))
from asmlib import Asm, Q

NAME = "recurrent_scan__sliding_local_dilated__swiglu_ffn__prompt"
OPT = dict(fh=1, s1l=0, fov=1, front=1, perm=1, c3=0, fbg=1, abg=2, flate=1, adel=0, np=2, arot=0, gap=2, anh=17, w2=1, tin=0, pt=0, sfl=0, ep=0, r2=0, ex=1, tit=4, rot=1, l2r=2, lateb=0, ost=0, l2t=0, exp=0, sleep=1, stamps=0, sg=0, nodma=0, btouch=1, map2=0, burst=6, prio=0)
for a in sys.argv[1:]:
    k, v = a.split('=')
    assert k in OPT, k
    OPT[k] = int(v)

SLOT = 53504
UPOFF = 18560
LDS_BYTES = 163840
SCR = 2 * SLOT + 49152
ACT_OFF = 1 << 20
TG_STRIDE = 118 * 1024
ACT_BYTES = 64 * TG_STRIDE
FLAG_F = 0
FLAG_A = 0x2000
FLAG_S = 0x2c00
FLAG_C = 0x3000
STAT_OFF = 0x4000
CS_OFF = 0x8000
AUX_BYTES = 0x8000 + 10 * 9216
STAMP_OFF = 1 << 19
NREG = 12
LOG2E = 1.4426950408889634
OOB = 0x80000000
SPIN = 0x40000
def f2u(x): return struct.unpack('<I', struct.pack('<f', x))[0]

sW = 3
SRD_X, SRD_W, SRD_ACT, SRD_B, SRD_XR, SRD_OUT = 4, 8, 12, 16, 20, 24
sDBG, sWS = 28, 30
sKA = 32
sIT, sKS, sBX, sBW, sKQ, sMW, sOX, sOW = 48, 49, 50, 51, 52, 53, 54, 55
sD = 56
sN0 = 59
sSLOT, sDELTA, sONES, sRS = 60, 61, 62, 63
sR, sCB, sA, sB, sTAG, sT0, sT1, sT2, sT3 = 64, 65, 66, 67, 68, 69, 70, 71, 72
sMH, sST, sFLAG, sSOFF, sNW, sT4, sT5 = 73, 74, 75, 76, 77, 78, 79
SRD_AUX = 80
SRD_T = 84
sEX = 88
sCLK = 90
sSTAMP = 92
sHM = 0
sP0, sP1, sP2, sP3, sP4, sP5 = 32, 33, 34, 35, 38, 39
sQ0, sQ1, sQ2, sSO, sQ3, sL2 = 40, 41, 42, 43, 1, 46
def srd(n): return f's[{n}:{n+3}]'

vL = 0
vDMA = 4
vRX, vRW = 11, 15
vST = 16
vPL, vFL, vTG = 22, 23, 24
vBP = 25
vL16 = 29
vTCH = 19
vAD = 30
vMSK = 36
vFR = 48
vACC = 80
def vr(b, n): return f'v[{b}:{b+n-1}]'
def ar(b, n): return f'a[{b}:{b+n-1}]'

A = Asm()
SFL = [' sc1', ' sc0 sc1'][OPT['sfl']]
STI = 's_memtime' if OPT['stamps'] == 2 else 's_memrealtime'
nstamp = [0]
def stamp(grp=0):
    if not OPT['stamps'] or grp != OPT['sg']: return
    i = nstamp[0]; nstamp[0] += 1
    assert i < 10
    A(f'{STI} s[{sCLK}:{sCLK+1}]\ns_waitcnt lgkmcnt(0)\ns_mov_b32 s{sSTAMP+i}, s{sCLK}')

def itstamp():
    if OPT['stamps'] and OPT['sg'] == 2:
        A(f'''{STI} s[{sCLK}:{sCLK+1}]
s_waitcnt lgkmcnt(0)
v_mov_b32 v77, s{sCLK}
v_cmp_eq_u32 vcc, s{sIT}, v{vL}
v_cndmask_b32 v78, v78, v77, vcc''')
def itdump():
    if OPT['stamps'] and OPT['sg'] == 2:
        itstamp()
        A(f'''s_lshl_b32 s{sT0}, s2, 9
s_lshl_b32 s{sT1}, s{sW}, 6
s_add_u32 s{sT0}, s{sT0}, s{sT1}
s_add_u32 s{sT0}, s{sT0}, {STAMP_OFF}
v_lshl_add_u32 v77, v{vL}, 2, s{sT0}
s_mov_b64 exec, 0x3ff
global_store_dword v77, v78, s[{sWS}:{sWS+1}]
s_mov_b64 exec, -1''')
def mf32(d, a, b, c): return f'v_mfma_f32_32x32x16_bf16 {d}, {a}, {b}, {c}'
def mf16(d, a, b, c): return f'v_mfma_f32_16x16x32_bf16 {d}, {a}, {b}, {c}'
def mf16k(d, a, b, c): return f'v_mfma_f32_16x16x16_bf16 {d}, {a}, {b}, {c}'

def spread(groups, slots, into=None):
    out = {} if into is None else into
    n = len(groups)
    for i, g in enumerate(groups):
        out.setdefault(slots[(i * len(slots)) // n], []).extend(g)
    return out
def lines(L):
    for l in L: (l() if callable(l) else A(l))
def mix(a, b):
    out = []; a = list(a); b = list(b)
    while a or b:
        if a: out.append(a.pop(0))
        if b: out.append(b.pop(0))
    return out

class Inter:
    def __init__(self): self.g = []; self.every = 1; self.c = 0
    def push(self, groups, every): self.g += list(groups); self.every = every; self.c = 0
    def __call__(self, text):
        for l in text.split('\n'):
            l = l.strip()
            if not l: continue
            A(l); self.c += 1
            if self.g and self.c >= self.every:
                lines(self.g.pop(0)); self.c = 0
    def flush(self):
        while self.g: lines(self.g.pop(0))

def build_srd(n, plo, size, E=None):
    (E or A)(f'''s_mov_b32 s{n}, s{plo}
s_mov_b32 s{n+1}, s{plo+1}
s_mov_b32 s{n+2}, {size}
s_mov_b32 s{n+3}, 0x20000''')

SOFFX = [f's_lshl_b32 s{sOX}, s{sKS}, 7', f's_add_u32 s{sOX}, s{sOX}, s{sBX}']
SOFFW = [f's_mul_i32 s{sOW}, s{sKS}, s{sMW}', f's_add_u32 s{sOW}, s{sOW}, s{sBW}']
SOFFWN = [f's_mul_i32 s{sNW}, s{sKS}, s{sMW}', f's_add_u32 s{sNW}, s{sNW}, s{sBW}']
KSINC = [f's_add_u32 s{sKS}, s{sKS}, 1', f's_and_b32 s{sKS}, s{sKS}, 7']
SOFF = SOFFX + SOFFW + KSINC
ADV = [f's_add_u32 s{sSLOT}, s{sSLOT}, {SLOT}', f's_cmp_eq_u32 s{sSLOT}, {3*SLOT}', f's_cselect_b32 s{sSLOT}, 0, s{sSLOT}']
RDELTA = [f's_add_u32 s{sRS}, s{sRS}, 1', f's_mov_b32 s{sDELTA}, {SLOT}', f's_cmp_eq_u32 s{sRS}, 3',
          f's_cmov_b32 s{sDELTA}, {(-2*SLOT) & 0xffffffff}', f's_cmov_b32 s{sRS}, 0']

sNEXT, sPOS, sNEG = sRS, sNW, 37
RDL = [f's_cmp_eq_u32 s{sSLOT}, s{sPOS}', f's_cselect_b32 s{sDELTA}, s{sNEG}, s{sPOS}']
ADVL = [f's_cmp_eq_u32 s{sSLOT}, {2*SLOT}', f's_cselect_b32 s{sT3}, s{sNEG}, s{sPOS}', f's_add_u32 s{sSLOT}, s{sSLOT}, s{sT3}']
def loop_prepare():
    A(f'''s_sub_u32 s{sT0}, 9, s{sKS}
s_and_b32 s{sT0}, s{sT0}, 7
s_mov_b32 s{sKS}, s{sT0}
s_bitset1_b32 s{sHM}, s{sT0}
s_and_b32 s{sHM}, s{sHM}, 62
s_or_b32 s{sHM}, s{sHM}, 64
s_ff1_i32_b32 s{sNEXT}, s{sHM}
s_mov_b32 s{sPOS}, {SLOT}
s_mov_b32 s{sNEG}, {(-2*SLOT) & 0xffffffff}''')
def dma(v, s_, o_, im, pre=None, flags=''):
    off = f' offset:{im}' if im else ''
    return (pre or []) + [f'buffer_load_dwordx4 v{v}, {srd(s_)}, s{o_} offen{off}{flags} lds']

vSR = 48
def stat_load():
    A(f'''s_lshl_b32 s{sT0}, s2, 13
s_lshl_b32 s{sT1}, s{sW}, 10
s_add_u32 s{sT0}, s{sT0}, s{sT1}
buffer_load_dwordx4 {vr(vSR, 4)}, v{vL16}, {srd(SRD_XR)}, s{sT0} offen''')

def stat_compute(E):
    sm, sq, t, t2 = 52, 53, 54, 55
    E(f'v_mov_b32 v{sm}, 0\nv_mov_b32 v{sq}, 0')
    for i in range(4):
        E(f'v_dot2c_f32_bf16 v{sm}, s{sONES}, v{vSR+i}\nv_dot2c_f32_bf16 v{sq}, v{vSR+i}, v{vSR+i}')
    for r in (1, 2, 4, 8):
        E(f'v_add_f32_dpp v{sm}, v{sm}, v{sm} row_ror:{r} row_mask:0xf bank_mask:0xf')
        E(f'v_add_f32_dpp v{sq}, v{sq}, v{sq} row_ror:{r} row_mask:0xf bank_mask:0xf')
    for sw in (16, 32):
        E(f'''v_mov_b32 v{t}, v{sm}
v_mov_b32 v{t2}, v{sq}
v_permlane{sw}_swap_b32 v{sm}, v{t}
v_permlane{sw}_swap_b32 v{sq}, v{t2}
v_add_f32 v{sm}, v{sm}, v{t}
v_add_f32 v{sq}, v{sq}, v{t2}''')
    E(f'''v_mul_f32 v{sm}, {f2u(1/512)}, v{sm}
v_mul_f32 v{sq}, {f2u(1/512)}, v{sq}
v_fma_f32 v{sq}, -v{sm}, v{sm}, v{sq}
v_max_f32 v{sq}, 0, v{sq}
v_cvt_pk_bf16_f32 v{sq}, v{sq}, v{sq}
v_lshlrev_b32 v{sq}, 16, v{sq}
v_add_f32 v{sq}, {f2u(1e-5)}, v{sq}
v_cvt_pk_bf16_f32 v{sq}, v{sq}, v{sq}
v_lshlrev_b32 v{sq}, 16, v{sq}
v_sqrt_f32 v{sq}, v{sq}
s_lshl_b32 s{sT0}, s2, 5
s_lshl_b32 s{sT1}, s{sW}, 2
s_add_u32 s{sT0}, s{sT0}, s{sT1}
s_add_u32 s{sT0}, s{sT0}, {STAT_OFF}
v_cvt_pk_bf16_f32 v{sq}, -v{sm}, v{sq}''')
    A(f'''s_mov_b64 exec, 1
buffer_store_dword v{sq}, off, {srd(SRD_AUX)}, s{sT0} sc1
s_mov_b64 exec, -1''')

uid = [0]
def publish_tag():
    uid[0] += 1; n = uid[0]
    A(f'''s_or_b32 s{sT0}, s2, s{sW}
s_cmp_lg_u32 s{sT0}, 0
s_cbranch_scc1 L_notag{n}
s_memrealtime s[{sT4}:{sT5}]
s_waitcnt lgkmcnt(0)
s_or_b32 s{sT4}, s{sT4}, 1
v_mov_b32 v1, 0
v_mov_b32 v2, s{sT4}
s_mov_b64 exec, 1
global_store_dword v1, v2, s[{sDBG}:{sDBG+1}] sc1
s_mov_b64 exec, -1
L_notag{n}:''')

def tile_map():
    light = [s_ for s_ in range(20) if s_ % 5 >= 3]
    slow = [8*r + c for c in (3, 7) for r in range(4)]
    rest = [t for t in range(32) if t not in slow]
    TILE = [slow.pop(0) if s_ in light else rest.pop(0) for s_ in range(32)]
    W = [sum(TILE[s_] << (5 * (s_ - b)) for s_ in range(b, min(b + 12, 32))) for b in (0, 12, 24)]
    A(f'''s_lshr_b32 s{sT1}, s2, 3
s_mov_b32 s{sT4}, {W[0] & 0xffffffff}
s_mov_b32 s{sT5}, {W[0] >> 32}
s_cmp_ge_u32 s{sT1}, 12
s_cmov_b32 s{sT4}, {W[1] & 0xffffffff}
s_cmov_b32 s{sT5}, {W[1] >> 32}
s_cselect_b32 s{sT2}, 12, 0
s_cmp_ge_u32 s{sT1}, 24
s_cmov_b32 s{sT4}, {W[2] & 0xffffffff}
s_cmov_b32 s{sT5}, {W[2] >> 32}
s_cmov_b32 s{sT2}, 24
s_sub_u32 s{sT1}, s{sT1}, s{sT2}
s_mul_i32 s{sT1}, s{sT1}, 5
s_lshr_b64 s[{sT4}:{sT5}], s[{sT4}:{sT5}], s{sT1}
s_and_b32 s{sCB}, s{sT4}, 7
s_bfe_u32 s{sR}, s{sT4}, 0x20003
s_and_b32 s{sT1}, s2, 7
s_lshl_b32 s{sT1}, s{sT1}, 2
s_add_u32 s{sR}, s{sR}, s{sT1}''')

def setup2():
    if OPT['perm']: tile_map()
    build_srd(SRD_AUX, sWS, AUX_BYTES)
    build_srd(SRD_OUT, sKA + 14, 2048 * 1024)
    A(f'''s_add_u32 s{SRD_ACT}, s{sWS}, {ACT_OFF}
s_addc_u32 s{SRD_ACT+1}, s{sWS+1}, 0
s_mov_b32 s{SRD_ACT+2}, {ACT_BYTES if OPT['exp'] != 2 else 0}
s_mov_b32 s{SRD_ACT+3}, 0x20000
s_lshr_b32 s{sKQ}, s{sW}, 1
s_lshr_b32 s{sT0}, s{sW}, 2
s_xor_b32 s{sKQ}, s{sKQ}, s{sT0}
s_and_b32 s{sMH}, s{sW}, 1
s_cmp_eq_u32 s{sKQ}, 0
s_cselect_b32 s{SRD_B}, s{sKA+4}, s{sKA+12}
s_cselect_b32 s{SRD_B+1}, s{sKA+5}, s{sKA+13}
s_mov_b32 s{SRD_B+2}, {1376*1024}
s_cmov_b32 s{SRD_B+2}, {512*1024}
s_mov_b32 s{SRD_B+3}, 0x20000
s_mov_b32 s{sIT}, 0
s_cmp_eq_u32 s{sW}, 0
s_cselect_b32 s{sHM}, {2 | ((1 << OPT['tit']) & ~1)}, {(1 << OPT['tit']) & ~1}''')
    if OPT['prio']:
        uid[0] += 1
        A(f's_cmp_{"ge" if OPT["prio"] == 1 else "lt"}_u32 s{sW}, 4\ns_cbranch_scc0 L_np{uid[0]}\ns_setprio 1\nL_np{uid[0]}:')
    A(f'''
v_lshrrev_b32 v1, 3, v{vL}
v_and_b32 v2, 7, v{vL}
v_bfe_u32 v3, v{vL}, 4, 1
v_lshlrev_b32 v3, 2, v3
v_xor_b32 v2, v2, v3
v_lshlrev_b32 v2, 4, v2
v_lshl_add_u32 v{vBP}, v1, 10, v2''')
    for i in range(1, 4): A(f'v_add_u32 v{vBP+i}, {7168*i}, v{vBP}')
    A(f'''s_sub_u32 s{sT0}, s{sKQ}, 1
s_max_i32 s{sT0}, s{sT0}, 0
s_mul_i32 s{sSOFF}, s{sT0}, {464*1024}
s_lshl_b32 s{sT0}, s{sCB}, 7
s_add_u32 s{sSOFF}, s{sSOFF}, s{sT0}''')

def touch_prepare():
    A(f'''s_lshl_b32 s{sT0}, s2, 3
s_add_u32 s{sT0}, s{sT0}, s{sW}
s_sub_u32 s{sT1}, s{sT0}, 1376
s_cmp_ge_u32 s{sT0}, 1376
s_cselect_b32 s{sT0}, s{sT1}, s{sT0}
s_cselect_b32 s{SRD_T}, s{sKA+4}, s{sKA+12}
s_cselect_b32 s{SRD_T+1}, s{sKA+5}, s{sKA+13}
s_mov_b32 s{SRD_T+2}, {1376*1024}
s_cmov_b32 s{SRD_T+2}, {512*1024}
s_mov_b32 s{SRD_T+3}, 0x20000
s_lshl_b32 s{sL2}, s{sT0}, 10
s_add_u32 s{sL2}, s{sL2}, {(-(OPT['tin'] - 1) * 0x20000000) & 0xffffffff if OPT['tin'] else 0}
v_and_b32 v18, 7, v{vL}
v_lshlrev_b32 v18, 7, v18
v_mov_b32 v17, 0''')
TOUCH = f'buffer_load_dword v{vTCH}, v18, {srd(SRD_T)}, s{sL2} offen'
def touches(vm):
    if not OPT['tit'] and not OPT['tin']: A(TOUCH); vm.issue('touch')
    A(f'global_load_dword v{vTG}, v17, s[{sDBG}:{sDBG+1}] sc1'); vm.issue('tag')

vTP = 18
L2T = [[TOUCH, f's_add_u32 s{sL2}, s{sL2}, 0x20000000']] if OPT['tin'] else []
def tail_prepare():
    A(f'''s_mul_i32 s{sT0}, s{sMH}, {48*1024}
s_add_u32 s{sP0}, s{sSOFF}, s{sT0}
s_mul_i32 s{sP1}, s{sKQ}, 12288
s_mul_i32 s{sT0}, s{sMH}, 6144
s_add_u32 s{sP1}, s{sP1}, s{sT0}''')
def tail_setup():
    A(f's_mov_b32 s{sOX}, s{sP0}\ns_mov_b32 s{sD}, s{sP1}')

def tail_dma():
    out = [dma(vBP, SRD_B, sOX, 0, [f's_add_u32 m0, s{sSLOT}, s{sD}'])]
    for i in range(1, 4): out.append(dma(vBP + i, SRD_B, sOX, 1024 * i))
    out.append(dma(vBP, SRD_B, sOX, 0, ['s_add_u32 m0, m0, 4096', f's_add_u32 s{sOX}, s{sOX}, 32768']))
    out.append(dma(vBP + 1, SRD_B, sOX, 1024) + [f's_add_u32 s{sOX}, s{sOX}, {96*1024 - 32768}'])
    return out

def get_tag(n):
    A(f'''v_readfirstlane_b32 s{sTAG}, v{vTG}
s_mov_b32 s{sT0}, 0
L_tag{n}:
s_cmp_lg_u32 s{sTAG}, 0
s_cbranch_scc1 L_tagok{n}
v_mov_b32 v1, 0
global_load_dword v{vTG}, v1, s[{sDBG}:{sDBG+1}] sc1
s_waitcnt vmcnt(0)
v_readfirstlane_b32 s{sTAG}, v{vTG}
s_add_u32 s{sT0}, s{sT0}, 1
s_cmp_lt_u32 s{sT0}, {SPIN}
s_cbranch_scc1 L_tag{n}
L_tagok{n}:''')
def handlers(n):
    A(f'''L_{n}h:
s_bitset0_b32 s{sHM}, s{sIT}
s_ff1_i32_b32 s{sNEXT}, s{sHM}
s_cmp_lg_u32 s{sIT}, s{sKS}
s_cbranch_scc1 L_{n}h0
s_sub_u32 s{sOX}, s{sOX}, 1024
s_lshl_b32 s{sT0}, s{sMW}, 3
s_sub_u32 s{sOW}, s{sOW}, s{sT0}
L_{n}h0:
s_cmp_lg_u32 s{sIT}, {OPT['tit']}
s_cbranch_scc1 L_{n}h1
{TOUCH}
L_{n}h1:
s_lshl_b32 s{sT0}, s{sW}, 3
s_add_u32 s{sT0}, s{sT0}, s{sIT}
s_cmp_lg_u32 s{sT0}, 1
s_cbranch_scc1 L_{n}back''')
    get_tag(n + 'h')
    A(f'''v_mov_b32 v1, s{sTAG}
s_mov_b64 exec, 3
buffer_store_dword v1, v{vFL}, {srd(SRD_AUX)}, 0 offen sc1
s_mov_b64 exec, -1
s_branch L_{n}back''')
LB_ = '' if OPT['exp'] in (6, 7) else 's_barrier'
def hcheck(n): A(f's_bitcmp1_b32 s{sHM}, s{sIT}\ns_cbranch_scc1 L_{n}h\nL_{n}back:')

def check_flag0(n):
    A(f'''s_mov_b32 s{sT0}, 0
L_f0{n}:
v_cmp_ne_u32 vcc, s{sTAG}, v{vTG}
s_cbranch_vccz L_f0ok{n}
buffer_load_dword v{vTG}, v{vPL}, {srd(SRD_AUX)}, 0 offen sc1
s_waitcnt vmcnt(0)
s_add_u32 s{sT0}, s{sT0}, 1
s_cmp_lt_u32 s{sT0}, {SPIN}
s_cbranch_scc1 L_f0{n}
L_f0ok{n}:''')

def split_hilo(r, t, E=None):
    (E or A)(f'''v_cvt_pk_bf16_f32 v{t}, v{r}, v{r}
v_lshlrev_b32 v{t}, 16, v{t}
v_sub_f32 v{t}, v{r}, v{t}
v_cvt_pk_bf16_f32 v{r}, v{r}, v{t}''')

vB = 4
REG_BASE = [SLOT, 2 * SLOT, 0]
REG_T = [(0, 6), (6, 12), (12, 20)]
def baddr_early(dst):
    A(f'''v_lshrrev_b32 v1, 5, v{vL}
v_bfe_u32 v2, v{vL}, 2, 2
v_lshl_add_u32 v1, v1, 2, v2
v_lshlrev_b32 v1, 7, v1
v_bfe_u32 v2, v{vL}, 3, 1
v_lshl_add_u32 v1, v2, 6, v1
v_bfe_u32 v2, v{vL}, 4, 1
v_lshl_add_u32 v1, v2, 5, v1
v_and_b32 v2, 3, v{vL}
v_lshl_add_u32 v{dst}, v2, 3, v1
s_mul_i32 s{sQ3}, s{sKQ}, 12288
s_lshl_b32 s{sT0}, s{sMH}, 10
s_add_u32 s{sQ0}, s{sQ3}, s{sT0}
s_min_u32 s{sT1}, s{sKQ}, 1
s_mul_i32 s{sT1}, s{sT1}, 6144
s_mul_i32 s{sQ1}, s{sKQ}, 10240
s_add_u32 s{sQ1}, s{sQ1}, s{sT1}
s_add_u32 s{sQ2}, s{sQ1}, s{sT0}
s_lshl_b32 s{sT0}, s{sMH}, 13
s_add_u32 s{sSO}, s{sSOFF}, s{sT0}
s_add_u32 s{sSO}, s{sSO}, {NREG*16384}''')
def baddr_first(src):
    if OPT['exp'] == 9: A(f's_mov_b32 s{SRD_B+2}, 0')
    A(f'''v_add_u32 v{vB}, s{sQ3}, v{src}
v_add_u32 v{vB+2}, {2*SLOT}, v{vB}
v_xor_b32 v{vB+3}, 64, v{vB+2}
v_add_u32 v11, {16384-2048}, v{vBP}''')
def defer_slow(nbg):
    if not OPT['c3']: A(f's_mov_b32 s{sST}, {nbg}'); return
    A(f'''s_mov_b32 s{sBW}, s{SRD_B+2}
s_mov_b32 s{sMW}, s{sSO}
s_cmp_eq_u32 s{sCB}, 3
s_cselect_b32 s{sST}, 0, {nbg}
s_cmov_b32 s{SRD_B+2}, 0''')
def breg_groups(half):
    out = []
    for st in range(6 * half, 6 * half + 6):
        for ct in range(2):
            base = vB + (2 if half == 0 else 0) + ct
            out.append([f'ds_read_b64_tr_b16 {ar(st*8 + ct*4 + hf*2, 2)}, v{base} offset:{(st % 6)*2048 + hf*1024}' for hf in range(2)])
    return out
def static_groups(r, vm, n):
    out = []
    a, b = REG_T[r]
    for t in range(a, b):
        g = []
        if t == 16: g += [f's_cmp_eq_u32 s{sKQ}, 3', f's_cbranch_scc1 L_sdone{n}']
        if t == 17: g += [f's_cmp_lg_u32 s{sKQ}, 0', f's_cbranch_scc1 L_sdone{n}']
        if t % 2 == 0:
            if t: g.append(f's_add_u32 s{sSO}, s{sSO}, 32768')
            g.append(f's_add_u32 m0, s{sQ0 if r < 2 else sQ2}, {REG_BASE[r] + (t - a)*2048}')
            g += dma(vBP, SRD_B, sSO, 0)
        else:
            g += dma(11, SRD_B, sSO, 2048)
        g.append(lambda: vm.issue('dma'))
        out.append(g)
    if r == 2:
        tail = sum(out[4:], []) + [f'L_sdone{n}:']
        out = out[:4] + [tail]
    return out

A(f'{NAME}_kernel:')
A(f'''s_load_dwordx16 s[{sKA}:{sKA+15}], s[0:1], 0
s_load_dwordx4 s[{sDBG}:{sDBG+3}], s[0:1], 64
s_cmp_ge_u32 s2, 256
s_cbranch_scc1 L_end
s_getpc_b64 s[{sT4}:{sT5}]
v_lshlrev_b32 v1, 6, v0
global_load_dword v{vTCH}, v1, s[{sT4}:{sT5}]
v_lshrrev_b32 v1, 6, v0
v_and_b32 v{vL}, 63, v0
v_readfirstlane_b32 s{sW}, v1
s_and_b32 s{sT0}, s2, 7
s_lshr_b32 s{sT1}, s2, 3
s_lshr_b32 s{sT2}, s{sT0}, 1
s_and_b32 s{sT3}, s{sT0}, 1''')
if OPT['stamps']:
    A(f'{STI} s[{sCLK}:{sCLK+1}]'); nstamp[0] = 1
if OPT['perm']: pass
elif OPT['map2'] == 0:
    A(f'''s_lshl_b32 s{sR}, s{sT0}, 2
s_lshr_b32 s{sCB}, s{sT1}, 3
s_add_u32 s{sR}, s{sR}, s{sCB}
s_and_b32 s{sCB}, s{sT1}, 7''')
else:
    A(f'''s_lshl_b32 s{sR}, s{sT2}, 3
s_lshr_b32 s{sCB}, s{sT1}, 2
s_add_u32 s{sR}, s{sR}, s{sCB}
s_and_b32 s{sCB}, s{sT1}, 3
s_lshl_b32 s{sA}, s{sT3}, 2
s_add_u32 s{sCB}, s{sCB}, s{sA}''')
if OPT['exp'] == 3: A(f's_add_u32 s{sCB}, s{sCB}, 1\ns_and_b32 s{sCB}, s{sCB}, 7')
A(f'''s_mov_b32 s{sONES}, 0x3f803f80
v_lshrrev_b32 v30, 3, v{vL}
v_and_b32 v31, 7, v{vL}
v_lshrrev_b32 v32, 4, v{vL}
v_lshlrev_b32 v{vL16}, 4, v{vL}
v_xor_b32 v1, v31, v32
v_lshlrev_b32 v1, 4, v1
v_lshl_add_u32 v{vDMA}, v30, 11, v1
s_mov_b32 s{sSLOT}, 0
s_cmp_ge_u32 s{sT1}, 20
s_cbranch_scc1 L_attn''')

A(f'''s_mul_i32 s{sA}, s{sT1}, 52
s_lshr_b32 s{sA}, s{sA}, 8
s_mul_i32 s{sB}, s{sA}, 5
s_sub_u32 s{sB}, s{sT1}, s{sB}
''')
if OPT['perm']:
    A(f'''s_cmp_lt_u32 s{sB}, 3
s_cselect_b32 s{sT4}, 3, 2
s_cselect_b32 s{sT5}, 0, 3
s_mul_i32 s{sT3}, s{sT3}, s{sT4}
s_add_u32 s{sB}, s{sB}, s{sT3}
s_add_u32 s{sB}, s{sB}, s{sT5}''')
else: A(f's_mul_i32 s{sT3}, s{sT3}, 5\ns_add_u32 s{sB}, s{sB}, s{sT3}')
A(f'''s_lshl_b32 s{sT2}, s{sT2}, 2
s_add_u32 s{sA}, s{sA}, s{sT2}
v_xor_b32 v{vDMA+1}, 64, v{vDMA}
v_add_u32 v{vDMA+1}, {16384-1024}, v{vDMA+1}
s_lshr_b32 s{sT0}, s{sW}, 2
s_and_b32 s{sT1}, s{sW}, 1
s_add_u32 s{sT2}, s{sT0}, 4
s_mul_i32 s{sT2}, s{sT2}, s{sT1}
s_lshl_b32 s{sT3}, s{sT0}, 3
s_add_u32 s{sT2}, s{sT2}, s{sT3}
s_lshl_b32 s{sT3}, s{sT2}, 6
v_add_u32 v1, s{sT3}, v{vL}
s_movk_i32 s{sT4}, 3641
s_movk_i32 s{sT5}, 2464''')
for i in range(5):
    A(f'''v_mul_u32_u24 v2, s{sT4}, v1
v_lshrrev_b32 v2, 16, v2
v_mul_u32_u24 v2, s{sT5}, v2
v_lshl_add_u32 v{vDMA+2+i}, v1, 4, v2''')
    if i % 4: A(f'v_subrev_u32 v{vDMA+2+i}, {(i % 4)*1024}, v{vDMA+2+i}')
    if i < 4: A('v_add_u32 v1, 64, v1')
A(f'''s_bfe_u32 s{sT3}, s{sW}, 0x10001
s_mul_i32 s{sD+1}, s{sT3}, {UPOFF}
s_lshl_b32 s{sT2}, s{sT2}, 10
s_add_u32 s{sD+1}, s{sD+1}, s{sT2}
s_add_u32 s{sD+1}, s{sD+1}, 16384
s_lshl_b32 s{sD}, s{sW}, 11
s_mul_i32 s{sST}, s{sB}, 9
s_sub_u32 s{sT2}, s{sB}, 6
s_max_i32 s{sT2}, s{sT2}, 0
s_sub_u32 s{sST}, s{sST}, s{sT2}
s_lshl_b32 s{sBW}, s{sST}, 5
s_lshl_b32 s{sBX}, s{sA}, 7
s_lshl_b32 s{sT2}, s{sT0}, 6
s_add_u32 s{sBX}, s{sBX}, s{sT2}
s_add_u32 s{sBX}, s{sBX}, s{sT3}
s_lshl_b32 s{sT2}, s{sT1}, 5
s_add_u32 s{sBX}, s{sBX}, s{sT2}
s_lshl_b32 s{sBX}, s{sBX}, 10
s_mov_b32 s{sMW}, {64*2752}
s_lshr_b32 s{sKS}, s{sA}, 1''')
if OPT['rot'] == 2: A(f's_add_u32 s{sKS}, s{sKS}, s{sB}\ns_and_b32 s{sKS}, s{sKS}, 7')
A(f'''s_cmp_lt_u32 s{sB}, 6
s_cselect_b32 s{sN0}, 5, 4''')
lines(SOFF)
A(f'''s_cmp_eq_u32 s{sT3}, 1
s_waitcnt lgkmcnt(0)
s_cselect_b32 s{SRD_W}, s{sKA+10}, s{sKA+8}
s_cselect_b32 s{SRD_W+1}, s{sKA+11}, s{sKA+9}
s_mov_b32 s{SRD_W+2}, {512*2752}
s_mov_b32 s{SRD_W+3}, 0x20000''')
if OPT['stamps']: A(f's_mov_b32 s{sSTAMP}, s{sCLK}')
build_srd(SRD_XR, sKA, 2048 * 1024)
stat_load()
build_srd(SRD_X, sKA, 2048 * 1024)
FX = [dma(vDMA, SRD_X, sOX, 0, [f's_add_u32 m0, s{sSLOT}, s{sD}']), dma(vDMA + 1, SRD_X, sOX, 1024)]
FW = [dma(vDMA + 2, SRD_W, sOW, 0, [f's_add_u32 m0, s{sSLOT}, s{sD+1}'])] + [dma(vDMA + 2 + i, SRD_W, sOW, 1024 * i) for i in range(1, 4)]
FW5 = dma(vDMA + 6, SRD_W, sOW, 0, ['s_add_u32 m0, m0, 4096'])
def fw5_guarded(tag):
    uid[0] += 1
    A(f's_cmp_lt_u32 s{sW}, 4\ns_cbranch_scc1 L_no5{uid[0]}'); lines(FW5); A(f'L_no5{uid[0]}:')
stamp(1)
vm = Q(63); vm.issue('code'); vm.issue('sr')
for g in FW: lines(g); vm.issue('w0')
fw5_guarded('w0')
for g in FX: lines(g); vm.issue('x0')
publish_tag()
stamp(1)
lines(ADV); lines(SOFF)
setup2()
A('v_mov_b32 v56, 0\nv_mov_b32 v57, 0\nv_mov_b32 v58, 0\nv_mov_b32 v59, 0')
for T in range(5): A(mf32(vr(vACC + 16*T, 16), 'v[56:59]', 'v[56:59]', '0'))
A(f'''v_and_b32 v1, 31, v{vL}
s_and_b32 s{sT0}, s{sW}, 3
s_lshl_b32 s{sT0}, s{sT0}, 5
v_add_u32 v1, s{sT0}, v1
v_bfe_u32 v2, v1, 1, 3
v_lshrrev_b32 v3, 5, v{vL}
v_xor_b32 v2, v2, v3
v_lshlrev_b32 v2, 4, v2
v_lshl_add_u32 v{vRX}, v1, 7, v2
v_xor_b32 v{vRX+1}, 32, v{vRX}
v_xor_b32 v{vRX+2}, 64, v{vRX}
v_xor_b32 v{vRX+3}, 96, v{vRX}
v_bfe_u32 v1, v{vL}, 2, 2
v_and_b32 v2, 3, v{vL}
v_lshlrev_b32 v2, 3, v2
s_movk_i32 s{sT0}, 288
v_mad_u32_u24 v35, v1, s{sT0}, v2
v_mul_u32_u24 v2, 2304, v3
v_bfe_u32 v1, v{vL}, 4, 1
v_mul_u32_u24 v{vRW}, {UPOFF}, v1
v_add3_u32 v{vRW}, v{vRW}, v2, v35
s_lshr_b32 s{sT0}, s{sW}, 2
s_mul_i32 s{sT0}, s{sT0}, s{sN0}
s_lshl_b32 s{sT0}, s{sT0}, 5
s_add_u32 s{sT0}, s{sT0}, 16384
v_add_u32 v{vRW}, s{sT0}, v{vRW}
s_and_b32 s{sT0}, s{sW}, 1
s_mul_i32 s{sT0}, s{sT0}, {UPOFF}
s_add_u32 s{sT0}, s{sT0}, 16384
v_add_u32 v35, s{sT0}, v35
v_mul_u32_u24 v34, 1152, v32
v_add_u32 v34, v34, v35
v_mul_u32_u24 v33, 1152, v3
v_lshl_add_u32 v33, v1, 7, v33
s_lshr_b32 s{sT1}, s{sW}, 1
s_lshl_b32 s{sT2}, s{sT1}, 5
v_add3_u32 v33, v33, v35, s{sT2}''')
A(f'''s_lshl_b32 s{sT0}, s2, 2
s_add_u32 s{sT0}, s{sT0}, {FLAG_S}
s_lshl_b32 s{sT3}, s{sB}, 5
s_add_u32 s{sT3}, s{sT3}, {FLAG_C}
s_lshl_b32 s{sT2}, s{sA}, 1
s_add_u32 s{sT4}, s{sT2}, s{sT3}
s_bitcmp0_b32 s{sA}, 0
s_cselect_b32 s{sT4}, s{sT4}, s{sT0}
v_mov_b32 v{vFL}, s{sT4}
v_writelane_b32 v{vFL}, s{sT0}, 0
s_lshl_b32 s{sT0}, s{sA}, 6
s_add_u32 s{sT0}, s{sT0}, {FLAG_S}
v_and_b32 v2, 15, v{vL}
v_lshl_add_u32 v3, v2, 2, s{sT0}
v_lshl_add_u32 v31, v31, 2, s{sT3}
v_cmp_gt_u32 vcc, 32, v{vL}
v_cndmask_b32 v{vPL}, v31, v3, vcc
s_mul_i32 s{sT0}, s{sB}, 9216
s_add_u32 s{sT0}, s{sT0}, s{sT2}
s_and_b32 s{sT3}, s{sW}, 1
s_lshl_b32 s{sT3}, s{sT3}, 9
s_add_u32 s{sT0}, s{sT0}, s{sT3}
s_add_u32 s{sT0}, s{sT0}, {CS_OFF}
v_lshl_add_u32 v2, v2, 5, s{sT0}
s_lshl_b32 s{sT3}, s{sT1}, 10
v_lshlrev_b32 v35, 12, v1
v_add3_u32 v35, v35, v2, s{sT3}
v_mov_b32 v3, {OOB}
v_cndmask_b32 v35, v3, v35, vcc
v_add_u32 v32, 8192, v2
s_cmp_eq_u32 s{sT1}, 0
s_cselect_b32 s{sT3}, 16, 0
v_cmp_gt_u32 vcc, s{sT3}, v{vL}
v_cndmask_b32 v32, v3, v32, vcc''')
A(f'''v_and_b32 v1, 31, v{vL}
s_lshl_b32 s{sT0}, s{sA}, 7
s_bfe_u32 s{sT1}, s{sW}, 0x10001
s_lshl_b32 s{sT1}, s{sT1}, 6
s_add_u32 s{sT0}, s{sT0}, s{sT1}
s_add_u32 s{sT0}, s{sT0}, s{sMH}
s_lshl_b32 s{sT0}, s{sT0}, 2
s_add_u32 s{sT0}, s{sT0}, {STAT_OFF}
v_lshl_add_u32 v20, v1, 3, s{sT0}
v_lshlrev_b32 v1, 5, v1
v_lshrrev_b32 v2, 5, v{vL}
v_lshl_add_u32 v21, v2, 4, v1
s_mul_i32 s{sT0}, s{sB}, 9216
s_add_u32 s{sT0}, s{sT0}, {CS_OFF}
s_lshr_b32 s{sT4}, s{sW}, 2
s_mul_i32 s{sT2}, s{sT4}, s{sN0}
s_sub_u32 s{sT1}, s{sN0}, 1
s_cmp_eq_u32 s{sT4}, 1
s_cselect_b32 s{sT1}, 3, s{sT1}
s_add_u32 s{sT1}, s{sT1}, s{sT2}
s_lshl_b32 s{sT1}, s{sT1}, 10
s_add_u32 s{sP2}, s{sT1}, s{sT0}
s_min_u32 s{sT1}, s{sW}, 6
s_lshl_b32 s{sT3}, s{sT1}, 10
s_add_u32 s{sP3}, s{sT3}, {SCR}
s_add_u32 s{sT1}, s{sT1}, 2
s_cmp_gt_u32 s{sT1}, s{sN0}
s_cselect_b32 s{sT1}, 1024, 0
s_add_u32 s{sT0}, s{sT0}, s{sT1}
s_add_u32 s{sP4}, s{sT0}, s{sT3}
s_sub_u32 s{sT1}, s{sT2}, 1
s_max_i32 s{sT1}, s{sT1}, 0
s_lshl_b32 s{sT1}, s{sT1}, 10
s_add_u32 s{sT1}, s{sT1}, {SCR}
v_add_u32 v{vAD}, s{sT1}, v21
s_lshl_b32 s{sT0}, s{sA}, 2
s_and_b32 s{sT1}, s{sW}, 3
s_add_u32 s{sT0}, s{sT0}, s{sT1}
s_mul_i32 s{sP5}, s{sT0}, {TG_STRIDE}
s_lshl_b32 s{sFLAG}, s{sA}, 7
s_add_u32 s{sT0}, s{sST}, s{sT2}
s_lshl_b32 s{sT0}, s{sT0}, 10
s_add_u32 s{sP5}, s{sP5}, s{sT0}
s_lshl_b32 s{sT0}, s{sB}, 2
s_add_u32 s{sFLAG}, s{sFLAG}, s{sT0}''')
tail_prepare(); baddr_early(31); touch_prepare()
stamp(1)
A(f's_waitcnt vmcnt({vm.need({"sr"})})')
stamp(1)
E = Inter()
def f_s1():
    for g in FW: lines(g); vm.issue('s1')
    fw5_guarded('s1')
    for g in FX: lines(g); vm.issue('s1')
    lines(ADV); lines(SOFF)
    loop_prepare()
if OPT['s1l']:
    stat_compute(E); vm.issue('st')
    touches(vm)
else:
    E.push([g + [lambda: vm.issue('s1')] for g in FW], 10)
    stat_compute(E); vm.issue('st')
    E.flush()
    fw5_guarded('s1')
    for g in FX: lines(g); vm.issue('s1')
    lines(ADV); lines(SOFF)
    touches(vm)
    loop_prepare()
A('v_mov_b32 v52, 0\nv_mov_b32 v53, 0\nv_mov_b32 v54, 0\nv_mov_b32 v55, 0')
A(f's_waitcnt vmcnt({vm.need({"w0"})})\ns_barrier')
stamp(1)
if OPT['s1l'] == 2: f_s1()
A(f's_bitcmp1_b32 s{sA}, 0\ns_cbranch_scc1 L_nocs')
for n in range(8): A(f'ds_read_b64_tr_b16 {vr(56+2*n, 2)}, v33 offset:{n*2304}')
for n in range(4): A(f'ds_read_b64_tr_b16 {vr(72+2*n, 2)}, v34 offset:{n*4608 + 256}')
for n in range(8):
    if n % 2 == 0: A(f's_waitcnt lgkmcnt({10 - n})')
    A(f'v_dot2c_f32_bf16 v52, s{sONES}, v{56+2*n}\nv_dot2c_f32_bf16 v54, s{sONES}, v{57+2*n}')
A('s_waitcnt lgkmcnt(0)')
for n in range(8): A(f'v_dot2c_f32_bf16 v{53 + 2*(n & 1)}, s{sONES}, v{72+n}')
A('''v_add_f32 v52, v52, v54
v_add_f32 v53, v53, v55
v_mov_b32 v54, v52
v_mov_b32 v55, v53
v_permlane32_swap_b32 v52, v54
v_permlane32_swap_b32 v53, v55
v_add_f32 v52, v52, v54
v_add_f32 v53, v53, v55
v_mov_b32 v55, v53
v_permlane16_swap_b32 v53, v55
v_add_f32 v53, v53, v55''')
split_hilo(52, 54); split_hilo(53, 55)
A(f'''buffer_store_dword v52, v35, {srd(SRD_AUX)}, 0 offen sc1
buffer_store_dword v53, v32, {srd(SRD_AUX)}, 0 offen sc1
L_nocs:''')
stamp(1)
A(f's_waitcnt vmcnt({vm.need({"x0"})})\ns_barrier')
if OPT['s1l'] == 1: f_s1()
stamp(); stamp(1)
if OPT['exp'] in (5, 7): A(f's_mov_b32 s{SRD_X+2}, 0\ns_mov_b32 s{SRD_W+2}, 0\ns_mov_b32 s{SRD_B+2}, 0')
A(f'''s_lshr_b32 s{sT0}, s{sW}, 2
s_add_u32 s{sT0}, s{sT0}, 4
s_cmp_lt_u32 s{sT0}, s{sN0}
s_cbranch_scc0 L_f4''')

lg = Q(15)
vC1, vIR = 18, 20
vBM = 36
vCL = 40
def ffn_role(nt, n):
    NM = 4 * nt
    R = 2 * nt
    D = R - 1
    NHD = D - OPT['gap']
    def rw(m):
        p, T = divmod(m, nt); s = (m % R) * 4
        A(f'ds_read_b64_tr_b16 {ar(s, 2)}, v{vRW} offset:{p*4608 + T*32}'); lg.issue(('w', m))
        A(f'ds_read_b64_tr_b16 {ar(s+2, 2)}, v{vRW} offset:{p*4608 + T*32 + 1152}'); lg.issue(('w', m))
    def rx(p):
        A(f'ds_read_b128 {ar(40 + p*4, 4)}, v{vRX+p}'); lg.issue(('x', p))
    def mm(m):
        p, T = divmod(m, nt)
        A(mf32(vr(vACC + 16*T, 16), ar((m % R) * 4, 4), ar(40 + p*4, 4), vr(vACC + 16*T, 16)))
    def five():
        uid[0] += 1
        return [f's_cmp_lt_u32 s{sW}, 4', f's_cbranch_scc1 L_no5{uid[0]}'] + FW5 + [f'L_no5{uid[0]}:']
    def fill_for(main, first=False):
        fill = {}
        dl = (FX + FW + ([five()] if nt == 4 else [])) if main else tail_dma()
        if first: dl = FX + FW + ([five()] if nt == 4 else []) + [ADV + SOFF + [loop_prepare]] + dl
        last = NM - 3
        if main: dl = dl + L2T
        if not OPT['nodma']: spread(dl, list(range(NHD - OPT['fh'] if first else 0, last + 1)), fill)
        spread([[f's_mov_b32 s{sDELTA}, {SLOT}'] if first else RDL], [NHD], fill)
        if main: spread([[f's_add_u32 s{sOX}, s{sOX}, 128'], [f's_add_u32 s{sOW}, s{sOW}, s{sMW}']], [last if first else 7, last], fill)
        spread([ADVL], [last], fill)
        spread([[f'v_add_u32 v{vRX+i}, s{sDELTA}, v{vRX+i}'] for i in range(4)], [NHD + 1, NHD + 2, NHD + 4, NM - 3], fill)
        spread([[f'v_add_u32 v{vRW}, s{sDELTA}, v{vRW}']], [NM - 1 - D + NHD], fill)
        return fill
    entry_q = []
    def head(fill, with_mfma, extra=None):
        itstamp()
        lg.drain()
        nxt = 0
        for m in range(NHD):
            if with_mfma: mm(NM - NHD + m)
            k = 0
            while nxt < D and D - nxt > NHD - 1 - m and k < 2:
                assert nxt <= R - NHD + m
                rw(nxt); nxt += 1; k += 1
            if m == 0: rx(0)
            if m == NHD - 2: rx(1)
            if extra and m == 0 and extra[0]: extra[0]()
            lines(fill.get(m, []))
        assert nxt == D
        entry_q[:] = lg.q
    def rest(fill, last_it, label):
        for m in range(NM - NHD):
            p, T = divmod(m, nt)
            if m == NM - NHD - 1:
                A(f's_waitcnt vmcnt({6 + len(L2T) if last_it == 6 else 6}) lgkmcnt(0)'); lg.drain()
            want = {('w', m), ('x', p)}
            if OPT['w2'] and m % 2 == 0: want |= {('w', m + 1), ('x', (m + 1) // nt)}
            c = lg.need(want)
            if c is not None: A(f's_waitcnt lgkmcnt({c})')
            mm(m)
            if m + D < NM: rw(m + D)
            if m == 2: rx(2)
            if m == nt + 1: rx(3)
            lines(fill.get(m + NHD, []))
            if m == NM - NHD - 2: A(f's_add_u32 s{sIT}, s{sIT}, 1\ns_cmp_lt_u32 s{sIT}, {f"s{sNEXT}" if last_it == 6 else last_it}')
        A(f's_cbranch_scc0 {label}\n{LB_}')
    fm = fill_for(True)
    if OPT['s1l'] == 3:
        f0 = fill_for(True, True)
        head(f0, False)
        rest(f0, 6, f'L_{n}exit')
        A(f's_branch L_{n}back')
        lg.drain(); lg.q = list(entry_q)
    else: head(fm, False)
    A(f'L_{n}loop:')
    rest(fm, 6, f'L_{n}exit')
    A(f'L_{n}back:')
    head(fm, True)
    A(f's_branch L_{n}loop\nL_{n}exit:\n{LB_}\ns_cmp_lt_u32 s{sIT}, 6\ns_cbranch_scc1 L_{n}h')
    def inter():
        get_tag(n)
        tail_setup()
        A(f'buffer_load_dword v{vTG}, v{vPL}, {srd(SRD_AUX)}, 0 offen sc1')
    def inter2():
        check_flag0(n)
        A(f'''buffer_load_dword v{vST}, v20, {srd(SRD_AUX)}, 0 offen sc1
s_mov_b32 m0, s{sP3}
buffer_load_dwordx4 {vr(vCL, 4)}, v21, {srd(SRD_AUX)}, s{sP2} offen sc1
buffer_load_dwordx4 v{vL16}, {srd(SRD_AUX)}, s{sP4} offen sc1 lds''')
    ft = fill_for(False)
    head(ft, True, [inter, None, None])
    A(f'L_{n}tail:')
    rest(ft, 8, f'L_{n}texit')
    head(ft, True, [inter2, None, None])
    A(f's_branch L_{n}tail\nL_{n}texit:\n{LB_}')
    stamp(); itdump()
    vCF = 20
    CF = [44, vFR, 32, 12]
    for t in range(nt - 1): A(f'ds_read_b128 {vr(CF[t], 4)}, v{vAD} offset:{t*1024}')
    vm = Q(63)
    for i in range(6): vm.issue('v9')
    early = [[l] for l in f"""v_and_b32 v1, 0xffff, v{vST}
v_and_b32 v{vST}, 0xffff0000, v{vST}
v_lshl_or_b32 v{vBM}, v1, 16, v1
v_rcp_f32 v{vC1}, v{vST}
v_mov_b32 v{vBM+1}, v{vBM}
v_mov_b32 v{vBM+2}, v{vBM}
v_mov_b32 v{vBM+3}, v{vBM}
v_mul_f32 v{vIR}, v{vST}, v{vST}
v_mul_f32 v{vIR+2}, v{vST}, v{vST}
v_mul_f32 v{vC1}, {f2u(-LOG2E)}, v{vC1}""".split('\n')]
    def corr(t): A(mf32(vr(vACC + 16*t, 16), vr(CF[t] if t < nt - 1 else vCL, 4), vr(vBM, 4), vr(vACC + 16*t, 16)))
    npre = NHD - nt
    for m in range(NM - NHD, NM - nt + 1):
        mm(m)
        for _ in range(-(-10 // (npre + 1))):
            if early: lines(early.pop(0))
    A('v_mov_b32 v10, v31'); baddr_first(31)
    defer_slow(OPT['fbg'])
    r0 = static_groups(0, vm, n) if OPT['fbg'] and OPT['front'] else []
    A('s_waitcnt lgkmcnt(0)')
    corr(0)
    a0, t0, o0 = vACC, 52, 68
    first = []
    if OPT['fov']:
        first = [f'v_mul_f32 v{t0+k}, v{vC1}, v{a0+k}' for k in range(8)] + [f'v_exp_f32 v{t0+k}, v{t0+k}' for k in range(8)]
        first += [f'v_mul_f32 v{t0+8+k}, v{a0+k}, v{a0+8+k}' for k in range(8)] + [f'v_fma_f32 v{t0+k}, v{t0+k}, v{vIR}, v{vIR}' for k in range(8)]
        first += [f'v_rcp_f32 v{t0+k}, v{t0+k}' for k in range(8)] + [f'v_mul_f32 v{t0+k}, v{t0+k}, v{t0+8+k}' for k in range(8)]
        first += [f'v_cvt_pk_bf16_f32 v{o0+k}, v{t0+2*k}, v{t0+2*k+1}' for k in range(4)]
    rem = [x for t in range(1, nt) for x in (lambda t=t: mm(NM - nt + t), lambda t=t: corr(t))]
    for i, f in enumerate(rem):
        f()
        if r0: lines(r0.pop(0))
        if i >= 1:
            for _ in range(-(-52 // (len(rem) - 1))):
                if first: A(first.pop(0))
    for g in r0: lines(g)
    if OPT['fov']:
        A(f'buffer_store_dwordx4 {vr(o0, 4)}, v{vL16}, {srd(SRD_ACT)}, s{sP5} offen{SFL}'); vm.issue('st')
    E = Inter()
    def tile(T):
        a = vACC + 16*T
        t = 52 if T & 1 else 32
        t = 52
        o = 68 + 4 * (T & 1)
        for k in range(4):
            E(f'v_pk_mul_f32 {vr(t+2*k, 2)}, {vr(a+2*k, 2)}, {vr(vC1, 2)} op_sel_hi:[1,0]')
        for k in range(8): E(f'v_exp_f32 v{t+k}, v{t+k}')
        for k in range(4):
            E(f'v_pk_mul_f32 {vr(t+8+2*k, 2)}, {vr(a+2*k, 2)}, {vr(a+8+2*k, 2)}')
        for k in range(4):
            E(f'v_pk_fma_f32 {vr(t+2*k, 2)}, {vr(t+2*k, 2)}, {vr(vIR, 2)}, {vr(vIR+2, 2)} op_sel_hi:[1,0,0]')
        for k in range(8): E(f'v_rcp_f32 v{t+k}, v{t+k}')
        for k in range(4):
            E(f'v_pk_mul_f32 {vr(t+2*k, 2)}, {vr(t+2*k, 2)}, {vr(t+8+2*k, 2)}')
        for k in range(4):
            E(f'v_cvt_pk_bf16_f32 v{o+k}, v{t+2*k}, v{t+2*k+1}')
        if T == 4: A(f's_add_u32 s{sP5}, s{sP5}, 4096')
        off = f' offset:{(T % 4)*1024}' if T % 4 else ''
        A(f'buffer_store_dwordx4 {vr(o, 4)}, v{vL16}, {srd(SRD_ACT)}, s{sP5} offen{off}{SFL}'); vm.issue('st')
    if OPT['flate'] and OPT['fbg'] < 2:
        if not OPT['front']: E.push(sum((static_groups(r, vm, n) for r in range(OPT['fbg'])), []), 16)
        for T in range(OPT['fov'], nt): tile(T)
        E.flush()
        for g in breg_groups(0): lines(g)
        A(f's_waitcnt vmcnt({vm.need({"v9"})}) lgkmcnt(0)\ns_barrier')
    else:
        for g in breg_groups(0): lines(g)
        A(f's_waitcnt vmcnt({vm.need({"v9"})}) lgkmcnt(0)\ns_barrier')
        E.push(sum((static_groups(r, vm, n) for r in range(OPT['front'], OPT['fbg'])), []), 4)
        for T in range(OPT['fov'], nt): tile(T)
        E.flush()
    A('s_branch L_phase2')
    handlers(n)
ns0 = nstamp[0]
ffn_role(5, 'f5')
nst_save = nstamp[0]; nstamp[0] = ns0
A('L_f4:')
ffn_role(4, 'f4')

nstamp[0] = 1 if OPT['stamps'] else 0
A.label('L_attn')
A(f'''s_sub_u32 s{sT1}, s{sT1}, 20
s_lshr_b32 s{sA}, s{sT1}, 2
s_lshr_b32 s{sKS}, s{sA}, 1
s_lshl_b32 s{sT4}, s{sT2}, 1
s_add_u32 s{sKS}, s{sKS}, s{sT4}
s_and_b32 s{sKS}, s{sKS}, {[7, 0, 4, 6][OPT['arot']]}
s_mul_i32 s{sT2}, s{sT2}, 3
s_add_u32 s{sA}, s{sA}, s{sT2}
s_and_b32 s{sB}, s{sT1}, 3
s_lshl_b32 s{sT3}, s{sT3}, 2
s_add_u32 s{sB}, s{sB}, s{sT3}''')
if OPT['rot'] == 2: A(f's_add_u32 s{sKS}, s{sKS}, s{sB}\ns_and_b32 s{sKS}, s{sKS}, 7')
A(f'''s_and_b32 s{sT0}, s{sW}, 1
s_lshl_b32 s{sT1}, s{sT0}, 6
v_xor_b32 v{vDMA}, s{sT1}, v{vDMA}
v_xor_b32 v{vDMA+1}, 64, v{vDMA}
v_add_u32 v{vDMA+1}, {16384-1024}, v{vDMA+1}
v_add_u32 v{vDMA+2}, {2*(16384-1024)}, v{vDMA}
v_and_b32 v1, 1, v32
s_lshl_b32 s{sT1}, s{sT0}, 1
v_add_u32 v1, s{sT1}, v1
v_lshlrev_b32 v1, 1, v1
v_xor_b32 v1, v31, v1
v_lshlrev_b32 v1, 4, v1
v_mul_u32_u24 v2, 3072, v30
s_mul_i32 s{sT1}, s{sW}, 24576
v_add3_u32 v{vDMA+3}, v1, v2, s{sT1}
s_mul_i32 s{sST}, s{sA}, 176
s_and_b32 s{sT1}, s{sW}, 3
s_mul_i32 s{sT2}, s{sT1}, 48
s_lshr_b32 s{sT3}, s{sW}, 2
s_add_u32 s{sBX}, s{sST}, s{sT2}
s_add_u32 s{sBX}, s{sBX}, s{sT3}
s_lshl_b32 s{sBX}, s{sBX}, 10
s_lshl_b32 s{sBW}, s{sB}, 7
s_mov_b32 s{sMW}, {64*3072}
s_mul_i32 s{sD}, s{sW}, 3072
s_add_u32 s{sD+1}, s{sD}, 24576
s_mov_b64 s[{sEX}:{sEX+1}], -1
s_cmp_eq_u32 s{sT1}, 0
s_cmov_b32 s{sEX}, 0xffffff00
s_or_b32 s{sT1}, s{sT1}, s{sA}
s_cmp_eq_u32 s{sT1}, 0
s_cselect_b32 s{sT1}, {OOB}, 0
v_add_u32 v{vDMA}, s{sT1}, v{vDMA}''')
lines(SOFF)
A('s_waitcnt lgkmcnt(0)')
if OPT['stamps']: A(f's_mov_b32 s{sSTAMP}, s{sCLK}')
build_srd(SRD_XR, sKA, 2048 * 1024)
if OPT['adel'] != 1: stat_load()
build_srd(SRD_W, sKA + 2, 512 * 3072)
A(f'''s_sub_u32 s{SRD_X}, s{sKA}, 16384
s_subb_u32 s{SRD_X+1}, s{sKA+1}, 0
s_mov_b32 s{SRD_X+2}, {2048*1024 + 16384}
s_mov_b32 s{SRD_X+3}, 0x20000''')
AX = [[f's_add_u32 m0, s{sSLOT}, s{sD}', f's_mov_b64 exec, s[{sEX}:{sEX+1}]'] + dma(vDMA, SRD_X, sOX, 0) + ['s_mov_b64 exec, -1'],
      dma(vDMA + 1, SRD_X, sOX, 1024), dma(vDMA + 2, SRD_X, sOX, 2048)]
AW = [dma(vDMA + 3, SRD_W, sOW, 0, [f's_add_u32 m0, s{sSLOT}, s{sD+1}']), dma(vDMA + 3, SRD_W, sOW, 1024), dma(vDMA + 3, SRD_W, sOW, 2048)]
stamp(1)
vm = Q(63); vm.issue('code'); vm.issue('sr')
if not OPT['adel']:
    for g in AX + AW: lines(g); vm.issue('s0')

stamp(1)
if not OPT['adel']: lines(ADV); lines(SOFF)
setup2()
A('v_mov_b32 v56, 0\nv_mov_b32 v57, 0\nv_mov_b32 v58, 0\nv_mov_b32 v59, 0')
for T in range(5): A(mf32(vr(vACC + 16*T, 16), 'v[56:59]', 'v[56:59]', '0'))
A(f'''v_min_u32 v1, 5, v30
v_lshrrev_b32 v2, 1, v1
v_mul_u32_u24 v2, {SLOT}, v2
v_and_b32 v1, 1, v1
v_mul_u32_u24 v1, 12288, v1
v_add_u32 v1, v1, v2
v_lshl_add_u32 v1, v31, 4, v1
v_mov_b32 v60, s{sONES}
v_mov_b32 v61, s{sONES}
v_mov_b32 v62, s{sONES}
v_mov_b32 v63, s{sONES}
ds_write_b128 v1, v[60:63]
v_and_b32 v33, 15, v{vL}
s_mul_i32 s{sT0}, s{sMH}, 96
v_add_u32 v1, s{sT0}, v33
v_bfe_u32 v2, v1, 1, 3
v_xor_b32 v2, v2, v32
v_lshlrev_b32 v2, 4, v2
v_lshl_add_u32 v{vRX}, v1, 7, v2
v_xor_b32 v{vRX+1}, 64, v{vRX}
v_mul_u32_u24 v1, 3072, v32
v_bfe_u32 v2, v{vL}, 2, 2
v_lshl_add_u32 v1, v2, 7, v1
v_bfe_u32 v2, v{vL}, 3, 2
s_lshr_b32 s{sT0}, s{sW}, 1
v_xor_b32 v2, s{sT0}, v2
v_lshl_add_u32 v1, v2, 5, v1
v_and_b32 v2, 3, v{vL}
v_lshl_add_u32 v1, v2, 3, v1
v_add_u32 v{vRW}, 24576, v1
s_lshl_b32 s{sT0}, s2, 2
s_add_u32 s{sT0}, s{sT0}, {FLAG_S}
v_mov_b32 v{vFL}, s{sT0}
s_lshr_b32 s{sT0}, s{sST}, 3
s_sub_u32 s{sT0}, s{sT0}, 2
v_min_u32 v1, 23, v{vL}
v_add_u32 v1, s{sT0}, v1
v_max_i32 v1, 0, v1
v_min_u32 v1, 255, v1
v_lshlrev_b32 v1, 2, v1
v_add_u32 v{vPL}, {FLAG_S}, v1
v_lshlrev_b32 v2, 2, v32
v_sub_u32 v2, v33, v2
v_mov_b32 v3, 0xff800000''')
for j in range(4):
    A(f'''v_add_u32 v{vMSK+j}, {16-j}, v2
v_subrev_u32 v{vMSK+4+j}, {j}, v2
v_cmp_gt_u32 vcc, 8, v{vMSK+j}
v_cmp_gt_u32 s[{sT4}:{sT5}], 8, v{vMSK+4+j}
v_cndmask_b32 v{vMSK+j}, v3, 0, vcc
v_cndmask_b32 v{vMSK+4+j}, v3, 0, s[{sT4}:{sT5}]''')
A(f'''s_cmp_eq_u32 s{sA}, 0
s_cselect_b32 s{sT0}, 32, 0
v_cmp_gt_u32 vcc, s{sT0}, v{vL}''')
for j in range(4): A(f'v_cndmask_b32 v{vMSK+8+j}, v{vMSK+4+j}, v3, vcc')
A(f'''v_lshlrev_b32 v1, 1, v33
s_add_u32 s{sT0}, s{sMH}, s{sST}
s_sub_u32 s{sT0}, s{sT0}, 16
v_add_u32 v1, s{sT0}, v1
v_mov_b32 v3, {OOB}''')
for t in range(6):
    A(f'''v_cmp_gt_u32 vcc, 2048, v1
v_lshlrev_b32 v2, 2, v1
v_add_u32 v2, {STAT_OFF}, v2
v_cndmask_b32 v{vAD+t}, v3, v2, vcc''')
    if t < 5: A('v_add_u32 v1, 32, v1')
tail_prepare(); baddr_early(10); touch_prepare()
OO = [8, 9, 13]
A(f'''v_and_b32 v1, 15, v{vL}
s_mul_i32 s{sP2}, s{sW}, 768
s_add_u32 s{sP2}, s{sP2}, {SCR}
v_lshl_add_u32 v14, v1, 2, s{sP2}
v_lshrrev_b32 v2, 5, v{vL}
v_lshl_add_u32 v1, v2, 4, v1
s_lshr_b32 s{sT0}, s{sST}, 1
s_sub_u32 s{sT0}, s{sT0}, 8
v_add_u32 v2, s{sT0}, v1
s_mov_b32 s{sT2}, {2*TG_STRIDE}
v_bfe_u32 v3, v{vL}, 4, 1
v_lshlrev_b32 v3, 9, v3
v_cmp_le_u32 vcc, 8, v1''')
for i in range(3):
    A(f'''v_lshrrev_b32 v{OO[i]}, 5, v2
v_mul_lo_u32 v{OO[i]}, v{OO[i]}, s{sT2}
v_and_b32 v1, 31, v2
v_lshl_add_u32 v1, v1, 4, v3
v_add_u32 v{OO[i]}, v{OO[i]}, v1''')
    if i < 2: A('v_add_u32 v2, 32, v2')
A(f'v_mov_b32 v1, {OOB}\nv_cndmask_b32 v{OO[0]}, v1, v{OO[0]}, vcc')
A(f'''s_lshl_b32 s{sFLAG}, s{sA}, 7
s_lshl_b32 s{sT3}, s{sB}, 2
s_add_u32 s{sFLAG}, s{sFLAG}, s{sT3}
s_lshr_b32 s{sT4}, s{sW}, 1
s_add_u32 s{sT3}, s{sT3}, s{sT4}
s_add_u32 s{sFLAG}, s{sFLAG}, {FLAG_A}
s_mul_i32 s{sT2}, s{sMH}, {TG_STRIDE}
s_add_u32 s{sT3}, s{sT3}, 86
s_lshl_b32 s{sT3}, s{sT3}, 10
s_add_u32 s{sP5}, s{sT2}, s{sT3}''')
if OPT['adel']:
    if OPT['adel'] == 1: stat_load()
    for g in AX + AW: lines(g); vm.issue('s0')
    lines(ADV); lines(SOFF)
stamp(1)
A(f's_waitcnt vmcnt({vm.need({"sr"})})')
stamp(1)
E = Inter()
if not OPT['s1l']: E.push([g + [lambda: vm.issue('s1')] for g in AX + AW], 8)
stat_compute(E); vm.issue('st')
E.flush()
stamp(1)
if not OPT['s1l']: lines(ADV); lines(SOFF); loop_prepare()
touches(vm)
stamp(1)
A(f's_waitcnt vmcnt({vm.need({"s0"})}) lgkmcnt(0)\ns_barrier')
if OPT['s1l'] in (1, 2):
    for g in AX + AW: lines(g)
    lines(ADV); lines(SOFF); loop_prepare()
stamp(); stamp(1)
if OPT['exp'] in (5, 7): A(f's_mov_b32 s{SRD_X+2}, 0\ns_mov_b32 s{SRD_W+2}, 0\ns_mov_b32 s{SRD_B+2}, 0')
def xf(j, t): return 36 * j + 4 * t
def wf(j, m): return 36 * j + 24 + 4 * m
RORD = [('w', 0), ('x', 0), ('w', 1), ('w', 2), ('x', 1), ('x', 2), ('x', 3), ('x', 4), ('x', 5)]
def a_rd(j, k):
    kind, i = RORD[k]
    if kind == 'x':
        A(f'ds_read_b128 {ar(xf(j, i), 4)}, v{vRX+j} offset:{i*2048}'); lg.issue(('x', j, i))
    else:
        A(f'ds_read_b64_tr_b16 {ar(wf(j, i), 2)}, v{vRW} offset:{j*12288 + i*1024}'); lg.issue(('w', j, i))
        A(f'ds_read_b64_tr_b16 {ar(wf(j, i)+2, 2)}, v{vRW} offset:{j*12288 + i*1024 + 512}'); lg.issue(('w', j, i))
QD, KD, VD = vACC, vACC + 24, vACC + 48
def a_mm(n):
    j, r = divmod(n, 18); t, m = divmod(r, 3)
    acc = vr(vACC + 24*m + 4*t, 4)
    if m < 2: A(mf16(acc, ar(wf(j, m), 4), ar(xf(j, t), 4), acc))
    else: A(mf16(acc, ar(xf(j, t), 4), ar(wf(j, m), 4), acc))
NH = OPT['anh']
HS = [(i * (NH - 1)) // 9 for i in range(9)]
RS_ = [(i * (36 - NH - 4)) // 9 for i in range(9)]
def a_fill(main, first=False):
    fill = {}
    if first: spread(AX + AW + [ADV + SOFF + [loop_prepare]] + AX + AW, list(range(NH - OPT['fh'], 31)), fill)
    elif not OPT['nodma']: spread((AX + AW) if main else tail_dma(), [2, 7, 13, 19, 24, 30], fill)
    if main and L2T: spread(L2T, [33], fill)
    spread([[f's_mov_b32 s{sDELTA}, {SLOT}'] if first else RDL], [NH - 1], fill)
    if main: spread([[f's_add_u32 s{sOX}, s{sOX}, 128'], [f's_add_u32 s{sOW}, s{sOW}, s{sMW}']], [31 if first else 15, 31], fill)
    spread([ADVL], [31], fill)
    spread([[f'v_add_u32 v{vRX}, s{sDELTA}, v{vRX}'], [f'v_add_u32 v{vRX+1}, s{sDELTA}, v{vRX+1}'], [f'v_add_u32 v{vRW}, s{sDELTA}, v{vRW}']], [NH, 32, 33], fill)
    return fill
def a_head(fill, with_mfma, extra=None):
    itstamp()
    lg.drain()
    for m in range(NH):
        if with_mfma: a_mm(36 - NH + m)
        for k in range(9):
            if HS[k] == m: a_rd(0, k)
        if m == 1 and extra: extra()
        lines(fill.get(m, []))
def a_rest(fill, last_it, label):
    for n in range(36 - NH):
        j, r = divmod(n, 18); t, m = divmod(r, 3)
        if n == 35 - NH:
            A(f's_waitcnt vmcnt({6 + len(L2T) if last_it == 6 else 6}) lgkmcnt(0)'); lg.drain()
        want = {('w', j, m), ('x', j, t)}
        if OPT['w2']:
            if r == 0: want |= {('w', j, 1), ('w', j, 2), ('x', j, 1)}
            elif m == 0 and t % 2 == 0: want |= {('x', j, t + 1)}
        c = lg.need(want)
        if c is not None: A(f's_waitcnt lgkmcnt({c})')
        a_mm(n)
        for k in range(9):
            if RS_[k] == n: a_rd(1, k)
        lines(fill.get(n + NH, []))
        if n == 34 - NH: A(f's_add_u32 s{sIT}, s{sIT}, 1\ns_cmp_lt_u32 s{sIT}, {f"s{sNEXT}" if last_it == 6 else last_it}')
    A(f's_cbranch_scc0 {label}\n{LB_}')
am, at = a_fill(True), a_fill(False)
if OPT['s1l'] == 3:
    a0_ = a_fill(True, True)
    a_head(a0_, False)
    q0_ = list(lg.q)
    a_rest(a0_, 6, 'L_aexit')
    A('s_branch L_aback')
    lg.q = q0_
else: a_head(am, False)
A('L_aloop:')
a_rest(am, 6, 'L_aexit')
A('L_aback:')
a_head(am, True)
A(f's_branch L_aloop\nL_aexit:\n{LB_}\ns_cmp_lt_u32 s{sIT}, 6\ns_cbranch_scc1 L_ah')
def a_inter():
    get_tag('a')
    tail_setup()
    A(f'buffer_load_dword v{vTG}, v{vPL}, {srd(SRD_AUX)}, 0 offen sc1')
def a_inter2():
    check_flag0('a')
    for t in range(6): A(f'buffer_load_dword v{vST+t}, v{vAD+t}, {srd(SRD_AUX)}, 0 offen sc1')
a_head(at, True, a_inter)
A('L_atail:')
a_rest(at, 8, 'L_atexit')
a_head(at, True, a_inter2)
A(f's_branch L_atail\nL_atexit:\n{LB_}')
stamp(); itdump(); stamp(4)
vMR = 48
RR = [152, 154, 156, 158, 32, 34]
A(f'v_and_b32 v31, 48, v{vL}\nv_add_u32 v31, s{sP2}, v31')
tr = list(range(36 - NH, 36))
for t in range(6):
    if tr: a_mm(tr.pop(0))
    A(f"""v_and_b32 v{RR[t]}, 0xffff0000, v{vST+t}
v_max_f32 v{RR[t]}, {f2u(1e-3)}, v{RR[t]}""")
    if tr: a_mm(tr.pop(0))
    A(f'v_rcp_f32 v{RR[t]}, v{RR[t]}\nv_lshlrev_b32 v{vMR+2*t}, 16, v{vST+t}')
    if len(tr) > 2*(5 - t): a_mm(tr.pop(0))
    A(f'ds_write2_b32 v14, v{vMR+2*t}, v{RR[t]} offset0:{16*t} offset1:{96+16*t}')
while tr: a_mm(tr.pop(0))
baddr_first(10)
ROW = [70, 16, 92]
def row_read(t):
    b = ROW[t % 3]
    A(f'ds_read_b128 {vr(b, 4)}, v31 offset:{64*t}\nds_read_b128 {vr(b+4, 4)}, v31 offset:{384 + 64*t}')
row_read(0); row_read(1)
stamp(4)
vm = Q(63)
for i in range(6): vm.issue('v9')
E = Inter()
vCQ, vCK, vCV = 60, 64, 68
A(f'v_mov_b32 v{vCV}, v{VD}\nv_mov_b32 v{vCV+1}, v{VD}')
for j in range(4): A(f'v_mov_b32_dpp v{vCK+j}, v{KD+j} row_newbcast:0 row_mask:0xf bank_mask:0xf')
A(f'v_permlane16_swap_b32 v{vCV}, v{vCV+1}')
for j in range(2): A(f'v_mov_b32_dpp v{vCQ+j}, v{QD+j} row_newbcast:0 row_mask:0xf bank_mask:0xf')
A(f'v_mov_b32 v{vCV+1}, v{vCV}')
for j in range(2, 4): A(f'v_mov_b32_dpp v{vCQ+j}, v{QD+j} row_newbcast:0 row_mask:0xf bank_mask:0xf')
A(f'v_permlane32_swap_b32 v{vCV}, v{vCV+1}')
QP, KP, VP = QD, KD, VD + 2
E.push(breg_groups(0), 4)
for t in range(6):
    for k in range(2): E(f'v_pk_fma_f32 {vr(QD+4*t+2*k, 2)}, {vr(vCQ+2*k, 2)}, {vr(vMR+2*t, 2)}, {vr(QD+4*t+2*k, 2)} op_sel_hi:[1,0,1]')
for t in range(6):
    for k in range(2): E(f'v_pk_fma_f32 {vr(KD+4*t+2*k, 2)}, {vr(vCK+2*k, 2)}, {vr(vMR+2*t, 2)}, {vr(KD+4*t+2*k, 2)} op_sel_hi:[1,0,1]')
for t in range(6):
    for k in range(2): E(f'v_cvt_pk_bf16_f32 v{QP+2*t+k}, v{QD+4*t+2*k}, v{QD+4*t+2*k+1}')
E.flush()
row_read(2)
for t in range(6):
    for k in range(2): A(f'v_pk_mul_f32 {vr(KD+4*t+2*k, 2)}, {vr(KD+4*t+2*k, 2)}, {vr(RR[t], 2)} op_sel_hi:[1,0]')
for t in range(6): A(f'v_mul_f32 v{vMR+2*t}, {f2u(0.25*LOG2E)}, v{RR[t]}')
for t in range(6):
    for k in range(2): A(f'v_cvt_pk_bf16_f32 v{KP+2*t+k}, v{KD+4*t+2*k}, v{KD+4*t+2*k+1}')
SB = [116, 60, 144, 92]
def s_mm(t):
    s = SB[t % 4]
    if t: A(mf16k(vr(s, 4), vr(KP+2*(t-1), 2), vr(QP+2*t, 2), vr(vMSK, 4)))
    A(mf16k(vr(s+4, 4), vr(KP+2*t, 2), vr(QP+2*t, 2), vr(vMSK + (4 if t else 8), 4)))
stamp(4)
A(f's_waitcnt vmcnt({vm.need({"v9"})}) lgkmcnt(0)\ns_barrier')
s_mm(0); s_mm(1)
defer_slow(OPT['abg'])
E.push(sum((static_groups(r, vm, 'a') for r in range(OPT['abg'])), []), 14 if OPT['abg'] == 2 else 28)
for half in range(2):
    ts = range(3*half, 3*half + 3)
    if half: A('s_waitcnt lgkmcnt(0)')
    for t in ts:
        for k in range(2): E(f'v_pk_fma_f32 {vr(VD+4*t+2*k, 2)}, {vr(ROW[t%3]+2*k, 2)}, {vr(vCV, 2)}, {vr(VD+4*t+2*k, 2)} op_sel_hi:[1,0,1]')
    for t in ts:
        for k in range(2): E(f'v_pk_mul_f32 {vr(VD+4*t+2*k, 2)}, {vr(VD+4*t+2*k, 2)}, {vr(ROW[t%3]+4+2*k, 2)}')
    if half == 0:
        for t in range(3, 6): row_read(t)
    for t in ts:
        if t == 0: E(f'v_cvt_pk_bf16_f32 v{VD+2}, v{VD+2}, v{VD+3}\nv_cvt_pk_bf16_f32 v{VD+3}, v{VD}, v{VD+1}\nv_swap_b32 v{VD+2}, v{VD+3}')
        else:
            for k in range(2): E(f'v_cvt_pk_bf16_f32 v{VP+2*t+k}, v{VD+4*t+2*k}, v{VD+4*t+2*k+1}')
    if half == 0: rowmax = True
PB = [100, 124]
OB = [152, 16]; LB = [156, 20]
MXS = {0: (32, 33, 34), 2: (2, 3, 24), 4: (32, 33, 34)}
stamp(4)
def pmax(t):
    m0, m1, _ = MXS[t]
    ch = []
    for e, m in ((0, m0), (1, m1)):
        s = SB[(t + e) % 4]
        if t + e == 0: ch.append([f'v_max3_f32 v{m}, v{s+4}, v{s+5}, v{s+6}', f'v_max_f32 v{m}, v{m}, v{s+7}'])
        else: ch.append([f'v_max3_f32 v{m}, v{s}, v{s+1}, v{s+2}', f'v_max3_f32 v{m}, v{m}, v{s+3}, v{s+4}',
                         f'v_max3_f32 v{m}, v{m}, v{s+5}, v{s+6}', f'v_max_f32 v{m}, v{m}, v{s+7}'])
    return mix(ch[1], ch[0]), [f'v_permlane32_swap_b32 v{m0}, v{m1}', f'v_max_f32 v{m0}, v{m0}, v{m1}', f'v_mov_b32 v{m1}, v{m0}',
                               f'v_permlane16_swap_b32 v{m0}, v{m1}', f'v_max_f32 v{m0}, v{m0}, v{m1}', f'v_mov_b32 v{m1}, v{m0}',
                               f'v_permlane32_swap_b32 v{m0}, v{m1}']
def weave(chain, fill):
    fill = list(fill)
    for c in chain:
        E(c)
        for _ in range(2):
            if fill: E(fill.pop(0))
    for f in fill: E(f)
def pexp(t):
    m0, m1, n1 = MXS[t]
    E(f'v_mul_f32 v{n1}, -v{vMR+2*t+2}, v{m1}\nv_mul_f32 v{m0}, -v{vMR+2*t}, v{m0}')
    for e in range(2):
        s = SB[(t + e) % 4]; c = vMR + 2 * (t + e); k0 = 2 if t + e == 0 else 0
        for k in range(k0, 4): E(f'v_pk_fma_f32 {vr(s+2*k, 2)}, {vr(s+2*k, 2)}, {vr(c, 2)}, {vr(n1 if e else m0, 2)} op_sel_hi:[1,0,0]')
    for e in range(2):
        s = SB[(t + e) % 4]; k0 = 2 if t + e == 0 else 0
        for k in range(2*k0, 8): E(f'v_exp_f32 v{s+k}, v{s+k}')
        for k in range(k0, 4): E(f'v_cvt_pk_bf16_f32 v{PB[e]+k}, v{s+2*k}, v{s+2*k+1}')
        E(mf16(vr(LB[e], 4), 'v[72:75]', vr(PB[e], 4), '0'))
        E(mf16(vr(OB[e], 4), vr(VP + 2*(t + e - 1), 4), vr(PB[e], 4), '0'))
def pfin(t):
    x = 76
    out = [f'v_rcp_f32 v{LB[0]}, v{LB[0]}', f'v_rcp_f32 v{LB[1]}, v{LB[1]}']
    for e in range(2):
        for k in range(2): out.append(f'v_pk_mul_f32 {vr(OB[e]+2*k, 2)}, {vr(OB[e]+2*k, 2)}, {vr(LB[e], 2)} op_sel_hi:[1,0]')
    for e in range(2):
        for k in range(2): out.append(f'v_cvt_pk_bf16_f32 v{x+2*e+k}, v{OB[e]+2*k}, v{OB[e]+2*k+1}')
    return out
def pstore(t):
    x = 76
    E(f'v_permlane32_swap_b32 v{x}, v{x+2}\nv_permlane32_swap_b32 v{x+1}, v{x+3}')
    A(f'buffer_store_dwordx4 {vr(x, 4)}, v{OO[t//2]}, {srd(SRD_ACT)}, s{sP5} offen{SFL}'); vm.issue('st')
loc, crs = pmax(0)
for l in loc: E(l)
weave(crs, [f'v_mov_b32 v{72+i}, s{sONES}' for i in range(4)] + [f'v_mov_b32 v{PB[0]}, 0', f'v_mov_b32 v{PB[0]+1}, 0', f'v_mov_b32 v{VD}, 0', f'v_mov_b32 v{VD+1}, 0'])
for t in (0, 2, 4):
    if t < 4: s_mm(t + 2); s_mm(t + 3)
    pexp(t)
    if t < 4:
        loc, crs = pmax(t + 2)
        for l in loc: E(l)
        weave(crs, pfin(t))
    else:
        E.flush()
        for l in pfin(t): E(l)
    pstore(t)
    stamp(4)
assert nstamp[0] == nst_save or OPT['sg'] == 4, (nstamp[0], nst_save)

A.label('L_phase2')
stamp()
A(f'v_xor_b32 v{vB+1}, 64, v{vB}')
for g in breg_groups(1): lines(g)
vP = 128
vRING = 80; NRING = 12
vLB = 48
vXR = 36
vPO, vOO, vEX = 12, 13, 14
A(f'''v_and_b32 v1, 31, v{vL}
v_lshrrev_b32 v2, 5, v{vL}
s_lshl_b32 s{sT2}, s{sR}, 6
s_add_u32 s{sT2}, s{sT2}, s{sMH}
s_lshl_b32 s{sT2}, s{sT2}, 10
s_lshl_b32 s{sT3}, s{sCB}, 7
s_add_u32 s{sT2}, s{sT2}, s{sT3}
s_lshl_b32 s{sT3}, s{sKQ}, 5
s_add_u32 s{sT2}, s{sT2}, s{sT3}
v_lshlrev_b32 v{vOO}, 11, v1
v_lshl_add_u32 v{vOO}, v2, 4, v{vOO}
v_add_u32 v{vOO}, s{sT2}, v{vOO}
s_lshl_b32 s{sT2}, s{sR}, 1
s_add_u32 s{sT2}, s{sT2}, s{sMH}
s_mul_i32 s{sOX}, s{sT2}, {TG_STRIDE}
s_sub_u32 s{sT1}, s{sKQ}, 1
s_mul_i32 s{sT3}, s{sT1}, {29*1024}
s_cmp_eq_u32 s{sKQ}, 0
s_cselect_b32 s{sT3}, {86*1024}, s{sT3}
s_add_u32 s{sOX}, s{sOX}, s{sT3}
s_add_u32 s{sOW}, s{sOX}, {28*1024}
s_cmp_eq_u32 s{sKQ}, 0
s_cselect_b32 s{sNW}, s{sOW}, {OOB}
s_cmp_eq_u32 s{sKQ}, 3
s_cselect_b32 s{sOW}, {OOB}, s{sOW}
s_lshr_b32 s{sT2}, s{sR}, 1
s_lshl_b32 s{sT2}, s{sT2}, 7
''')
if OPT['np'] == 2: A(f'v_min_u32 v3, 9, v{vL}')
else: A(f's_mul_i32 s{sT3}, s{sT1}, 12\ns_add_u32 s{sT2}, s{sT2}, s{sT3}\nv_and_b32 v3, 3, v{vL}')
A(f'''v_lshl_add_u32 v{vPO}, v3, 2, s{sT2}
s_lshl_b32 s{sT3}, s{sR}, 6
s_mul_i32 s{sT4}, s{sT3}, 745
s_lshr_b32 s{sT4}, s{sT4}, 17
s_add_u32 s{sT3}, s{sT3}, 63
s_mul_i32 s{sT3}, s{sT3}, 745
s_lshr_b32 s{sT3}, s{sT3}, 17
s_sub_u32 s{sT3}, s{sT3}, s{sT4}
s_lshl_b32 s{sT3}, s{sT3}, 7
s_lshl_b32 s{sT4}, s{sT4}, 7
s_add_u32 s{sT4}, s{sT4}, {FLAG_A}
v_mul_u32_u24 v2, s{sT3}, v2
v_and_b32 v1, 7, v{vL}
v_lshl_add_u32 v1, v1, 2, s{sT4}
v_add_u32 v1, v1, v2
s_cmp_eq_u32 s{sKQ}, 0
s_cselect_b64 vcc, -1, 0
v_cndmask_b32 v{vPO}, v{vPO}, v1, vcc
s_mul_i32 s{sT0}, s{sMH}, {6144 if OPT['ex'] else 32768}
s_add_u32 s{sT0}, s{sT0}, {SLOT if OPT['ex'] else 0}
v_add_u32 v{vEX}, s{sT0}, v{vL16}
s_lshl_b32 s{sT0}, s{sW}, 2
s_add_u32 s{sT0}, s{sT0}, {LDS_BYTES - 48}
v_mov_b32 v15, s{sT0}
v_xor_b32 v16, 4, v15
v_mov_b32 v2, s{sTAG}''')
if OPT['r2']:
    A('s_waitcnt lgkmcnt(0)\ns_barrier')
    for g in static_groups(2, Q(63), 'p'): lines(g)
    A(f's_waitcnt vmcnt({4 if OPT["r2"] == 1 else 0})')
else: A('s_waitcnt vmcnt(0) lgkmcnt(0)')
A(f'''s_barrier
s_cmp_lg_u32 s{sW}, 0
s_cbranch_scc1 L_noflag
s_mov_b64 exec, 1
buffer_store_dword v2, off, {srd(SRD_AUX)}, s{sFLAG} sc1
s_mov_b64 exec, -1
L_noflag:
v_add_u32 v{vB+4}, s{sQ1}, v10
v_xor_b32 v{vB+5}, 64, v{vB+4}
v_add_u32 v{vB}, {SLOT}, v{vB}
v_add_u32 v{vB+1}, {SLOT}, v{vB+1}''')
stamp(); stamp(3)
if OPT['exp'] == 8: A(f's_mov_b32 s{SRD_B+2}, 0')
if not OPT['r2']:
    if OPT['c3']: A(f's_mov_b32 s{SRD_B+2}, s{sBW}\ns_cmp_eq_u32 s{sST}, 0\ns_cmov_b32 s{sSO}, s{sMW}')
    for r in range(0 if OPT['c3'] else min(OPT['fbg'], OPT['abg']), 2):
        A(f's_cmp_gt_u32 s{sST}, {r}\ns_cbranch_scc1 L_had{r}')
        for g in static_groups(r, Q(63), 'p'): lines(g)
        A(f'L_had{r}:')
    for g in static_groups(2, Q(63), 'p'): lines(g)
stamp(3)
A(f"""s_min_u32 s{sT1}, s{sKQ}, {1 if OPT['np'] == 2 else 3}
s_lshl_b32 s{sT1}, s{sT1}, 2
s_add_u32 s{sT1}, s{sT1}, {LDS_BYTES - 16}
v_mov_b32 v1, s{sT1}
s_mov_b32 s{sT0}, 0
s_and_b32 s{sT2}, s{sW}, {5 if OPT['np'] == 2 else 1}
s_cmp_lg_u32 s{sT2}, 0
s_cbranch_scc0 L_poller""")
if not OPT['lateb']: A('s_waitcnt vmcnt(0)\ns_barrier')
A('s_branch L_lpoll\nL_poller:')
if OPT['ep']: A(f'buffer_load_dword v3, v{vPO}, {srd(SRD_AUX)}, 0 offen sc1\ns_waitcnt vmcnt(1)\ns_barrier\ns_branch L_pchk')
elif not OPT['lateb']: A('s_waitcnt vmcnt(0)\ns_barrier')
A(f"""L_poll:
buffer_load_dword v3, v{vPO}, {srd(SRD_AUX)}, 0 offen sc1
L_pchk:
s_add_u32 s{sT0}, s{sT0}, 1
s_waitcnt vmcnt(0)
v_cmp_ne_u32 vcc, s{sTAG}, v3
s_cbranch_vccz L_ptell
s_sleep {OPT['sleep']}
s_cmp_lt_u32 s{sT0}, {SPIN}
s_cbranch_scc1 L_poll
L_ptell:
ds_write_b32 v1, v2
s_branch L_pollok
L_lpoll:
ds_read_b32 v3, v1
s_add_u32 s{sT0}, s{sT0}, 1
s_waitcnt lgkmcnt(0)
v_cmp_ne_u32 vcc, s{sTAG}, v3
s_cbranch_vccz L_pollok
s_sleep 1
s_cmp_lt_u32 s{sT0}, {SPIN*8}
s_cbranch_scc1 L_lpoll
L_pollok:""")
stamp(); stamp(3)
vm = Q(63); lg = Q(15)
def a_load(st):
    so = sOX if st < 28 else (sOW if st == 28 else sNW)
    if st and st % 4 == 0 and st < 28: A(f's_add_u32 s{sOX}, s{sOX}, 4096')
    off = f' offset:{(st % 4)*1024}' if st % 4 else ''
    A(f'buffer_load_dwordx4 {vr(vRING + 4*(st % NRING), 4)}, v{vL16}, {srd(SRD_ACT)}, s{so} offen{off} sc1')
    vm.issue(st)
def b_read(st, ct):
    t = st - NREG
    r = [i for i, (a, b) in enumerate(REG_T) if a <= t < b][0]
    off = (t - REG_T[r][0]) * 2048
    for hf in range(2):
        A(f'ds_read_b64_tr_b16 {vr(vLB + (st % 4)*8 + ct*4 + hf*2, 2)}, v{vB + 2*r + ct} offset:{off + hf*1024}')
        lg.issue(st)
NB = OPT['burst']
for st in range(NB): a_load(st)
for st in range(32):
    if st == OPT['lateb'] and st: A('s_barrier')
    if st == 28: A(f's_cmp_eq_u32 s{sKQ}, 3\ns_cbranch_scc1 L_p2done')
    if st == 29: A(f's_cmp_lg_u32 s{sKQ}, 0\ns_cbranch_scc1 L_p2done')
    w = []
    c = vm.need({st})
    if c is not None: w.append(f'vmcnt({c})')
    c = lg.need({st})
    if c is not None: w.append(f'lgkmcnt({c})')
    if w: A('s_waitcnt ' + ' '.join(w))
    if st in (0, 12): stamp(3)
    if st == 18 and OPT['ex']: A('ds_write_b32 v15, v2'); lg.issue('done17')
    if st == 25 and OPT['ex']: A('ds_read_b32 v3, v16'); lg.issue(26)
    if st == 27 and OPT['ex']: A(f'v_cmp_ne_u32 vcc, s{sTAG}, v3\ns_mov_b32 s{sT1}, {f2u(-LOG2E)}\ns_mov_b32 s{sT1+1}, {f2u(-LOG2E)}')
    for ct in range(2):
        b = ar(st*8 + ct*4, 4) if st < NREG else vr(vLB + (st % 4)*8 + ct*4, 4)
        acc = vr(vP + 16*ct, 16)
        A(mf32(acc, b, vr(vRING + 4*(st % NRING), 4), acc if st else '0'))
        if NREG <= st + 2 < 32: b_read(st + 2, ct)
        if ct == 0 and st + NB < 32: a_load(st + NB)
        if ct == 1 and st + NB == 31:
            A(f'buffer_load_dwordx4 v[44:47], v{vOO}, {srd(SRD_XR)}, 0 offen'); vm.issue('x')
A('L_p2done:')
stamp(); stamp(3)
vF, vS, vR1 = 48, 56, 64
if OPT['ex']:
    A(f"""s_cbranch_vccz L_pwok
s_mov_b32 s{sT0}, 0
L_pw:
ds_read_b32 v3, v16
s_add_u32 s{sT0}, s{sT0}, 1
s_waitcnt lgkmcnt(0)
v_cmp_ne_u32 vcc, s{sTAG}, v3
s_cbranch_vccz L_pwok
s_cmp_lt_u32 s{sT0}, {SPIN*8}
s_cbranch_scc1 L_pw
L_pwok:""")
else: A('s_waitcnt lgkmcnt(0)\ns_barrier')
A(f"""s_cmp_eq_u32 s{sKQ}, 1
s_cbranch_scc1 L_red1
s_cmp_eq_u32 s{sKQ}, 2
s_cbranch_scc1 L_red2
s_cmp_eq_u32 s{sKQ}, 3
s_cbranch_scc1 L_red3""")
def exo(src, chunk):
    if not OPT['ex']: return src*8192 + chunk*2048
    return src*12288 + (chunk - (chunk > src))*2048
def xunpack():
    A('s_waitcnt vmcnt(0)\nv_permlane32_swap_b32 v44, v46\nv_permlane32_swap_b32 v45, v47')
    for i in range(4):
        A(f'v_lshlrev_b32 v{vXR+2*i}, 16, v{44+i}\nv_and_b32 v{vXR+2*i+1}, 0xffff0000, v{44+i}')
for q in range(4):
    if q: A(f'L_red{q}:')
    for c in range(4):
        if c == q: continue
        for i in range(2): A(f'ds_write_b128 v{vEX}, {vr(vP + 8*c + 4*i, 4)} offset:{exo(q, c) + i*1024}')
    xunpack()
    A('s_waitcnt lgkmcnt(0)\ns_barrier')
    srcs = [s for s in range(4) if s != q]
    dst = {}
    for n_, s in enumerate(srcs):
        dst[s] = vS if s == 0 else vR1 + 8 * n_
        for i in range(2): A(f'ds_read_b128 {vr(dst[s] + 4*i, 4)}, v{vEX} offset:{exo(s, q) + i*1024}')
    dst[q] = vP + 8 * q
    if q == 0:
        for i in range(4): A(f'v_pk_mul_f32 {vr(vS+2*i, 2)}, {vr(vP+2*i, 2)}, 1.0 op_sel_hi:[1,0]')
    fs = [q] + [s for s in srcs if s] if q else [1, 2, 3]
    A('s_waitcnt lgkmcnt(2)')
    for i in range(4): A(f'v_pk_add_f32 {vr(vF+2*i, 2)}, {vr(dst[fs[0]]+2*i, 2)}, {vr(dst[fs[1]]+2*i, 2)}')
    A('s_waitcnt lgkmcnt(0)')
    for i in range(4): A(f'v_pk_add_f32 {vr(vF+2*i, 2)}, {vr(vF+2*i, 2)}, {vr(dst[fs[2]]+2*i, 2)}')
    if q < 3: A('s_branch L_final')
A.label('L_final')
t = 88
assert sT1 % 2 == 0
for i in range(4): A(f'v_pk_mul_f32 {vr(t+2*i, 2)}, {vr(vF+2*i, 2)}, s[{sT1}:{sT1+1}]')
for i in range(8): A(f'v_exp_f32 v{t+i}, v{t+i}')
for i in range(4): A(f'v_pk_mul_f32 {vr(vS+2*i, 2)}, {vr(vS+2*i, 2)}, {vr(vF+2*i, 2)}')
for i in range(4): A(f'v_pk_add_f32 {vr(t+2*i, 2)}, {vr(t+2*i, 2)}, 1.0 op_sel_hi:[1,0]')
for i in range(8): A(f'v_rcp_f32 v{t+i}, v{t+i}')
for i in range(4): A(f'v_pk_fma_f32 {vr(t+2*i, 2)}, {vr(t+2*i, 2)}, {vr(vS+2*i, 2)}, {vr(vXR+2*i, 2)}')
for i in range(4): A(f'v_cvt_pk_bf16_f32 v{44+i}, v{t+2*i}, v{t+2*i+1}')
A(f'''v_permlane32_swap_b32 v44, v46
v_permlane32_swap_b32 v45, v47
buffer_store_dwordx4 v[44:47], v{vOO}, {srd(SRD_OUT)}, 0 offen{['', ' sc1', ' nt', ' sc0 sc1'][OPT['ost']]}''')
if OPT['stamps'] and OPT['sg'] != 2:
    stamp(); stamp(3)
    A('s_waitcnt vmcnt(0)')
    stamp()
    A(f'''s_lshl_b32 s{sT0}, s2, 9
s_lshl_b32 s{sT1}, s{sW}, 6
s_add_u32 s{sT0}, s{sT0}, s{sT1}
s_add_u32 s{sT0}, s{sT0}, {STAMP_OFF}
v_mov_b32 v1, s{sT0}''')
    for i in range(10): A(f'v_mov_b32 v{48+i}, s{sSTAMP+i}')
    A(f'''global_store_dwordx4 v1, v[48:51], s[{sWS}:{sWS+1}]
global_store_dwordx4 v1, v[52:55], s[{sWS}:{sWS+1}] offset:16
global_store_dwordx2 v1, v[56:57], s[{sWS}:{sWS+1}] offset:32''')
A.label('L_end')
A('s_endpgm')
handlers('a')

body = A.finish(verbose=False)
hdr = open('cdna_kernels/' + NAME + '.s.ref').read().split('; Override launch')[0]
out = hdr + f'''; @launch grid=(256,1,1) block=(512,1,1) lds={LDS_BYTES}
.amdgcn_target "amdgcn-amd-amdhsa--gfx950"
.text
.globl {NAME}_kernel
.p2align 8
.type {NAME}_kernel,@function
''' + body + f'''L_codeend:
.fill (33024 - (L_codeend - {NAME}_kernel)) / 4, 4, 0xbf810000
.section .rodata,"a"
.p2align 6
.amdhsa_kernel {NAME}_kernel
  .amdhsa_next_free_vgpr 256
  .amdhsa_next_free_sgpr 102
  .amdhsa_accum_offset 160
  .amdhsa_group_segment_fixed_size 0
  .amdhsa_kernarg_size 80
  .amdhsa_user_sgpr_count 2
  .amdhsa_user_sgpr_kernarg_segment_ptr 1
  .amdhsa_system_sgpr_workgroup_id_x 1
.end_amdhsa_kernel
'''
sys.stdout.write(out)
sys.stderr.write(f'nops inserted: {A.nops}\n')
```

```python
import sys, os, struct
sys.path.insert(0, os.path.dirname(os.path.abspath(__file__)))
from asmlib import Asm, Q

NAME = "recurrent_scan__sliding_local_dilated__swiglu_ffn__prompt"
OPT = dict(jit=0, wrap=1, asc=0, avo=1, fh=1, s1l=0, fov=1, front=1, perm=1, c3=0, fbg=1, abg=2, flate=1, adel=0, np=2, arot=0, gap=2, anh=17, w2=1, tin=0, pt=0, sfl=0, ep=0, r2=0, ex=1, tit=4, rot=1, l2r=2, lateb=0, ost=1, l2t=0, exp=0, sleep=1, stamps=0, sg=0, nodma=0, btouch=1, map2=0, burst=6, prio=0)
for a in sys.argv[1:]:
    k, v = a.split('=')
    assert k in OPT, k
    OPT[k] = int(v)

SLOT = 53504
UPOFF = 18560
LDS_BYTES = 163840
SCR = 2 * SLOT + 49152
ACT_OFF = 1 << 20
TG_STRIDE = 118 * 1024
ACT_BYTES = 64 * TG_STRIDE
FLAG_F = 0
FLAG_A = 0x2000
FLAG_S = 0x2c00
FLAG_C = 0x3000
STAT_OFF = 0x4000
CS_OFF = 0x8000
AUX_BYTES = 0x8000 + 10 * 9216
STAMP_OFF = 1 << 19
NREG = 12
LOG2E = 1.4426950408889634
OOB = 0x80000000
SPIN = 0x40000
def f2u(x): return struct.unpack('<I', struct.pack('<f', x))[0]

sW = 3
SRD_X, SRD_W, SRD_ACT, SRD_B, SRD_XR, SRD_OUT = 4, 8, 12, 16, 20, 24
sDBG, sWS = 28, 30
sKA = 32
sIT, sKS, sBX, sBW, sKQ, sMW, sOX, sOW = 48, 49, 50, 51, 52, 53, 54, 55
sD = 56
sN0 = 59
sSLOT, sDELTA, sONES, sRS = 60, 61, 62, 63
sR, sCB, sA, sB, sTAG, sT0, sT1, sT2, sT3 = 64, 65, 66, 67, 68, 69, 70, 71, 72
sMH, sST, sFLAG, sSOFF, sNW, sT4, sT5 = 73, 74, 75, 76, 77, 78, 79
SRD_AUX = 80
SRD_T = 84
sEX = 88
sCLK = 90
sSTAMP = 92
sHM = 0
sP0, sP1, sP2, sP3, sP4, sP5 = 32, 33, 34, 35, 38, 39
sQ0, sQ1, sQ2, sSO, sQ3, sL2 = 40, 41, 42, 43, 1, 46
def srd(n): return f's[{n}:{n+3}]'

vL = 0
vDMA = 4
vRX, vRW = 11, 15
vST = 16
vPL, vFL, vTG = 22, 23, 24
vBP = 25
vL16 = 29
vTCH = 19
vAD = 30
vMSK = 36
vFR = 48
vACC = 80
def vr(b, n): return f'v[{b}:{b+n-1}]'
def ar(b, n): return f'a[{b}:{b+n-1}]'

A = Asm()
SFL = [' sc1', ' sc0 sc1'][OPT['sfl']]
STI = 's_memtime' if OPT['stamps'] == 2 else 's_memrealtime'
nstamp = [0]
def stamp(grp=0):
    if not OPT['stamps'] or grp != OPT['sg']: return
    i = nstamp[0]; nstamp[0] += 1
    assert i < 10
    A(f'{STI} s[{sCLK}:{sCLK+1}]\ns_waitcnt lgkmcnt(0)\ns_mov_b32 s{sSTAMP+i}, s{sCLK}')

def itstamp():
    if OPT['stamps'] and OPT['sg'] == 2:
        A(f'''{STI} s[{sCLK}:{sCLK+1}]
s_waitcnt lgkmcnt(0)
v_mov_b32 v77, s{sCLK}
v_cmp_eq_u32 vcc, s{sIT}, v{vL}
v_cndmask_b32 v78, v78, v77, vcc''')
def itdump():
    if OPT['stamps'] and OPT['sg'] == 2:
        itstamp()
        A(f'''s_lshl_b32 s{sT0}, s2, 9
s_lshl_b32 s{sT1}, s{sW}, 6
s_add_u32 s{sT0}, s{sT0}, s{sT1}
s_add_u32 s{sT0}, s{sT0}, {STAMP_OFF}
v_lshl_add_u32 v77, v{vL}, 2, s{sT0}
s_mov_b64 exec, 0x3ff
global_store_dword v77, v78, s[{sWS}:{sWS+1}]
s_mov_b64 exec, -1''')
jn = [0]
def jitter():
    if not OPT['jit']: return
    jn[0] += 1
    k = (jn[0] * 7 + OPT['jit'] * 3) % 11
    A(f'''s_lshl_b32 s100, s2, 3
s_add_u32 s100, s100, s{sW}
s_mul_i32 s100, s100, {2654435 + 2*jn[0]*OPT['jit'] + 1}
s_bitcmp1_b32 s100, {8 + k}
s_cbranch_scc1 L_jit{jn[0]}
s_bitcmp1_b32 s100, {9 + (k*5) % 9}
s_cbranch_scc1 L_jit{jn[0]}
s_sleep {20 + 13 * (jn[0] % 7)}
L_jit{jn[0]}:''')
def mf32(d, a, b, c): return f'v_mfma_f32_32x32x16_bf16 {d}, {a}, {b}, {c}'
def mf16(d, a, b, c): return f'v_mfma_f32_16x16x32_bf16 {d}, {a}, {b}, {c}'
def mf16k(d, a, b, c): return f'v_mfma_f32_16x16x16_bf16 {d}, {a}, {b}, {c}'

def spread(groups, slots, into=None):
    out = {} if into is None else into
    n = len(groups)
    for i, g in enumerate(groups):
        out.setdefault(slots[(i * len(slots)) // n], []).extend(g)
    return out
def lines(L):
    for l in L: (l() if callable(l) else A(l))
def mix(a, b):
    out = []; a = list(a); b = list(b)
    while a or b:
        if a: out.append(a.pop(0))
        if b: out.append(b.pop(0))
    return out

class Inter:
    def __init__(self): self.g = []; self.every = 1; self.c = 0
    def push(self, groups, every): self.g += list(groups); self.every = every; self.c = 0
    def __call__(self, text):
        for l in text.split('\n'):
            l = l.strip()
            if not l: continue
            A(l); self.c += 1
            if self.g and self.c >= self.every:
                lines(self.g.pop(0)); self.c = 0
    def flush(self):
        while self.g: lines(self.g.pop(0))

def build_srd(n, plo, size, E=None):
    (E or A)(f'''s_mov_b32 s{n}, s{plo}
s_mov_b32 s{n+1}, s{plo+1}
s_mov_b32 s{n+2}, {size}
s_mov_b32 s{n+3}, 0x20000''')

SOFFX = [f's_lshl_b32 s{sOX}, s{sKS}, 7', f's_add_u32 s{sOX}, s{sOX}, s{sBX}']
SOFFW = [f's_mul_i32 s{sOW}, s{sKS}, s{sMW}', f's_add_u32 s{sOW}, s{sOW}, s{sBW}']
SOFFWN = [f's_mul_i32 s{sNW}, s{sKS}, s{sMW}', f's_add_u32 s{sNW}, s{sNW}, s{sBW}']
KSINC = [f's_add_u32 s{sKS}, s{sKS}, 1', f's_and_b32 s{sKS}, s{sKS}, 7']
SOFF = SOFFX + SOFFW + KSINC
ADV = [f's_add_u32 s{sSLOT}, s{sSLOT}, {SLOT}', f's_cmp_eq_u32 s{sSLOT}, {3*SLOT}', f's_cselect_b32 s{sSLOT}, 0, s{sSLOT}']
RDELTA = [f's_add_u32 s{sRS}, s{sRS}, 1', f's_mov_b32 s{sDELTA}, {SLOT}', f's_cmp_eq_u32 s{sRS}, 3',
          f's_cmov_b32 s{sDELTA}, {(-2*SLOT) & 0xffffffff}', f's_cmov_b32 s{sRS}, 0']

sNEXT, sPOS, sNEG = sRS, sNW, 37
RDL = [f's_cmp_eq_u32 s{sSLOT}, s{sPOS}', f's_cselect_b32 s{sDELTA}, s{sNEG}, s{sPOS}']
ADVL = [f's_cmp_eq_u32 s{sSLOT}, {2*SLOT}', f's_cselect_b32 s{sT3}, s{sNEG}, s{sPOS}', f's_add_u32 s{sSLOT}, s{sSLOT}, s{sT3}']
sW7 = 45
WRAPX = [f's_add_u32 s{sOX}, s{sOX}, 128', f's_and_b32 s{sT2}, s{sOX}, 1023', f's_or_b32 s{sOX}, s{sT2}, s{sBX}']
WRAPW = [f's_cmp_eq_u32 s{sT2}, 0', f's_cselect_b32 s{sT3}, s{sW7}, s{sMW}', f's_add_u32 s{sOW}, s{sOW}, s{sT3}']
def loop_prepare():
    if OPT['wrap']: A(f's_mul_i32 s{sW7}, s{sMW}, -7\ns_mov_b32 s{sKS}, 15')
    else: A(f'''s_sub_u32 s{sT0}, 9, s{sKS}
s_and_b32 s{sT0}, s{sT0}, 7
s_mov_b32 s{sKS}, s{sT0}
s_bitset1_b32 s{sHM}, s{sT0}''')
    A(f'''s_and_b32 s{sHM}, s{sHM}, 62
s_or_b32 s{sHM}, s{sHM}, 64
s_ff1_i32_b32 s{sNEXT}, s{sHM}
s_mov_b32 s{sPOS}, {SLOT}
s_mov_b32 s{sNEG}, {(-2*SLOT) & 0xffffffff}''')
def dma(v, s_, o_, im, pre=None, flags=''):
    off = f' offset:{im}' if im else ''
    return (pre or []) + [f'buffer_load_dwordx4 v{v}, {srd(s_)}, s{o_} offen{off}{flags} lds']

vSR = 48
def stat_load():
    A(f'''s_lshl_b32 s{sT0}, s2, 13
s_lshl_b32 s{sT1}, s{sW}, 10
s_add_u32 s{sT0}, s{sT0}, s{sT1}
buffer_load_dwordx4 {vr(vSR, 4)}, v{vL16}, {srd(SRD_XR)}, s{sT0} offen''')

def stat_compute(E):
    sm, sq, t, t2 = 52, 53, 54, 55
    E(f'v_mov_b32 v{sm}, 0\nv_mov_b32 v{sq}, 0')
    for i in range(4):
        E(f'v_dot2c_f32_bf16 v{sm}, s{sONES}, v{vSR+i}\nv_dot2c_f32_bf16 v{sq}, v{vSR+i}, v{vSR+i}')
    for r in (1, 2, 4, 8):
        E(f'v_add_f32_dpp v{sm}, v{sm}, v{sm} row_ror:{r} row_mask:0xf bank_mask:0xf')
        E(f'v_add_f32_dpp v{sq}, v{sq}, v{sq} row_ror:{r} row_mask:0xf bank_mask:0xf')
    for sw in (16, 32):
        E(f'''v_mov_b32 v{t}, v{sm}
v_mov_b32 v{t2}, v{sq}
v_permlane{sw}_swap_b32 v{sm}, v{t}
v_permlane{sw}_swap_b32 v{sq}, v{t2}
v_add_f32 v{sm}, v{sm}, v{t}
v_add_f32 v{sq}, v{sq}, v{t2}''')
    E(f'''v_mul_f32 v{sm}, {f2u(1/512)}, v{sm}
v_mul_f32 v{sq}, {f2u(1/512)}, v{sq}
v_fma_f32 v{sq}, -v{sm}, v{sm}, v{sq}
v_max_f32 v{sq}, 0, v{sq}
v_cvt_pk_bf16_f32 v{sq}, v{sq}, v{sq}
v_lshlrev_b32 v{sq}, 16, v{sq}
v_add_f32 v{sq}, {f2u(1e-5)}, v{sq}
v_cvt_pk_bf16_f32 v{sq}, v{sq}, v{sq}
v_lshlrev_b32 v{sq}, 16, v{sq}
v_sqrt_f32 v{sq}, v{sq}
s_lshl_b32 s{sT0}, s2, 5
s_lshl_b32 s{sT1}, s{sW}, 2
s_add_u32 s{sT0}, s{sT0}, s{sT1}
s_add_u32 s{sT0}, s{sT0}, {STAT_OFF}
v_cvt_pk_bf16_f32 v{sq}, -v{sm}, v{sq}''')
    A(f'''s_mov_b64 exec, 1
buffer_store_dword v{sq}, off, {srd(SRD_AUX)}, s{sT0} sc1
s_mov_b64 exec, -1''')

uid = [0]
def publish_tag():
    uid[0] += 1; n = uid[0]
    A(f'''s_or_b32 s{sT0}, s2, s{sW}
s_cmp_lg_u32 s{sT0}, 0
s_cbranch_scc1 L_notag{n}
s_memrealtime s[{sT4}:{sT5}]
s_waitcnt lgkmcnt(0)
s_or_b32 s{sT4}, s{sT4}, 1
v_mov_b32 v1, 0
v_mov_b32 v2, s{sT4}
s_mov_b64 exec, 1
global_store_dword v1, v2, s[{sDBG}:{sDBG+1}] sc1
s_mov_b64 exec, -1
L_notag{n}:''')

def tile_map():
    light = [s_ for s_ in range(20) if s_ % 5 >= 3]
    slow = [8*r + c for c in (3, 7) for r in range(4)]
    rest = [t for t in range(32) if t not in slow]
    TILE = [slow.pop(0) if s_ in light else rest.pop(0) for s_ in range(32)]
    W = [sum(TILE[s_] << (5 * (s_ - b)) for s_ in range(b, min(b + 12, 32))) for b in (0, 12, 24)]
    A(f'''s_lshr_b32 s{sT1}, s2, 3
s_mov_b32 s{sT4}, {W[0] & 0xffffffff}
s_mov_b32 s{sT5}, {W[0] >> 32}
s_cmp_ge_u32 s{sT1}, 12
s_cmov_b32 s{sT4}, {W[1] & 0xffffffff}
s_cmov_b32 s{sT5}, {W[1] >> 32}
s_cselect_b32 s{sT2}, 12, 0
s_cmp_ge_u32 s{sT1}, 24
s_cmov_b32 s{sT4}, {W[2] & 0xffffffff}
s_cmov_b32 s{sT5}, {W[2] >> 32}
s_cmov_b32 s{sT2}, 24
s_sub_u32 s{sT1}, s{sT1}, s{sT2}
s_mul_i32 s{sT1}, s{sT1}, 5
s_lshr_b64 s[{sT4}:{sT5}], s[{sT4}:{sT5}], s{sT1}
s_and_b32 s{sCB}, s{sT4}, 7
s_bfe_u32 s{sR}, s{sT4}, 0x20003
s_and_b32 s{sT1}, s2, 7
s_lshl_b32 s{sT1}, s{sT1}, 2
s_add_u32 s{sR}, s{sR}, s{sT1}''')

def setup2():
    jitter()
    if OPT['perm']: tile_map()
    build_srd(SRD_AUX, sWS, AUX_BYTES)
    build_srd(SRD_OUT, sKA + 14, 2048 * 1024)
    A(f'''s_add_u32 s{SRD_ACT}, s{sWS}, {ACT_OFF}
s_addc_u32 s{SRD_ACT+1}, s{sWS+1}, 0
s_mov_b32 s{SRD_ACT+2}, {ACT_BYTES if OPT['exp'] != 2 else 0}
s_mov_b32 s{SRD_ACT+3}, 0x20000
s_lshr_b32 s{sKQ}, s{sW}, 1
s_lshr_b32 s{sT0}, s{sW}, 2
s_xor_b32 s{sKQ}, s{sKQ}, s{sT0}
s_and_b32 s{sMH}, s{sW}, 1
s_cmp_eq_u32 s{sKQ}, 0
s_cselect_b32 s{SRD_B}, s{sKA+4}, s{sKA+12}
s_cselect_b32 s{SRD_B+1}, s{sKA+5}, s{sKA+13}
s_mov_b32 s{SRD_B+2}, {1376*1024}
s_cmov_b32 s{SRD_B+2}, {512*1024}
s_mov_b32 s{SRD_B+3}, 0x20000
s_mov_b32 s{sIT}, 0
s_cmp_eq_u32 s{sW}, 0
s_cselect_b32 s{sHM}, 2, 0
s_lshr_b32 s{sT0}, s{sW}, 2
s_add_u32 s{sT0}, s{sT0}, {OPT['tit'] - 1}
s_bitset1_b32 s{sHM}, s{sT0}''')
    if OPT['prio']:
        uid[0] += 1
        A(f's_cmp_{"ge" if OPT["prio"] == 1 else "lt"}_u32 s{sW}, 4\ns_cbranch_scc0 L_np{uid[0]}\ns_setprio 1\nL_np{uid[0]}:')
    A(f'''
v_lshrrev_b32 v1, 3, v{vL}
v_and_b32 v2, 7, v{vL}
v_bfe_u32 v3, v{vL}, 4, 1
v_lshlrev_b32 v3, 2, v3
v_xor_b32 v2, v2, v3
v_lshlrev_b32 v2, 4, v2
v_lshl_add_u32 v{vBP}, v1, 10, v2''')
    for i in range(1, 4): A(f'v_add_u32 v{vBP+i}, {7168*i}, v{vBP}')
    A(f'''s_sub_u32 s{sT0}, s{sKQ}, 1
s_max_i32 s{sT0}, s{sT0}, 0
s_mul_i32 s{sSOFF}, s{sT0}, {464*1024}
s_lshl_b32 s{sT0}, s{sCB}, 7
s_add_u32 s{sSOFF}, s{sSOFF}, s{sT0}''')

def touch_prepare():
    A(f'''s_lshl_b32 s{sT0}, s2, 3
s_add_u32 s{sT0}, s{sT0}, s{sW}
s_sub_u32 s{sT1}, s{sT0}, 1376
s_cmp_ge_u32 s{sT0}, 1376
s_cselect_b32 s{sT0}, s{sT1}, s{sT0}
s_cselect_b32 s{SRD_T}, s{sKA+4}, s{sKA+12}
s_cselect_b32 s{SRD_T+1}, s{sKA+5}, s{sKA+13}
s_mov_b32 s{SRD_T+2}, {1376*1024}
s_cmov_b32 s{SRD_T+2}, {512*1024}
s_mov_b32 s{SRD_T+3}, 0x20000
s_lshl_b32 s{sL2}, s{sT0}, 10
s_add_u32 s{sL2}, s{sL2}, {(-(OPT['tin'] - 1) * 0x20000000) & 0xffffffff if OPT['tin'] else 0}
v_and_b32 v18, 7, v{vL}
v_lshlrev_b32 v18, 7, v18
v_mov_b32 v17, 0''')
TOUCH = f'buffer_load_dword v{vTCH}, v18, {srd(SRD_T)}, s{sL2} offen'
def touches(vm):
    if not OPT['tit'] and not OPT['tin']: A(TOUCH); vm.issue('touch')
    A(f'global_load_dword v{vTG}, v17, s[{sDBG}:{sDBG+1}] sc1'); vm.issue('tag')

vTP = 18
L2T = [[TOUCH, f's_add_u32 s{sL2}, s{sL2}, 0x20000000']] if OPT['tin'] else []
def tail_prepare():
    A(f'''s_mul_i32 s{sT0}, s{sMH}, {48*1024}
s_add_u32 s{sP0}, s{sSOFF}, s{sT0}
s_mul_i32 s{sP1}, s{sKQ}, 12288
s_mul_i32 s{sT0}, s{sMH}, 6144
s_add_u32 s{sP1}, s{sP1}, s{sT0}''')
def tail_setup():
    A(f's_mov_b32 s{sOX}, s{sP0}\ns_mov_b32 s{sD}, s{sP1}')

def tail_dma():
    out = [dma(vBP, SRD_B, sOX, 0, [f's_add_u32 m0, s{sSLOT}, s{sD}'])]
    for i in range(1, 4): out.append(dma(vBP + i, SRD_B, sOX, 1024 * i))
    out.append(dma(vBP, SRD_B, sOX, 0, ['s_add_u32 m0, m0, 4096', f's_add_u32 s{sOX}, s{sOX}, 32768']))
    out.append(dma(vBP + 1, SRD_B, sOX, 1024) + [f's_add_u32 s{sOX}, s{sOX}, {96*1024 - 32768}'])
    return out

def get_tag(n):
    A(f'''v_readfirstlane_b32 s{sTAG}, v{vTG}
s_mov_b32 s{sT0}, 0
L_tag{n}:
s_cmp_lg_u32 s{sTAG}, 0
s_cbranch_scc1 L_tagok{n}
v_mov_b32 v1, 0
global_load_dword v{vTG}, v1, s[{sDBG}:{sDBG+1}] sc1
s_waitcnt vmcnt(0)
v_readfirstlane_b32 s{sTAG}, v{vTG}
s_add_u32 s{sT0}, s{sT0}, 1
s_cmp_lt_u32 s{sT0}, {SPIN}
s_cbranch_scc1 L_tag{n}
L_tagok{n}:''')
def handlers(n):
    A(f'''L_{n}h:
s_bitset0_b32 s{sHM}, s{sIT}
s_ff1_i32_b32 s{sNEXT}, s{sHM}
s_cmp_lg_u32 s{sIT}, s{sKS}
s_cbranch_scc1 L_{n}h0
s_sub_u32 s{sOX}, s{sOX}, 1024
s_lshl_b32 s{sT0}, s{sMW}, 3
s_sub_u32 s{sOW}, s{sOW}, s{sT0}
L_{n}h0:
s_cmp_lt_u32 s{sIT}, {OPT['tit'] - 1}
s_cbranch_scc1 L_{n}h1
{TOUCH}
L_{n}h1:
s_lshl_b32 s{sT0}, s{sW}, 3
s_add_u32 s{sT0}, s{sT0}, s{sIT}
s_cmp_lg_u32 s{sT0}, 1
s_cbranch_scc1 L_{n}back''')
    get_tag(n + 'h')
    A(f'''v_mov_b32 v1, s{sTAG}
s_mov_b64 exec, 3
buffer_store_dword v1, v{vFL}, {srd(SRD_AUX)}, 0 offen sc1
s_mov_b64 exec, -1
s_branch L_{n}back''')
LB_ = '' if OPT['exp'] in (6, 7) else 's_barrier'
def hcheck(n): A(f's_bitcmp1_b32 s{sHM}, s{sIT}\ns_cbranch_scc1 L_{n}h\nL_{n}back:')

def check_flag0(n):
    A(f'''s_mov_b32 s{sT0}, 0
L_f0{n}:
v_cmp_ne_u32 vcc, s{sTAG}, v{vTG}
s_cbranch_vccz L_f0ok{n}
buffer_load_dword v{vTG}, v{vPL}, {srd(SRD_AUX)}, 0 offen sc1
s_waitcnt vmcnt(0)
s_add_u32 s{sT0}, s{sT0}, 1
s_cmp_lt_u32 s{sT0}, {SPIN}
s_cbranch_scc1 L_f0{n}
L_f0ok{n}:''')

def split_hilo(r, t, E=None):
    (E or A)(f'''v_cvt_pk_bf16_f32 v{t}, v{r}, v{r}
v_lshlrev_b32 v{t}, 16, v{t}
v_sub_f32 v{t}, v{r}, v{t}
v_cvt_pk_bf16_f32 v{r}, v{r}, v{t}''')

vB = 4
REG_BASE = [SLOT, 2 * SLOT, 0]
REG_T = [(0, 6), (6, 12), (12, 20)]
def baddr_early(dst):
    A(f'''v_lshrrev_b32 v1, 5, v{vL}
v_bfe_u32 v2, v{vL}, 2, 2
v_lshl_add_u32 v1, v1, 2, v2
v_lshlrev_b32 v1, 7, v1
v_bfe_u32 v2, v{vL}, 3, 1
v_lshl_add_u32 v1, v2, 6, v1
v_bfe_u32 v2, v{vL}, 4, 1
v_lshl_add_u32 v1, v2, 5, v1
v_and_b32 v2, 3, v{vL}
v_lshl_add_u32 v{dst}, v2, 3, v1
s_mul_i32 s{sQ3}, s{sKQ}, 12288
s_lshl_b32 s{sT0}, s{sMH}, 10
s_add_u32 s{sQ0}, s{sQ3}, s{sT0}
s_min_u32 s{sT1}, s{sKQ}, 1
s_mul_i32 s{sT1}, s{sT1}, 6144
s_mul_i32 s{sQ1}, s{sKQ}, 10240
s_add_u32 s{sQ1}, s{sQ1}, s{sT1}
s_add_u32 s{sQ2}, s{sQ1}, s{sT0}
s_lshl_b32 s{sT0}, s{sMH}, 13
s_add_u32 s{sSO}, s{sSOFF}, s{sT0}
s_add_u32 s{sSO}, s{sSO}, {NREG*16384}''')
def baddr_first(src):
    if OPT['exp'] == 9: A(f's_mov_b32 s{SRD_B+2}, 0')
    A(f'''v_add_u32 v{vB}, s{sQ3}, v{src}
v_add_u32 v{vB+2}, {2*SLOT}, v{vB}
v_xor_b32 v{vB+3}, 64, v{vB+2}
v_add_u32 v11, {16384-2048}, v{vBP}''')
def defer_slow(nbg):
    if not OPT['c3']: A(f's_mov_b32 s{sST}, {nbg}'); return
    A(f'''s_mov_b32 s{sBW}, s{SRD_B+2}
s_mov_b32 s{sMW}, s{sSO}
s_cmp_eq_u32 s{sCB}, 3
s_cselect_b32 s{sST}, 0, {nbg}
s_cmov_b32 s{SRD_B+2}, 0''')
def breg_groups(half):
    out = []
    for st in range(6 * half, 6 * half + 6):
        for ct in range(2):
            base = vB + (2 if half == 0 else 0) + ct
            out.append([f'ds_read_b64_tr_b16 {ar(st*8 + ct*4 + hf*2, 2)}, v{base} offset:{(st % 6)*2048 + hf*1024}' for hf in range(2)])
    return out
def static_groups(r, vm, n):
    out = []
    a, b = REG_T[r]
    for t in range(a, b):
        g = []
        if t == 16: g += [f's_cmp_eq_u32 s{sKQ}, 3', f's_cbranch_scc1 L_sdone{n}']
        if t == 17: g += [f's_cmp_lg_u32 s{sKQ}, 0', f's_cbranch_scc1 L_sdone{n}']
        if t % 2 == 0:
            if t: g.append(f's_add_u32 s{sSO}, s{sSO}, 32768')
            g.append(f's_add_u32 m0, s{sQ0 if r < 2 else sQ2}, {REG_BASE[r] + (t - a)*2048}')
            g += dma(vBP, SRD_B, sSO, 0)
        else:
            g += dma(11, SRD_B, sSO, 2048)
        g.append(lambda: vm.issue('dma'))
        out.append(g)
    if r == 2:
        tail = sum(out[4:], []) + [f'L_sdone{n}:']
        out = out[:4] + [tail]
    return out

A(f'{NAME}_kernel:')
A(f'''s_load_dwordx16 s[{sKA}:{sKA+15}], s[0:1], 0
s_load_dwordx4 s[{sDBG}:{sDBG+3}], s[0:1], 64
s_cmp_ge_u32 s2, 256
s_cbranch_scc1 L_end
s_getpc_b64 s[{sT4}:{sT5}]
v_lshlrev_b32 v1, 6, v0
global_load_dword v{vTCH}, v1, s[{sT4}:{sT5}]
v_lshrrev_b32 v1, 6, v0
v_and_b32 v{vL}, 63, v0
v_readfirstlane_b32 s{sW}, v1
s_and_b32 s{sT0}, s2, 7
s_lshr_b32 s{sT1}, s2, 3
s_lshr_b32 s{sT2}, s{sT0}, 1
s_and_b32 s{sT3}, s{sT0}, 1''')
if OPT['stamps']:
    A(f'{STI} s[{sCLK}:{sCLK+1}]'); nstamp[0] = 1
if OPT['perm']: pass
elif OPT['map2'] == 0:
    A(f'''s_lshl_b32 s{sR}, s{sT0}, 2
s_lshr_b32 s{sCB}, s{sT1}, 3
s_add_u32 s{sR}, s{sR}, s{sCB}
s_and_b32 s{sCB}, s{sT1}, 7''')
else:
    A(f'''s_lshl_b32 s{sR}, s{sT2}, 3
s_lshr_b32 s{sCB}, s{sT1}, 2
s_add_u32 s{sR}, s{sR}, s{sCB}
s_and_b32 s{sCB}, s{sT1}, 3
s_lshl_b32 s{sA}, s{sT3}, 2
s_add_u32 s{sCB}, s{sCB}, s{sA}''')
if OPT['exp'] == 3: A(f's_add_u32 s{sCB}, s{sCB}, 1\ns_and_b32 s{sCB}, s{sCB}, 7')
A(f'''s_mov_b32 s{sONES}, 0x3f803f80
v_lshrrev_b32 v30, 3, v{vL}
v_and_b32 v31, 7, v{vL}
v_lshrrev_b32 v32, 4, v{vL}
v_lshlrev_b32 v{vL16}, 4, v{vL}
v_xor_b32 v1, v31, v32
v_lshlrev_b32 v1, 4, v1
v_lshl_add_u32 v{vDMA}, v30, 11, v1
s_mov_b32 s{sSLOT}, 0
s_cmp_ge_u32 s{sT1}, 20
s_cbranch_scc1 L_attn''')

A(f'''s_mul_i32 s{sA}, s{sT1}, 52
s_lshr_b32 s{sA}, s{sA}, 8
s_mul_i32 s{sB}, s{sA}, 5
s_sub_u32 s{sB}, s{sT1}, s{sB}
''')
if OPT['perm']:
    A(f'''s_cmp_lt_u32 s{sB}, 3
s_cselect_b32 s{sT4}, 3, 2
s_cselect_b32 s{sT5}, 0, 3
s_mul_i32 s{sT3}, s{sT3}, s{sT4}
s_add_u32 s{sB}, s{sB}, s{sT3}
s_add_u32 s{sB}, s{sB}, s{sT5}''')
else: A(f's_mul_i32 s{sT3}, s{sT3}, 5\ns_add_u32 s{sB}, s{sB}, s{sT3}')
A(f'''s_lshl_b32 s{sT2}, s{sT2}, 2
s_add_u32 s{sA}, s{sA}, s{sT2}
v_xor_b32 v{vDMA+1}, 64, v{vDMA}
v_add_u32 v{vDMA+1}, {16384-1024}, v{vDMA+1}
s_lshr_b32 s{sT0}, s{sW}, 2
s_and_b32 s{sT1}, s{sW}, 1
s_add_u32 s{sT2}, s{sT0}, 4
s_mul_i32 s{sT2}, s{sT2}, s{sT1}
s_lshl_b32 s{sT3}, s{sT0}, 3
s_add_u32 s{sT2}, s{sT2}, s{sT3}
s_lshl_b32 s{sT3}, s{sT2}, 6
v_add_u32 v1, s{sT3}, v{vL}
s_movk_i32 s{sT4}, 3641
s_movk_i32 s{sT5}, 2464''')
for i in range(5):
    A(f'''v_mul_u32_u24 v2, s{sT4}, v1
v_lshrrev_b32 v2, 16, v2
v_mul_u32_u24 v2, s{sT5}, v2
v_lshl_add_u32 v{vDMA+2+i}, v1, 4, v2''')
    if i % 4: A(f'v_subrev_u32 v{vDMA+2+i}, {(i % 4)*1024}, v{vDMA+2+i}')
    if i < 4: A('v_add_u32 v1, 64, v1')
A(f'''s_bfe_u32 s{sT3}, s{sW}, 0x10001
s_mul_i32 s{sD+1}, s{sT3}, {UPOFF}
s_lshl_b32 s{sT2}, s{sT2}, 10
s_add_u32 s{sD+1}, s{sD+1}, s{sT2}
s_add_u32 s{sD+1}, s{sD+1}, 16384
s_lshl_b32 s{sD}, s{sW}, 11
s_mul_i32 s{sST}, s{sB}, 9
s_sub_u32 s{sT2}, s{sB}, 6
s_max_i32 s{sT2}, s{sT2}, 0
s_sub_u32 s{sST}, s{sST}, s{sT2}
s_lshl_b32 s{sBW}, s{sST}, 5
s_lshl_b32 s{sBX}, s{sA}, 7
s_lshl_b32 s{sT2}, s{sT0}, 6
s_add_u32 s{sBX}, s{sBX}, s{sT2}
s_add_u32 s{sBX}, s{sBX}, s{sT3}
s_lshl_b32 s{sT2}, s{sT1}, 5
s_add_u32 s{sBX}, s{sBX}, s{sT2}
s_lshl_b32 s{sBX}, s{sBX}, 10
s_mov_b32 s{sMW}, {64*2752}
s_lshr_b32 s{sKS}, s{sA}, 1''')
if OPT['rot'] == 2: A(f's_add_u32 s{sKS}, s{sKS}, s{sB}\ns_and_b32 s{sKS}, s{sKS}, 7')
A(f'''s_cmp_lt_u32 s{sB}, 6
s_cselect_b32 s{sN0}, 5, 4''')
lines(SOFF)
A(f'''s_cmp_eq_u32 s{sT3}, 1
s_waitcnt lgkmcnt(0)
s_cselect_b32 s{SRD_W}, s{sKA+10}, s{sKA+8}
s_cselect_b32 s{SRD_W+1}, s{sKA+11}, s{sKA+9}
s_mov_b32 s{SRD_W+2}, {512*2752}
s_mov_b32 s{SRD_W+3}, 0x20000''')
if OPT['stamps']: A(f's_mov_b32 s{sSTAMP}, s{sCLK}')
build_srd(SRD_XR, sKA, 2048 * 1024)
stat_load()
build_srd(SRD_X, sKA, 2048 * 1024)
FX = [dma(vDMA, SRD_X, sOX, 0, [f's_add_u32 m0, s{sSLOT}, s{sD}']), dma(vDMA + 1, SRD_X, sOX, 1024)]
FW = [dma(vDMA + 2, SRD_W, sOW, 0, [f's_add_u32 m0, s{sSLOT}, s{sD+1}'])] + [dma(vDMA + 2 + i, SRD_W, sOW, 1024 * i) for i in range(1, 4)]
FW5 = dma(vDMA + 6, SRD_W, sOW, 0, ['s_add_u32 m0, m0, 4096'])
def fw5_guarded(tag):
    uid[0] += 1
    A(f's_cmp_lt_u32 s{sW}, 4\ns_cbranch_scc1 L_no5{uid[0]}'); lines(FW5); A(f'L_no5{uid[0]}:')
stamp(1)
vm = Q(63); vm.issue('code'); vm.issue('sr')
for g in FW: lines(g); vm.issue('w0')
fw5_guarded('w0')
for g in FX: lines(g); vm.issue('x0')
publish_tag()
stamp(1)
lines(ADV); lines(SOFF)
setup2()
A('v_mov_b32 v56, 0\nv_mov_b32 v57, 0\nv_mov_b32 v58, 0\nv_mov_b32 v59, 0')
for T in range(5): A(mf32(vr(vACC + 16*T, 16), 'v[56:59]', 'v[56:59]', '0'))
A(f'''v_and_b32 v1, 31, v{vL}
s_and_b32 s{sT0}, s{sW}, 3
s_lshl_b32 s{sT0}, s{sT0}, 5
v_add_u32 v1, s{sT0}, v1
v_bfe_u32 v2, v1, 1, 3
v_lshrrev_b32 v3, 5, v{vL}
v_xor_b32 v2, v2, v3
v_lshlrev_b32 v2, 4, v2
v_lshl_add_u32 v{vRX}, v1, 7, v2
v_xor_b32 v{vRX+1}, 32, v{vRX}
v_xor_b32 v{vRX+2}, 64, v{vRX}
v_xor_b32 v{vRX+3}, 96, v{vRX}
v_bfe_u32 v1, v{vL}, 2, 2
v_and_b32 v2, 3, v{vL}
v_lshlrev_b32 v2, 3, v2
s_movk_i32 s{sT0}, 288
v_mad_u32_u24 v35, v1, s{sT0}, v2
v_mul_u32_u24 v2, 2304, v3
v_bfe_u32 v1, v{vL}, 4, 1
v_mul_u32_u24 v{vRW}, {UPOFF}, v1
v_add3_u32 v{vRW}, v{vRW}, v2, v35
s_lshr_b32 s{sT0}, s{sW}, 2
s_mul_i32 s{sT0}, s{sT0}, s{sN0}
s_lshl_b32 s{sT0}, s{sT0}, 5
s_add_u32 s{sT0}, s{sT0}, 16384
v_add_u32 v{vRW}, s{sT0}, v{vRW}
s_and_b32 s{sT0}, s{sW}, 1
s_mul_i32 s{sT0}, s{sT0}, {UPOFF}
s_add_u32 s{sT0}, s{sT0}, 16384
v_add_u32 v35, s{sT0}, v35
v_mul_u32_u24 v34, 1152, v32
v_add_u32 v34, v34, v35
v_mul_u32_u24 v33, 1152, v3
v_lshl_add_u32 v33, v1, 7, v33
s_lshr_b32 s{sT1}, s{sW}, 1
s_lshl_b32 s{sT2}, s{sT1}, 5
v_add3_u32 v33, v33, v35, s{sT2}''')
A(f'''s_lshl_b32 s{sT0}, s2, 2
s_add_u32 s{sT0}, s{sT0}, {FLAG_S}
s_lshl_b32 s{sT3}, s{sB}, 5
s_add_u32 s{sT3}, s{sT3}, {FLAG_C}
s_lshl_b32 s{sT2}, s{sA}, 1
s_add_u32 s{sT4}, s{sT2}, s{sT3}
s_bitcmp0_b32 s{sA}, 0
s_cselect_b32 s{sT4}, s{sT4}, s{sT0}
v_mov_b32 v{vFL}, s{sT4}
v_writelane_b32 v{vFL}, s{sT0}, 0
s_lshl_b32 s{sT0}, s{sA}, 6
s_add_u32 s{sT0}, s{sT0}, {FLAG_S}
v_and_b32 v2, 15, v{vL}
v_lshl_add_u32 v3, v2, 2, s{sT0}
v_lshl_add_u32 v31, v31, 2, s{sT3}
v_cmp_gt_u32 vcc, 32, v{vL}
v_cndmask_b32 v{vPL}, v31, v3, vcc
s_mul_i32 s{sT0}, s{sB}, 9216
s_add_u32 s{sT0}, s{sT0}, s{sT2}
s_and_b32 s{sT3}, s{sW}, 1
s_lshl_b32 s{sT3}, s{sT3}, 9
s_add_u32 s{sT0}, s{sT0}, s{sT3}
s_add_u32 s{sT0}, s{sT0}, {CS_OFF}
v_lshl_add_u32 v2, v2, 5, s{sT0}
s_lshl_b32 s{sT3}, s{sT1}, 10
v_lshlrev_b32 v35, 12, v1
v_add3_u32 v35, v35, v2, s{sT3}
v_mov_b32 v3, {OOB}
v_cndmask_b32 v35, v3, v35, vcc
v_add_u32 v32, 8192, v2
s_cmp_eq_u32 s{sT1}, 0
s_cselect_b32 s{sT3}, 16, 0
v_cmp_gt_u32 vcc, s{sT3}, v{vL}
v_cndmask_b32 v32, v3, v32, vcc''')
A(f'''v_and_b32 v1, 31, v{vL}
s_lshl_b32 s{sT0}, s{sA}, 7
s_bfe_u32 s{sT1}, s{sW}, 0x10001
s_lshl_b32 s{sT1}, s{sT1}, 6
s_add_u32 s{sT0}, s{sT0}, s{sT1}
s_add_u32 s{sT0}, s{sT0}, s{sMH}
s_lshl_b32 s{sT0}, s{sT0}, 2
s_add_u32 s{sT0}, s{sT0}, {STAT_OFF}
v_lshl_add_u32 v20, v1, 3, s{sT0}
v_lshlrev_b32 v1, 5, v1
v_lshrrev_b32 v2, 5, v{vL}
v_lshl_add_u32 v21, v2, 4, v1
s_mul_i32 s{sT0}, s{sB}, 9216
s_add_u32 s{sT0}, s{sT0}, {CS_OFF}
s_lshr_b32 s{sT4}, s{sW}, 2
s_mul_i32 s{sT2}, s{sT4}, s{sN0}
s_sub_u32 s{sT1}, s{sN0}, 1
s_cmp_eq_u32 s{sT4}, 1
s_cselect_b32 s{sT1}, 3, s{sT1}
s_add_u32 s{sT1}, s{sT1}, s{sT2}
s_lshl_b32 s{sT1}, s{sT1}, 10
s_add_u32 s{sP2}, s{sT1}, s{sT0}
s_min_u32 s{sT1}, s{sW}, 6
s_lshl_b32 s{sT3}, s{sT1}, 10
s_add_u32 s{sP3}, s{sT3}, {SCR}
s_add_u32 s{sT1}, s{sT1}, 2
s_cmp_gt_u32 s{sT1}, s{sN0}
s_cselect_b32 s{sT1}, 1024, 0
s_add_u32 s{sT0}, s{sT0}, s{sT1}
s_add_u32 s{sP4}, s{sT0}, s{sT3}
s_sub_u32 s{sT1}, s{sT2}, 1
s_max_i32 s{sT1}, s{sT1}, 0
s_lshl_b32 s{sT1}, s{sT1}, 10
s_add_u32 s{sT1}, s{sT1}, {SCR}
v_add_u32 v{vAD}, s{sT1}, v21
s_lshl_b32 s{sT0}, s{sA}, 2
s_and_b32 s{sT1}, s{sW}, 3
s_add_u32 s{sT0}, s{sT0}, s{sT1}
s_mul_i32 s{sP5}, s{sT0}, {TG_STRIDE}
s_lshl_b32 s{sFLAG}, s{sA}, 7
s_add_u32 s{sT0}, s{sST}, s{sT2}
s_lshl_b32 s{sT0}, s{sT0}, 10
s_add_u32 s{sP5}, s{sP5}, s{sT0}
s_lshl_b32 s{sT0}, s{sB}, 2
s_add_u32 s{sFLAG}, s{sFLAG}, s{sT0}''')
tail_prepare(); baddr_early(31); touch_prepare()
stamp(1)
A(f's_waitcnt vmcnt({vm.need({"sr"})})')
stamp(1)
E = Inter()
def f_s1():
    for g in FW: lines(g); vm.issue('s1')
    fw5_guarded('s1')
    for g in FX: lines(g); vm.issue('s1')
    lines(ADV); lines(SOFF)
    loop_prepare()
if OPT['s1l']:
    stat_compute(E); vm.issue('st')
    touches(vm)
else:
    E.push([g + [lambda: vm.issue('s1')] for g in FW], 10)
    stat_compute(E); vm.issue('st')
    E.flush()
    fw5_guarded('s1')
    for g in FX: lines(g); vm.issue('s1')
    lines(ADV); lines(SOFF)
    touches(vm)
    loop_prepare()
A('v_mov_b32 v52, 0\nv_mov_b32 v53, 0\nv_mov_b32 v54, 0\nv_mov_b32 v55, 0')
A(f's_waitcnt vmcnt({vm.need({"w0"})})\ns_barrier')
stamp(1)
if OPT['s1l'] == 2: f_s1()
A(f's_bitcmp1_b32 s{sA}, 0\ns_cbranch_scc1 L_nocs')
for n in range(8): A(f'ds_read_b64_tr_b16 {vr(56+2*n, 2)}, v33 offset:{n*2304}')
for n in range(4): A(f'ds_read_b64_tr_b16 {vr(72+2*n, 2)}, v34 offset:{n*4608 + 256}')
for n in range(8):
    if n % 2 == 0: A(f's_waitcnt lgkmcnt({10 - n})')
    A(f'v_dot2c_f32_bf16 v52, s{sONES}, v{56+2*n}\nv_dot2c_f32_bf16 v54, s{sONES}, v{57+2*n}')
A('s_waitcnt lgkmcnt(0)')
for n in range(8): A(f'v_dot2c_f32_bf16 v{53 + 2*(n & 1)}, s{sONES}, v{72+n}')
A('''v_add_f32 v52, v52, v54
v_add_f32 v53, v53, v55
v_mov_b32 v54, v52
v_mov_b32 v55, v53
v_permlane32_swap_b32 v52, v54
v_permlane32_swap_b32 v53, v55
v_add_f32 v52, v52, v54
v_add_f32 v53, v53, v55
v_mov_b32 v55, v53
v_permlane16_swap_b32 v53, v55
v_add_f32 v53, v53, v55''')
split_hilo(52, 54); split_hilo(53, 55)
A(f'''buffer_store_dword v52, v35, {srd(SRD_AUX)}, 0 offen sc1
buffer_store_dword v53, v32, {srd(SRD_AUX)}, 0 offen sc1
L_nocs:''')
stamp(1)
A(f's_waitcnt vmcnt({vm.need({"x0"})})\ns_barrier')
if OPT['s1l'] == 1: f_s1()
stamp(); stamp(1)
if OPT['exp'] in (5, 7): A(f's_mov_b32 s{SRD_X+2}, 0\ns_mov_b32 s{SRD_W+2}, 0\ns_mov_b32 s{SRD_B+2}, 0')
A(f'''s_lshr_b32 s{sT0}, s{sW}, 2
s_add_u32 s{sT0}, s{sT0}, 4
s_cmp_lt_u32 s{sT0}, s{sN0}
s_cbranch_scc0 L_f4''')

lg = Q(15)
vC1, vIR = 18, 20
vBM = 36
vCL = 40
def ffn_role(nt, n):
    NM = 4 * nt
    R = 2 * nt
    D = R - 1
    NHD = D - OPT['gap']
    def rw(m):
        p, T = divmod(m, nt); s = (m % R) * 4
        A(f'ds_read_b64_tr_b16 {ar(s, 2)}, v{vRW} offset:{p*4608 + T*32}'); lg.issue(('w', m))
        if OPT['exp'] != 14: A(f'ds_read_b64_tr_b16 {ar(s+2, 2)}, v{vRW} offset:{p*4608 + T*32 + 1152}'); lg.issue(('w', m))
    def rx(p):
        A(f'ds_read_b128 {ar(40 + p*4, 4)}, v{vRX+p}'); lg.issue(('x', p))
    def mm(m):
        p, T = divmod(m, nt)
        if OPT['exp'] in (11, 12):
            for hf in range(2):
                d = vr(vACC + 16*T + 8*(p & 1) + 4*hf, 4)
                A(mf16(d, ar((m % R) * 4, 4), ar(40 + ((p + hf) & 3)*4, 4), d))
        else: A(mf32(vr(vACC + 16*T, 16), ar((m % R) * 4, 4), ar(40 + p*4, 4), vr(vACC + 16*T, 16)))
    def five():
        uid[0] += 1
        return [f's_cmp_lt_u32 s{sW}, 4', f's_cbranch_scc1 L_no5{uid[0]}'] + FW5 + [f'L_no5{uid[0]}:']
    def fill_for(main, first=False):
        fill = {}
        dl = (FX + FW + ([five()] if nt == 4 else [])) if main else tail_dma()
        if first: dl = FX + FW + ([five()] if nt == 4 else []) + [ADV + SOFF + [loop_prepare]] + dl
        last = NM - 3
        if main: dl = dl + L2T
        if not OPT['nodma']: spread(dl, list(range(NHD - OPT['fh'] if first else 0, last + 1)), fill)
        spread([[f's_mov_b32 s{sDELTA}, {SLOT}'] if first else RDL], [NHD], fill)
        if main and OPT['wrap']: spread([WRAPX, WRAPW], [last if first else 7, last], fill)
        elif main: spread([[f's_add_u32 s{sOX}, s{sOX}, 128'], [f's_add_u32 s{sOW}, s{sOW}, s{sMW}']], [last if first else 7, last], fill)
        spread([ADVL], [last], fill)
        spread([[f'v_add_u32 v{vRX+i}, s{sDELTA}, v{vRX+i}'] for i in range(4)], [NHD + 1, NHD + 2, NHD + 4, NM - 3], fill)
        spread([[f'v_add_u32 v{vRW}, s{sDELTA}, v{vRW}']], [NM - 1 - D + NHD], fill)
        return fill
    entry_q = []
    def head(fill, with_mfma, extra=None):
        itstamp(); jitter()
        lg.drain()
        nxt = 0
        for m in range(NHD):
            if with_mfma: mm(NM - NHD + m)
            k = 0
            while nxt < D and D - nxt > NHD - 1 - m and k < 2:
                assert nxt <= R - NHD + m
                rw(nxt); nxt += 1; k += 1
            if m == 0: rx(0)
            if m == NHD - 2: rx(1)
            if extra and m == 0 and extra[0]: extra[0]()
            lines(fill.get(m, []))
        assert nxt == D
        entry_q[:] = lg.q
    def rest(fill, last_it, label):
        for m in range(NM - NHD):
            p, T = divmod(m, nt)
            if m == NM - NHD - 1:
                A(f's_waitcnt vmcnt({6 + len(L2T) if last_it == 6 else 6}) lgkmcnt(0)'); lg.drain()
            want = {('w', m), ('x', p)}
            if OPT['w2'] and m % 2 == 0: want |= {('w', m + 1), ('x', (m + 1) // nt)}
            c = lg.need(want)
            if c is not None: A(f's_waitcnt lgkmcnt({c})')
            mm(m)
            if m + D < NM: rw(m + D)
            if m == 2: rx(2)
            if m == nt + 1: rx(3)
            lines(fill.get(m + NHD, []))
            if m == NM - NHD - 2: A(f's_add_u32 s{sIT}, s{sIT}, 1\ns_cmp_lt_u32 s{sIT}, {f"s{sNEXT}" if last_it == 6 else last_it}')
        A(f's_cbranch_scc0 {label}\n{LB_}')
    fm = fill_for(True)
    if OPT['s1l'] == 3:
        f0 = fill_for(True, True)
        head(f0, False)
        rest(f0, 6, f'L_{n}exit')
        A(f's_branch L_{n}back')
        lg.drain(); lg.q = list(entry_q)
    else: head(fm, False)
    A(f'L_{n}loop:')
    rest(fm, 6, f'L_{n}exit')
    A(f'L_{n}back:')
    head(fm, True)
    A(f's_branch L_{n}loop\nL_{n}exit:\n{LB_}\ns_cmp_lt_u32 s{sIT}, 6\ns_cbranch_scc1 L_{n}h')
    def inter():
        jitter(); get_tag(n)
        tail_setup()
        A(f'buffer_load_dword v{vTG}, v{vPL}, {srd(SRD_AUX)}, 0 offen sc1')
    def inter2():
        jitter(); check_flag0(n)
        A(f'''buffer_load_dword v{vST}, v20, {srd(SRD_AUX)}, 0 offen sc1
s_mov_b32 m0, s{sP3}
buffer_load_dwordx4 {vr(vCL, 4)}, v21, {srd(SRD_AUX)}, s{sP2} offen sc1
buffer_load_dwordx4 v{vL16}, {srd(SRD_AUX)}, s{sP4} offen sc1 lds''')
    ft = fill_for(False)
    head(ft, True, [inter, None, None])
    A(f'L_{n}tail:')
    rest(ft, 8, f'L_{n}texit')
    head(ft, True, [inter2, None, None])
    A(f's_branch L_{n}tail\nL_{n}texit:\n{LB_}')
    stamp(); itdump()
    jitter()
    vCF = 20
    CF = [44, vFR, 32, 12]
    for t in range(nt - 1): A(f'ds_read_b128 {vr(CF[t], 4)}, v{vAD} offset:{t*1024}')
    vm = Q(63)
    for i in range(6): vm.issue('v9')
    early = [[l] for l in f"""v_and_b32 v1, 0xffff, v{vST}
v_and_b32 v{vST}, 0xffff0000, v{vST}
v_lshl_or_b32 v{vBM}, v1, 16, v1
v_rcp_f32 v{vC1}, v{vST}
v_mov_b32 v{vBM+1}, v{vBM}
v_mov_b32 v{vBM+2}, v{vBM}
v_mov_b32 v{vBM+3}, v{vBM}
v_mul_f32 v{vIR}, v{vST}, v{vST}
v_mul_f32 v{vIR+2}, v{vST}, v{vST}
v_mul_f32 v{vC1}, {f2u(-LOG2E)}, v{vC1}""".split('\n')]
    def corr(t): A(mf32(vr(vACC + 16*t, 16), vr(CF[t] if t < nt - 1 else vCL, 4), vr(vBM, 4), vr(vACC + 16*t, 16)))
    npre = NHD - nt
    for m in range(NM - NHD, NM - nt + 1):
        mm(m)
        for _ in range(-(-10 // (npre + 1))):
            if early: lines(early.pop(0))
    A('v_mov_b32 v10, v31'); baddr_first(31)
    defer_slow(OPT['fbg'])
    r0 = static_groups(0, vm, n) if OPT['fbg'] and OPT['front'] else []
    A('s_waitcnt lgkmcnt(0)')
    corr(0)
    a0, t0, o0 = vACC, 52, 68
    first = []
    if OPT['fov']:
        first = [f'v_mul_f32 v{t0+k}, v{vC1}, v{a0+k}' for k in range(8)] + [f'v_exp_f32 v{t0+k}, v{t0+k}' for k in range(8)]
        first += [f'v_mul_f32 v{t0+8+k}, v{a0+k}, v{a0+8+k}' for k in range(8)] + [f'v_fma_f32 v{t0+k}, v{t0+k}, v{vIR}, v{vIR}' for k in range(8)]
        first += [f'v_rcp_f32 v{t0+k}, v{t0+k}' for k in range(8)] + [f'v_mul_f32 v{t0+k}, v{t0+k}, v{t0+8+k}' for k in range(8)]
        first += [f'v_cvt_pk_bf16_f32 v{o0+k}, v{t0+2*k}, v{t0+2*k+1}' for k in range(4)]
    rem = [x for t in range(1, nt) for x in (lambda t=t: mm(NM - nt + t), lambda t=t: corr(t))]
    for i, f in enumerate(rem):
        f()
        if r0: lines(r0.pop(0))
        if i >= 1:
            for _ in range(-(-52 // (len(rem) - 1))):
                if first: A(first.pop(0))
    for g in r0: lines(g)
    if OPT['fov']:
        A(f'buffer_store_dwordx4 {vr(o0, 4)}, v{vL16}, {srd(SRD_ACT)}, s{sP5} offen{SFL}'); vm.issue('st')
    E = Inter()
    def tile(T):
        a = vACC + 16*T
        t = 52 if T & 1 else 32
        t = 52
        o = 68 + 4 * (T & 1)
        for k in range(4):
            E(f'v_pk_mul_f32 {vr(t+2*k, 2)}, {vr(a+2*k, 2)}, {vr(vC1, 2)} op_sel_hi:[1,0]')
        for k in range(8): E(f'v_exp_f32 v{t+k}, v{t+k}')
        for k in range(4):
            E(f'v_pk_mul_f32 {vr(t+8+2*k, 2)}, {vr(a+2*k, 2)}, {vr(a+8+2*k, 2)}')
        for k in range(4):
            E(f'v_pk_fma_f32 {vr(t+2*k, 2)}, {vr(t+2*k, 2)}, {vr(vIR, 2)}, {vr(vIR+2, 2)} op_sel_hi:[1,0,0]')
        for k in range(8): E(f'v_rcp_f32 v{t+k}, v{t+k}')
        for k in range(4):
            E(f'v_pk_mul_f32 {vr(t+2*k, 2)}, {vr(t+2*k, 2)}, {vr(t+8+2*k, 2)}')
        for k in range(4):
            E(f'v_cvt_pk_bf16_f32 v{o+k}, v{t+2*k}, v{t+2*k+1}')
        if T == 4: A(f's_add_u32 s{sP5}, s{sP5}, 4096')
        off = f' offset:{(T % 4)*1024}' if T % 4 else ''
        A(f'buffer_store_dwordx4 {vr(o, 4)}, v{vL16}, {srd(SRD_ACT)}, s{sP5} offen{off}{SFL}'); vm.issue('st')
    if OPT['flate'] and OPT['fbg'] < 2:
        if not OPT['front']: E.push(sum((static_groups(r, vm, n) for r in range(OPT['fbg'])), []), 16)
        for T in range(OPT['fov'], nt): tile(T)
        E.flush()
        for g in breg_groups(0): lines(g)
        A(f's_waitcnt vmcnt({vm.need({"v9"})}) lgkmcnt(0)\ns_barrier')
    else:
        for g in breg_groups(0): lines(g)
        A(f's_waitcnt vmcnt({vm.need({"v9"})}) lgkmcnt(0)\ns_barrier')
        E.push(sum((static_groups(r, vm, n) for r in range(OPT['front'], OPT['fbg'])), []), 4)
        for T in range(OPT['fov'], nt): tile(T)
        E.flush()
    A('s_branch L_phase2')
    handlers(n)
ns0 = nstamp[0]
ffn_role(5, 'f5')
nst_save = nstamp[0]; nstamp[0] = ns0
A('L_f4:')
ffn_role(4, 'f4')

nstamp[0] = 1 if OPT['stamps'] else 0
A.label('L_attn')
A(f'''s_sub_u32 s{sT1}, s{sT1}, 20
s_lshr_b32 s{sA}, s{sT1}, 2
s_lshr_b32 s{sKS}, s{sA}, 1
s_lshl_b32 s{sT4}, s{sT2}, 1
s_add_u32 s{sKS}, s{sKS}, s{sT4}
s_and_b32 s{sKS}, s{sKS}, {[7, 0, 4, 6][OPT['arot']]}
s_mul_i32 s{sT2}, s{sT2}, 3
s_add_u32 s{sA}, s{sA}, s{sT2}
s_and_b32 s{sB}, s{sT1}, 3
s_lshl_b32 s{sT3}, s{sT3}, 2
s_add_u32 s{sB}, s{sB}, s{sT3}''')
if OPT['rot'] == 2: A(f's_add_u32 s{sKS}, s{sKS}, s{sB}\ns_and_b32 s{sKS}, s{sKS}, 7')
A(f'''s_and_b32 s{sT0}, s{sW}, 1
s_lshl_b32 s{sT1}, s{sT0}, 6
v_xor_b32 v{vDMA}, s{sT1}, v{vDMA}
v_xor_b32 v{vDMA+1}, 64, v{vDMA}
v_add_u32 v{vDMA+1}, {16384-1024}, v{vDMA+1}
v_add_u32 v{vDMA+2}, {2*(16384-1024)}, v{vDMA}
v_and_b32 v1, 1, v32
s_lshl_b32 s{sT1}, s{sT0}, 1
v_add_u32 v1, s{sT1}, v1
v_lshlrev_b32 v1, 1, v1
v_xor_b32 v1, v31, v1
v_lshlrev_b32 v1, 4, v1
v_mul_u32_u24 v2, 3072, v30
s_mul_i32 s{sT1}, s{sW}, 24576
v_add3_u32 v{vDMA+3}, v1, v2, s{sT1}
s_mul_i32 s{sST}, s{sA}, 176
s_and_b32 s{sT1}, s{sW}, 3
s_mul_i32 s{sT2}, s{sT1}, 48
s_lshr_b32 s{sT3}, s{sW}, 2
s_add_u32 s{sBX}, s{sST}, s{sT2}
s_add_u32 s{sBX}, s{sBX}, s{sT3}
s_lshl_b32 s{sBX}, s{sBX}, 10
s_lshl_b32 s{sBW}, s{sB}, 7
s_mov_b32 s{sMW}, {64*3072}
s_mul_i32 s{sD}, s{sW}, 3072
s_add_u32 s{sD+1}, s{sD}, 24576
s_mov_b64 s[{sEX}:{sEX+1}], -1
s_cmp_eq_u32 s{sT1}, 0
s_cmov_b32 s{sEX}, 0xffffff00
s_or_b32 s{sT1}, s{sT1}, s{sA}
s_cmp_eq_u32 s{sT1}, 0
s_cselect_b32 s{sT1}, {OOB}, 0
v_add_u32 v{vDMA}, s{sT1}, v{vDMA}''')
lines(SOFF)
A('s_waitcnt lgkmcnt(0)')
if OPT['stamps']: A(f's_mov_b32 s{sSTAMP}, s{sCLK}')
build_srd(SRD_XR, sKA, 2048 * 1024)
if OPT['adel'] != 1: stat_load()
build_srd(SRD_W, sKA + 2, 512 * 3072)
A(f'''s_sub_u32 s{SRD_X}, s{sKA}, 16384
s_subb_u32 s{SRD_X+1}, s{sKA+1}, 0
s_mov_b32 s{SRD_X+2}, {2048*1024 + 16384}
s_mov_b32 s{SRD_X+3}, 0x20000''')
AX = [[f's_add_u32 m0, s{sSLOT}, s{sD}', f's_mov_b64 exec, s[{sEX}:{sEX+1}]'] + dma(vDMA, SRD_X, sOX, 0) + ['s_mov_b64 exec, -1'],
      dma(vDMA + 1, SRD_X, sOX, 1024), dma(vDMA + 2, SRD_X, sOX, 2048)]
AW = [dma(vDMA + 3, SRD_W, sOW, 0, [f's_add_u32 m0, s{sSLOT}, s{sD+1}']), dma(vDMA + 3, SRD_W, sOW, 1024), dma(vDMA + 3, SRD_W, sOW, 2048)]
stamp(1)
vm = Q(63); vm.issue('code'); vm.issue('sr')
if not OPT['adel']:
    for g in AX + AW: lines(g); vm.issue('s0')

stamp(1)
if not OPT['adel']: lines(ADV); lines(SOFF)
setup2()
A('v_mov_b32 v56, 0\nv_mov_b32 v57, 0\nv_mov_b32 v58, 0\nv_mov_b32 v59, 0')
for T in range(5): A(mf32(vr(vACC + 16*T, 16), 'v[56:59]', 'v[56:59]', '0'))
A(f'''v_min_u32 v1, 5, v30
v_lshrrev_b32 v2, 1, v1
v_mul_u32_u24 v2, {SLOT}, v2
v_and_b32 v1, 1, v1
v_mul_u32_u24 v1, 12288, v1
v_add_u32 v1, v1, v2
v_lshl_add_u32 v1, v31, 4, v1
v_mov_b32 v60, s{sONES}
v_mov_b32 v61, s{sONES}
v_mov_b32 v62, s{sONES}
v_mov_b32 v63, s{sONES}
ds_write_b128 v1, v[60:63]
v_and_b32 v33, 15, v{vL}
s_mul_i32 s{sT0}, s{sMH}, 96
v_add_u32 v1, s{sT0}, v33
v_bfe_u32 v2, v1, 1, 3
v_xor_b32 v2, v2, v32
v_lshlrev_b32 v2, 4, v2
v_lshl_add_u32 v{vRX}, v1, 7, v2
v_xor_b32 v{vRX+1}, 64, v{vRX}
v_mul_u32_u24 v1, 3072, v32
v_bfe_u32 v2, v{vL}, 2, 2
v_lshl_add_u32 v1, v2, 7, v1
v_bfe_u32 v2, v{vL}, 3, 2
s_lshr_b32 s{sT0}, s{sW}, 1
v_xor_b32 v2, s{sT0}, v2
v_lshl_add_u32 v1, v2, 5, v1
v_and_b32 v2, 3, v{vL}
v_lshl_add_u32 v1, v2, 3, v1
v_add_u32 v{vRW}, 24576, v1
s_lshl_b32 s{sT0}, s2, 2
s_add_u32 s{sT0}, s{sT0}, {FLAG_S}
v_mov_b32 v{vFL}, s{sT0}
s_lshr_b32 s{sT0}, s{sST}, 3
s_sub_u32 s{sT0}, s{sT0}, 2
v_min_u32 v1, 23, v{vL}
v_add_u32 v1, s{sT0}, v1
v_max_i32 v1, 0, v1
v_min_u32 v1, 255, v1
v_lshlrev_b32 v1, 2, v1
v_add_u32 v{vPL}, {FLAG_S}, v1
v_lshlrev_b32 v2, 2, v32
v_sub_u32 v2, v33, v2
v_mov_b32 v3, 0xff800000''')
for j in range(4):
    A(f'''v_add_u32 v{vMSK+j}, {16-j}, v2
v_subrev_u32 v{vMSK+4+j}, {j}, v2
v_cmp_gt_u32 vcc, 8, v{vMSK+j}
v_cmp_gt_u32 s[{sT4}:{sT5}], 8, v{vMSK+4+j}
v_cndmask_b32 v{vMSK+j}, v3, 0, vcc
v_cndmask_b32 v{vMSK+4+j}, v3, 0, s[{sT4}:{sT5}]''')
A(f'''s_cmp_eq_u32 s{sA}, 0
s_cselect_b32 s{sT0}, 32, 0
v_cmp_gt_u32 vcc, s{sT0}, v{vL}''')
for j in range(4): A(f'v_cndmask_b32 v{vMSK+8+j}, v{vMSK+4+j}, v3, vcc')
A(f'''v_lshlrev_b32 v1, 1, v33
s_add_u32 s{sT0}, s{sMH}, s{sST}
s_sub_u32 s{sT0}, s{sT0}, 16
v_add_u32 v1, s{sT0}, v1
v_mov_b32 v3, {OOB}''')
for t in range(6):
    A(f'''v_cmp_gt_u32 vcc, 2048, v1
v_lshlrev_b32 v2, 2, v1
v_add_u32 v2, {STAT_OFF}, v2
v_cndmask_b32 v{vAD+t}, v3, v2, vcc''')
    if t < 5: A('v_add_u32 v1, 32, v1')
tail_prepare(); baddr_early(10); touch_prepare()
OO = [8, 9, 13]
A(f'''v_and_b32 v1, 15, v{vL}
s_mul_i32 s{sP2}, s{sW}, 768
s_add_u32 s{sP2}, s{sP2}, {SCR}
v_lshl_add_u32 v14, v1, 2, s{sP2}
v_lshrrev_b32 v2, 5, v{vL}
v_lshl_add_u32 v1, v2, 4, v1
s_lshr_b32 s{sT0}, s{sST}, 1
s_sub_u32 s{sT0}, s{sT0}, 8
v_add_u32 v2, s{sT0}, v1
s_mov_b32 s{sT2}, {2*TG_STRIDE}
v_bfe_u32 v3, v{vL}, 4, 1
v_lshlrev_b32 v3, 9, v3
v_cmp_le_u32 vcc, 8, v1''')
for i in range(3):
    A(f'''v_lshrrev_b32 v{OO[i]}, 5, v2
v_mul_lo_u32 v{OO[i]}, v{OO[i]}, s{sT2}
v_and_b32 v1, 31, v2
v_lshl_add_u32 v1, v1, 4, v3
v_add_u32 v{OO[i]}, v{OO[i]}, v1''')
    if i < 2: A('v_add_u32 v2, 32, v2')
A(f'v_mov_b32 v1, {OOB}\nv_cndmask_b32 v{OO[0]}, v1, v{OO[0]}, vcc')
A(f'''s_lshl_b32 s{sFLAG}, s{sA}, 7
s_lshl_b32 s{sT3}, s{sB}, 2
s_add_u32 s{sFLAG}, s{sFLAG}, s{sT3}
s_lshr_b32 s{sT4}, s{sW}, 1
s_add_u32 s{sT3}, s{sT3}, s{sT4}
s_add_u32 s{sFLAG}, s{sFLAG}, {FLAG_A}
s_mul_i32 s{sT2}, s{sMH}, {TG_STRIDE}
s_add_u32 s{sT3}, s{sT3}, 86
s_lshl_b32 s{sT3}, s{sT3}, 10
s_add_u32 s{sP5}, s{sT2}, s{sT3}''')
if OPT['adel']:
    if OPT['adel'] == 1: stat_load()
    for g in AX + AW: lines(g); vm.issue('s0')
    lines(ADV); lines(SOFF)
stamp(1)
A(f's_waitcnt vmcnt({vm.need({"sr"})})')
stamp(1)
E = Inter()
if not OPT['s1l']: E.push([g + [lambda: vm.issue('s1')] for g in AX + AW], 8)
stat_compute(E); vm.issue('st')
E.flush()
stamp(1)
if not OPT['s1l']: lines(ADV); lines(SOFF); loop_prepare()
touches(vm)
stamp(1)
A(f's_waitcnt vmcnt({vm.need({"s0"})}) lgkmcnt(0)\ns_barrier')
if OPT['s1l'] in (1, 2):
    for g in AX + AW: lines(g)
    lines(ADV); lines(SOFF); loop_prepare()
stamp(); stamp(1)
if OPT['exp'] in (5, 7): A(f's_mov_b32 s{SRD_X+2}, 0\ns_mov_b32 s{SRD_W+2}, 0\ns_mov_b32 s{SRD_B+2}, 0')
def xf(j, t): return 36 * j + 4 * t
def wf(j, m): return 36 * j + 24 + 4 * m
RORD = [('w', 0), ('x', 0), ('w', 1), ('w', 2), ('x', 1), ('x', 2), ('x', 3), ('x', 4), ('x', 5)]
def a_rd(j, k):
    kind, i = RORD[k]
    if kind == 'x':
        if OPT['exp'] != 14 or i % 2 == 0: A(f'ds_read_b128 {ar(xf(j, i), 4)}, v{vRX+j} offset:{i*2048}'); lg.issue(('x', j, i))
    else:
        A(f'ds_read_b64_tr_b16 {ar(wf(j, i), 2)}, v{vRW} offset:{j*12288 + i*1024}'); lg.issue(('w', j, i))
        A(f'ds_read_b64_tr_b16 {ar(wf(j, i)+2, 2)}, v{vRW} offset:{j*12288 + i*1024 + 512}'); lg.issue(('w', j, i))
QD, KD, VD = vACC, vACC + 24, vACC + 48
def a_mm(n):
    j, r = divmod(n, 18); t, m = divmod(r, 3)
    acc = vr(vACC + 24*m + 4*t, 4)
    if m < 2: A(mf16(acc, ar(wf(j, m), 4), ar(xf(j, t), 4), acc))
    else: A(mf16(acc, ar(xf(j, t), 4), ar(wf(j, m), 4), acc))
NH = OPT['anh']
HS = [(i * (NH - 1)) // 9 for i in range(9)]
RS_ = [(i * (36 - NH - 4)) // 9 for i in range(9)]
def a_fill(main, first=False):
    fill = {}
    if first: spread(AX + AW + [ADV + SOFF + [loop_prepare]] + AX + AW, list(range(NH - OPT['fh'], 31)), fill)
    elif not OPT['nodma']: spread((AX + AW) if main else tail_dma(), [2, 7, 13, 19, 24, 30], fill)
    if main and L2T: spread(L2T, [33], fill)
    spread([[f's_mov_b32 s{sDELTA}, {SLOT}'] if first else RDL], [NH - 1], fill)
    if main and OPT['wrap']: spread([WRAPX, WRAPW], [31 if first else 15, 31], fill)
    elif main: spread([[f's_add_u32 s{sOX}, s{sOX}, 128'], [f's_add_u32 s{sOW}, s{sOW}, s{sMW}']], [31 if first else 15, 31], fill)
    spread([ADVL], [31], fill)
    spread([[f'v_add_u32 v{vRX}, s{sDELTA}, v{vRX}'], [f'v_add_u32 v{vRX+1}, s{sDELTA}, v{vRX+1}'], [f'v_add_u32 v{vRW}, s{sDELTA}, v{vRW}']], [NH, 32, 33], fill)
    return fill
def a_head(fill, with_mfma, extra=None):
    itstamp(); jitter()
    lg.drain()
    for m in range(NH):
        if with_mfma: a_mm(36 - NH + m)
        for k in range(9):
            if HS[k] == m: a_rd(0, k)
        if m == 1 and extra: extra()
        lines(fill.get(m, []))
def a_rest(fill, last_it, label):
    for n in range(36 - NH):
        j, r = divmod(n, 18); t, m = divmod(r, 3)
        if n == 35 - NH:
            A(f's_waitcnt vmcnt({6 + len(L2T) if last_it == 6 else 6}) lgkmcnt(0)'); lg.drain()
        want = {('w', j, m), ('x', j, t)}
        if OPT['w2']:
            if r == 0: want |= {('w', j, 1), ('w', j, 2), ('x', j, 1)}
            elif m == 0 and t % 2 == 0: want |= {('x', j, t + 1)}
        c = lg.need(want)
        if c is not None: A(f's_waitcnt lgkmcnt({c})')
        a_mm(n)
        for k in range(9):
            if RS_[k] == n: a_rd(1, k)
        lines(fill.get(n + NH, []))
        if n == 34 - NH: A(f's_add_u32 s{sIT}, s{sIT}, 1\ns_cmp_lt_u32 s{sIT}, {f"s{sNEXT}" if last_it == 6 else last_it}')
    A(f's_cbranch_scc0 {label}\n{LB_}')
am, at = a_fill(True), a_fill(False)
if OPT['s1l'] == 3:
    a0_ = a_fill(True, True)
    a_head(a0_, False)
    q0_ = list(lg.q)
    a_rest(a0_, 6, 'L_aexit')
    A('s_branch L_aback')
    lg.q = q0_
else: a_head(am, False)
A('L_aloop:')
a_rest(am, 6, 'L_aexit')
A('L_aback:')
a_head(am, True)
A(f's_branch L_aloop\nL_aexit:\n{LB_}\ns_cmp_lt_u32 s{sIT}, 6\ns_cbranch_scc1 L_ah')
def a_inter():
    jitter(); get_tag('a')
    tail_setup()
    A(f'buffer_load_dword v{vTG}, v{vPL}, {srd(SRD_AUX)}, 0 offen sc1')
def a_inter2():
    jitter(); check_flag0('a')
    for t in range(6): A(f'buffer_load_dword v{vST+t}, v{vAD+t}, {srd(SRD_AUX)}, 0 offen sc1')
a_head(at, True, a_inter)
A('L_atail:')
a_rest(at, 8, 'L_atexit')
a_head(at, True, a_inter2)
A(f's_branch L_atail\nL_atexit:\n{LB_}')
stamp(); itdump(); stamp(4)
jitter()
vMR = 48
RR = [152, 154, 156, 158, 32, 34]
A(f'v_and_b32 v31, 48, v{vL}\nv_add_u32 v31, s{sP2}, v31')
tr = list(range(36 - NH, 36))
for t in range(6):
    if tr: a_mm(tr.pop(0))
    A(f"""v_and_b32 v{RR[t]}, 0xffff0000, v{vST+t}
v_max_f32 v{RR[t]}, {f2u(1e-3)}, v{RR[t]}""")
    if tr: a_mm(tr.pop(0))
    A(f'v_rcp_f32 v{RR[t]}, v{RR[t]}\nv_lshlrev_b32 v{vMR+2*t}, 16, v{vST+t}')
    if len(tr) > 2*(5 - t): a_mm(tr.pop(0))
    A(f'ds_write2_b32 v14, v{vMR+2*t}, v{RR[t]} offset0:{16*t} offset1:{96+16*t}')
while tr: a_mm(tr.pop(0))
baddr_first(10)
ROW = [70, 16, 92]
def row_read(t):
    b = ROW[t % 3]
    A(f'ds_read_b128 {vr(b, 4)}, v31 offset:{64*t}\nds_read_b128 {vr(b+4, 4)}, v31 offset:{384 + 64*t}')
row_read(0); row_read(1)
stamp(4)
vm = Q(63)
for i in range(6): vm.issue('v9')
E = Inter()
vCQ, vCK, vCV = 60, 64, 68
A(f'v_mov_b32 v{vCV}, v{VD}\nv_mov_b32 v{vCV+1}, v{VD}')
for j in range(4): A(f'v_mov_b32_dpp v{vCK+j}, v{KD+j} row_newbcast:0 row_mask:0xf bank_mask:0xf')
A(f'v_permlane16_swap_b32 v{vCV}, v{vCV+1}')
for j in range(2): A(f'v_mov_b32_dpp v{vCQ+j}, v{QD+j} row_newbcast:0 row_mask:0xf bank_mask:0xf')
A(f'v_mov_b32 v{vCV+1}, v{vCV}')
for j in range(2, 4): A(f'v_mov_b32_dpp v{vCQ+j}, v{QD+j} row_newbcast:0 row_mask:0xf bank_mask:0xf')
A(f'v_permlane32_swap_b32 v{vCV}, v{vCV+1}')
QP, KP, VP = QD, KD, VD + 2
E.push(breg_groups(0), 4)
for t in range(6):
    for k in range(2): E(f'v_pk_fma_f32 {vr(QD+4*t+2*k, 2)}, {vr(vCQ+2*k, 2)}, {vr(vMR+2*t, 2)}, {vr(QD+4*t+2*k, 2)} op_sel_hi:[1,0,1]')
for t in range(6):
    for k in range(2): E(f'v_pk_fma_f32 {vr(KD+4*t+2*k, 2)}, {vr(vCK+2*k, 2)}, {vr(vMR+2*t, 2)}, {vr(KD+4*t+2*k, 2)} op_sel_hi:[1,0,1]')
for t in range(6):
    for k in range(2): E(f'v_cvt_pk_bf16_f32 v{QP+2*t+k}, v{QD+4*t+2*k}, v{QD+4*t+2*k+1}')
E.flush()
row_read(2)
for t in range(6):
    for k in range(2): A(f'v_pk_mul_f32 {vr(KD+4*t+2*k, 2)}, {vr(KD+4*t+2*k, 2)}, {vr(RR[t], 2)} op_sel_hi:[1,0]')
for t in range(6): A(f'v_mul_f32 v{vMR+2*t}, {f2u(0.25*LOG2E)}, v{RR[t]}')
for t in range(6):
    for k in range(2): A(f'v_cvt_pk_bf16_f32 v{KP+2*t+k}, v{KD+4*t+2*k}, v{KD+4*t+2*k+1}')
SB = [116, 60, 144, 92]
def s_mm(t):
    s = SB[t % 4]
    if t: A(mf16k(vr(s, 4), vr(KP+2*(t-1), 2), vr(QP+2*t, 2), vr(vMSK, 4)))
    A(mf16k(vr(s+4, 4), vr(KP+2*t, 2), vr(QP+2*t, 2), vr(vMSK + (4 if t else 8), 4)))
stamp(4)
def v_math(ts):
    for t in ts:
        for k in range(2): E(f'v_pk_fma_f32 {vr(VD+4*t+2*k, 2)}, {vr(ROW[t%3]+2*k, 2)}, {vr(vCV, 2)}, {vr(VD+4*t+2*k, 2)} op_sel_hi:[1,0,1]')
    for t in ts:
        for k in range(2): E(f'v_pk_mul_f32 {vr(VD+4*t+2*k, 2)}, {vr(VD+4*t+2*k, 2)}, {vr(ROW[t%3]+4+2*k, 2)}')
def v_pack(ts):
    for t in ts:
        if t == 0: E(f'v_cvt_pk_bf16_f32 v{VD+2}, v{VD+2}, v{VD+3}\nv_cvt_pk_bf16_f32 v{VD+3}, v{VD}, v{VD+1}\nv_swap_b32 v{VD+2}, v{VD+3}')
        else:
            for k in range(2): E(f'v_cvt_pk_bf16_f32 v{VP+2*t+k}, v{VD+4*t+2*k}, v{VD+4*t+2*k+1}')
def a_bg():
    defer_slow(OPT['abg'])
    E.push(sum((static_groups(r, vm, 'a') for r in range(OPT['abg'])), []), 14 if OPT['abg'] == 2 else 28)
if OPT['avo']:
    A('s_waitcnt lgkmcnt(0)')
    v_math(range(3))
    for t in range(3, 6): row_read(t)
    v_pack(range(3))
    A(f's_waitcnt vmcnt({vm.need({"v9"})}) lgkmcnt(0)\ns_barrier')
    a_bg()
    v_math(range(3, 6))
    s_mm(0); s_mm(1)
    v_pack(range(3, 6))
else:
    A(f's_waitcnt vmcnt({vm.need({"v9"})}) lgkmcnt(0)\ns_barrier')
    s_mm(0); s_mm(1)
    a_bg()
    v_math(range(3))
    for t in range(3, 6): row_read(t)
    v_pack(range(3))
    A('s_waitcnt lgkmcnt(0)')
    v_math(range(3, 6)); v_pack(range(3, 6))
PB = [100, 124]
OB = [152, 16]; LB = [156, 20]
MXS = {0: (32, 33, 34), 2: (2, 3, 24), 4: (32, 33, 34)}
stamp(4)
def pmax(t):
    m0, m1, _ = MXS[t]
    ch = []
    for e, m in ((0, m0), (1, m1)):
        s = SB[(t + e) % 4]
        if t + e == 0: ch.append([f'v_max3_f32 v{m}, v{s+4}, v{s+5}, v{s+6}', f'v_max_f32 v{m}, v{m}, v{s+7}'])
        else: ch.append([f'v_max3_f32 v{m}, v{s}, v{s+1}, v{s+2}', f'v_max3_f32 v{m}, v{m}, v{s+3}, v{s+4}',
                         f'v_max3_f32 v{m}, v{m}, v{s+5}, v{s+6}', f'v_max_f32 v{m}, v{m}, v{s+7}'])
    return mix(ch[1], ch[0]), [f'v_permlane32_swap_b32 v{m0}, v{m1}', f'v_max_f32 v{m0}, v{m0}, v{m1}', f'v_mov_b32 v{m1}, v{m0}',
                               f'v_permlane16_swap_b32 v{m0}, v{m1}', f'v_max_f32 v{m0}, v{m0}, v{m1}', f'v_mov_b32 v{m1}, v{m0}',
                               f'v_permlane32_swap_b32 v{m0}, v{m1}']
def weave(chain, fill):
    fill = list(fill)
    for c in chain:
        E(c)
        for _ in range(2):
            if fill: E(fill.pop(0))
    for f in fill: E(f)
def pexp(t):
    m0, m1, n1 = MXS[t]
    E(f'v_mul_f32 v{n1}, -v{vMR+2*t+2}, v{m1}\nv_mul_f32 v{m0}, -v{vMR+2*t}, v{m0}')
    for e in range(2):
        s = SB[(t + e) % 4]; c = vMR + 2 * (t + e); k0 = 2 if t + e == 0 else 0
        if OPT['asc']:
            for k in range(2*k0, 8): E(f'v_fma_f32 v{s+k}, v{s+k}, v{c}, v{n1 if e else m0}')
        else:
            for k in range(k0, 4): E(f'v_pk_fma_f32 {vr(s+2*k, 2)}, {vr(s+2*k, 2)}, {vr(c, 2)}, {vr(n1 if e else m0, 2)} op_sel_hi:[1,0,0]')
    for e in range(2):
        s = SB[(t + e) % 4]; k0 = 2 if t + e == 0 else 0
        for k in range(2*k0, 8): E(f'v_exp_f32 v{s+k}, v{s+k}')
        for k in range(k0, 4): E(f'v_cvt_pk_bf16_f32 v{PB[e]+k}, v{s+2*k}, v{s+2*k+1}')
        E(mf16(vr(LB[e], 4), 'v[72:75]', vr(PB[e], 4), '0'))
        E(mf16(vr(OB[e], 4), vr(VP + 2*(t + e - 1), 4), vr(PB[e], 4), '0'))
def pfin(t):
    x = 76
    out = [f'v_rcp_f32 v{LB[0]}, v{LB[0]}', f'v_rcp_f32 v{LB[1]}, v{LB[1]}']
    for e in range(2):
        if OPT['asc']: out += [f'v_mul_f32 v{OB[e]+k}, v{LB[e]}, v{OB[e]+k}' for k in range(4)]
        else: out += [f'v_pk_mul_f32 {vr(OB[e]+2*k, 2)}, {vr(OB[e]+2*k, 2)}, {vr(LB[e], 2)} op_sel_hi:[1,0]' for k in range(2)]
    for e in range(2):
        for k in range(2): out.append(f'v_cvt_pk_bf16_f32 v{x+2*e+k}, v{OB[e]+2*k}, v{OB[e]+2*k+1}')
    return out
def pstore(t):
    x = 76
    E(f'v_permlane32_swap_b32 v{x}, v{x+2}\nv_permlane32_swap_b32 v{x+1}, v{x+3}')
    A(f'buffer_store_dwordx4 {vr(x, 4)}, v{OO[t//2]}, {srd(SRD_ACT)}, s{sP5} offen{SFL}'); vm.issue('st')
loc, crs = pmax(0)
for l in loc: E(l)
weave(crs, [f'v_mov_b32 v{72+i}, s{sONES}' for i in range(4)] + [f'v_mov_b32 v{PB[0]}, 0', f'v_mov_b32 v{PB[0]+1}, 0', f'v_mov_b32 v{VD}, 0', f'v_mov_b32 v{VD+1}, 0'])
for t in (0, 2, 4):
    if t < 4: s_mm(t + 2); s_mm(t + 3)
    pexp(t)
    if t < 4:
        loc, crs = pmax(t + 2)
        for l in loc: E(l)
        weave(crs, pfin(t))
    else:
        E.flush()
        for l in pfin(t): E(l)
    pstore(t)
    stamp(4)
assert nstamp[0] == nst_save or OPT['sg'] == 4, (nstamp[0], nst_save)

A.label('L_phase2')
jitter()
stamp()
A(f'v_xor_b32 v{vB+1}, 64, v{vB}')
for g in breg_groups(1): lines(g)
vP = 128
vRING = 80; NRING = 12
vLB = 48
vXR = 36
vPO, vOO, vEX = 12, 13, 14
A(f'''v_and_b32 v1, 31, v{vL}
v_lshrrev_b32 v2, 5, v{vL}
s_lshl_b32 s{sT2}, s{sR}, 6
s_add_u32 s{sT2}, s{sT2}, s{sMH}
s_lshl_b32 s{sT2}, s{sT2}, 10
s_lshl_b32 s{sT3}, s{sCB}, 7
s_add_u32 s{sT2}, s{sT2}, s{sT3}
s_lshl_b32 s{sT3}, s{sKQ}, 14
s_add_u32 s{sT2}, s{sT2}, s{sT3}
v_lshrrev_b32 v18, 3, v{vL}
v_and_b32 v19, 7, v{vL}
v_lshlrev_b32 v{vOO}, 11, v18
v_lshl_add_u32 v{vOO}, v19, 4, v{vOO}
v_add_u32 v{vOO}, s{sT2}, v{vOO}
s_mul_i32 s{sT3}, s{sMH}, 6144
s_mul_i32 s{sT4}, s{sKQ}, {8*144}
s_add_u32 s{sT4}, s{sT4}, s{sT3}
s_add_u32 s{sT4}, s{sT4}, {SLOT}
v_mul_u32_u24 v18, 144, v18
v_and_b32 v20, 3, v19
v_lshl_add_u32 v18, v20, 5, v18
v_lshrrev_b32 v19, 2, v19
v_mul_u32_u24 v19, {SLOT + 16}, v19
v_add3_u32 v18, v18, v19, s{sT4}
s_add_u32 s{sT3}, s{sT3}, s{sQ3}
s_add_u32 s{sT3}, s{sT3}, {SLOT}
v_mul_u32_u24 v{vEX}, 144, v1
v_lshl_add_u32 v{vEX}, v2, 4, v{vEX}
v_add_u32 v{vEX}, s{sT3}, v{vEX}
s_lshl_b32 s{sT2}, s{sR}, 1
s_add_u32 s{sT2}, s{sT2}, s{sMH}
s_mul_i32 s{sOX}, s{sT2}, {TG_STRIDE}
s_sub_u32 s{sT1}, s{sKQ}, 1
s_mul_i32 s{sT3}, s{sT1}, {29*1024}
s_cmp_eq_u32 s{sKQ}, 0
s_cselect_b32 s{sT3}, {86*1024}, s{sT3}
s_add_u32 s{sOX}, s{sOX}, s{sT3}
s_add_u32 s{sOW}, s{sOX}, {28*1024}
s_cmp_eq_u32 s{sKQ}, 0
s_cselect_b32 s{sNW}, s{sOW}, {OOB}
s_cmp_eq_u32 s{sKQ}, 3
s_cselect_b32 s{sOW}, {OOB}, s{sOW}
s_lshr_b32 s{sT2}, s{sR}, 1
s_lshl_b32 s{sT2}, s{sT2}, 7
''')
if OPT['np'] == 2: A(f'v_min_u32 v3, 9, v{vL}')
else: A(f's_mul_i32 s{sT3}, s{sT1}, 12\ns_add_u32 s{sT2}, s{sT2}, s{sT3}\nv_and_b32 v3, 3, v{vL}')
A(f'''v_lshl_add_u32 v{vPO}, v3, 2, s{sT2}
s_lshl_b32 s{sT3}, s{sR}, 6
s_mul_i32 s{sT4}, s{sT3}, 745
s_lshr_b32 s{sT4}, s{sT4}, 17
s_add_u32 s{sT3}, s{sT3}, 63
s_mul_i32 s{sT3}, s{sT3}, 745
s_lshr_b32 s{sT3}, s{sT3}, 17
s_sub_u32 s{sT3}, s{sT3}, s{sT4}
s_lshl_b32 s{sT3}, s{sT3}, 7
s_lshl_b32 s{sT4}, s{sT4}, 7
s_add_u32 s{sT4}, s{sT4}, {FLAG_A}
v_mul_u32_u24 v2, s{sT3}, v2
v_and_b32 v1, 7, v{vL}
v_lshl_add_u32 v1, v1, 2, s{sT4}
v_add_u32 v1, v1, v2
s_cmp_eq_u32 s{sKQ}, 0
s_cselect_b64 vcc, -1, 0
v_cndmask_b32 v{vPO}, v{vPO}, v1, vcc
s_lshl_b32 s{sT0}, s{sW}, 2
s_add_u32 s{sT0}, s{sT0}, {LDS_BYTES - 48}
v_mov_b32 v15, s{sT0}
v_xor_b32 v16, 4, v15
v_mov_b32 v2, s{sTAG}''')
if OPT['r2']:
    A('s_waitcnt lgkmcnt(0)\ns_barrier')
    for g in static_groups(2, Q(63), 'p'): lines(g)
    A(f's_waitcnt vmcnt({4 if OPT["r2"] == 1 else 0})')
else: A('s_waitcnt vmcnt(0) lgkmcnt(0)')
A(f'''s_barrier
s_cmp_lg_u32 s{sW}, 0
s_cbranch_scc1 L_noflag
s_mov_b64 exec, 1
buffer_store_dword v2, off, {srd(SRD_AUX)}, s{sFLAG} sc1
s_mov_b64 exec, -1
L_noflag:
v_add_u32 v{vB+4}, s{sQ1}, v10
v_xor_b32 v{vB+5}, 64, v{vB+4}
v_add_u32 v{vB}, {SLOT}, v{vB}
v_add_u32 v{vB+1}, {SLOT}, v{vB+1}''')
jitter()
stamp(); stamp(3)
if OPT['exp'] == 8: A(f's_mov_b32 s{SRD_B+2}, 0')
if not OPT['r2']:
    if OPT['c3']: A(f's_mov_b32 s{SRD_B+2}, s{sBW}\ns_cmp_eq_u32 s{sST}, 0\ns_cmov_b32 s{sSO}, s{sMW}')
    for r in range(0 if OPT['c3'] else min(OPT['fbg'], OPT['abg']), 2):
        A(f's_cmp_gt_u32 s{sST}, {r}\ns_cbranch_scc1 L_had{r}')
        for g in static_groups(r, Q(63), 'p'): lines(g)
        A(f'L_had{r}:')
    for g in static_groups(2, Q(63), 'p'): lines(g)
stamp(3)
A(f"""s_min_u32 s{sT1}, s{sKQ}, {1 if OPT['np'] == 2 else 3}
s_lshl_b32 s{sT1}, s{sT1}, 2
s_add_u32 s{sT1}, s{sT1}, {LDS_BYTES - 16}
v_mov_b32 v1, s{sT1}
s_mov_b32 s{sT0}, 0
s_and_b32 s{sT2}, s{sW}, {5 if OPT['np'] == 2 else 1}
s_cmp_lg_u32 s{sT2}, 0
s_cbranch_scc0 L_poller""")
if not OPT['lateb']: A('s_waitcnt vmcnt(0)\ns_barrier')
A('s_branch L_lpoll\nL_poller:')
if OPT['ep']: A(f'buffer_load_dword v3, v{vPO}, {srd(SRD_AUX)}, 0 offen sc1\ns_waitcnt vmcnt(1)\ns_barrier\ns_branch L_pchk')
elif not OPT['lateb']: A('s_waitcnt vmcnt(0)\ns_barrier')
A(f"""L_poll:
buffer_load_dword v3, v{vPO}, {srd(SRD_AUX)}, 0 offen sc1
L_pchk:
s_add_u32 s{sT0}, s{sT0}, 1
s_waitcnt vmcnt(0)
v_cmp_ne_u32 vcc, s{sTAG}, v3
s_cbranch_vccz L_ptell
s_sleep {OPT['sleep']}
s_cmp_lt_u32 s{sT0}, {SPIN}
s_cbranch_scc1 L_poll
L_ptell:
ds_write_b32 v1, v2
s_branch L_pollok
L_lpoll:
ds_read_b32 v3, v1
s_add_u32 s{sT0}, s{sT0}, 1
s_waitcnt lgkmcnt(0)
v_cmp_ne_u32 vcc, s{sTAG}, v3
s_cbranch_vccz L_pollok
s_sleep 1
s_cmp_lt_u32 s{sT0}, {SPIN*8}
s_cbranch_scc1 L_lpoll
L_pollok:""")
stamp(); stamp(3)
vm = Q(63); lg = Q(15)
def a_load(st):
    so = sOX if st < 28 else (sOW if st == 28 else sNW)
    if st and st % 4 == 0 and st < 28: A(f's_add_u32 s{sOX}, s{sOX}, 4096')
    off = f' offset:{(st % 4)*1024}' if st % 4 else ''
    A(f'buffer_load_dwordx4 {vr(vRING + 4*(st % NRING), 4)}, v{vL16}, {srd(SRD_ACT)}, s{so} offen{off} sc1')
    vm.issue(st)
def b_read(st, ct):
    t = st - NREG
    r = [i for i, (a, b) in enumerate(REG_T) if a <= t < b][0]
    off = (t - REG_T[r][0]) * 2048
    for hf in range(2):
        A(f'ds_read_b64_tr_b16 {vr(vLB + (st % 4)*8 + ct*4 + hf*2, 2)}, v{vB + 2*r + ct} offset:{off + hf*1024}')
        lg.issue(st)
NB = OPT['burst']
for st in range(NB): a_load(st)
for st in range(32):
    if st == OPT['lateb'] and st: A('s_barrier')
    if st == 28: A(f's_cmp_eq_u32 s{sKQ}, 3\ns_cbranch_scc1 L_p2done')
    if st == 29: A(f's_cmp_lg_u32 s{sKQ}, 0\ns_cbranch_scc1 L_p2done')
    w = []
    c = vm.need({st})
    if c is not None: w.append(f'vmcnt({c})')
    c = lg.need({st})
    if c is not None: w.append(f'lgkmcnt({c})')
    if w: A('s_waitcnt ' + ' '.join(w))
    if st in (0, 12): stamp(3)
    if st in (1, 11, 16, 23): jitter()
    if st == 24 and OPT['ex']: A('ds_write_b32 v15, v2'); lg.issue('done17')
    if st == 26 and OPT['ex']: A('ds_read_b32 v3, v16'); lg.issue(27)
    if st == 27 and OPT['ex']: A(f'v_cmp_ne_u32 vcc, s{sTAG}, v3\ns_mov_b32 s{sT1}, {f2u(-LOG2E)}\ns_mov_b32 s{sT1+1}, {f2u(-LOG2E)}')
    for ct in range(2):
        b = ar(st*8 + ct*4, 4) if st < NREG else vr(vLB + (st % 4)*8 + ct*4, 4)
        acc = vr(vP + 16*ct, 16)
        if OPT['exp'] in (10, 12):
            for hf in range(2):
                d = vr(vP + 16*ct + 8*(st & 1) + 4*hf, 4)
                A(mf16(d, b, vr(vRING + 4*(st % NRING), 4), d if st > 1 else '0'))
        else: A(mf32(acc, b, vr(vRING + 4*(st % NRING), 4), acc if st else '0'))
        if NREG <= st + 2 < 32: b_read(st + 2, ct)
        if ct == 0 and st + NB < 32: a_load(st + NB)
        if ct == 1 and st + NB == 31:
            A(f'buffer_load_dwordx4 v[44:47], v{vOO}, {srd(SRD_XR)}, 0 offen'); vm.issue('x')
A('L_p2done:')
jitter()
stamp(); stamp(3)
vF, vS, vR1 = 48, 56, 64
if OPT['ex']:
    A(f"""s_cbranch_vccz L_pwok
s_mov_b32 s{sT0}, 0
L_pw:
ds_read_b32 v3, v16
s_add_u32 s{sT0}, s{sT0}, 1
s_waitcnt lgkmcnt(0)
v_cmp_ne_u32 vcc, s{sTAG}, v3
s_cbranch_vccz L_pwok
s_cmp_lt_u32 s{sT0}, {SPIN*8}
s_cbranch_scc1 L_pw
L_pwok:""")
else: A('s_waitcnt lgkmcnt(0)\ns_barrier')
for ct in range(2):
    for a_ in range(4): A(f'ds_write_b128 v{vEX}, {vr(vP + 16*ct + 4*a_, 4)} offset:{ct*(SLOT + 16) + a_*32}')
A('s_waitcnt vmcnt(0)')
for i in range(4):
    A(f'v_lshlrev_b32 v{vXR+2*i}, 16, v{44+i}\nv_and_b32 v{vXR+2*i+1}, 0xffff0000, v{44+i}')
A('s_waitcnt lgkmcnt(0)\ns_barrier')
for src, d in ((1, vF), (2, vR1), (3, vR1 + 8), (0, vS)):
    for i in range(2): A(f'ds_read_b128 {vr(d + 4*i, 4)}, v18 offset:{src*12288 + i*16}')
A('s_waitcnt lgkmcnt(4)')
for i in range(4): A(f'v_pk_add_f32 {vr(vF+2*i, 2)}, {vr(vF+2*i, 2)}, {vr(vR1+2*i, 2)}')
A('s_waitcnt lgkmcnt(2)')
for i in range(4): A(f'v_pk_add_f32 {vr(vF+2*i, 2)}, {vr(vF+2*i, 2)}, {vr(vR1+8+2*i, 2)}')
t = 88
assert sT1 % 2 == 0
for i in range(4): A(f'v_pk_mul_f32 {vr(t+2*i, 2)}, {vr(vF+2*i, 2)}, s[{sT1}:{sT1+1}]')
for i in range(8): A(f'v_exp_f32 v{t+i}, v{t+i}')
A('s_waitcnt lgkmcnt(0)')
for i in range(4): A(f'v_pk_mul_f32 {vr(vS+2*i, 2)}, {vr(vS+2*i, 2)}, {vr(vF+2*i, 2)}')
for i in range(4): A(f'v_pk_add_f32 {vr(t+2*i, 2)}, {vr(t+2*i, 2)}, 1.0 op_sel_hi:[1,0]')
for i in range(8): A(f'v_rcp_f32 v{t+i}, v{t+i}')
for i in range(4): A(f'v_pk_fma_f32 {vr(t+2*i, 2)}, {vr(t+2*i, 2)}, {vr(vS+2*i, 2)}, {vr(vXR+2*i, 2)}')
for i in range(4): A(f'v_cvt_pk_bf16_f32 v{44+i}, v{t+2*i}, v{t+2*i+1}')
A(f'''buffer_store_dwordx4 v[44:47], v{vOO}, {srd(SRD_OUT)}, 0 offen{['', ' sc1', ' nt', ' sc0 sc1'][OPT['ost']]}''')
if OPT['stamps'] and OPT['sg'] != 2:
    stamp(); stamp(3)
    A('s_waitcnt vmcnt(0)')
    stamp()
    A(f'''s_lshl_b32 s{sT0}, s2, 9
s_lshl_b32 s{sT1}, s{sW}, 6
s_add_u32 s{sT0}, s{sT0}, s{sT1}
s_add_u32 s{sT0}, s{sT0}, {STAMP_OFF}
v_mov_b32 v1, s{sT0}''')
    for i in range(10): A(f'v_mov_b32 v{48+i}, s{sSTAMP+i}')
    A(f'''global_store_dwordx4 v1, v[48:51], s[{sWS}:{sWS+1}]
global_store_dwordx4 v1, v[52:55], s[{sWS}:{sWS+1}] offset:16
global_store_dwordx2 v1, v[56:57], s[{sWS}:{sWS+1}] offset:32''')
A.label('L_end')
A('s_endpgm')
handlers('a')

body = A.finish(verbose=False)
hdr = open('cdna_kernels/' + NAME + '.s.ref').read().split('; Override launch')[0]
out = hdr + f'''; @launch grid=(256,1,1) block=(512,1,1) lds={LDS_BYTES}
.amdgcn_target "amdgcn-amd-amdhsa--gfx950"
.text
.globl {NAME}_kernel
.p2align 8
.type {NAME}_kernel,@function
''' + body + f'''L_codeend:
.fill (33024 - (L_codeend - {NAME}_kernel)) / 4, 4, 0xbf810000
.section .rodata,"a"
.p2align 6
.amdhsa_kernel {NAME}_kernel
  .amdhsa_next_free_vgpr 256
  .amdhsa_next_free_sgpr 102
  .amdhsa_accum_offset 160
  .amdhsa_group_segment_fixed_size 0
  .amdhsa_kernarg_size 80
  .amdhsa_user_sgpr_count 2
  .amdhsa_user_sgpr_kernarg_segment_ptr 1
  .amdhsa_system_sgpr_workgroup_id_x 1
.end_amdhsa_kernel
'''
sys.stdout.write(out)
sys.stderr.write(f'nops inserted: {A.nops}\n')
```
